```python
import torch

def _softmax(x, axis=-1):
    return torch.softmax(x, dim=axis)
def _gelu(x):
    return torch.nn.functional.gelu(x, approximate="tanh")
def _silu(x):
    return torch.nn.functional.silu(x)
def _sigmoid(x):
    return torch.sigmoid(x)
def _layernorm(x, axis=-1, eps=1e-5):
    m = x.mean(dim=axis, keepdim=True)
    v = x.var(dim=axis, keepdim=True, unbiased=False)
    return (x - m) / torch.sqrt(v + eps)
def _scatter_add(tgt, idx, src, axis=0):
    return tgt.clone().index_add_(axis, idx, src)
def _segment_sum(src, seg, n):
    out = torch.zeros((n,) + src.shape[1:], dtype=src.dtype)
    return out.index_add_(0, seg, src)
def _pad(x, pw):
    flat = tuple(v for pair in reversed(pw) for v in pair)
    return torch.nn.functional.pad(x, flat)

kernel_name = 'standalone__window_attn_swin_v2__vision'

def setup_inputs():

    _w = (lambda a: (lambda t: t.to(torch.bfloat16) if t.is_floating_point() else t)(torch.as_tensor(a)))
    win = 7
    H = W = (384 // win) * win
    C = 96
    nh = 4
    shift = win // 2
    coords = torch.stack(torch.meshgrid(torch.arange(win), torch.arange(win), indexing="ij"), -1).reshape(-1, 2)
    rel = coords[:, None, :] - coords[None, :, :]
    rel_idx = ((rel[..., 0] + win - 1) * (2 * win - 1) + (rel[..., 1] + win - 1)).to(torch.int64)
    tab = torch.stack(torch.meshgrid(torch.arange(1 - win, win), torch.arange(1 - win, win), indexing="ij"), -1).reshape(-1, 2).to(float)
    tab = (lambda _x: torch.sign(torch.as_tensor(_x)))(tab) * (lambda _x: torch.log1p(torch.as_tensor(_x)))(torch.abs(tab))
    img = torch.zeros((H, W), dtype=torch.int64)
    cnt = 0
    for hs in (slice(0, H - win), slice(H - win, H - shift), slice(H - shift, H)):
        for ws in (slice(0, W - win), slice(W - win, W - shift), slice(W - shift, W)):
            img[hs, ws] = cnt; cnt += 1
    mw = img.reshape(H // win, win, W // win, win).permute(0, 2, 1, 3).reshape(-1, win * win)
    mask = (mw[:, :, None] != mw[:, None, :]).to(float) * (-100.0)
    return {
        "x": _w((lambda *s: torch.randn(*s, dtype=torch.bfloat16) * 0.05)(1, H, W, C)),
        "wqkv": _w((lambda *s: torch.randn(*s, dtype=torch.bfloat16) * 0.8)(C, 3 * C)),
        "wo": _w((lambda *s: torch.randn(*s, dtype=torch.bfloat16) * 0.05)(C, C)),
        "logit_scale": _w((lambda *s: torch.randn(*s, dtype=torch.bfloat16) * 0.8)(nh)),
        "cpb_w1": _w((lambda *s: torch.randn(*s, dtype=torch.bfloat16) * 0.8)(2, 4 * nh)),
        "cpb_w2": _w((lambda *s: torch.randn(*s, dtype=torch.bfloat16) * 0.8)(4 * nh, nh)),
        "rel_coords": _w(tab),
        "rel_idx": _w(rel_idx),
        "attn_mask": _w(mask),
    }

def reference(x, wqkv, wo, logit_scale, cpb_w1, cpb_w2, rel_coords, rel_idx, attn_mask):
    B, H, W, C = x.shape
    win = 7
    nh = 4
    hd = C // nh
    shift = win // 2
    ww = win * win
    nH, nW = H // win, W // win
    xs = torch.roll(x, (-shift, -shift), (1, 2))
    xw = (lambda x, *d: x.permute(*d))(xs.reshape(B, nH, win, nW, win, C), 0, 1, 3, 2, 4, 5).reshape(B * nH * nW, ww, C)
    qkv = (lambda x, *d: x.permute(*d))((xw @ wqkv).reshape(B * nH * nW, ww, 3, nh, hd), 2, 0, 3, 1, 4)
    q, k, v = qkv[0], qkv[1], qkv[2]
    qn = q * (torch.einsum("bhqd,bhqd->bhq", q, q)[..., None] + 1e-12) ** -0.5
    kn = k * (torch.einsum("bhkd,bhkd->bhk", k, k)[..., None] + 1e-12) ** -0.5
    logits = torch.einsum("bhqd,bhkd->bhqk", qn, kn)
    tau = torch.exp(torch.clip(logit_scale, -100.0, 4.6052))
    logits = logits * tau[None, :, None, None]
    hcpb = rel_coords @ cpb_w1
    hcpb = torch.where(hcpb > 0, hcpb, hcpb * 0)
    bias_tab = 16.0 * _sigmoid(hcpb @ cpb_w2)
    bias = (lambda x, *d: x.permute(*d))(bias_tab[rel_idx], 2, 0, 1)
    logits = logits.reshape(B, nH * nW, nh, ww, ww) + bias[None, None, :, :, :] + attn_mask[None, :, None, :, :]
    p = _softmax(logits.reshape(B * nH * nW, nh, ww, ww), axis=-1)
    o = (lambda x, *d: x.permute(*d))(torch.einsum("bhqk,bhkd->bhqd", p, v), 0, 2, 1, 3).reshape(B * nH * nW, ww, C) @ wo
    o = (lambda x, *d: x.permute(*d))(o.reshape(B, nH, nW, win, win, C), 0, 1, 3, 2, 4, 5).reshape(B, H, W, C)
    o = torch.roll(o, (shift, shift), (1, 2))
    return _layernorm(o, axis=-1)
```

```python
VCC, EXEC, M0, SCC = 2000, 2002, 2003, 2004
SB = 1000


def v(i, n=1):
    return f"v{i}" if n == 1 else f"v[{i}:{i + n - 1}]"


def s(i, n=1):
    return f"s{i}" if n == 1 else f"s[{i}:{i + n - 1}]"


def vr(i, n=1):
    return list(range(i, i + n))


def sr(i, n=1):
    return list(range(SB + i, SB + i + n))


VALU_KINDS = ("valu", "trans", "perm", "dpp", "rdlane")


class I:
    __slots__ = ("text", "kind", "rd", "wr", "c", "sub", "cond", "wide", "states", "prio", "tag")

    def __init__(self, text, kind, rd=(), wr=(), c=None, sub=None, wide=False, states=1, tag=None):
        self.text = text
        self.kind = kind
        self.rd = frozenset(rd)
        self.wr = frozenset(wr)
        self.c = c
        self.sub = sub
        self.cond = False
        self.wide = wide
        self.states = states
        self.prio = 0
        self.tag = tag

    def __repr__(self):
        return self.text


class Prog:
    def __init__(self):
        self.ins = []
        self._cond = False

    def add(self, i):
        i.cond = self._cond
        self.ins.append(i)
        return i

    def raw(self, text, kind="ctrl", rd=(), wr=(), **kw):
        return self.add(I(text, kind, rd, wr, **kw))

    def label(self, name):
        return self.add(I(name + ":", "label", states=0))

    def comment(self, t):
        return self.add(I("; " + t, "label", states=0))

    def salu(self, text, rd=(), wr=()):
        return self.add(I(text, "salu", rd, wr))

    def valu(self, text, rd=(), wr=(), kind="valu"):
        return self.add(I(text, kind, rd, wr))

    @staticmethod
    def _op(x):
        if isinstance(x, int):
            return v(x), [x]
        if isinstance(x, str) and x.startswith("s") and x[1:].isdigit():
            return x, [SB + int(x[1:])]
        return str(x), []

    def op(self, name, dst, *srcs, kind="valu", rmw=False, extra="", xrd=(), xwr=()):
        ts, rd = [], []
        for x in srcs:
            t, r = self._op(x)
            ts.append(t)
            rd += r
        if rmw:
            rd.append(dst)
        return self.add(I(f"{name} {v(dst)}, " + ", ".join(ts) + extra, kind, rd + list(xrd), [dst] + list(xwr)))

    def mfma(self, d, a, b, c=None, k=16):
        n = 4 if k == 16 else 2
        name = "v_mfma_f32_32x32x16_bf16" if k == 16 else "v_mfma_f32_32x32x8_bf16"
        ct = "0" if c is None else v(c, 16)
        rd = vr(a, n) + vr(b, n) + ([] if c is None else vr(c, 16))
        return self.add(I(f"{name} {v(d, 16)}, {v(a, n)}, {v(b, n)}, {ct}", "mfma", rd, vr(d, 16),
                          c=None if c is None else (c, 16)))

    def dsr(self, name, d, n, addr, off=0):
        return self.add(I(f"{name} {v(d, n)}, {v(addr)} offset:{off}", "dsr", [addr], vr(d, n)))

    def dsw(self, name, addr, src, n, off=0):
        return self.add(I(f"{name} {v(addr)}, {v(src, n)} offset:{off}", "dsw", [addr] + vr(src, n), []))

    def vld(self, name, d, n, addr, srd, off=0, extra=""):
        return self.add(I(f"{name} {v(d, n)}, {v(addr)}, {s(srd, 4)}, 0 offen offset:{off}{extra}", "vld",
                          [addr] + sr(srd, 4), vr(d, n)))

    def vst(self, name, src, n, addr, srd, off=0, extra=""):
        return self.add(I(f"{name} {v(src, n)}, {v(addr)}, {s(srd, 4)}, 0 offen offset:{off}{extra}", "vst",
                          [addr] + vr(src, n) + sr(srd, 4), [], wide=n > 2))

    def dma(self, addr, srd):
        return self.add(I(f"buffer_load_dwordx4 {v(addr)}, {s(srd, 4)}, 0 offen lds", "dma",
                          [addr, M0] + sr(srd, 4), []))

    def smem(self, name, d, n, base, off):
        return self.add(I(f"{name} {s(d, n)}, {s(base, 2)}, {off}", "smem", sr(base, 2), sr(d, n)))

    def swap32(self, a, b):
        return self.add(I(f"v_permlane32_swap_b32 {v(a)}, {v(b)}", "perm", [a, b], [a, b]))

    def group(self, fn):
        save = self.ins
        self.ins = []
        fn()
        sub = self.ins
        self.ins = save
        rd, wr = set(), set()
        for i in sub:
            rd |= (i.rd - wr)
            wr |= i.wr
        rd.discard(EXEC)
        wr.discard(EXEC)
        return self.add(I("<group>", "group", rd, wr, sub=sub))

    def cond_begin(self):
        self.ins.append(I("", "condbegin", states=0))
        self._cond = True

    def cond_end(self):
        self._cond = False
        self.ins.append(I("", "condend", states=0))

    def wait(self, vm=None, lgkm=None):
        return self.add(I("<wait>", "wait", tag=(vm, lgkm)))

    def wait_tag(self, tag):
        return self.add(I("<waittag>", "waittag", tag=tag))


def flatten(ins):
    out = []
    for i in ins:
        if i.kind == "group":
            for x in i.sub:
                x.cond = i.cond
                out.append(x)
        else:
            out.append(i)
    return out


class WaitState:
    def __init__(self):
        self.vm = []
        self.lg = []

    def copy(self):
        w = WaitState()
        w.vm = list(self.vm)
        w.lg = list(self.lg)
        return w


def _younger(lst, idx):
    return sum(1 for x in lst[idx + 1:] if not x.cond)


def _keep_youngest(lst, n):
    keep, cnt = [], 0
    for x in reversed(lst):
        if cnt >= n:
            break
        keep.append(x)
        if not x.cond:
            cnt += 1
    return list(reversed(keep))


def insert_waits(ins, st):
    out = []
    snap = None
    for i in ins:
        if i.kind == "condbegin":
            snap = st.copy()
            continue
        if i.kind == "condend":
            st.vm = snap.vm + [x for x in st.vm if x not in snap.vm]
            st.lg = snap.lg + [x for x in st.lg if x not in snap.lg]
            snap = None
            continue
        needvm, needlg = None, None
        if i.kind == "wait":
            needvm, needlg = i.tag
        elif i.kind == "waittag":
            last = -1
            for k, x in enumerate(st.vm):
                if x.tag == i.tag:
                    last = k
            if last >= 0:
                needvm = _younger(st.vm, last)
        else:
            touched = i.rd | i.wr
            last = -1
            for k, x in enumerate(st.vm):
                if x.wr & touched:
                    last = k
            if last >= 0:
                needvm = _younger(st.vm, last)
            last = -1
            for k, x in enumerate(st.lg):
                if x.wr & touched:
                    last = k
            if last >= 0:
                if any(x.kind == "smem" for x in st.lg):
                    needlg = 0
                else:
                    needlg = _younger(st.lg, last)
        parts = []
        if needvm is not None:
            needvm = min(needvm, 63)
            if len(st.vm) > needvm:
                parts.append(f"vmcnt({needvm})")
                st.vm = _keep_youngest(st.vm, needvm)
        if needlg is not None:
            needlg = min(needlg, 15)
            if len(st.lg) > needlg:
                parts.append(f"lgkmcnt({needlg})")
                st.lg = _keep_youngest(st.lg, needlg)
        if parts:
            w = I("s_waitcnt " + " ".join(parts), "salu")
            w.cond = i.cond
            out.append(w)
        if i.kind in ("wait", "waittag"):
            continue
        out.append(i)
        if i.kind in ("vld", "vst", "dma"):
            st.vm.append(i)
        elif i.kind in ("dsr", "dsw", "smem"):
            st.lg.append(i)
    return out


def insert_nops(ins, hist=None):
    out = list(hist[-200:]) if hist else []
    base = len(out)
    for i in ins:
        if i.kind == "label":
            out.append(i)
            continue
        need = 0
        dist = 0
        isvalu = i.kind in VALU_KINDS
        for p in reversed(out):
            if dist >= 13:
                break
            req = 0
            if p.kind in VALU_KINDS:
                vw = {r for r in p.wr if r < SB}
                sw = {r for r in p.wr if r >= SB}
                if vw & i.rd:
                    if i.kind == "mfma":
                        req = max(req, 2)
                    if i.kind in ("perm", "dpp"):
                        req = max(req, 2)
                    if i.kind == "rdlane":
                        req = max(req, 1)
                    if p.kind == "trans":
                        req = max(req, 1)
                if sw & i.rd:
                    if isvalu:
                        req = max(req, 4 if i.kind == "rdlane" else 2)
                    elif i.kind in ("vld", "vst", "dma"):
                        req = max(req, 5)
                    else:
                        req = max(req, 2)
            elif p.kind == "mfma":
                d = p.wr
                if i.kind == "mfma":
                    ab = set(i.rd)
                    cset = set()
                    if i.c is not None:
                        cset = set(vr(*i.c))
                    abset = _ab_regs(i)
                    if d & abset:
                        req = max(req, 12)
                    if d & cset:
                        if not (cset == set(d)):
                            req = max(req, 10)
                    elif d & i.wr:
                        req = max(req, 10)
                else:
                    if d & (i.rd | i.wr):
                        req = max(req, 12)
                if p.c is not None and isvalu and (set(vr(*p.c)) & i.wr):
                    req = max(req, 7)
            elif p.kind == "salu":
                if M0 in p.wr and i.kind == "dma":
                    req = max(req, 1)
            elif p.kind == "vst" and p.wide:
                if {r for r in p.rd if r < SB} & i.wr:
                    req = max(req, 2)
            if req > dist:
                need = max(need, req - dist)
            dist += 0 if (p.cond and not i.cond) else p.states
        while need > 0:
            n = min(need, 16)
            x = I(f"s_nop {n - 1}", "nop", states=n)
            x.cond = i.cond
            out.append(x)
            need -= n
        out.append(i)
    return out[base:]


def _ab_regs(i):
    ops = i.text.split(None, 1)[1].split(", ")
    res = set()
    for o in ops[1:3]:
        a, b = o[2:-1].split(":")
        res |= set(range(int(a), int(b) + 1))
    return res


def render(ins):
    lines = []
    for i in ins:
        if i.kind == "label":
            lines.append(i.text if i.text.endswith(":") else "    " + i.text)
        else:
            lines.append("    " + i.text)
    return "\n".join(lines)
```

```python
import sys, struct, math
sys.path.insert(0, "gen")
from asmlib import *

def f32(x):
    return "0x%08x" % struct.unpack("<I", struct.pack("<f", x))[0]

LOG2E = 1.4426950408889634
NWG = 243
WPW = 12
X_BYTES = 378 * 378 * 96 * 2
MASK_BYTES = 2916 * 49 * 49 * 2

L_WQ = 0
L_WO = 55296
L_BIAS = 73728
L_TAB = L_BIAS + 57344
L_ONES = L_TAB + 3072
L_END = L_ONES + 64
LDS_BYTES = L_END

S_W = 3
SRD_X, SRD_OUT, SRD_WQ, SRD_WO, SRD_MASK, SRD_RIDX, SRD_RC = 4, 8, 12, 16, 20, 24, 28
S_PTR = 32
S_W1 = 48
S_W2 = 64
S_LS = 96
S_T0, S_T1, S_T2, S_T3 = 98, 99, 100, 101
S_TAU = 32
S_EPSQ, S_EPSLN = 36, 37
S_VMASK = 38
S_HIMASK = 40
S_UNSAFE = 42
S_WIN = 43
S_MBASE = 44
S_WI, S_WJ = 45, 46

V_OFFA, V_OFFB, V_WQ, V_BIAS = 0, 1, 2, 3
V_PZ = 4
V_SC = 6
XA, XB = 12, 36
OQ0, T0R, OQ1, T1R = 60, 84, 88, 112
K1R, UR, K0R, VA, WB = 116, 128, 132, 144, 158
V_TAUV, V_SP = 166, 167
NVGPR = 168

TAU_THR = 24.0
NEG_BIG = -30000.0


class Opt:
    mask_check = True
    debug = None


def build_srd(p, srd, ptr, nbytes):
    p.salu(f"s_mov_b32 {s(srd)}, {s(ptr)}", sr(ptr), sr(srd))
    p.salu(f"s_and_b32 {s(srd + 1)}, {s(ptr + 1)}, 0xffff", sr(ptr + 1), sr(srd + 1) + [SCC])
    p.salu(f"s_mov_b32 {s(srd + 2)}, {nbytes}", [], sr(srd + 2))
    p.salu(f"s_mov_b32 {s(srd + 3)}, 0x00020000", [], sr(srd + 3))


MASK_REGS = [VA, VA + 4, VA + 8, UR, K1R + 4]


def prologue(p, opt):
    L = 60
    t = list(range(61, 116))
    p.salu(f"s_cmp_ge_u32 s2, {NWG}", sr(2), [SCC])
    p.raw("s_cbranch_scc1 L_end", rd=[SCC])
    p.smem("s_load_dwordx16", S_PTR, 16, 0, 0)
    p.smem("s_load_dwordx4", 48, 4, 0, 64)
    p.op("v_lshrrev_b32", t[0], "6", 0)
    p.op("v_and_b32", L, "63", 0)
    p.add(I(f"v_readfirstlane_b32 {s(S_W)}, {v(t[0])}", "rdlane", [t[0]], sr(S_W)))
    sw, swi, swj = 52, 53, 54
    p.salu(f"s_mul_i32 {s(sw)}, s2, {WPW}", sr(2), sr(sw))
    p.salu(f"s_add_u32 {s(sw)}, {s(sw)}, {s(S_W)}", sr(sw) + sr(S_W), sr(sw) + [SCC])
    p.salu(f"s_mul_i32 {s(swi)}, {s(sw)}, 1214", sr(sw), sr(swi))
    p.salu(f"s_lshr_b32 {s(swi)}, {s(swi)}, 16", sr(swi), sr(swi) + [SCC])
    p.salu(f"s_mul_i32 {s(swj)}, {s(swi)}, 54", sr(swi), sr(swj))
    p.salu(f"s_sub_u32 {s(swj)}, {s(sw)}, {s(swj)}", sr(sw) + sr(swj), sr(swj) + [SCC])
    p.salu(f"s_mul_i32 {s(swi)}, {s(swi)}, 7", sr(swi), sr(swi))
    p.salu(f"s_add_u32 {s(swi)}, {s(swi)}, 3", sr(swi), sr(swi) + [SCC])
    p.salu(f"s_mul_i32 {s(swj)}, {s(swj)}, 7", sr(swj), sr(swj))
    p.salu(f"s_add_u32 {s(swj)}, {s(swj)}, 3", sr(swj), sr(swj) + [SCC])
    p.salu(f"s_mul_i32 {s(55)}, {s(sw)}, 4802", sr(sw), sr(55))
    p.salu(f"s_movk_i32 {s(S_T0)}, 378", [], sr(S_T0))
    HI16 = t[1]
    p.op("v_lshrrev_b32", HI16, "5", L)
    p.op("v_lshlrev_b32", HI16, "4", HI16)
    N31 = t[2]
    p.op("v_and_b32", N31, "31", L)
    for tt, dst in ((0, V_OFFA), (1, V_OFFB)):
        n, ty, tx, a = t[3], t[4], t[5], t[6]
        if tt == 0:
            n = N31
        else:
            p.op("v_add_u32", n, "32", N31)
        p.op("v_mul_u32_u24", ty, "37", n)
        p.op("v_lshrrev_b32", ty, "8", ty)
        p.op("v_mul_u32_u24", tx, "7", ty)
        p.op("v_sub_u32", tx, n, tx)
        p.op("v_add_u32", ty, f"s{swi}", ty)
        p.op("v_add_u32", tx, f"s{swj}", tx)
        p.op("v_subrev_u32", a, f"s{S_T0}", ty)
        p.op("v_min_u32", ty, ty, a)
        p.op("v_subrev_u32", a, f"s{S_T0}", tx)
        p.op("v_min_u32", tx, tx, a)
        p.op("v_mad_u32_u24", a, ty, f"s{S_T0}", tx)
        p.op("v_mul_u32_u24", a, "0xc0", a)
        if tt == 0:
            p.op("v_add_u32", dst, a, HI16)
        else:
            p.op("v_add_u32", a, a, HI16)
            p.add(I(f"v_cmp_gt_u32 vcc, 17, {v(N31)}", "valu", [N31], [VCC]))
            p.op("v_mov_b32", ty, "0x80000000")
            p.add(I(f"v_cndmask_b32 {v(dst)}, {v(ty)}, {v(a)}, vcc", "valu", [ty, a, VCC], [dst]))
    DM = t[10:15]
    for i in range(5):
        c, row, cc, d = t[3], t[4], t[5], t[6]
        p.salu(f"s_add_u32 {s(S_T1)}, {s(S_W)}, {12 * i}", sr(S_W), sr(S_T1) + [SCC])
        p.salu(f"s_lshl_b32 {s(S_T1)}, {s(S_T1)}, 6", sr(S_T1), sr(S_T1) + [SCC])
        p.op("v_add_u32", c, f"s{S_T1}", L)
        p.op("v_mul_u32_u24", row, "3641", c)
        p.op("v_lshrrev_b32", row, "17", row)
        p.op("v_mul_u32_u24", cc, "36", row)
        p.op("v_sub_u32", cc, c, cc)
        p.op("v_subrev_u32", row, "6", cc)
        p.add(I(f"v_cmp_gt_u32 vcc, 6, {v(row)}", "valu", [row], [VCC]))
        p.op("v_add_u32", d, "6", c)
        p.add(I(f"v_cndmask_b32 {v(d)}, {v(c)}, {v(d)}, vcc", "valu", [c, d, VCC], [d]))
        p.op("v_subrev_u32", row, "12", cc)
        p.add(I(f"v_cmp_gt_u32 vcc, 6, {v(row)}", "valu", [row], [VCC]))
        p.op("v_subrev_u32", c, "6", c)
        p.add(I(f"v_cndmask_b32 {v(d)}, {v(d)}, {v(c)}, vcc", "valu", [c, d, VCC], [d]))
        p.op("v_lshlrev_b32", DM[i], "4", d)
    WOA = t[15]
    p.op("v_lshrrev_b32", t[3], "3", L)
    p.salu(f"s_lshl_b32 {s(S_T1)}, {s(S_W)}, 3", sr(S_W), sr(S_T1) + [SCC])
    p.op("v_add_u32", t[3], f"s{S_T1}", t[3])
    p.op("v_mul_u32_u24", t[3], "0xc0", t[3])
    p.op("v_and_b32", t[4], "7", L)
    p.op("v_mad_u32_u24", WOA, t[4], "24", t[3])
    TE = t[16]
    p.salu(f"s_lshr_b32 {s(S_T1)}, {s(S_W)}, 2", sr(S_W), sr(S_T1) + [SCC])
    p.salu(f"s_lshl_b32 {s(S_T1)}, {s(S_T1)}, 8", sr(S_T1), sr(S_T1) + [SCC])
    p.op("v_lshl_add_u32", TE, L, "2", f"s{S_T1}")
    GQ, GA, GB = t[17], t[18], t[19]
    sqt, sgrp = S_T2, S_T3
    p.salu(f"s_cmp_ge_u32 {s(S_W)}, 6", sr(S_W), [SCC])
    p.salu(f"s_cselect_b32 {s(sqt)}, 1, 0", [SCC], sr(sqt))
    p.salu(f"s_mul_i32 {s(sgrp)}, {s(sqt)}, 6", sr(sqt), sr(sgrp))
    p.salu(f"s_sub_u32 {s(sgrp)}, {s(S_W)}, {s(sgrp)}", sr(S_W) + sr(sgrp), sr(sgrp) + [SCC])
    p.salu(f"s_lshl_b32 {s(S_T1)}, {s(sqt)}, 5", sr(sqt), sr(S_T1) + [SCC])
    p.op("v_add_u32", GQ, f"s{S_T1}", N31)
    p.op("v_min_u32", GQ, "48", GQ)
    p.op("v_mul_u32_u24", GQ, "0xc4", GQ)
    p.op("v_add_u32", GQ, GQ, HI16)
    p.salu(f"s_lshl_b32 {s(S_T1)}, {s(sgrp)}, 5", sr(sgrp), sr(S_T1) + [SCC])
    p.op("v_add_u32", GA, f"s{S_T1}", GQ)
    p.salu(f"s_and_b32 {s(S_T1)}, {s(S_W)}, 1", sr(S_W), sr(S_T1) + [SCC])
    p.salu(f"s_lshl_b32 {s(S_T1)}, {s(S_T1)}, 5", sr(S_T1), sr(S_T1) + [SCC])
    p.op("v_add_u32", GB, f"s{S_T1}", N31)
    p.op("v_min_u32", GB, "48", GB)
    p.op("v_mul_u32_u24", GB, "0xc4", GB)
    MO = t[20:25]
    if opt.mask_check:
        p.op("v_lshlrev_b32", t[3], "4", L)
        for i in range(5):
            if i < 4:
                p.op("v_add_u32", MO[i], f"s{55}", t[3]) if i == 0 else None
            else:
                p.op("v_add_u32", t[4], "4096", t[3])
                p.op("v_min_u32", t[4], "4786", t[4])
                p.op("v_add_u32", MO[4], f"s{55}", t[4])
    p.op("v_bfe_u32", t[3], L, "2", "2")
    p.op("v_lshrrev_b32", t[4], "1", HI16)
    p.op("v_add_u32", t[3], t[3], t[4])
    p.op("v_mul_u32_u24", t[3], "0x240", t[3])
    p.op("v_bfe_u32", t[4], L, "4", "1")
    p.op("v_lshl_add_u32", t[3], t[4], "5", t[3])
    p.op("v_and_b32", t[4], "3", L)
    p.op("v_lshl_add_u32", V_WQ, t[4], "3", t[3])
    p.op("v_lshlrev_b32", t[3], "4", L)
    p.op("v_add_u32", V_BIAS, str(L_BIAS), t[3])
    p.op("v_mov_b32", V_PZ + 1, "0")

    build_srd(p, SRD_WQ, S_PTR + 2, 96 * 288 * 2)
    build_srd(p, SRD_WO, S_PTR + 4, 96 * 96 * 2)
    build_srd(p, SRD_X, S_PTR + 0, X_BYTES)
    build_srd(p, SRD_RC, S_PTR + 12, 169 * 2 * 2)
    build_srd(p, SRD_RIDX, S_PTR + 14, 49 * 49 * 4)
    build_srd(p, SRD_MASK, 48, MASK_BYTES)
    build_srd(p, SRD_OUT, 50, X_BYTES)
    for i in range(5):
        if i == 4:
            p.salu(f"s_cmp_ge_u32 {s(S_W)}, 6", sr(S_W), [SCC])
            p.raw("s_cbranch_scc1 L_nodma5", rd=[SCC])
            p.cond_begin()
        p.salu(f"s_add_u32 {s(S_T1)}, {s(S_W)}, {12 * i}", sr(S_W), sr(S_T1) + [SCC])
        p.salu(f"s_lshl_b32 m0, {s(S_T1)}, 10", sr(S_T1), [M0, SCC])
        p.dma(DM[i], SRD_WQ).tag = "w"
        if i == 4:
            p.cond_end()
            p.label("L_nodma5")
    WOV = t[26:32]
    assert WOV[0] % 2 == 1 or True
    wov = 88
    for i in range(3):
        p.vld("buffer_load_dwordx2", wov + 2 * i, 2, WOA, SRD_WO, 8 * i)
    RCV = t[3]
    rcv = 94
    p.vld("buffer_load_dword", rcv, 1, TE, SRD_RC, 0)
    ridx = 96
    p.vld("buffer_load_dwordx4", ridx, 4, GA, SRD_RIDX, 0)
    ridx2 = 95
    p.vld("buffer_load_dword", ridx2, 1, GB, SRD_RIDX, 192)
    for tt, off in ((0, V_OFFA), (1, V_OFFB)):
        for k in range(6):
            p.vld("buffer_load_dwordx4", (XA, XB)[tt] + 4 * k, 4, off, SRD_X, 32 * k)
    if opt.mask_check:
        for i in range(5):
            if i < 4:
                p.vld("buffer_load_dwordx4", MASK_REGS[i], 4, MO[0], SRD_MASK, 1024 * i)
            else:
                p.vld("buffer_load_dwordx4", MASK_REGS[i], 4, MO[4], SRD_MASK, 0)
    p.salu(f"s_mov_b32 {s(S_MBASE)}, {s(55)}", sr(55), sr(S_MBASE))
    p.smem("s_load_dwordx2", S_LS, 2, S_PTR + 6, 0)
    p.smem("s_load_dwordx16", S_W2, 16, S_PTR + 10, 0)
    p.smem("s_load_dwordx16", S_W2 + 16, 16, S_PTR + 10, 64)
    p.smem("s_load_dwordx16", S_W1, 16, S_PTR + 8, 0)
    GDST, TDST = 86, 87
    p.salu(f"s_mul_i32 {s(S_T1)}, {s(sqt)}, 7", sr(sqt), sr(S_T1))
    p.salu(f"s_add_u32 {s(S_T1)}, {s(S_T1)}, {s(sgrp)}", sr(S_T1) + sr(sgrp), sr(S_T1) + [SCC])
    p.salu(f"s_lshl_b32 {s(S_T1)}, {s(S_T1)}, 10", sr(S_T1), sr(S_T1) + [SCC])
    p.op("v_add_u32", GDST, f"s{S_T1}", V_BIAS)
    p.salu(f"s_and_b32 {s(S_T2)}, {s(S_W)}, 3", sr(S_W), sr(S_T2) + [SCC])
    p.salu(f"s_mul_i32 {s(S_T1)}, {s(S_T2)}, 768", sr(S_T2), sr(S_T1))
    p.salu(f"s_add_u32 {s(S_T1)}, {s(S_T1)}, {L_TAB}", sr(S_T1), sr(S_T1) + [SCC])
    p.op("v_add_u32", TDST, f"s{S_T1}", TE)
    p.salu(f"s_lshl_b32 {s(S_T2)}, {s(S_T2)}, 4", sr(S_T2), sr(S_T2) + [SCC])
    p.op("v_mov_b32", t[7], "0x3f803f80")
    p.op("v_lshlrev_b32", t[8], "2", L)
    p.op("v_and_b32", t[8], "63", t[8])
    p.dsw("ds_write_b32", t[8], t[7], 1, L_ONES) if L_ONES < 65536 else None
    if L_ONES >= 65536:
        p.op("v_add_u32", t[8], str(L_ONES), t[8])
        p.dsw("ds_write_b32", t[8], t[7], 1, 0)
    p.wait(lgkm=0)
    TV = t[7]
    for h in range(4):
        src = S_LS + (h >> 1)
        if h & 1:
            p.salu(f"s_and_b32 {s(S_T1)}, {s(src)}, 0xffff0000", sr(src), sr(S_T1) + [SCC])
        else:
            p.salu(f"s_lshl_b32 {s(S_T1)}, {s(src)}, 16", sr(src), sr(S_T1) + [SCC])
        p.add(I(f"v_writelane_b32 {v(TV)}, {s(S_T1)}, {h}", "valu", sr(S_T1) + [TV], [TV]))
    p.op("v_min_f32", TV, "0x40930000", TV)
    p.op("v_max_f32", TV, "0xc2c80000", TV)
    p.op("v_mul_f32", TV, f32(LOG2E), TV)
    p.op("v_exp_f32", TV, TV, kind="trans")
    p.op("v_cvt_pk_bf16_f32", TV, TV, TV)
    p.op("v_and_b32", TV, "0xffff0000", TV)
    p.add(I(f"v_cmp_nle_f32 vcc, {v(TV)}, {v(TV)}", "valu", [TV], [VCC])) if False else None
    p.add(I(f"v_cmp_nge_f32 vcc, {f32(TAU_THR)}, {v(TV)}", "valu", [TV], [VCC]))
    p.op("v_mul_f32", TV, f32(LOG2E), TV)
    p.salu(f"s_and_b32 {s(S_UNSAFE)}, vcc_lo, 15", [VCC], sr(S_UNSAFE) + [SCC])
    for h in range(4):
        p.add(I(f"v_readlane_b32 {s(S_TAU + h)}, {v(TV)}, {h}", "rdlane", [TV], sr(S_TAU + h)))
    p.salu(f"s_mov_b32 {s(S_EPSQ)}, {f32(0.5e-12)}", [], sr(S_EPSQ))
    p.salu(f"s_mov_b32 {s(S_EPSLN)}, {f32(48e-5)}", [], sr(S_EPSLN))
    p.salu(f"s_mov_b32 {s(S_VMASK)}, 0x00ffffff", [], sr(S_VMASK))
    p.salu(f"s_mov_b32 {s(S_VMASK + 1)}, 0x00ffffff", [], sr(S_VMASK + 1))
    p.salu(f"s_mov_b32 {s(S_HIMASK)}, 0", [], sr(S_HIMASK))
    p.salu(f"s_mov_b32 {s(S_HIMASK + 1)}, -1", [], sr(S_HIMASK + 1))
    for j in range(16):
        r = S_W2 + 2 * j
        p.salu(f"s_lshr_b64 {s(r, 2)}, {s(r, 2)}, {s(S_T2)}", sr(r, 2) + sr(S_T2), sr(r, 2) + [SCC])
        p.salu(f"s_lshl_b32 {s(r)}, {s(r)}, 16", sr(r), sr(r) + [SCC])
    u = list(range(100, 112))
    for i in range(6):
        p.op("v_lshlrev_b32", u[2 * i], "16", wov + i)
        p.op("v_and_b32", u[2 * i + 1], "0xffff0000", wov + i)
    sm = t[3]
    p.op("v_add_f32", sm, u[0], u[1])
    for i in range(2, 12):
        p.op("v_add_f32", sm, sm, u[i])
    for ctl in ("quad_perm:[1,0,3,2]", "quad_perm:[2,3,0,1]", "row_half_mirror"):
        p.add(I(f"v_add_f32_dpp {v(sm)}, {v(sm)}, {v(sm)} {ctl} row_mask:0xf bank_mask:0xf", "dpp", [sm], [sm]))
    p.op("v_mul_f32", sm, f32(1.0 / 96.0), sm)
    for i in range(12):
        p.op("v_sub_f32", u[i], u[i], sm)
    for i in range(6):
        p.op("v_cvt_pk_bf16_f32", wov + i, u[2 * i], u[2 * i + 1])
    for i in range(3):
        p.dsw("ds_write_b64", WOA, wov + 2 * i, 2, L_WO + 8 * i)
    c0, c1 = t[3], t[4]
    p.op("v_lshlrev_b32", c0, "16", rcv)
    p.op("v_and_b32", c1, "0xffff0000", rcv)
    hb = 100
    tmps = [S_T0, S_T1, S_T3, S_LS, S_LS + 1]
    k = 0
    for j in range(16):
        for i, cc in ((0, c0), (1, c1)):
            src = S_W1 + 8 * i + (j >> 1)
            st = tmps[k % len(tmps)]
            k += 1
            if j & 1:
                p.salu(f"s_and_b32 {s(st)}, {s(src)}, 0xffff0000", sr(src), sr(st) + [SCC])
            else:
                p.salu(f"s_lshl_b32 {s(st)}, {s(src)}, 16", sr(src), sr(st) + [SCC])
            if i == 0:
                p.op("v_mul_f32", hb + j, f"s{st}", cc)
            else:
                p.op("v_fmac_f32", hb + j, f"s{st}", cc, rmw=True)
    for j in range(8):
        p.op("v_cvt_pk_bf16_f32", hb + 2 * j, hb + 2 * j, hb + 2 * j + 1)
        p.op("v_pk_max_i16", hb + 2 * j, hb + 2 * j, "0")
        p.op("v_and_b32", hb + 2 * j + 1, "0xffff0000", hb + 2 * j)
        p.op("v_lshlrev_b32", hb + 2 * j, "16", hb + 2 * j)
    acc = t[3]
    for j in range(16):
        if j == 0:
            p.op("v_mul_f32", acc, f"s{S_W2}", hb)
        else:
            p.op("v_fmac_f32", acc, f"s{S_W2 + 2 * j}", hb + j, rmw=True)
    p.op("v_cvt_pk_bf16_f32", acc, acc, acc)
    p.op("v_and_b32", acc, "0xffff0000", acc)
    p.op("v_mul_f32", acc, f32(-LOG2E), acc)
    p.op("v_exp_f32", acc, acc, kind="trans")
    p.op("v_add_f32", acc, "1.0", acc)
    p.op("v_rcp_f32", acc, acc, kind="trans")
    p.op("v_cvt_pk_bf16_f32", acc, acc, acc)
    p.op("v_and_b32", acc, "0xffff0000", acc)
    p.op("v_mov_b32", t[4], f32(16.0 * LOG2E))
    p.op("v_fmaak_f32", acc, acc, t[4], f32(-8.0 * LOG2E))
    p.dsw("ds_write_b32", TDST, acc, 1, 0)
    for r in range(4):
        p.op("v_min_u32", ridx + r, "0xa8", ridx + r)
        p.op("v_lshlrev_b32", ridx + r, "2", ridx + r)
        p.op("v_add_u32", ridx + r, str(L_TAB), ridx + r)
    p.op("v_min_u32", ridx2, "0xa8", ridx2)
    p.op("v_lshlrev_b32", ridx2, "2", ridx2)
    p.op("v_add_u32", ridx2, str(L_TAB), ridx2)
    p.wait_tag("w")
    p.wait(lgkm=0)
    p.raw("s_barrier")
    g = 100
    for h in range(4):
        for r in range(4):
            p.dsr("ds_read_b32", g + 4 * h + r, 1, ridx + r, 768 * h)
    for h in range(4):
        p.dsw("ds_write_b128", GDST, g + 4 * h, 4, 14336 * h)
    p.salu(f"s_cmp_ge_u32 {s(S_W)}, 2", sr(S_W), [SCC])
    p.raw("s_cbranch_scc1 L_nog2", rd=[SCC])
    p.cond_begin()
    g2 = 64
    for h in range(4):
        p.dsr("ds_read_b32", g2 + h, 1, ridx2, 768 * h)
    p.salu(f"s_mul_i32 {s(S_T1)}, {s(S_W)}, 7168", sr(S_W), sr(S_T1))
    p.op("v_add_u32", g2 + 4, f"s{S_T1}", V_BIAS)
    p.op("v_mov_b32", g2 + 5, f32(NEG_BIG))
    for h in range(4):
        p.add(I(f"v_cndmask_b32 {v(g2 + h)}, {v(g2 + h)}, {v(g2 + 5)}, {s(S_HIMASK, 2)}", "valu",
                [g2 + h, g2 + 5] + sr(S_HIMASK, 2), [g2 + h]))
        p.dsw("ds_write_b32", g2 + 4, g2 + h, 1, 14336 * h + 6144)
    p.cond_end()
    p.label("L_nog2")
    p.wait(lgkm=0)
    p.raw("s_barrier")


class WBuf:
    def __init__(self, quads):
        self.q = list(quads)
        self.i = 0

    def next(self):
        r = self.q[self.i % len(self.q)]
        self.i += 1
        return r


def ld_wq(p, wb, col, ks):
    r = wb.next()
    off = L_WQ + col * 2 + 16 * ks * 576
    p.dsr("ds_read_b64_tr_b16", r, 2, V_WQ, off)
    p.dsr("ds_read_b64_tr_b16", r + 2, 2, V_WQ, off + 4 * 576)
    return r


def qk_proj(p, hp, X, areas, wb):
    for T in range(3):
        for ks in range(6):
            w = ld_wq(p, wb, hp * 96 + 32 * T, ks)
            p.mfma(areas[T], w, X + 4 * ks, None if ks == 0 else areas[T])


def qk_norm(p, hp, areas, qdst, kdst, order=None):
    Lr = [areas[i // 16] + i % 16 for i in range(48)]
    ss = [V_SC + i for i in range(4)]
    cp = [V_SC + 4, V_SC + 5]
    for g in range(4):
        for i in range(12):
            x = Lr[12 * g + i]
            if i == 0:
                p.op("v_fma_f32", ss[g], x, x, f"s{S_EPSQ}")
            else:
                p.op("v_fmac_f32", ss[g], x, x, rmw=True)
    sc = {}
    for pr in range(2):
        a, b = ss[2 * pr], ss[2 * pr + 1]
        p.swap32(a, b)
        p.op("v_add_f32", a, a, b)
        p.op("v_rsq_f32", a, a, kind="trans")
        if pr == 0:
            p.op("v_mul_f32", a, a, V_TAUV)
        p.op("v_mov_b32", b, a)
        p.swap32(a, b)
        sc[2 * pr], sc[2 * pr + 1] = a, b
    for i in range(48):
        p.op("v_mul_f32", Lr[i], Lr[i], sc[i // 12])
    dst = [qdst + i for i in range(12)] + [kdst + i for i in range(12)]
    pend = list(range(24))
    done_src = set()
    while pend:
        for pi in pend:
            d = dst[pi]
            blockers = [q for q in pend if q != pi and d in (Lr[2 * q], Lr[2 * q + 1])]
            if not blockers:
                p.op("v_cvt_pk_bf16_f32", d, Lr[2 * pi], Lr[2 * pi + 1])
                pend.remove(pi)
                break
        else:
            raise RuntimeError("no legal packing order")


def set_tauv(p, hp):
    def g():
        p.op("v_mov_b32", V_TAUV, f"s{S_TAU + 2 * hp}")
        p.salu(f"s_mov_b64 exec, {s(S_HIMASK, 2)}", sr(S_HIMASK, 2), [EXEC])
        p.op("v_mov_b32", V_TAUV, f"s{S_TAU + 2 * hp + 1}", rmw=True)
        p.salu("s_mov_b64 exec, -1", [], [EXEC])
    p.group(g)


def fill_ones(p, regs_quads, addr):
    for (r, n) in regs_quads:
        p.dsr({4: "ds_read_b128", 2: "ds_read_b64"}[n], r, n, addr, 0)


def v_proj(p, h, tiles, wb):
    for ks in range(6):
        w = ld_wq(p, wb, 192 + 24 * h, ks)
        for (X, D) in tiles:
            p.mfma(D, X + 4 * ks, w, None if ks == 0 else D)


def v_pack(p, pairs):
    for i in range(0, len(pairs), 5):
        chunk = pairs[i:i + 5]
        def g():
            p.salu(f"s_mov_b64 exec, {s(S_VMASK, 2)}", sr(S_VMASK, 2), [EXEC])
            for d, a in chunk:
                p.op("v_cvt_pk_bf16_f32", d, a, a + 1, rmw=True)
            p.salu("s_mov_b64 exec, -1", [], [EXEC])
        p.group(g)


def unit(p, h, qt, S0, S1, Q, Ka, Kb, Vq, slow, opt):
    boff = (h * 2 + qt) * 7168
    for g in range(4):
        p.dsr("ds_read_b128", S0 + 4 * g, 4, V_BIAS, boff + 1024 * g)
    for g in range(3):
        p.dsr("ds_read_b128", S1 + 4 * g, 4, V_BIAS, boff + 1024 * (4 + g))
    if slow:
        M = [WB, WB + 2, WB + 4, WB + 6, V_SC, V_SC + 2]
        M6 = V_SC + 4
        ad = V_SP
        p.op("v_subrev_u32", ad, str(L_BIAS), V_BIAS)
        p.op("v_bfe_u32", V_SC + 5, ad, "4", "5")
        if qt:
            p.op("v_add_u32", V_SC + 5, "32", V_SC + 5)
            p.op("v_min_u32", V_SC + 5, "48", V_SC + 5)
        p.op("v_mul_u32_u24", V_SC + 5, "0x62", V_SC + 5)
        p.op("v_lshrrev_b32", ad, "9", ad)
        p.op("v_lshl_add_u32", ad, ad, "3", V_SC + 5)
        p.op("v_add_u32", ad, f"s{S_MBASE}", ad)
        for g in range(6):
            p.vld("buffer_load_dwordx2", M[g], 2, ad, SRD_MASK, 16 * g)
        p.op("v_add_u32", V_SC + 5, f"s{S_MBASE}", V_SC + 5)
        p.vld("buffer_load_ushort", M6, 1, V_SC + 5, SRD_MASK, 96)
    p.mfma(S0, Ka, Q, S0)
    p.mfma(S0, Ka + 4, Q + 4, S0, k=8)
    p.mfma(S1, Kb, Q, S1)
    p.mfma(S1, Kb + 4, Q + 4, S1, k=8)
    regs = [S0 + i for i in range(16)] + [S1 + i for i in range(9)]
    if slow:
        tmp = V_SP
        for g in range(6):
            for e in range(4):
                r = regs[4 * g + e]
                src = M[g] + (e >> 1)
                if e & 1:
                    p.op("v_and_b32", tmp, "0xffff0000", src)
                else:
                    p.op("v_lshlrev_b32", tmp, "16", src)
                p.op("v_fmamk_f32", r, tmp, f32(LOG2E), r)
        p.op("v_lshlrev_b32", tmp, "16", M6)
        p.op("v_fmamk_f32", regs[24], tmp, f32(LOG2E), regs[24])
        mx, m2 = V_SC, V_SC + 1
        p.op("v_max3_f32", mx, regs[0], regs[1], regs[2])
        for i in range(3, 25, 2):
            p.op("v_max3_f32", mx, mx, regs[i], regs[i + 1])
        p.op("v_mov_b32", m2, mx)
        p.swap32(mx, m2)
        p.op("v_max_f32", mx, mx, m2)
        for r in regs:
            p.op("v_sub_f32", r, r, mx)
    for r in regs:
        p.op("v_exp_f32", r, r, kind="trans")
    for i in range(8):
        p.op("v_cvt_pk_bf16_f32", S0 + i, S0 + 2 * i, S0 + 2 * i + 1)
    for i in range(4):
        p.op("v_cvt_pk_bf16_f32", S0 + 8 + i, S1 + 2 * i, S1 + 2 * i + 1)
    p.op("v_cvt_pk_bf16_f32", V_PZ, S1 + 8, "0")
    O = S1
    p.mfma(O, Vq[0], S0, None)
    p.mfma(O, Vq[1], S0 + 4, O)
    p.mfma(O, Vq[2], S0 + 8, O)
    p.mfma(O, Vq[3], V_PZ, O, k=8)
    p.op("v_rcp_f32", O + 12, O + 12, kind="trans")
    for i in range(12):
        p.op("v_mul_f32", O + i, O + i, O + 12)
    for i in range(6):
        p.op("v_cvt_pk_bf16_f32", Q + i, O + 2 * i, O + 2 * i + 1)


def prefix(p, opt):
    set_tauv(p, 0)
    wb = WBuf([WB, WB + 4, K0R, K0R + 4, K0R + 8])
    areas = [OQ0, OQ0 + 16, OQ0 + 32]
    qk_proj(p, 0, XA, areas, wb)
    qk_norm(p, 0, areas, OQ0, K0R)


def mask_check(p, opt):
    m = MASK_REGS
    a = V_SC
    if opt.mask_check:
        regs = [r + i for r in m for i in range(4)]
        p.op("v_or3_b32", a, regs[0], regs[1], regs[2])
        for i in range(3, 19, 2):
            p.op("v_or3_b32", a, a, regs[i], regs[i + 1])
        p.op("v_or_b32", a, a, regs[19])
        p.add(I(f"v_cmp_ne_u32 vcc, 0, {v(a)}", "valu", [a], [VCC]))
        p.salu(f"s_or_b32 {s(S_T0)}, vcc_lo, vcc_hi", [VCC], sr(S_T0) + [SCC])
        p.salu(f"s_or_b32 {s(S_T0)}, {s(S_T0)}, {s(S_UNSAFE)}", sr(S_T0) + sr(S_UNSAFE), sr(S_T0) + [SCC])
    p.raw("s_cbranch_scc1 L_slow", rd=[SCC])


def body(p, slow, opt):
    S0a, S1a = OQ0 + 12, OQ1 + 12
    ones_addr = V_SP
    wb = WBuf([WB, WB + 4, VA, VA + 4, VA + 8])
    areas = [OQ1, OQ0 + 12, OQ1 + 16]
    qk_proj(p, 0, XB, areas, wb)
    qk_norm(p, 0, areas, OQ1, K1R)
    p.op("v_mov_b32", ones_addr, str(L_ONES))
    fill_ones(p, [(VA, 4), (VA + 4, 4), (VA + 8, 4), (VA + 12, 2)], ones_addr)
    Vq = [VA, VA + 4, VA + 8, VA + 12]
    for h in (0, 1):
        wb = WBuf([WB, WB + 4, UR] if not slow else [UR, UR])
        if slow:
            wb = WBuf([WB, WB + 4, UR])
        v_proj(p, h, [(XA, S0a), (XB, S1a)], wb)
        v_pack(p, [(VA + i, S0a + 2 * i) for i in range(8)] + [(VA + 8 + i, S1a + 2 * i) for i in range(5)])
        for qt in (0, 1):
            unit(p, h, qt, S0a, S1a, (OQ0, OQ1)[qt] + 6 * h, K0R + 6 * h, K1R + 6 * h, Vq, slow, opt)
    set_tauv(p, 1)
    wb = WBuf([WB, WB + 4, UR, K0R, K0R + 4, K0R + 8])
    v_proj(p, 2, [(XA, S0a), (XB, S1a)], wb)
    v_pack(p, [(VA + i, S0a + 2 * i) for i in range(8)] + [(VA + 8 + i, S1a + 2 * i) for i in range(5)])
    wb = WBuf([WB, WB + 4, K0R, K0R + 4, K0R + 8])
    areas = [S0a, S1a, K1R]
    qk_proj(p, 1, XA, areas, wb)
    qk_norm(p, 1, areas, OQ0 + 12, K0R)
    wb = WBuf([WB, WB + 4, K1R, K1R + 4, K1R + 8, UR])
    v_proj(p, 3, [(XA, S1a)], wb)
    VB0 = XA + 16
    p.op("v_mov_b32", ones_addr, str(L_ONES))
    fill_ones(p, [(VB0, 4), (VB0 + 4, 4)], ones_addr)
    v_pack(p, [(VB0 + i, S1a + 2 * i) for i in range(8)])
    wb = WBuf([WB, WB + 4, T0R])
    areas = [S1a, XA, K1R]
    qk_proj(p, 1, XB, areas, wb)
    qk_norm(p, 1, areas, OQ1 + 12, K1R)
    wb = WBuf([WB, WB + 4, T0R, T1R, UR])
    v_proj(p, 3, [(XB, XA)], wb)
    VB1 = XB
    fill_ones(p, [(VB1, 4), (VB1 + 4, 2)], ones_addr)
    v_pack(p, [(VB1 + i, XA + 2 * i) for i in range(5)])
    S0b, S1b = XA, XB + 8
    for h in (2, 3):
        vq = Vq if h == 2 else [VB0, VB0 + 4, VB1, VB1 + 4]
        for qt in (0, 1):
            unit(p, h, qt, S0b, S1b, (OQ0, OQ1)[qt] + 6 * h, K0R + 6 * (h - 2), K1R + 6 * (h - 2), vq, slow, opt)
    vwo = V_SP
    a, b = V_SC, V_SC + 1
    p.op("v_subrev_u32", a, str(L_BIAS), V_BIAS)
    p.op("v_bfe_u32", b, a, "6", "2")
    p.op("v_lshrrev_b32", vwo, "9", a)
    p.op("v_lshl_add_u32", b, vwo, "2", b)
    p.op("v_mul_u32_u24", b, "0xc0", b)
    p.op("v_bfe_u32", vwo, a, "8", "1")
    p.op("v_lshl_add_u32", b, vwo, "5", b)
    p.op("v_bfe_u32", vwo, a, "4", "1")
    p.op("v_lshl_add_u32", b, vwo, "4", b)
    p.op("v_bfe_u32", vwo, a, "5", "1")
    p.op("v_lshl_add_u32", b, vwo, "3", b)
    p.op("v_add_u32", vwo, str(L_WO), b)
    Y = [[XA, XA + 16, XA + 32], [K1R, K1R + 16, K1R + 32]]
    wb = WBuf([T0R, T1R, WB + 6 - 2])
    wb = WBuf([T0R, T1R, V_SC + 2])
    for T in range(3):
        for ks in range(6):
            w = wb.next()
            p.dsr("ds_read_b64_tr_b16", w, 2, vwo, (16 * ks) * 192 + 64 * T)
            p.dsr("ds_read_b64_tr_b16", w + 2, 2, vwo, (16 * ks + 8) * 192 + 64 * T)
            for tt in (0, 1):
                p.mfma(Y[tt][T], w, (OQ0, OQ1)[tt] + 4 * ks, None if ks == 0 else Y[tt][T])
    for tt in (0, 1):
        y = [Y[tt][i // 16] + i % 16 for i in range(48)]
        ss, cp = (V_SC, V_SC + 1) if tt == 0 else (V_PZ, V_PZ + 1)
        for i in range(48):
            if i == 0:
                p.op("v_fma_f32", ss, y[0], y[0], f"s{S_EPSLN}")
            else:
                p.op("v_fmac_f32", ss, y[i], y[i], rmw=True)
        p.op("v_mov_b32", cp, ss)
        p.swap32(ss, cp)
        p.op("v_add_f32", ss, ss, cp)
        p.op("v_rsq_f32", ss, ss, kind="trans")
        p.op("v_mul_f32", ss, f32(math.sqrt(96.0)), ss)
        for i in range(48):
            p.op("v_mul_f32", y[i], y[i], ss)
        for T in range(3):
            for jj in range(2):
                base = Y[tt][T] + 8 * jj
                for i in range(4):
                    p.op("v_cvt_pk_bf16_f32", base + i, base + 2 * i, base + 2 * i + 1)
                p.vst("buffer_store_dwordx4", base, 4, (V_OFFA, V_OFFB)[tt], SRD_OUT, 64 * T + 32 * jj)
    p.raw("s_endpgm")


HEADER = open("standalone__window_attn_swin_v2__vision.s.ref").read().split("; Override")[0]


def generate(opt, sched=None):
    segs = {}
    p = Prog(); prologue(p, opt); segs["pro"] = p.ins
    p = Prog(); prefix(p, opt); segs["pre"] = p.ins
    p = Prog(); mask_check(p, opt); segs["chk"] = p.ins
    p = Prog(); body(p, False, opt); segs["fast"] = p.ins
    p = Prog(); body(p, True, opt); segs["slow"] = p.ins
    if sched:
        for k in ("pre", "fast", "slow"):
            segs[k] = sched(segs[k])
    st = WaitState()
    head = insert_waits(flatten(segs["pro"] + segs["pre"] + segs["chk"]), st)
    head = insert_nops(head)
    fast = insert_nops(insert_waits(flatten(segs["fast"]), st.copy()), head)
    slow = insert_nops(insert_waits(flatten(segs["slow"]), st.copy()), head)
    name = "standalone__window_attn_swin_v2__vision_kernel"
    txt = HEADER
    txt += f"; @launch grid=({NWG},1,1) block=({64 * WPW},1,1) lds={LDS_BYTES}\n"
    txt += f""".amdgcn_target "amdgcn-amd-amdhsa--gfx950"
.text
.globl {name}
.p2align 8
.type {name},@function
{name}:
"""
    txt += render(head) + "\n" + render(fast) + "\nL_slow:\n" + render(slow) + "\nL_end:\n    s_endpgm\n"
    txt += f""".section .rodata,"a"
.p2align 6
.amdhsa_kernel {name}
  .amdhsa_next_free_vgpr {NVGPR}
  .amdhsa_next_free_sgpr 102
  .amdhsa_accum_offset {NVGPR}
  .amdhsa_group_segment_fixed_size 0
  .amdhsa_kernarg_size 96
  .amdhsa_user_sgpr_count 2
  .amdhsa_user_sgpr_kernarg_segment_ptr 1
  .amdhsa_system_sgpr_workgroup_id_x 1
.end_amdhsa_kernel
"""
    stats = {}
    for nm, seq in (("head", head), ("fast", fast), ("slow", slow)):
        c = {}
        for i in seq:
            c[i.kind] = c.get(i.kind, 0) + 1
        c["nopstates"] = sum(i.states for i in seq if i.kind == "nop")
        stats[nm] = c
    return txt, stats


if __name__ == "__main__":
    opt = Opt()
    out = sys.argv[1] if len(sys.argv) > 1 else "standalone__window_attn_swin_v2__vision.s"
    txt, stats = generate(opt)
    open(out, "w").write(txt)
    for k, c in stats.items():
        print(k, c)
```

```python
VCC, EXEC, M0, SCC = 2000, 2002, 2003, 2004
SB = 1000


def v(i, n=1):
    return f"v{i}" if n == 1 else f"v[{i}:{i + n - 1}]"


def s(i, n=1):
    return f"s{i}" if n == 1 else f"s[{i}:{i + n - 1}]"


def vr(i, n=1):
    return list(range(i, i + n))


def sr(i, n=1):
    return list(range(SB + i, SB + i + n))


VALU_KINDS = ("valu", "trans", "perm", "dpp", "rdlane", "dot")


class I:
    __slots__ = ("text", "kind", "rd", "wr", "c", "sub", "cond", "wide", "states", "prio", "tag")

    def __init__(self, text, kind, rd=(), wr=(), c=None, sub=None, wide=False, states=1, tag=None):
        self.text = text
        self.kind = kind
        self.rd = frozenset(rd)
        self.wr = frozenset(wr)
        self.c = c
        self.sub = sub
        self.cond = False
        self.wide = wide
        self.states = states
        self.prio = 0
        self.tag = tag

    def __repr__(self):
        return self.text


class Prog:
    def __init__(self):
        self.ins = []
        self._cond = False

    def add(self, i):
        i.cond = self._cond
        self.ins.append(i)
        return i

    def raw(self, text, kind="ctrl", rd=(), wr=(), **kw):
        return self.add(I(text, kind, rd, wr, **kw))

    def label(self, name):
        return self.add(I(name + ":", "label", states=0))

    def comment(self, t):
        return self.add(I("; " + t, "label", states=0))

    def salu(self, text, rd=(), wr=()):
        return self.add(I(text, "salu", rd, wr))

    def valu(self, text, rd=(), wr=(), kind="valu"):
        return self.add(I(text, kind, rd, wr))

    @staticmethod
    def _op(x):
        if isinstance(x, int):
            return v(x), [x]
        if isinstance(x, str) and x.startswith("s") and x[1:].isdigit():
            return x, [SB + int(x[1:])]
        return str(x), []

    def op(self, name, dst, *srcs, kind="valu", rmw=False, extra="", xrd=(), xwr=()):
        ts, rd = [], []
        for x in srcs:
            t, r = self._op(x)
            ts.append(t)
            rd += r
        if rmw:
            rd.append(dst)
        return self.add(I(f"{name} {v(dst)}, " + ", ".join(ts) + extra, kind, rd + list(xrd), [dst] + list(xwr)))

    def mfma(self, d, a, b, c=None, k=16):
        n = 4 if k == 16 else 2
        name = "v_mfma_f32_32x32x16_bf16" if k == 16 else "v_mfma_f32_32x32x8_bf16"
        ct = "0" if c is None else v(c, 16)
        rd = vr(a, n) + vr(b, n) + ([] if c is None else vr(c, 16))
        return self.add(I(f"{name} {v(d, 16)}, {v(a, n)}, {v(b, n)}, {ct}", "mfma", rd, vr(d, 16),
                          c=None if c is None else (c, 16)))

    def dsr(self, name, d, n, addr, off=0):
        return self.add(I(f"{name} {v(d, n)}, {v(addr)} offset:{off}", "dsr", [addr], vr(d, n)))

    def dsw(self, name, addr, src, n, off=0):
        return self.add(I(f"{name} {v(addr)}, {v(src, n)} offset:{off}", "dsw", [addr] + vr(src, n), []))

    def vld(self, name, d, n, addr, srd, off=0, extra=""):
        return self.add(I(f"{name} {v(d, n)}, {v(addr)}, {s(srd, 4)}, 0 offen offset:{off}{extra}", "vld",
                          [addr] + sr(srd, 4), vr(d, n)))

    def vst(self, name, src, n, addr, srd, off=0, extra=""):
        return self.add(I(f"{name} {v(src, n)}, {v(addr)}, {s(srd, 4)}, 0 offen offset:{off}{extra}", "vst",
                          [addr] + vr(src, n) + sr(srd, 4), [], wide=n > 2))

    def dma(self, addr, srd, soff=None):
        so = "0" if soff is None else s(soff)
        return self.add(I(f"buffer_load_dwordx4 {v(addr)}, {s(srd, 4)}, {so} offen lds", "dma",
                          [addr, M0] + sr(srd, 4) + ([] if soff is None else sr(soff)), []))

    def smem(self, name, d, n, base, off):
        return self.add(I(f"{name} {s(d, n)}, {s(base, 2)}, {off}", "smem", sr(base, 2), sr(d, n)))

    def swap32(self, a, b):
        return self.add(I(f"v_permlane32_swap_b32 {v(a)}, {v(b)}", "perm", [a, b], [a, b]))

    def group(self, fn):
        save = self.ins
        self.ins = []
        fn()
        sub = self.ins
        self.ins = save
        rd, wr = set(), set()
        for i in sub:
            rd |= (i.rd - wr)
            wr |= i.wr
        rd.discard(EXEC)
        wr.discard(EXEC)
        return self.add(I("<group>", "group", rd, wr, sub=sub))

    def cond_begin(self):
        self.ins.append(I("", "condbegin", states=0))
        self._cond = True

    def cond_end(self):
        self._cond = False
        self.ins.append(I("", "condend", states=0))

    def wait(self, vm=None, lgkm=None):
        return self.add(I("<wait>", "wait", tag=(vm, lgkm)))

    def wait_tag(self, tag):
        return self.add(I("<waittag>", "waittag", tag=tag))


def flatten(ins):
    out = []
    for i in ins:
        if i.kind == "group":
            for x in i.sub:
                x.cond = i.cond
                out.append(x)
        else:
            out.append(i)
    return out


class WaitState:
    def __init__(self):
        self.vm = []
        self.lg = []

    def copy(self):
        w = WaitState()
        w.vm = list(self.vm)
        w.lg = list(self.lg)
        return w


def _younger(lst, idx):
    return sum(1 for x in lst[idx + 1:] if not x.cond)


def _keep_youngest(lst, n):
    keep, cnt = [], 0
    for x in reversed(lst):
        if cnt >= n:
            break
        keep.append(x)
        if not x.cond:
            cnt += 1
    return list(reversed(keep))


def insert_waits(ins, st):
    out = []
    snap = None
    for i in ins:
        if i.kind == "condbegin":
            snap = st.copy()
            continue
        if i.kind == "condend":
            st.vm = snap.vm + [x for x in st.vm if x not in snap.vm]
            st.lg = snap.lg + [x for x in st.lg if x not in snap.lg]
            snap = None
            continue
        needvm, needlg = None, None
        if i.kind == "wait":
            needvm, needlg = i.tag
        elif i.kind == "waittag":
            last = -1
            for k, x in enumerate(st.vm):
                if x.tag == i.tag:
                    last = k
            if last >= 0:
                needvm = _younger(st.vm, last)
        else:
            touched = i.rd | i.wr
            last = -1
            for k, x in enumerate(st.vm):
                if x.wr & touched:
                    last = k
            if last >= 0:
                needvm = _younger(st.vm, last)
            last = -1
            for k, x in enumerate(st.lg):
                if x.wr & touched:
                    last = k
            if last >= 0:
                if any(x.kind == "smem" for x in st.lg):
                    needlg = 0
                else:
                    needlg = _younger(st.lg, last)
        parts = []
        if needvm is not None:
            needvm = min(needvm, 63)
            if len(st.vm) > needvm:
                parts.append(f"vmcnt({needvm})")
                st.vm = _keep_youngest(st.vm, needvm)
        if needlg is not None:
            needlg = min(needlg, 15)
            if len(st.lg) > needlg:
                parts.append(f"lgkmcnt({needlg})")
                st.lg = _keep_youngest(st.lg, needlg)
        if parts:
            w = I("s_waitcnt " + " ".join(parts), "salu")
            w.cond = i.cond
            out.append(w)
        if i.kind in ("wait", "waittag"):
            continue
        out.append(i)
        if i.kind in ("vld", "vst", "dma"):
            st.vm.append(i)
        elif i.kind in ("dsr", "dsw", "smem"):
            st.lg.append(i)
    return out


def insert_nops(ins, hist=None):
    out = list(hist[-200:]) if hist else []
    base = len(out)
    for i in ins:
        if i.kind == "label":
            out.append(i)
            continue
        need = 0
        dist = 0
        isvalu = i.kind in VALU_KINDS
        for p in reversed(out):
            if dist >= 13:
                break
            req = 0
            if p.kind in VALU_KINDS:
                vw = {r for r in p.wr if r < SB}
                sw = {r for r in p.wr if r >= SB}
                if vw & i.rd:
                    if i.kind == "mfma":
                        req = max(req, 2)
                    if i.kind in ("perm", "dpp"):
                        req = max(req, 2)
                    if i.kind == "rdlane":
                        req = max(req, 1)
                    if p.kind == "trans":
                        req = max(req, 1)
                if p.kind == "dot" and (vw & (i.rd | i.wr)):
                    if not (i.kind == "dot" and i.tag == "acc" and not (vw & (i.rd - i.wr))):
                        req = max(req, 3)
                if sw & i.rd:
                    if isvalu:
                        req = max(req, 4 if i.kind == "rdlane" else 2)
                    elif i.kind in ("vld", "vst", "dma"):
                        req = max(req, 5)
                    else:
                        req = max(req, 2)
            elif p.kind == "mfma":
                d = p.wr
                if i.kind == "mfma":
                    ab = set(i.rd)
                    cset = set()
                    if i.c is not None:
                        cset = set(vr(*i.c))
                    abset = _ab_regs(i)
                    if d & abset:
                        req = max(req, 12)
                    if d & cset:
                        if not (cset == set(d)):
                            req = max(req, 10)
                    elif d & i.wr:
                        req = max(req, 10)
                else:
                    if d & (i.rd | i.wr):
                        req = max(req, 12)
                if p.c is not None and isvalu and (set(vr(*p.c)) & i.wr):
                    req = max(req, 7)
            elif p.kind == "salu":
                if M0 in p.wr and i.kind == "dma":
                    req = max(req, 1)
            elif p.kind == "vst" and p.wide:
                if {r for r in p.rd if r < SB} & i.wr:
                    req = max(req, 2)
            if req > dist:
                need = max(need, req - dist)
            dist += 0 if (p.cond and not i.cond) else p.states
        while need > 0:
            n = min(need, 16)
            x = I(f"s_nop {n - 1}", "nop", states=n)
            x.cond = i.cond
            out.append(x)
            need -= n
        out.append(i)
    return out[base:]


def _ab_regs(i):
    ops = i.text.split(None, 1)[1].split(", ")
    res = set()
    for o in ops[1:3]:
        a, b = o[2:-1].split(":")
        res |= set(range(int(a), int(b) + 1))
    return res


def render(ins):
    lines = []
    for i in ins:
        if i.kind == "label":
            lines.append(i.text if i.text.endswith(":") else "    " + i.text)
        else:
            lines.append("    " + i.text)
    return "\n".join(lines)
```

```python
from asmlib import *

ISSUE = {"dot": 4, "valu": 4, "dpp": 4, "rdlane": 4, "trans": 8, "perm": 8, "mfma": 8, "dsr": 4, "dsw": 4, "vld": 4, "vst": 4,
         "dma": 4, "salu": 4, "smem": 4, "ctrl": 4, "label": 0, "wait": 4, "waittag": 4}


def icost(i):
    if i.kind == "group":
        return sum(ISSUE[x.kind] for x in i.sub)
    return ISSUE[i.kind]


class Params:
    lds_lat = 140
    vm_lat = 1500
    mfma_lat = 64
    max_lds_out = 12


def raw_latency(p, c, P):
    k = p.kind
    if k == "mfma":
        if c.kind == "mfma" and c.c is not None and set(vr(*c.c)) == set(p.wr) and not (p.wr & _ab(c)):
            return 32
        return P.mfma_lat
    if k == "dsr":
        return P.lds_lat
    if k == "vld":
        return P.vm_lat
    if k == "smem":
        return 200
    base = icost(p)
    if c.kind in ("mfma", "perm", "dpp"):
        return base + 8
    if k == "trans":
        return base + 4
    return base


def _ab(i):
    from asmlib import _ab_regs
    return _ab_regs(i)


def schedule(ins, P=Params, verbose=False):
    out, cur = [], []
    total = 0
    for i in ins:
        if i.kind in ("ctrl", "label", "wait", "waittag", "condbegin", "condend", "smem") or getattr(i, "tag", None) == "fence":
            o, t = _sched_block(cur, P)
            out += o
            total += t
            cur = []
            out.append(i)
        else:
            cur.append(i)
    o, t = _sched_block(cur, P)
    out += o
    total += t
    if verbose:
        print("  modeled single-wave cycles:", total)
    return out


def _sched_block(ins, P):
    n = len(ins)
    if n == 0:
        return [], 0
    succ = [[] for _ in range(n)]
    npred = [0] * n
    lastw, readers = {}, {}
    lastmem = {"vm": None}
    edges = {}

    def edge(a, b, lat):
        if a == b:
            return
        if (a, b) in edges:
            edges[(a, b)] = max(edges[(a, b)], lat)
        else:
            edges[(a, b)] = lat

    prev_store = None
    for j, i in enumerate(ins):
        for r in i.rd:
            if r in lastw:
                edge(lastw[r], j, raw_latency(ins[lastw[r]], i, P))
        for r in i.wr:
            if r in lastw:
                p = ins[lastw[r]]
                lat = P.mfma_lat if (p.kind == "mfma" and not (i.kind == "mfma" and i.c is not None and set(vr(*i.c)) == set(p.wr))) else icost(p)
                if p.kind in ("dsr", "vld"):
                    lat = P.lds_lat
                edge(lastw[r], j, lat)
            for q in readers.get(r, ()):
                p = ins[q]
                lat = icost(p)
                if p.kind == "mfma" and p.c is not None and r in vr(*p.c):
                    lat = 36
                if p.kind == "vst":
                    lat = 12
                edge(q, j, lat)
        for r in i.rd:
            readers.setdefault(r, []).append(j)
        for r in i.wr:
            lastw[r] = j
            readers[r] = []
        if i.kind == "vst":
            if prev_store is not None:
                edge(prev_store, j, 4)
            prev_store = j
    for (a, b), lat in edges.items():
        succ[a].append((b, lat))
        npred[b] += 1
    cp = [0] * n
    for j in range(n - 1, -1, -1):
        c = icost(ins[j])
        for b, lat in succ[j]:
            c = max(c, lat + cp[b])
        cp[j] = c
    est = [0] * n
    ready = [j for j in range(n) if npred[j] == 0]
    t = 0
    mfree = 0
    order = []
    lds_out = []
    while ready:
        lds_out = [x for x in lds_out if x > t]
        avail = [j for j in ready if est[j] <= t and not (ins[j].kind == "mfma" and mfree > t)
                 and not (ins[j].kind == "dsr" and len(lds_out) >= P.max_lds_out)]
        if not avail:
            nt = min([max(est[j], mfree if ins[j].kind == "mfma" else 0,
                          (min(lds_out) if (ins[j].kind == "dsr" and len(lds_out) >= P.max_lds_out) else 0)) for j in ready])
            t = max(t + 1, nt)
            continue
        mf = [j for j in avail if ins[j].kind == "mfma"]
        mem = [j for j in avail if ins[j].kind in ("dsr", "vld")]
        if mf:
            j = max(mf, key=lambda x: (cp[x], -x))
        elif mem:
            j = max(mem, key=lambda x: (cp[x], -x))
        else:
            j = max(avail, key=lambda x: (cp[x], -x))
        ready.remove(j)
        order.append(ins[j])
        if ins[j].kind == "mfma":
            mfree = t + 32
        if ins[j].kind == "dsr":
            lds_out.append(t + P.lds_lat)
        for b, lat in succ[j]:
            est[b] = max(est[b], t + lat)
            npred[b] -= 1
            if npred[b] == 0:
                ready.append(b)
        t += icost(ins[j])
    return order, t
```

```python
import sys, struct, math
sys.path.insert(0, "gen")
from asmlib import *

def f32(x):
    return "0x%08x" % struct.unpack("<I", struct.pack("<f", x))[0]

LOG2E = 1.4426950408889634
NWG = 252
NS = 27
WPW = 12
X_BYTES = 378 * 378 * 96 * 2
MASK_BYTES = 2916 * 49 * 49 * 2

L_WQ = 0
L_WO = 55296
L_BIAS = 73728
L_ONES = L_BIAS + 57344
L_TAB = L_ONES + 1024
L_PAR = L_TAB + 3072
L_END = L_PAR + 64
LDS_BYTES = L_END

S_W = 3
SRD_X, SRD_OUT, SRD_WQ, SRD_WO, SRD_MASK, SRD_RIDX, SRD_RC = 4, 8, 12, 16, 20, 24, 28
S_PTR = 32
S_W1 = 48
S_W2 = 64
S_LS = 96
S_T0, S_T1, S_T2, S_T3 = 98, 99, 100, 101
S_TAU = 32
S_EPSQ, S_EPSLN = 36, 37
S_VMASK = 38
S_HIMASK = 40
S_UNSAFE = 42
S_WIN = 43
S_MBASE = 44
S_KILL, S_G2 = 45, 46

V_OFFA, V_OFFB, V_WQ, V_BIAS = 0, 1, 2, 3
V_PZ = 4
V_SC = 6
XA, XB = 12, 36
OQ0, T0R, OQ1, T1R = 60, 84, 88, 112
K1R, UR, K0R, VA, WB = 116, 128, 132, 144, 158
V_TAUV, V_SP = 166, 167
NVGPR = 168

TAU_THR = 24.0
NEG_BIG = -30000.0


class Opt:
    mask_check = True
    debug = None
    xflag = ""
    mflag = ""
    sflag = ""
    prefetch = False


S_STAMP = 64
NSTAMP = 12


def stamp(p, opt, idx, early=False):
    if not opt.debug:
        return
    if early:
        p.add(I(f"s_memtime {s(S_T2, 2)}", "smem", [], sr(S_T2, 2)))
        p.op("v_mov_b32", WB + idx, f"s{S_T2}")
        return
    p.add(I(f"s_memtime {s(S_T2, 2)}", "smem", [], sr(S_T2, 2)))
    p.salu(f"s_mov_b32 {s(S_STAMP + idx)}, {s(S_T2)}", sr(S_T2), sr(S_STAMP + idx)).tag = "fence"
    p.raw("; stamp fence", kind="label") if False else None


def stamp_flush(p, opt):
    if not opt.debug:
        return
    stamp(p, opt, NSTAMP - 1)
    p.smem("s_load_dwordx2", 48, 2, 0, 88)
    build_srd(p, 52, 48, 1 << 22)
    p.salu(f"s_lshl_b32 {s(S_T0)}, {s(S_WIN)}, 6", sr(S_WIN), sr(S_T0) + [SCC])
    p.add(I(f"s_getreg_b32 {s(S_STAMP + 12)}, hwreg(HW_REG_HW_ID)", "salu", [], sr(S_STAMP + 12)))
    p.salu(f"s_lshl_b32 {s(S_STAMP + 13)}, s2, 4", sr(2), sr(S_STAMP + 13) + [SCC])
    p.salu(f"s_add_u32 {s(S_STAMP + 13)}, {s(S_STAMP + 13)}, {s(S_W)}", sr(S_STAMP + 13) + sr(S_W), sr(S_STAMP + 13) + [SCC])
    p.add(I(f"s_memrealtime {s(S_STAMP + 14, 2)}", "smem", [], sr(S_STAMP + 14, 2)))
    p.op("v_mov_b32", 60, f"s{S_T0}")
    for i in range(15):
        p.op("v_mov_b32", 64 + i, f"s{S_STAMP + i}")
    p.op("v_mov_b32", 64 + 15, f"s{S_STAMP + 16}")
    p.salu("s_mov_b64 exec, 1", [], [EXEC])
    for i in range(4):
        p.vst("buffer_store_dwordx4", 64 + 4 * i, 4, 60, 52, 16 * i)


def build_srd(p, srd, ptr, nbytes):
    p.salu(f"s_mov_b32 {s(srd)}, {s(ptr)}", sr(ptr), sr(srd))
    p.salu(f"s_and_b32 {s(srd + 1)}, {s(ptr + 1)}, 0xffff", sr(ptr + 1), sr(srd + 1) + [SCC])
    p.salu(f"s_mov_b32 {s(srd + 2)}, {nbytes}", [], sr(srd + 2))
    p.salu(f"s_mov_b32 {s(srd + 3)}, 0x00020000", [], sr(srd + 3))


MASK_REGS = [VA, VA + 4, VA + 8, UR, K1R + 4]


def sal(p, text, rd=(), wr=(), scc=True):
    return p.salu(text, [SB + x for x in rd], [SB + x for x in wr] + ([SCC] if scc else []))


L, HI16, N31, L16 = 60, 61, 62, 67
ta, tb, tc, td = 63, 64, 65, 66
DMA, WOA, TE, GA, GB, MO0, MO4, GDST, PARA = 68, 69, 70, 71, 72, 73, 74, 75, 77
wov, rcv, ridx2, ridx, u, g2 = 116, 86, 87, 88, 92, 108
W = S_W


def window_map(p, opt, sA, sB, sC, sD, sf, swi, swj):
    sal(p, f"s_mul_i32 {s(sA)}, s2, 12", [2], [sA], False)
    sal(p, f"s_add_u32 {s(sA)}, {s(sA)}, {s(W)}", [sA, W], [sA])
    sal(p, f"s_sub_u32 {s(sA)}, {s(sA)}, {12 * NS}", [sA], [sA])
    sal(p, f"s_lshl_b32 {s(sB)}, s2, 2", [2], [sB])
    sal(p, f"s_add_u32 {s(sB)}, {s(sB)}, {s(W)}", [sB, W], [sB])
    sal(p, f"s_add_u32 {s(sC)}, {s(sB)}, {12 * (NWG - NS) - 4}", [sB], [sC])
    sal(p, f"s_cmp_lt_u32 {s(W)}, 4", [W], [])
    p.salu(f"s_cselect_b32 {s(sC)}, 2808, {s(sC)}", [SCC] + sr(sC), sr(sC))
    p.salu(f"s_cselect_b32 {s(sD)}, {s(sB)}, 999", [SCC] + sr(sB), sr(sD))
    sal(p, f"s_cmp_lt_u32 s2, {NS}", [2], [])
    p.salu(f"s_cselect_b32 {s(sf)}, {s(sC)}, {s(sA)}", [SCC] + sr(sC) + sr(sA), sr(sf))
    p.salu(f"s_cselect_b32 {s(sD)}, {s(sD)}, 999", [SCC] + sr(sD), sr(sD))
    sal(p, f"s_mul_i32 {s(swi)}, {s(sf)}, 19785", [sf], [swi], False)
    sal(p, f"s_lshr_b32 {s(swi)}, {s(swi)}, 20", [swi], [swi])
    sal(p, f"s_mul_i32 {s(swj)}, {s(swi)}, 53", [swi], [swj], False)
    sal(p, f"s_sub_u32 {s(swj)}, {s(sf)}, {s(swj)}", [sf, swj], [swj])
    sal(p, f"s_sub_u32 {s(sA)}, {s(sD)}, 54", [sD], [sA])
    sal(p, f"s_cmp_lt_u32 {s(sD)}, 54", [sD], [])
    p.salu(f"s_cselect_b32 {s(sA)}, 53, {s(sA)}", [SCC] + sr(sA), sr(sA))
    p.salu(f"s_cselect_b32 {s(sB)}, {s(sD)}, 53", [SCC] + sr(sD), sr(sB))
    sal(p, f"s_cmp_lt_u32 {s(sD)}, 107", [sD], [])
    p.salu(f"s_cselect_b32 {s(swi)}, {s(sA)}, {s(swi)}", [SCC] + sr(sA) + sr(swi), sr(swi))
    p.salu(f"s_cselect_b32 {s(swj)}, {s(sB)}, {s(swj)}", [SCC] + sr(sB) + sr(swj), sr(swj))
    p.salu(f"s_cselect_b32 {s(S_KILL)}, 1, 0", [SCC], sr(S_KILL))
    sal(p, f"s_mul_i32 {s(S_WIN)}, {s(swi)}, 54", [swi], [S_WIN], False)
    sal(p, f"s_add_u32 {s(S_WIN)}, {s(S_WIN)}, {s(swj)}", [S_WIN, swj], [S_WIN])
    sal(p, f"s_mul_i32 {s(S_MBASE)}, {s(S_WIN)}, 4802", [S_WIN], [S_MBASE], False)
    sal(p, f"s_mul_i32 {s(swi)}, {s(swi)}, 7", [swi], [swi], False)
    sal(p, f"s_add_u32 {s(swi)}, {s(swi)}, 3", [swi], [swi])
    sal(p, f"s_mul_i32 {s(swj)}, {s(swj)}, 7", [swj], [swj], False)
    sal(p, f"s_add_u32 {s(swj)}, {s(swj)}, 3", [swj], [swj])
    sal(p, f"s_movk_i32 {s(sA)}, 378", [], [sA], False)
    p.add(I(f"v_cmp_gt_u32 {s(sC, 2)}, 17, {v(N31)}", "valu", [N31], sr(sC, 2)))
    xa, xb, xc, xd = 78, 79, 80, 81
    for tt, dst in ((0, V_OFFA), (1, V_OFFB)):
        n, ty, tx, a = xa, xb, xc, xd
        if tt == 0:
            n = N31
        else:
            p.op("v_add_u32", n, "32", N31)
        p.op("v_mul_u32_u24", ty, "37", n)
        p.op("v_lshrrev_b32", ty, "8", ty)
        p.op("v_mad_i32_i24", tx, ty, "-7", n)
        p.op("v_add_u32", ty, f"s{swi}", ty)
        p.op("v_add_u32", tx, f"s{swj}", tx)
        p.op("v_subrev_u32", a, f"s{sA}", ty)
        p.op("v_min_u32", ty, ty, a)
        p.op("v_subrev_u32", a, f"s{sA}", tx)
        p.op("v_min_u32", tx, tx, a)
        p.op("v_mad_u32_u24", a, ty, f"s{sA}", tx)
        p.op("v_mul_u32_u24", a, "0xc0", a)
        if tt == 0:
            p.op("v_add_u32", dst, a, HI16)
        else:
            p.op("v_add_u32", a, a, HI16)
            p.op("v_bfrev_b32", ty, "1")
            p.add(I(f"v_cndmask_b32 {v(dst)}, {v(ty)}, {v(a)}, {s(sC, 2)}", "valu", [ty, a] + sr(sC, 2), [dst]))
    if opt.mask_check:
        p.op("v_add_u32", MO0, f"s{S_MBASE}", L16)
        p.op("v_add_u32", xa, "4096", L16)
        p.op("v_min_u32", xa, "4786", xa)
        p.op("v_add_u32", MO4, f"s{S_MBASE}", xa)


def x_loads(p, opt):
    for tt, off in ((0, V_OFFA), (1, V_OFFB)):
        for k in range(6):
            p.vld("buffer_load_dwordx4", (XA, XB)[tt] + 4 * k, 4, off, SRD_X, 32 * k, opt.xflag)


def mask_loads(p, opt):
    if opt.mask_check:
        for i in range(5):
            if i < 4:
                p.vld("buffer_load_dwordx4", MASK_REGS[i], 4, MO0, SRD_MASK, 1024 * i, opt.mflag)
            else:
                p.vld("buffer_load_dwordx4", MASK_REGS[i], 4, MO4, SRD_MASK, 0, opt.mflag)


def pro_common(p, opt):
    p.salu(f"s_cmp_ge_u32 s2, {NWG}", sr(2), [SCC])
    p.raw("s_cbranch_scc1 L_end", rd=[SCC])
    if opt.debug:
        p.add(I(f"s_memtime {s(S_T2, 2)}", "smem", [], sr(S_T2, 2)))
        p.op("v_mov_b32", WB + 7, f"s{S_T2}")
        p.add(I(f"s_memrealtime {s(S_T2, 2)}", "smem", [], sr(S_T2, 2)))
        p.op("v_mov_b32", WB + 6, f"s{S_T2}")
    for srd, off in ((SRD_WQ, 8), (SRD_WO, 16), (SRD_RC, 48), (SRD_RIDX, 56), (SRD_X, 0), (SRD_MASK, 64), (SRD_OUT, 72)):
        p.smem("s_load_dwordx2", srd, 2, 0, off)
    p.smem("s_load_dwordx2", 32, 2, 0, 24)
    p.smem("s_load_dwordx4", 36, 4, 0, 32)
    p.op("v_lshrrev_b32", ta, "6", 0)
    p.op("v_and_b32", L, "63", 0)
    p.add(I(f"v_readfirstlane_b32 {s(W)}, {v(ta)}", "rdlane", [ta], sr(W)))
    for srd, nb in ((SRD_WQ, 96 * 288 * 2), (SRD_WO, 96 * 96 * 2), (SRD_RC, 169 * 4), (SRD_RIDX, 49 * 49 * 4), (SRD_X, X_BYTES),
                    (SRD_MASK, MASK_BYTES), (SRD_OUT, X_BYTES)):
        sal(p, f"s_mov_b32 {s(srd + 2)}, {nb}", [], [srd + 2], False)
        sal(p, f"s_mov_b32 {s(srd + 3)}, 0x00020000", [], [srd + 3], False)
    p.op("v_lshrrev_b32", HI16, "5", L)
    p.op("v_lshlrev_b32", HI16, "4", HI16)
    p.op("v_and_b32", N31, "31", L)
    p.op("v_lshlrev_b32", L16, "4", L)
    sA, sB, sC, sD = 48, 49, 50, 51
    sal(p, f"s_sub_u32 {s(sB)}, {s(W)}, 3", [W], [sB])
    sal(p, f"s_max_i32 {s(sB)}, {s(sB)}, 0", [sB], [sB])
    sal(p, f"s_lshl_b32 {s(sA)}, {s(sB)}, 6", [sB], [sA])
    p.op("v_add_u32", ta, f"s{sA}", L)
    p.op("v_mul_u32_u24", tb, "1821", ta)
    p.op("v_lshrrev_b32", tb, "16", tb)
    p.op("v_mul_u32_u24", tb, "36", tb)
    p.op("v_sub_u32", tb, ta, tb)
    p.op("v_subrev_u32", tc, "6", tb)
    p.add(I(f"v_cmp_gt_u32 {s(54, 2)}, 6, {v(tc)}", "valu", [tc], sr(54, 2)))
    p.op("v_subrev_u32", tc, "12", tb)
    p.add(I(f"v_cmp_gt_u32 {s(56, 2)}, 6, {v(tc)}", "valu", [tc], sr(56, 2)))
    p.op("v_add_u32", tb, "6", ta)
    p.op("v_subrev_u32", tc, "6", ta)
    p.add(I(f"v_cndmask_b32 {v(ta)}, {v(ta)}, {v(tb)}, {s(54, 2)}", "valu", [ta, tb] + sr(54, 2), [ta]))
    p.add(I(f"v_cndmask_b32 {v(ta)}, {v(ta)}, {v(tc)}, {s(56, 2)}", "valu", [ta, tc] + sr(56, 2), [ta]))
    p.op("v_lshlrev_b32", DMA, "4", ta)
    sal(p, f"s_lshl_b32 {s(sC)}, {s(sB)}, 10", [sB], [sC])
    sal(p, f"s_mov_b32 {s(sD)}, 0", [], [sD], False)
    sqt, sgrp = 58, 59
    sal(p, f"s_cmp_ge_u32 {s(W)}, 6", [W], [])
    p.salu(f"s_cselect_b32 {s(sqt)}, 1, 0", [SCC], sr(sqt))
    sal(p, f"s_mul_i32 {s(sgrp)}, {s(sqt)}, 6", [sqt], [sgrp], False)
    sal(p, f"s_sub_u32 {s(sgrp)}, {s(W)}, {s(sgrp)}", [W, sgrp], [sgrp])
    sal(p, f"s_lshl_b32 {s(sA)}, {s(sqt)}, 5", [sqt], [sA])
    p.op("v_add_u32", ta, f"s{sA}", N31)
    p.op("v_min_u32", ta, "48", ta)
    p.op("v_mul_u32_u24", ta, "0xc4", ta)
    sal(p, f"s_lshl_b32 {s(sA)}, {s(sgrp)}, 5", [sgrp], [sA])
    p.op("v_add3_u32", GA, ta, HI16, f"s{sA}")
    sal(p, f"s_mul_i32 {s(sA)}, {s(sqt)}, 7", [sqt], [sA], False)
    sal(p, f"s_add_u32 {s(sA)}, {s(sA)}, {s(sgrp)}", [sA, sgrp], [sA])
    sal(p, f"s_lshl_b32 {s(S_G2)}, {s(sA)}, 10", [sA], [S_G2])
    sal(p, f"s_cmp_lt_u32 {s(W)}, 4", [W], [])
    p.raw("s_cbranch_scc0 L_pathY", rd=[SCC])


def dma_w(p, opt, lbl):
    sC, sD = 50, 51
    sal(p, f"s_cmp_lt_u32 {s(W)}, 3", [W], [])
    p.raw(f"s_cbranch_scc1 {lbl}", rd=[SCC])
    p.cond_begin()
    for i in range(6):
        p.salu(f"s_mov_b32 m0, {s(sC)}", sr(sC), [M0])
        p.dma(DMA, SRD_WQ, sD).tag = "w"
        if i < 5:
            sal(p, f"s_addk_i32 {s(sC)}, 9216", [sC], [sC])
            sal(p, f"s_addk_i32 {s(sD)}, 9216", [sD], [sD])
    p.cond_end()
    p.label(lbl)


def lds_bases(p, opt):
    p.op("v_bfe_u32", ta, L, "2", "2")
    p.op("v_lshrrev_b32", tb, "1", HI16)
    p.op("v_add_u32", ta, ta, tb)
    p.op("v_mul_u32_u24", ta, "0x240", ta)
    p.op("v_bfe_u32", tb, L, "4", "1")
    p.op("v_lshl_add_u32", ta, tb, "5", ta)
    p.op("v_and_b32", tb, "3", L)
    p.op("v_lshl_add_u32", V_WQ, tb, "3", ta)
    p.op("v_add_u32", V_BIAS, str(L_BIAS), L16)
    p.op("v_mov_b32", V_PZ + 1, "0")
    p.op("v_add_u32", GDST, f"s{S_G2}", V_BIAS)
    p.op("v_mov_b32", PARA, str(L_PAR))
    sal(p, f"s_mov_b32 {s(S_HIMASK)}, 0", [], [S_HIMASK], False)
    sal(p, f"s_mov_b32 {s(S_HIMASK + 1)}, -1", [], [S_HIMASK + 1], False)
    sal(p, f"s_mov_b32 {s(S_T0)}, {L_TAB}", [], [S_T0], False)


def gather(p, opt, extra):
    for r in range(4):
        p.op("v_min_u32", ridx + r, "0xa8", ridx + r)
        p.op("v_lshl_add_u32", ridx + r, ridx + r, "2", f"s{S_T0}")
    p.wait(lgkm=0)
    if opt.debug:
        for k, r in ((0, 7), (16, 6), (1, 1), (2, 2)):
            p.add(I(f"v_readfirstlane_b32 {s(S_STAMP + k)}, {v(WB + r)}", "rdlane", [WB + r], sr(S_STAMP + k)))
    p.wait_tag("w")
    p.raw("s_barrier")
    stamp(p, opt, 3)
    g = u
    p.dsr("ds_read_b128", 64, 4, PARA, 0) if False else None
    p.dsr("ds_read_b128", 112, 4, PARA, 0)
    for h in range(4):
        for r in range(4):
            p.dsr("ds_read_b32", g + 4 * h + r, 1, ridx + r, 768 * h)
    for h in range(4):
        p.add(I(f"v_readfirstlane_b32 {s(S_TAU + h)}, {v(112 + h)}", "rdlane", [112 + h], sr(S_TAU + h)))
    for h in range(4):
        p.dsw("ds_write_b128", GDST, g + 4 * h, 4, 14336 * h)
    if extra:
        sal(p, f"s_sub_u32 {s(S_T1)}, {s(W)}, 4", [W], [S_T1])
        sal(p, f"s_cmp_ge_u32 {s(S_T1)}, 2", [S_T1], [])
        p.raw("s_cbranch_scc1 L_nog2", rd=[SCC])
        p.cond_begin()
        for h in range(4):
            p.dsr("ds_read_b32", g2 + h, 1, ridx2, 768 * h)
        sal(p, f"s_mul_i32 {s(S_T1)}, {s(S_T1)}, 7168", [S_T1], [S_T1], False)
        p.op("v_add_u32", ta, f"s{S_T1}", V_BIAS)
        p.op("v_mov_b32", tb, f32(NEG_BIG))
        for h in range(4):
            p.add(I(f"v_cndmask_b32 {v(g2 + h)}, {v(g2 + h)}, {v(tb)}, {s(S_HIMASK, 2)}", "valu",
                    [g2 + h, tb] + sr(S_HIMASK, 2), [g2 + h]))
            p.dsw("ds_write_b32", ta, g2 + h, 1, 14336 * h + 6144)
        p.cond_end()
        p.label("L_nog2")
    sal(p, f"s_mov_b32 {s(S_EPSQ)}, {f32(0.5e-12)}", [], [S_EPSQ], False)
    sal(p, f"s_mov_b32 {s(S_EPSLN)}, {f32(48e-5)}", [], [S_EPSLN], False)
    sal(p, f"s_mov_b32 {s(S_VMASK)}, 0x00ffffff", [], [S_VMASK], False)
    sal(p, f"s_mov_b32 {s(S_VMASK + 1)}, 0x00ffffff", [], [S_VMASK + 1], False)
    sal(p, f"s_max_u32 {s(S_T0)}, {s(S_TAU)}, {s(S_TAU + 1)}", [S_TAU, S_TAU + 1], [S_T0])
    sal(p, f"s_max_u32 {s(S_T1)}, {s(S_TAU + 2)}, {s(S_TAU + 3)}", [S_TAU + 2, S_TAU + 3], [S_T1])
    sal(p, f"s_max_u32 {s(S_T0)}, {s(S_T0)}, {s(S_T1)}", [S_T0, S_T1], [S_T0])
    sal(p, f"s_cmp_gt_u32 {s(S_T0)}, {f32(TAU_THR * LOG2E)}", [S_T0], [])
    p.salu(f"s_cselect_b32 {s(S_UNSAFE)}, 1, 0", [SCC], sr(S_UNSAFE))
    p.wait(lgkm=0)
    p.raw("s_barrier")
    stamp(p, opt, 4)


def path_o(p, opt):
    if opt.prefetch:
        p.add(I(f"s_getpc_b64 {s(68, 2)}", "salu", [], sr(68, 2)))
        sal(p, f"s_lshl_b32 {s(70)}, {s(W)}, 13", [W], [70])
        p.op("v_lshl_add_u32", 82, L, "7", "s70")
        p.add(I(f"global_load_dword {v(83)}, {v(82)}, {s(68, 2)}", "vld", [82] + sr(68, 2), [83]))
    window_map(p, opt, 60, 61, 62, 64, 65, 66, 67)
    p.wait(lgkm=0)
    stamp(p, opt, 1, early=True)
    dma_w(p, opt, "L_nodma")
    p.vld("buffer_load_dwordx4", ridx, 4, GA, SRD_RIDX, 0)
    p.raw("s_barrier")
    x_loads(p, opt)
    stamp(p, opt, 2, early=True)
    lds_bases(p, opt)
    gather(p, opt, False)
    mask_loads(p, opt)
    p.label("L_join")


def path_y(p, opt):
    p.label("L_pathY")
    sA, sB = 48, 49
    p.op("v_lshrrev_b32", ta, "2", L)
    sal(p, f"s_sub_u32 {s(sB)}, {s(W)}, 4", [W], [sB])
    sal(p, f"s_lshl_b32 {s(sA)}, {s(sB)}, 4", [sB], [sA])
    p.op("v_add_u32", ta, f"s{sA}", ta)
    p.op("v_mul_u32_u24", ta, "0xc0", ta)
    p.op("v_and_b32", tb, "3", L)
    p.op("v_mad_u32_u24", WOA, tb, "48", ta)
    sal(p, f"s_sub_u32 {s(sA)}, {s(W)}, 9", [W], [sA])
    sal(p, f"s_lshl_b32 {s(sA)}, {s(sA)}, 8", [sA], [sA])
    p.op("v_lshl_add_u32", TE, L, "2", f"s{sA}")
    sal(p, f"s_lshl_b32 {s(sB)}, {s(sB)}, 5", [sB], [sB])
    p.op("v_add_u32", GB, f"s{sB}", N31)
    p.op("v_min_u32", GB, "48", GB)
    p.op("v_mul_u32_u24", GB, "0xc4", GB)
    p.wait(lgkm=0)
    stamp(p, opt, 1, early=True)
    p.smem("s_load_dwordx2", S_LS, 2, 32, 0)
    p.smem("s_load_dwordx16", S_W2, 16, 38, 0)
    p.smem("s_load_dwordx16", S_W2 + 16, 16, 38, 64)
    p.vld("buffer_load_dword", rcv, 1, TE, SRD_RC, 0)
    for i in range(6):
        p.salu(f"s_mov_b32 m0, {s(50)}", sr(50), [M0])
        p.dma(DMA, SRD_WQ, 51).tag = "w"
        if i < 5:
            sal(p, f"s_addk_i32 {s(50)}, 9216", [50], [50])
            sal(p, f"s_addk_i32 {s(51)}, 9216", [51], [51])
    for i in range(3):
        p.vld("buffer_load_dwordx4", wov + 4 * i, 4, WOA, SRD_WO, 16 * i)
    p.vld("buffer_load_dwordx4", ridx, 4, GA, SRD_RIDX, 0)
    p.vld("buffer_load_dword", ridx2, 1, GB, SRD_RIDX, 192)
    p.smem("s_load_dwordx16", S_W1, 16, 36, 0)
    p.raw("s_barrier")
    stamp(p, opt, 2, early=True)
    lds_bases(p, opt)
    sal(p, f"s_cmp_lt_u32 {s(W)}, 9", [W], [])
    p.raw("s_cbranch_scc1 L_notab", rd=[SCC])
    p.cond_begin()
    p.raw("s_setprio 3", kind="salu")
    p.wait(lgkm=0)
    hb = u
    tmps = [S_LS, S_T1, S_T2, S_T3]
    for j in range(16):
        st = tmps[j % 4]
        nm = "s_pack_hh_b32_b16" if j & 1 else "s_pack_ll_b32_b16"
        sal(p, f"{nm} {s(st)}, {s(S_W1 + (j >> 1))}, {s(S_W1 + 8 + (j >> 1))}", [S_W1 + (j >> 1), S_W1 + 8 + (j >> 1)], [st], False)
        p.op("v_dot2_f32_bf16", hb + j, rcv, f"s{st}", "0", kind="dot")
    for j in range(8):
        p.op("v_cvt_pk_bf16_f32", hb + j, hb + 2 * j, hb + 2 * j + 1)
    for j in range(8):
        p.op("v_pk_max_i16", hb + j, hb + j, "0")
    acc = hb + 8
    k = 0
    for jp in range(8):
        for h in range(4):
            st = tmps[k % 4]
            k += 1
            r0, r1 = S_W2 + 4 * jp + (h >> 1), S_W2 + 4 * jp + 2 + (h >> 1)
            nm = "s_pack_hh_b32_b16" if h & 1 else "s_pack_ll_b32_b16"
            sal(p, f"{nm} {s(st)}, {s(r0)}, {s(r1)}", [r0, r1], [st], False)
            if jp == 0:
                p.op("v_dot2_f32_bf16", acc + h, hb, f"s{st}", "0", kind="dot")
            else:
                p.op("v_dot2_f32_bf16", acc + h, hb + jp, f"s{st}", acc + h, kind="dot").tag = "acc"
    p.op("v_mov_b32", ta, f32(16.0 * LOG2E))
    p.op("v_add_u32", TE, str(L_TAB), TE)
    for step in range(9):
        for h in range(4):
            a = acc + h
            if step == 0: p.op("v_cvt_pk_bf16_f32", a, a, a)
            if step == 1: p.op("v_and_b32", a, "0xffff0000", a)
            if step == 2: p.op("v_mul_f32", a, f32(-LOG2E), a)
            if step == 3: p.op("v_exp_f32", a, a, kind="trans")
            if step == 4: p.op("v_add_f32", a, "1.0", a)
            if step == 5: p.op("v_rcp_f32", a, a, kind="trans")
            if step == 6: p.op("v_cvt_pk_bf16_f32", a, a, a)
            if step == 7: p.op("v_and_b32", a, "0xffff0000", a)
            if step == 8:
                p.op("v_fmaak_f32", a, a, ta, f32(-8.0 * LOG2E))
                p.dsw("ds_write_b32", TE, a, 1, 768 * h)
    p.raw("s_setprio 0", kind="salu")
    p.cond_end()
    p.label("L_notab")
    sal(p, f"s_cmp_lg_u32 {s(W)}, 8", [W], [])
    p.raw("s_cbranch_scc1 L_notau", rd=[SCC])
    p.cond_begin()
    p.wait(lgkm=0)
    for h in range(4):
        src = S_LS + (h >> 1)
        st = S_W1 + h
        if h & 1:
            sal(p, f"s_and_b32 {s(st)}, {s(src)}, 0xffff0000", [src], [st])
        else:
            sal(p, f"s_lshl_b32 {s(st)}, {s(src)}, 16", [src], [st])
        p.op("v_mov_b32", u + h, f"s{st}")
    for h in range(4):
        x = u + h
        p.op("v_min_f32", x, "0x40930000", x)
        p.op("v_max_f32", x, "0xc2c80000", x)
        p.op("v_mul_f32", x, f32(LOG2E), x)
        p.op("v_exp_f32", x, x, kind="trans")
    for h in range(4):
        x = u + h
        p.op("v_cvt_pk_bf16_f32", x, x, x)
        p.op("v_and_b32", x, "0xffff0000", x)
        p.op("v_mul_f32", x, f32(LOG2E), x)
    p.dsw("ds_write_b128", PARA, u, 4, 0)
    for i in range(4):
        p.op("v_mov_b32", g2 + i, "0x3f803f80")
    p.dsw("ds_write_b128", V_BIAS, g2, 4, L_ONES - L_BIAS)
    p.cond_end()
    p.label("L_notau")
    sal(p, f"s_cmp_ge_u32 {s(W)}, 10", [W], [])
    p.raw("s_cbranch_scc1 L_nowo", rd=[SCC])
    p.cond_begin()
    uu = 128
    for i in range(12):
        p.op("v_lshlrev_b32", uu + 2 * i, "16", wov + i)
        p.op("v_and_b32", uu + 2 * i + 1, "0xffff0000", wov + i)
    sm = 64
    def pk(name, d, a, b, mods=""):
        p.add(I(f"{name} {v(d, 2)}, {v(a, 2)}, {v(b, 2)}{mods}", "valu", vr(a, 2) + vr(b, 2), vr(d, 2)))
    pk("v_pk_add_f32", sm, uu, uu + 2)
    for i in range(2, 12):
        pk("v_pk_add_f32", sm, sm, uu + 2 * i)
    p.op("v_add_f32", sm, sm, sm + 1)
    for ctl in ("quad_perm:[1,0,3,2]", "quad_perm:[2,3,0,1]"):
        p.add(I(f"v_add_f32_dpp {v(sm)}, {v(sm)}, {v(sm)} {ctl} row_mask:0xf bank_mask:0xf", "dpp", [sm], [sm]))
    p.op("v_mul_f32", sm, f32(-1.0 / 96.0), sm)
    for i in range(12):
        pk("v_pk_add_f32", uu + 2 * i, uu + 2 * i, sm, " op_sel_hi:[1,0]")
    for i in range(12):
        p.op("v_cvt_pk_bf16_f32", wov + i, uu + 2 * i, uu + 2 * i + 1)
    for i in range(3):
        p.dsw("ds_write_b128", WOA, wov + 4 * i, 4, L_WO + 16 * i)
    p.cond_end()
    p.label("L_nowo")
    p.op("v_min_u32", ridx2, "0xa8", ridx2)
    p.op("v_lshl_add_u32", ridx2, ridx2, "2", f"s{S_T0}")
    p.wait(lgkm=0)
    window_map(p, opt, 48, 49, 50, 52, 53, 54, 55)
    gather(p, opt, True)
    sal(p, f"s_cmp_lt_u32 s2, {NS}", [2], [])
    p.salu(f"s_cselect_b32 {s(S_T0)}, {s(W)}, 0", [SCC] + sr(W), sr(S_T0))
    sal(p, f"s_cmp_ge_u32 {s(S_T0)}, 8", [S_T0], [])
    p.raw("s_cbranch_scc1 L_end", rd=[SCC])
    x_loads(p, opt)
    mask_loads(p, opt)
    p.raw("s_branch L_join")


class WBuf:
    def __init__(self, quads):
        self.q = list(quads)
        self.i = 0

    def next(self):
        r = self.q[self.i % len(self.q)]
        self.i += 1
        return r


def ld_wq(p, wb, col, ks):
    r = wb.next()
    off = L_WQ + col * 2 + 16 * ks * 576
    p.dsr("ds_read_b64_tr_b16", r, 2, V_WQ, off)
    p.dsr("ds_read_b64_tr_b16", r + 2, 2, V_WQ, off + 4 * 576)
    return r


def qk_proj(p, hp, X, areas, wb):
    for T in range(3):
        for ks in range(6):
            w = ld_wq(p, wb, hp * 96 + 32 * T, ks)
            p.mfma(areas[T], w, X + 4 * ks, None if ks == 0 else areas[T])


def qk_norm(p, hp, areas, qdst, kdst, order=None):
    Lr = [areas[i // 16] + i % 16 for i in range(48)]
    ss = [V_SC + i for i in range(4)]
    cp = [V_SC + 4, V_SC + 5]
    for g in range(4):
        for i in range(12):
            x = Lr[12 * g + i]
            if i == 0:
                p.op("v_fma_f32", ss[g], x, x, f"s{S_EPSQ}")
            else:
                p.op("v_fmac_f32", ss[g], x, x, rmw=True)
    sc = {}
    for pr in range(2):
        a, b = ss[2 * pr], ss[2 * pr + 1]
        p.swap32(a, b)
        p.op("v_add_f32", a, a, b)
        p.op("v_rsq_f32", a, a, kind="trans")
        if pr == 0:
            p.op("v_mul_f32", a, a, V_TAUV)
        p.op("v_mov_b32", b, a)
        p.swap32(a, b)
        sc[2 * pr], sc[2 * pr + 1] = a, b
    for i in range(48):
        p.op("v_mul_f32", Lr[i], Lr[i], sc[i // 12])
    dst = [qdst + i for i in range(12)] + [kdst + i for i in range(12)]
    pend = list(range(24))
    done_src = set()
    while pend:
        for pi in pend:
            d = dst[pi]
            blockers = [q for q in pend if q != pi and d in (Lr[2 * q], Lr[2 * q + 1])]
            if not blockers:
                p.op("v_cvt_pk_bf16_f32", d, Lr[2 * pi], Lr[2 * pi + 1])
                pend.remove(pi)
                break
        else:
            raise RuntimeError("no legal packing order")


def set_tauv(p, hp):
    def g():
        p.op("v_mov_b32", V_TAUV, f"s{S_TAU + 2 * hp}")
        p.salu(f"s_mov_b64 exec, {s(S_HIMASK, 2)}", sr(S_HIMASK, 2), [EXEC])
        p.op("v_mov_b32", V_TAUV, f"s{S_TAU + 2 * hp + 1}", rmw=True)
        p.salu("s_mov_b64 exec, -1", [], [EXEC])
    p.group(g)


def fill_ones(p, regs_quads, addr=None):
    for (r, n) in regs_quads:
        p.dsr({4: "ds_read_b128", 2: "ds_read_b64"}[n], r, n, V_BIAS, L_ONES - L_BIAS)


def v_proj(p, h, tiles, wb):
    for ks in range(6):
        w = ld_wq(p, wb, 192 + 24 * h, ks)
        for (X, D) in tiles:
            p.mfma(D, X + 4 * ks, w, None if ks == 0 else D)


def v_pack(p, pairs):
    for i in range(0, len(pairs), 5):
        chunk = pairs[i:i + 5]
        def g():
            p.salu(f"s_mov_b64 exec, {s(S_VMASK, 2)}", sr(S_VMASK, 2), [EXEC])
            for d, a in chunk:
                p.op("v_cvt_pk_bf16_f32", d, a, a + 1, rmw=True)
            p.salu("s_mov_b64 exec, -1", [], [EXEC])
        p.group(g)


def unit(p, h, qt, S0, S1, Q, Ka, Kb, Vq, slow, opt):
    boff = (h * 2 + qt) * 7168
    for g in range(4):
        p.dsr("ds_read_b128", S0 + 4 * g, 4, V_BIAS, boff + 1024 * g)
    for g in range(3):
        p.dsr("ds_read_b128", S1 + 4 * g, 4, V_BIAS, boff + 1024 * (4 + g))
    if slow:
        M = [WB, WB + 2, WB + 4, WB + 6, V_SC, V_SC + 2]
        M6 = V_SC + 4
        ad = V_SP
        p.op("v_subrev_u32", ad, str(L_BIAS), V_BIAS)
        p.op("v_bfe_u32", V_SC + 5, ad, "4", "5")
        if qt:
            p.op("v_add_u32", V_SC + 5, "32", V_SC + 5)
            p.op("v_min_u32", V_SC + 5, "48", V_SC + 5)
        p.op("v_mul_u32_u24", V_SC + 5, "0x62", V_SC + 5)
        p.op("v_lshrrev_b32", ad, "9", ad)
        p.op("v_lshl_add_u32", ad, ad, "3", V_SC + 5)
        p.op("v_add_u32", ad, f"s{S_MBASE}", ad)
        for g in range(6):
            p.vld("buffer_load_dwordx2", M[g], 2, ad, SRD_MASK, 16 * g)
        p.op("v_add_u32", V_SC + 5, f"s{S_MBASE}", V_SC + 5)
        p.vld("buffer_load_ushort", M6, 1, V_SC + 5, SRD_MASK, 96)
    p.mfma(S0, Ka, Q, S0)
    p.mfma(S0, Ka + 4, Q + 4, S0, k=8)
    p.mfma(S1, Kb, Q, S1)
    p.mfma(S1, Kb + 4, Q + 4, S1, k=8)
    regs = [S0 + i for i in range(16)] + [S1 + i for i in range(9)]
    if slow:
        tmp = V_SP
        for g in range(6):
            for e in range(4):
                r = regs[4 * g + e]
                src = M[g] + (e >> 1)
                if e & 1:
                    p.op("v_and_b32", tmp, "0xffff0000", src)
                else:
                    p.op("v_lshlrev_b32", tmp, "16", src)
                p.op("v_fmamk_f32", r, tmp, f32(LOG2E), r)
        p.op("v_lshlrev_b32", tmp, "16", M6)
        p.op("v_fmamk_f32", regs[24], tmp, f32(LOG2E), regs[24])
        mx, m2 = V_SC, V_SC + 1
        p.op("v_max3_f32", mx, regs[0], regs[1], regs[2])
        for i in range(3, 25, 2):
            p.op("v_max3_f32", mx, mx, regs[i], regs[i + 1])
        p.op("v_mov_b32", m2, mx)
        p.swap32(mx, m2)
        p.op("v_max_f32", mx, mx, m2)
        for r in regs:
            p.op("v_sub_f32", r, r, mx)
    for r in regs:
        p.op("v_exp_f32", r, r, kind="trans")
    for i in range(8):
        p.op("v_cvt_pk_bf16_f32", S0 + i, S0 + 2 * i, S0 + 2 * i + 1)
    for i in range(4):
        p.op("v_cvt_pk_bf16_f32", S0 + 8 + i, S1 + 2 * i, S1 + 2 * i + 1)
    p.op("v_cvt_pk_bf16_f32", V_PZ, S1 + 8, "0")
    O = S1
    p.mfma(O, Vq[0], S0, None)
    p.mfma(O, Vq[1], S0 + 4, O)
    p.mfma(O, Vq[2], S0 + 8, O)
    p.mfma(O, Vq[3], V_PZ, O, k=8)
    p.op("v_rcp_f32", O + 12, O + 12, kind="trans")
    for i in range(12):
        p.op("v_mul_f32", O + i, O + i, O + 12)
    for i in range(6):
        p.op("v_cvt_pk_bf16_f32", Q + i, O + 2 * i, O + 2 * i + 1)


def prefix(p, opt):
    set_tauv(p, 0)
    wb = WBuf([WB, WB + 4, K0R, K0R + 4, K0R + 8])
    areas = [OQ0, OQ0 + 16, OQ0 + 32]
    qk_proj(p, 0, XA, areas, wb)
    qk_norm(p, 0, areas, OQ0, K0R)


def mask_check(p, opt):
    m = MASK_REGS
    a = V_SC
    stamp(p, opt, 6)
    if opt.mask_check:
        regs = [r + i for r in m for i in range(4)]
        p.op("v_or3_b32", a, regs[0], regs[1], regs[2])
        for i in range(3, 19, 2):
            p.op("v_or3_b32", a, a, regs[i], regs[i + 1])
        p.op("v_or_b32", a, a, regs[19])
        p.op("v_and_b32", a, "0x7fff7fff", a)
        p.add(I(f"v_cmp_ne_u32 vcc, 0, {v(a)}", "valu", [a], [VCC]))
        p.salu(f"s_or_b32 {s(S_T0)}, vcc_lo, vcc_hi", [VCC], sr(S_T0) + [SCC])
        p.salu(f"s_or_b32 {s(S_T0)}, {s(S_T0)}, {s(S_UNSAFE)}", sr(S_T0) + sr(S_UNSAFE), sr(S_T0) + [SCC])
    else:
        p.salu(f"s_or_b32 {s(S_T0)}, {s(S_KILL)}, {s(S_UNSAFE)}", sr(S_KILL) + sr(S_UNSAFE), sr(S_T0) + [SCC])
    if getattr(opt, "loop2", False):
        p.salu("s_cmp_eq_u32 s47, 0", sr(47), [SCC])
        p.salu(f"s_cselect_b32 s46, {s(S_T0)}, s46", [SCC] + sr(S_T0) + sr(46), sr(46))
        p.salu("s_cmp_lg_u32 s46, 0", sr(46), [SCC])
    p.raw("s_cbranch_scc1 L_slow", rd=[SCC])


def body(p, slow, opt):
    S0a, S1a = OQ0 + 12, OQ1 + 12
    ones_addr = V_SP
    stamp(p, opt, 7)
    wb = WBuf([WB, WB + 4, VA, VA + 4, VA + 8])
    areas = [OQ1, OQ0 + 12, OQ1 + 16]
    qk_proj(p, 0, XB, areas, wb)
    qk_norm(p, 0, areas, OQ1, K1R)
    fill_ones(p, [(VA, 4), (VA + 4, 4), (VA + 8, 4), (VA + 12, 2)], ones_addr)
    Vq = [VA, VA + 4, VA + 8, VA + 12]
    for h in (0, 1):
        wb = WBuf([WB, WB + 4, UR] if not slow else [UR, UR])
        if slow:
            wb = WBuf([WB, WB + 4, UR])
        v_proj(p, h, [(XA, S0a), (XB, S1a)], wb)
        v_pack(p, [(VA + i, S0a + 2 * i) for i in range(8)] + [(VA + 8 + i, S1a + 2 * i) for i in range(5)])
        for qt in (0, 1):
            unit(p, h, qt, S0a, S1a, (OQ0, OQ1)[qt] + 6 * h, K0R + 6 * h, K1R + 6 * h, Vq, slow, opt)
    stamp(p, opt, 8)
    set_tauv(p, 1)
    wb = WBuf([WB, WB + 4, UR, K0R, K0R + 4, K0R + 8])
    v_proj(p, 2, [(XA, S0a), (XB, S1a)], wb)
    v_pack(p, [(VA + i, S0a + 2 * i) for i in range(8)] + [(VA + 8 + i, S1a + 2 * i) for i in range(5)])
    wb = WBuf([WB, WB + 4, K0R, K0R + 4, K0R + 8])
    areas = [S0a, S1a, K1R]
    qk_proj(p, 1, XA, areas, wb)
    qk_norm(p, 1, areas, OQ0 + 12, K0R)
    wb = WBuf([WB, WB + 4, K1R, K1R + 4, K1R + 8, UR])
    v_proj(p, 3, [(XA, S1a)], wb)
    VB0 = XA + 16
    fill_ones(p, [(VB0, 4), (VB0 + 4, 4)], ones_addr)
    v_pack(p, [(VB0 + i, S1a + 2 * i) for i in range(8)])
    wb = WBuf([WB, WB + 4, T0R])
    areas = [S1a, XA, K1R]
    qk_proj(p, 1, XB, areas, wb)
    qk_norm(p, 1, areas, OQ1 + 12, K1R)
    wb = WBuf([WB, WB + 4, T0R, T1R, UR])
    v_proj(p, 3, [(XB, XA)], wb)
    VB1 = XB
    fill_ones(p, [(VB1, 4), (VB1 + 4, 2)], ones_addr)
    v_pack(p, [(VB1 + i, XA + 2 * i) for i in range(5)])
    S0b, S1b = XA, XB + 8
    for h in (2, 3):
        vq = Vq if h == 2 else [VB0, VB0 + 4, VB1, VB1 + 4]
        for qt in (0, 1):
            unit(p, h, qt, S0b, S1b, (OQ0, OQ1)[qt] + 6 * h, K0R + 6 * (h - 2), K1R + 6 * (h - 2), vq, slow, opt)
    stamp(p, opt, 9)
    vwo = V_SP
    a, b = V_SC, V_SC + 1
    p.op("v_subrev_u32", a, str(L_BIAS), V_BIAS)
    p.op("v_bfe_u32", b, a, "6", "2")
    p.op("v_lshrrev_b32", vwo, "9", a)
    p.op("v_lshl_add_u32", b, vwo, "2", b)
    p.op("v_mul_u32_u24", b, "0xc0", b)
    p.op("v_bfe_u32", vwo, a, "8", "1")
    p.op("v_lshl_add_u32", b, vwo, "5", b)
    p.op("v_bfe_u32", vwo, a, "4", "1")
    p.op("v_lshl_add_u32", b, vwo, "4", b)
    p.op("v_bfe_u32", vwo, a, "5", "1")
    p.op("v_lshl_add_u32", b, vwo, "3", b)
    p.op("v_add_u32", vwo, str(L_WO), b)
    Y = [[XA, XA + 16, XA + 32], [K1R, K1R + 16, K1R + 32]]
    wb = WBuf([T0R, T1R, WB + 6 - 2])
    wb = WBuf([T0R, T1R, V_SC + 2])
    for T in range(3):
        for ks in range(6):
            w = wb.next()
            p.dsr("ds_read_b64_tr_b16", w, 2, vwo, (16 * ks) * 192 + 64 * T)
            p.dsr("ds_read_b64_tr_b16", w + 2, 2, vwo, (16 * ks + 8) * 192 + 64 * T)
            for tt in (0, 1):
                p.mfma(Y[tt][T], w, (OQ0, OQ1)[tt] + 4 * ks, None if ks == 0 else Y[tt][T])
    for tt in (0, 1):
        y = [Y[tt][i // 16] + i % 16 for i in range(48)]
        ss, cp = (V_SC, V_SC + 1) if tt == 0 else (V_PZ, V_PZ + 1)
        for i in range(48):
            if i == 0:
                p.op("v_fma_f32", ss, y[0], y[0], f"s{S_EPSLN}")
            else:
                p.op("v_fmac_f32", ss, y[i], y[i], rmw=True)
        p.op("v_mov_b32", cp, ss)
        p.swap32(ss, cp)
        p.op("v_add_f32", ss, ss, cp)
        p.op("v_rsq_f32", ss, ss, kind="trans")
        p.op("v_mul_f32", ss, f32(math.sqrt(96.0)), ss)
        for i in range(48):
            p.op("v_mul_f32", y[i], y[i], ss)
        for T in range(3):
            for jj in range(2):
                base = Y[tt][T] + 8 * jj
                for i in range(4):
                    p.op("v_cvt_pk_bf16_f32", base + i, base + 2 * i, base + 2 * i + 1)
                p.vst("buffer_store_dwordx4", base, 4, (V_OFFA, V_OFFB)[tt], SRD_OUT, 64 * T + 32 * jj, opt.sflag)
    stamp(p, opt, 10)
    if getattr(opt, "loop2", False):
        p.salu("s_add_u32 s47, s47, 1", sr(47), sr(47) + [SCC]).tag = "fence"
        p.salu("s_cmp_lt_u32 s47, 2", sr(47), [SCC]).tag = "fence"
        p.raw("s_cbranch_scc1 L_again", rd=[SCC])
    if opt.debug:
        p.wait(vm=0)
    stamp_flush(p, opt)
    p.raw("s_endpgm")


HEADER = open("standalone__window_attn_swin_v2__vision.s.ref").read().split("; Override")[0]


def generate(opt, sched=None):
    segs = {}
    p = Prog(); pro_common(p, opt); segs["com"] = p.ins
    p = Prog(); path_o(p, opt); segs["po"] = p.ins
    p = Prog(); path_y(p, opt); segs["py"] = p.ins
    p = Prog()
    if opt.debug:
        p.wait(vm=5 if opt.mask_check else 0)
        stamp(p, opt, 5)
    prefix(p, opt); segs["pre"] = p.ins
    p = Prog(); mask_check(p, opt); segs["chk"] = p.ins
    p = Prog(); body(p, False, opt); segs["fast"] = p.ins
    p = Prog(); body(p, True, opt); segs["slow"] = p.ins
    if sched:
        for k in ("pre", "fast", "slow"):
            segs[k] = sched(segs[k])
    if getattr(opt, "drop", None):
        for k in ("fast",):
            segs[k] = [i for i in flatten(segs[k]) if not (i.kind in opt.drop and not i.text.startswith("v_mov_b32 v6") and not i.text.startswith("v_mov_b32 v7"))]
    st = WaitState()
    com = insert_nops(insert_waits(flatten(segs["com"]), st))
    sty = st.copy()
    po = insert_nops(insert_waits(flatten(segs["po"]), st), com)
    py = insert_nops(insert_waits(flatten(segs["py"]), sty), com)
    tail = lambda w: [(x.text) for x in w.vm[-(17 if opt.mask_check else 12):]]
    assert tail(st) == tail(sty), (tail(st), tail(sty))
    assert not st.lg and not sty.lg
    st.vm = st.vm[-(17 if opt.mask_check else 12):]
    mid = insert_nops(insert_waits(flatten(segs["pre"] + segs["chk"]), st), [I("s_nop 15", "nop", states=16)])
    head = com + po + mid
    fast = insert_nops(insert_waits(flatten(segs["fast"]), st.copy()), head)
    slow = insert_nops(insert_waits(flatten(segs["slow"]), st.copy()), head)
    name = "standalone__window_attn_swin_v2__vision_kernel"
    txt = HEADER
    txt += f"; @launch grid=({NWG},1,1) block=({64 * WPW},1,1) lds={LDS_BYTES}\n"
    txt += f""".amdgcn_target "amdgcn-amd-amdhsa--gfx950"
.text
.globl {name}
.p2align 8
.type {name},@function
{name}:
"""
    txt += render(head) + "\n" + render(fast) + "\nL_slow:\n" + render(slow) + "\n" + render(py) + "\nL_end:\n    s_endpgm\n"
    txt += f""".section .rodata,"a"
.p2align 6
.amdhsa_kernel {name}
  .amdhsa_next_free_vgpr {NVGPR}
  .amdhsa_next_free_sgpr 102
  .amdhsa_accum_offset {NVGPR}
  .amdhsa_group_segment_fixed_size 0
  .amdhsa_kernarg_size 96
  .amdhsa_user_sgpr_count 2
  .amdhsa_user_sgpr_kernarg_segment_ptr 1
  .amdhsa_system_sgpr_workgroup_id_x 1
.end_amdhsa_kernel
"""
    stats = {}
    for nm, seq in (("head", head), ("py", py), ("fast", fast), ("slow", slow)):
        c = {}
        for i in seq:
            c[i.kind] = c.get(i.kind, 0) + 1
        c["nopstates"] = sum(i.states for i in seq if i.kind == "nop")
        stats[nm] = c
    return txt, stats


if __name__ == "__main__":
    opt = Opt()
    if "--debug" in sys.argv:
        opt.debug = True
        sys.argv.remove("--debug")
    args = [a for a in sys.argv[1:] if not a.startswith("--")]
    out = args[0] if args else "standalone__window_attn_swin_v2__vision.s"
    for a in sys.argv:
        if a.startswith("--drop="):
            opt.drop = a[7:].split(",")
    if "--loop2" in sys.argv:
        opt.loop2 = True
    for a in sys.argv:
        for fl in ("xflag", "mflag", "sflag"):
            if a.startswith(f"--{fl}="):
                setattr(opt, fl, " " + a.split("=")[1].replace(",", " "))
    if "--nomask" in sys.argv:
        opt.mask_check = False
    if "--pf" in sys.argv:
        opt.prefetch = True
    import sched
    sc = None if "--nosched" in sys.argv else (lambda x: sched.schedule(x, verbose=True))
    txt, stats = generate(opt, sc)
    open(out, "w").write(txt)
    for k, c in stats.items():
        print(k, c)
```

```python
import sys, struct, math
sys.path.insert(0, "gen")
from asmlib import *

def f32(x):
    return "0x%08x" % struct.unpack("<I", struct.pack("<f", x))[0]

LOG2E = 1.4426950408889634
NWG = 252
NS = 27
WPW = 12
X_BYTES = 378 * 378 * 96 * 2
MASK_BYTES = 2916 * 49 * 49 * 2

L_WQ = 0
L_WO = 55296
L_BIAS = 73728
L_ONES = L_BIAS + 57344
L_TAB = L_ONES + 1024
L_PAR = L_TAB + 3072
L_END = L_PAR + 64
LDS_BYTES = L_END

S_W = 3
SRD_X, SRD_OUT, SRD_WQ, SRD_WO, SRD_MASK, SRD_RIDX, SRD_RC = 4, 8, 12, 16, 20, 24, 28
S_PTR = 32
S_W1 = 48
S_W2 = 64
S_LS = 96
S_T0, S_T1, S_T2, S_T3 = 98, 99, 100, 101
S_TAU = 32
S_EPSQ, S_EPSLN = 36, 37
S_VMASK = 38
S_HIMASK = 40
S_UNSAFE = 42
S_WIN = 43
S_MBASE = 44
S_KILL, S_G2 = 45, 46

V_OFFA, V_OFFB, V_WQ, V_BIAS = 0, 1, 2, 3
V_PZ = 4
V_SC = 6
XA, XB = 12, 36
OQ0, T0R, OQ1, T1R = 60, 84, 88, 112
K1R, UR, K0R, VA, WB = 116, 128, 132, 144, 158
V_TAUV, V_SP = 166, 167
NVGPR = 168

TAU_THR = 24.0
NEG_BIG = -30000.0


class Opt:
    mask_check = True
    debug = None
    xflag = ""
    mflag = ""
    sflag = ""
    prefetch = False


S_STAMP = 64
NSTAMP = 12


def stamp(p, opt, idx, early=False):
    if not opt.debug:
        return
    if early:
        p.add(I(f"s_memtime {s(S_T2, 2)}", "smem", [], sr(S_T2, 2)))
        p.op("v_mov_b32", WB + idx, f"s{S_T2}")
        return
    p.add(I(f"s_memtime {s(S_T2, 2)}", "smem", [], sr(S_T2, 2)))
    p.salu(f"s_mov_b32 {s(S_STAMP + idx)}, {s(S_T2)}", sr(S_T2), sr(S_STAMP + idx)).tag = "fence"
    p.raw("; stamp fence", kind="label") if False else None


def stamp_flush(p, opt):
    if not opt.debug:
        return
    stamp(p, opt, NSTAMP - 1)
    p.smem("s_load_dwordx2", 48, 2, 0, 88)
    build_srd(p, 52, 48, 1 << 22)
    p.salu(f"s_lshl_b32 {s(S_T0)}, {s(S_WIN)}, 6", sr(S_WIN), sr(S_T0) + [SCC])
    p.add(I(f"s_getreg_b32 {s(S_STAMP + 12)}, hwreg(HW_REG_HW_ID)", "salu", [], sr(S_STAMP + 12)))
    p.salu(f"s_lshl_b32 {s(S_STAMP + 13)}, s2, 4", sr(2), sr(S_STAMP + 13) + [SCC])
    p.salu(f"s_add_u32 {s(S_STAMP + 13)}, {s(S_STAMP + 13)}, {s(S_W)}", sr(S_STAMP + 13) + sr(S_W), sr(S_STAMP + 13) + [SCC])
    p.add(I(f"s_memrealtime {s(S_STAMP + 14, 2)}", "smem", [], sr(S_STAMP + 14, 2)))
    p.op("v_mov_b32", 60, f"s{S_T0}")
    for i in range(15):
        p.op("v_mov_b32", 64 + i, f"s{S_STAMP + i}")
    p.op("v_mov_b32", 64 + 15, f"s{S_STAMP + 16}")
    p.salu("s_mov_b64 exec, 1", [], [EXEC])
    for i in range(4):
        p.vst("buffer_store_dwordx4", 64 + 4 * i, 4, 60, 52, 16 * i)


def build_srd(p, srd, ptr, nbytes):
    p.salu(f"s_mov_b32 {s(srd)}, {s(ptr)}", sr(ptr), sr(srd))
    p.salu(f"s_and_b32 {s(srd + 1)}, {s(ptr + 1)}, 0xffff", sr(ptr + 1), sr(srd + 1) + [SCC])
    p.salu(f"s_mov_b32 {s(srd + 2)}, {nbytes}", [], sr(srd + 2))
    p.salu(f"s_mov_b32 {s(srd + 3)}, 0x00020000", [], sr(srd + 3))


MASK_REGS = [VA, VA + 4, VA + 8, UR, K1R + 4]


def sal(p, text, rd=(), wr=(), scc=True):
    return p.salu(text, [SB + x for x in rd], [SB + x for x in wr] + ([SCC] if scc else []))


L, HI16, N31, L16 = 60, 61, 62, 67
ta, tb, tc, td = 63, 64, 65, 66
DMA, WOA, TE, GA, GB, MO0, MO4, GDST, PARA = 68, 69, 70, 71, 72, 73, 74, 75, 77
wov, rcv, ridx2, ridx, u, g2 = 116, 86, 87, 88, 92, 108
W = S_W


def window_map(p, opt, sA, sB, sC, sD, sf, swi, swj):
    sal(p, f"s_mul_i32 {s(sA)}, s2, 12", [2], [sA], False)
    sal(p, f"s_add_u32 {s(sA)}, {s(sA)}, {s(W)}", [sA, W], [sA])
    sal(p, f"s_sub_u32 {s(sA)}, {s(sA)}, {12 * NS}", [sA], [sA])
    sal(p, f"s_lshl_b32 {s(sB)}, s2, 2", [2], [sB])
    sal(p, f"s_add_u32 {s(sB)}, {s(sB)}, {s(W)}", [sB, W], [sB])
    sal(p, f"s_add_u32 {s(sC)}, {s(sB)}, {12 * (NWG - NS) - 4}", [sB], [sC])
    sal(p, f"s_cmp_lt_u32 {s(W)}, 4", [W], [])
    p.salu(f"s_cselect_b32 {s(sC)}, 2808, {s(sC)}", [SCC] + sr(sC), sr(sC))
    p.salu(f"s_cselect_b32 {s(sD)}, {s(sB)}, 999", [SCC] + sr(sB), sr(sD))
    sal(p, f"s_cmp_lt_u32 s2, {NS}", [2], [])
    p.salu(f"s_cselect_b32 {s(sf)}, {s(sC)}, {s(sA)}", [SCC] + sr(sC) + sr(sA), sr(sf))
    p.salu(f"s_cselect_b32 {s(sD)}, {s(sD)}, 999", [SCC] + sr(sD), sr(sD))
    sal(p, f"s_mul_i32 {s(swi)}, {s(sf)}, 19785", [sf], [swi], False)
    sal(p, f"s_lshr_b32 {s(swi)}, {s(swi)}, 20", [swi], [swi])
    sal(p, f"s_mul_i32 {s(swj)}, {s(swi)}, 53", [swi], [swj], False)
    sal(p, f"s_sub_u32 {s(swj)}, {s(sf)}, {s(swj)}", [sf, swj], [swj])
    sal(p, f"s_sub_u32 {s(sA)}, {s(sD)}, 54", [sD], [sA])
    sal(p, f"s_cmp_lt_u32 {s(sD)}, 54", [sD], [])
    p.salu(f"s_cselect_b32 {s(sA)}, 53, {s(sA)}", [SCC] + sr(sA), sr(sA))
    p.salu(f"s_cselect_b32 {s(sB)}, {s(sD)}, 53", [SCC] + sr(sD), sr(sB))
    sal(p, f"s_cmp_lt_u32 {s(sD)}, 107", [sD], [])
    p.salu(f"s_cselect_b32 {s(swi)}, {s(sA)}, {s(swi)}", [SCC] + sr(sA) + sr(swi), sr(swi))
    p.salu(f"s_cselect_b32 {s(swj)}, {s(sB)}, {s(swj)}", [SCC] + sr(sB) + sr(swj), sr(swj))
    p.salu(f"s_cselect_b32 {s(S_KILL)}, 1, 0", [SCC], sr(S_KILL))
    sal(p, f"s_mul_i32 {s(S_WIN)}, {s(swi)}, 54", [swi], [S_WIN], False)
    sal(p, f"s_add_u32 {s(S_WIN)}, {s(S_WIN)}, {s(swj)}", [S_WIN, swj], [S_WIN])
    sal(p, f"s_mul_i32 {s(S_MBASE)}, {s(S_WIN)}, 4802", [S_WIN], [S_MBASE], False)
    sal(p, f"s_mul_i32 {s(swi)}, {s(swi)}, 7", [swi], [swi], False)
    sal(p, f"s_add_u32 {s(swi)}, {s(swi)}, 3", [swi], [swi])
    sal(p, f"s_mul_i32 {s(swj)}, {s(swj)}, 7", [swj], [swj], False)
    sal(p, f"s_add_u32 {s(swj)}, {s(swj)}, 3", [swj], [swj])
    sal(p, f"s_movk_i32 {s(sA)}, 378", [], [sA], False)
    p.add(I(f"v_cmp_gt_u32 {s(sC, 2)}, 17, {v(N31)}", "valu", [N31], sr(sC, 2)))
    xa, xb, xc, xd = 78, 79, 80, 81
    for tt, dst in ((0, V_OFFA), (1, V_OFFB)):
        n, ty, tx, a = xa, xb, xc, xd
        if tt == 0:
            n = N31
        else:
            p.op("v_add_u32", n, "32", N31)
        p.op("v_mul_u32_u24", ty, "37", n)
        p.op("v_lshrrev_b32", ty, "8", ty)
        p.op("v_mad_i32_i24", tx, ty, "-7", n)
        p.op("v_add_u32", ty, f"s{swi}", ty)
        p.op("v_add_u32", tx, f"s{swj}", tx)
        p.op("v_subrev_u32", a, f"s{sA}", ty)
        p.op("v_min_u32", ty, ty, a)
        p.op("v_subrev_u32", a, f"s{sA}", tx)
        p.op("v_min_u32", tx, tx, a)
        p.op("v_mad_u32_u24", a, ty, f"s{sA}", tx)
        p.op("v_mul_u32_u24", a, "0xc0", a)
        if tt == 0:
            p.op("v_add_u32", dst, a, HI16)
        else:
            p.op("v_add_u32", a, a, HI16)
            p.op("v_bfrev_b32", ty, "1")
            p.add(I(f"v_cndmask_b32 {v(dst)}, {v(ty)}, {v(a)}, {s(sC, 2)}", "valu", [ty, a] + sr(sC, 2), [dst]))
    if opt.mask_check:
        p.op("v_add_u32", MO0, f"s{S_MBASE}", L16)
        p.op("v_add_u32", xa, "4096", L16)
        p.op("v_min_u32", xa, "4786", xa)
        p.op("v_add_u32", MO4, f"s{S_MBASE}", xa)


def x_loads(p, opt):
    for tt, off in ((0, V_OFFA), (1, V_OFFB)):
        for k in range(6):
            p.vld("buffer_load_dwordx4", (XA, XB)[tt] + 4 * k, 4, off, SRD_X, 32 * k, opt.xflag)


def mask_loads(p, opt):
    if opt.mask_check:
        for i in range(5):
            if i < 4:
                p.vld("buffer_load_dwordx4", MASK_REGS[i], 4, MO0, SRD_MASK, 1024 * i, opt.mflag)
            else:
                p.vld("buffer_load_dwordx4", MASK_REGS[i], 4, MO4, SRD_MASK, 0, opt.mflag)


def pro_common(p, opt):
    p.salu(f"s_cmp_ge_u32 s2, {NWG}", sr(2), [SCC])
    p.raw("s_cbranch_scc1 L_end", rd=[SCC])
    if opt.debug:
        p.add(I(f"s_memtime {s(S_T2, 2)}", "smem", [], sr(S_T2, 2)))
        p.op("v_mov_b32", WB + 7, f"s{S_T2}")
        p.add(I(f"s_memrealtime {s(S_T2, 2)}", "smem", [], sr(S_T2, 2)))
        p.op("v_mov_b32", WB + 6, f"s{S_T2}")
    for srd, off in ((SRD_WQ, 8), (SRD_WO, 16), (SRD_RC, 48), (SRD_RIDX, 56), (SRD_X, 0), (SRD_MASK, 64), (SRD_OUT, 72)):
        p.smem("s_load_dwordx2", srd, 2, 0, off)
    p.smem("s_load_dwordx2", 32, 2, 0, 24)
    p.smem("s_load_dwordx4", 36, 4, 0, 32)
    p.op("v_lshrrev_b32", ta, "6", 0)
    p.op("v_and_b32", L, "63", 0)
    p.add(I(f"v_readfirstlane_b32 {s(W)}, {v(ta)}", "rdlane", [ta], sr(W)))
    for srd, nb in ((SRD_WQ, 96 * 288 * 2), (SRD_WO, 96 * 96 * 2), (SRD_RC, 169 * 4), (SRD_RIDX, 49 * 49 * 4), (SRD_X, X_BYTES),
                    (SRD_MASK, MASK_BYTES), (SRD_OUT, X_BYTES)):
        sal(p, f"s_mov_b32 {s(srd + 2)}, {nb}", [], [srd + 2], False)
        sal(p, f"s_mov_b32 {s(srd + 3)}, 0x00020000", [], [srd + 3], False)
    p.op("v_lshrrev_b32", HI16, "5", L)
    p.op("v_lshlrev_b32", HI16, "4", HI16)
    p.op("v_and_b32", N31, "31", L)
    p.op("v_lshlrev_b32", L16, "4", L)
    sA, sB, sC, sD = 48, 49, 50, 51
    sal(p, f"s_sub_u32 {s(sB)}, {s(W)}, 3", [W], [sB])
    sal(p, f"s_max_i32 {s(sB)}, {s(sB)}, 0", [sB], [sB])
    sal(p, f"s_lshl_b32 {s(sA)}, {s(sB)}, 6", [sB], [sA])
    p.op("v_add_u32", ta, f"s{sA}", L)
    p.op("v_mul_u32_u24", tb, "1821", ta)
    p.op("v_lshrrev_b32", tb, "16", tb)
    p.op("v_mul_u32_u24", tb, "36", tb)
    p.op("v_sub_u32", tb, ta, tb)
    p.op("v_subrev_u32", tc, "6", tb)
    p.add(I(f"v_cmp_gt_u32 {s(54, 2)}, 6, {v(tc)}", "valu", [tc], sr(54, 2)))
    p.op("v_subrev_u32", tc, "12", tb)
    p.add(I(f"v_cmp_gt_u32 {s(56, 2)}, 6, {v(tc)}", "valu", [tc], sr(56, 2)))
    p.op("v_add_u32", tb, "6", ta)
    p.op("v_subrev_u32", tc, "6", ta)
    p.add(I(f"v_cndmask_b32 {v(ta)}, {v(ta)}, {v(tb)}, {s(54, 2)}", "valu", [ta, tb] + sr(54, 2), [ta]))
    p.add(I(f"v_cndmask_b32 {v(ta)}, {v(ta)}, {v(tc)}, {s(56, 2)}", "valu", [ta, tc] + sr(56, 2), [ta]))
    p.op("v_lshlrev_b32", DMA, "4", ta)
    sal(p, f"s_lshl_b32 {s(sC)}, {s(sB)}, 10", [sB], [sC])
    sal(p, f"s_mov_b32 {s(sD)}, 0", [], [sD], False)
    sqt, sgrp = 58, 59
    sal(p, f"s_cmp_ge_u32 {s(W)}, 6", [W], [])
    p.salu(f"s_cselect_b32 {s(sqt)}, 1, 0", [SCC], sr(sqt))
    sal(p, f"s_mul_i32 {s(sgrp)}, {s(sqt)}, 6", [sqt], [sgrp], False)
    sal(p, f"s_sub_u32 {s(sgrp)}, {s(W)}, {s(sgrp)}", [W, sgrp], [sgrp])
    sal(p, f"s_lshl_b32 {s(sA)}, {s(sqt)}, 5", [sqt], [sA])
    p.op("v_add_u32", ta, f"s{sA}", N31)
    p.op("v_min_u32", ta, "48", ta)
    p.op("v_mul_u32_u24", ta, "0xc4", ta)
    sal(p, f"s_lshl_b32 {s(sA)}, {s(sgrp)}, 5", [sgrp], [sA])
    p.op("v_add3_u32", GA, ta, HI16, f"s{sA}")
    sal(p, f"s_mul_i32 {s(sA)}, {s(sqt)}, 7", [sqt], [sA], False)
    sal(p, f"s_add_u32 {s(sA)}, {s(sA)}, {s(sgrp)}", [sA, sgrp], [sA])
    sal(p, f"s_lshl_b32 {s(S_G2)}, {s(sA)}, 10", [sA], [S_G2])
    sal(p, f"s_cmp_lt_u32 {s(W)}, 4", [W], [])
    p.raw("s_cbranch_scc0 L_pathY", rd=[SCC])


def dma_w(p, opt, lbl):
    sC, sD = 50, 51
    sal(p, f"s_cmp_lt_u32 {s(W)}, 3", [W], [])
    p.raw(f"s_cbranch_scc1 {lbl}", rd=[SCC])
    p.cond_begin()
    for i in range(6):
        p.salu(f"s_mov_b32 m0, {s(sC)}", sr(sC), [M0])
        p.dma(DMA, SRD_WQ, sD).tag = "w"
        if i < 5:
            sal(p, f"s_addk_i32 {s(sC)}, 9216", [sC], [sC])
            sal(p, f"s_addk_i32 {s(sD)}, 9216", [sD], [sD])
    p.cond_end()
    p.label(lbl)


def lds_bases(p, opt):
    p.op("v_bfe_u32", ta, L, "2", "2")
    p.op("v_lshrrev_b32", tb, "1", HI16)
    p.op("v_add_u32", ta, ta, tb)
    p.op("v_mul_u32_u24", ta, "0x240", ta)
    p.op("v_bfe_u32", tb, L, "4", "1")
    p.op("v_lshl_add_u32", ta, tb, "5", ta)
    p.op("v_and_b32", tb, "3", L)
    p.op("v_lshl_add_u32", V_WQ, tb, "3", ta)
    p.op("v_add_u32", V_BIAS, str(L_BIAS), L16)
    p.op("v_mov_b32", V_PZ + 1, "0")
    p.op("v_add_u32", GDST, f"s{S_G2}", V_BIAS)
    p.op("v_mov_b32", PARA, str(L_PAR))
    sal(p, f"s_mov_b32 {s(S_HIMASK)}, 0", [], [S_HIMASK], False)
    sal(p, f"s_mov_b32 {s(S_HIMASK + 1)}, -1", [], [S_HIMASK + 1], False)
    sal(p, f"s_mov_b32 {s(S_T0)}, {L_TAB}", [], [S_T0], False)


def gather(p, opt, extra):
    for r in range(4):
        p.op("v_min_u32", ridx + r, "0xa8", ridx + r)
        p.op("v_lshl_add_u32", ridx + r, ridx + r, "2", f"s{S_T0}")
    p.wait(lgkm=0)
    if opt.debug:
        for k, r in ((0, 7), (16, 6), (1, 1), (2, 2)):
            p.add(I(f"v_readfirstlane_b32 {s(S_STAMP + k)}, {v(WB + r)}", "rdlane", [WB + r], sr(S_STAMP + k)))
    p.wait_tag("w")
    p.raw("s_barrier")
    stamp(p, opt, 3)
    g = u
    p.dsr("ds_read_b128", 64, 4, PARA, 0) if False else None
    p.dsr("ds_read_b128", 112, 4, PARA, 0)
    for h in range(4):
        for r in range(4):
            p.dsr("ds_read_b32", g + 4 * h + r, 1, ridx + r, 768 * h)
    for h in range(4):
        p.add(I(f"v_readfirstlane_b32 {s(S_TAU + h)}, {v(112 + h)}", "rdlane", [112 + h], sr(S_TAU + h)))
    for h in range(4):
        p.dsw("ds_write_b128", GDST, g + 4 * h, 4, 14336 * h)
    if extra:
        sal(p, f"s_sub_u32 {s(S_T1)}, {s(W)}, 4", [W], [S_T1])
        sal(p, f"s_cmp_ge_u32 {s(S_T1)}, 2", [S_T1], [])
        p.raw("s_cbranch_scc1 L_nog2", rd=[SCC])
        p.cond_begin()
        for h in range(4):
            p.dsr("ds_read_b32", g2 + h, 1, ridx2, 768 * h)
        sal(p, f"s_mul_i32 {s(S_T1)}, {s(S_T1)}, 7168", [S_T1], [S_T1], False)
        p.op("v_add_u32", ta, f"s{S_T1}", V_BIAS)
        p.op("v_mov_b32", tb, f32(NEG_BIG))
        for h in range(4):
            p.add(I(f"v_cndmask_b32 {v(g2 + h)}, {v(g2 + h)}, {v(tb)}, {s(S_HIMASK, 2)}", "valu",
                    [g2 + h, tb] + sr(S_HIMASK, 2), [g2 + h]))
            p.dsw("ds_write_b32", ta, g2 + h, 1, 14336 * h + 6144)
        p.cond_end()
        p.label("L_nog2")
    sal(p, f"s_mov_b32 s47, 0", [], [47], False)
    sal(p, f"s_mov_b32 {s(S_EPSQ)}, {f32(0.5e-12)}", [], [S_EPSQ], False)
    sal(p, f"s_mov_b32 {s(S_EPSLN)}, {f32(48e-5)}", [], [S_EPSLN], False)
    sal(p, f"s_mov_b32 {s(S_VMASK)}, 0x00ffffff", [], [S_VMASK], False)
    sal(p, f"s_mov_b32 {s(S_VMASK + 1)}, 0x00ffffff", [], [S_VMASK + 1], False)
    sal(p, f"s_max_u32 {s(S_T0)}, {s(S_TAU)}, {s(S_TAU + 1)}", [S_TAU, S_TAU + 1], [S_T0])
    sal(p, f"s_max_u32 {s(S_T1)}, {s(S_TAU + 2)}, {s(S_TAU + 3)}", [S_TAU + 2, S_TAU + 3], [S_T1])
    sal(p, f"s_max_u32 {s(S_T0)}, {s(S_T0)}, {s(S_T1)}", [S_T0, S_T1], [S_T0])
    sal(p, f"s_cmp_gt_u32 {s(S_T0)}, {f32(TAU_THR * LOG2E)}", [S_T0], [])
    p.salu(f"s_cselect_b32 {s(S_UNSAFE)}, 1, 0", [SCC], sr(S_UNSAFE))
    p.wait(lgkm=0)
    p.raw("s_barrier")
    stamp(p, opt, 4)


def path_o(p, opt):
    if opt.prefetch:
        p.add(I(f"s_getpc_b64 {s(68, 2)}", "salu", [], sr(68, 2)))
        sal(p, f"s_lshl_b32 {s(70)}, {s(W)}, 13", [W], [70])
        p.op("v_lshl_add_u32", 82, L, "7", "s70")
        p.add(I(f"global_load_dword {v(83)}, {v(82)}, {s(68, 2)}", "vld", [82] + sr(68, 2), [83]))
    window_map(p, opt, 60, 61, 62, 64, 65, 66, 67)
    p.wait(lgkm=0)
    stamp(p, opt, 1, early=True)
    dma_w(p, opt, "L_nodma")
    p.vld("buffer_load_dwordx4", ridx, 4, GA, SRD_RIDX, 0)
    p.raw("s_barrier")
    x_loads(p, opt)
    stamp(p, opt, 2, early=True)
    lds_bases(p, opt)
    gather(p, opt, False)
    mask_loads(p, opt)
    p.label("L_join")


def path_y(p, opt):
    p.label("L_pathY")
    sA, sB = 48, 49
    p.op("v_lshrrev_b32", ta, "2", L)
    sal(p, f"s_sub_u32 {s(sB)}, {s(W)}, 4", [W], [sB])
    sal(p, f"s_lshl_b32 {s(sA)}, {s(sB)}, 4", [sB], [sA])
    p.op("v_add_u32", ta, f"s{sA}", ta)
    p.op("v_mul_u32_u24", ta, "0xc0", ta)
    p.op("v_and_b32", tb, "3", L)
    p.op("v_mad_u32_u24", WOA, tb, "48", ta)
    sal(p, f"s_sub_u32 {s(sA)}, {s(W)}, 9", [W], [sA])
    sal(p, f"s_lshl_b32 {s(sA)}, {s(sA)}, 8", [sA], [sA])
    p.op("v_lshl_add_u32", TE, L, "2", f"s{sA}")
    sal(p, f"s_lshl_b32 {s(sB)}, {s(sB)}, 5", [sB], [sB])
    p.op("v_add_u32", GB, f"s{sB}", N31)
    p.op("v_min_u32", GB, "48", GB)
    p.op("v_mul_u32_u24", GB, "0xc4", GB)
    p.wait(lgkm=0)
    stamp(p, opt, 1, early=True)
    p.smem("s_load_dwordx2", S_LS, 2, 32, 0)
    p.smem("s_load_dwordx16", S_W2, 16, 38, 0)
    p.smem("s_load_dwordx16", S_W2 + 16, 16, 38, 64)
    p.vld("buffer_load_dword", rcv, 1, TE, SRD_RC, 0)
    for i in range(6):
        p.salu(f"s_mov_b32 m0, {s(50)}", sr(50), [M0])
        p.dma(DMA, SRD_WQ, 51).tag = "w"
        if i < 5:
            sal(p, f"s_addk_i32 {s(50)}, 9216", [50], [50])
            sal(p, f"s_addk_i32 {s(51)}, 9216", [51], [51])
    for i in range(3):
        p.vld("buffer_load_dwordx4", wov + 4 * i, 4, WOA, SRD_WO, 16 * i)
    p.vld("buffer_load_dwordx4", ridx, 4, GA, SRD_RIDX, 0)
    p.vld("buffer_load_dword", ridx2, 1, GB, SRD_RIDX, 192)
    p.smem("s_load_dwordx16", S_W1, 16, 36, 0)
    p.raw("s_barrier")
    stamp(p, opt, 2, early=True)
    lds_bases(p, opt)
    sal(p, f"s_cmp_lt_u32 {s(W)}, 9", [W], [])
    p.raw("s_cbranch_scc1 L_notab", rd=[SCC])
    p.cond_begin()
    p.raw("s_setprio 3", kind="salu")
    p.wait(lgkm=0)
    hb = u
    tmps = [S_LS, S_T1, S_T2, S_T3]
    for j in range(16):
        st = tmps[j % 4]
        nm = "s_pack_hh_b32_b16" if j & 1 else "s_pack_ll_b32_b16"
        sal(p, f"{nm} {s(st)}, {s(S_W1 + (j >> 1))}, {s(S_W1 + 8 + (j >> 1))}", [S_W1 + (j >> 1), S_W1 + 8 + (j >> 1)], [st], False)
        p.op("v_dot2_f32_bf16", hb + j, rcv, f"s{st}", "0", kind="dot")
    for j in range(8):
        p.op("v_cvt_pk_bf16_f32", hb + j, hb + 2 * j, hb + 2 * j + 1)
    for j in range(8):
        p.op("v_pk_max_i16", hb + j, hb + j, "0")
    acc = hb + 8
    k = 0
    for jp in range(8):
        for h in range(4):
            st = tmps[k % 4]
            k += 1
            r0, r1 = S_W2 + 4 * jp + (h >> 1), S_W2 + 4 * jp + 2 + (h >> 1)
            nm = "s_pack_hh_b32_b16" if h & 1 else "s_pack_ll_b32_b16"
            sal(p, f"{nm} {s(st)}, {s(r0)}, {s(r1)}", [r0, r1], [st], False)
            if jp == 0:
                p.op("v_dot2_f32_bf16", acc + h, hb, f"s{st}", "0", kind="dot")
            else:
                p.op("v_dot2_f32_bf16", acc + h, hb + jp, f"s{st}", acc + h, kind="dot").tag = "acc"
    p.op("v_mov_b32", ta, f32(16.0 * LOG2E))
    p.op("v_add_u32", TE, str(L_TAB), TE)
    for step in range(9):
        for h in range(4):
            a = acc + h
            if step == 0: p.op("v_cvt_pk_bf16_f32", a, a, a)
            if step == 1: p.op("v_and_b32", a, "0xffff0000", a)
            if step == 2: p.op("v_mul_f32", a, f32(-LOG2E), a)
            if step == 3: p.op("v_exp_f32", a, a, kind="trans")
            if step == 4: p.op("v_add_f32", a, "1.0", a)
            if step == 5: p.op("v_rcp_f32", a, a, kind="trans")
            if step == 6: p.op("v_cvt_pk_bf16_f32", a, a, a)
            if step == 7: p.op("v_and_b32", a, "0xffff0000", a)
            if step == 8:
                p.op("v_fmaak_f32", a, a, ta, f32(-8.0 * LOG2E))
                p.dsw("ds_write_b32", TE, a, 1, 768 * h)
    p.raw("s_setprio 0", kind="salu")
    p.cond_end()
    p.label("L_notab")
    sal(p, f"s_cmp_lg_u32 {s(W)}, 8", [W], [])
    p.raw("s_cbranch_scc1 L_notau", rd=[SCC])
    p.cond_begin()
    p.wait(lgkm=0)
    for h in range(4):
        src = S_LS + (h >> 1)
        st = S_W1 + h
        if h & 1:
            sal(p, f"s_and_b32 {s(st)}, {s(src)}, 0xffff0000", [src], [st])
        else:
            sal(p, f"s_lshl_b32 {s(st)}, {s(src)}, 16", [src], [st])
        p.op("v_mov_b32", u + h, f"s{st}")
    for h in range(4):
        x = u + h
        p.op("v_min_f32", x, "0x40930000", x)
        p.op("v_max_f32", x, "0xc2c80000", x)
        p.op("v_mul_f32", x, f32(LOG2E), x)
        p.op("v_exp_f32", x, x, kind="trans")
    for h in range(4):
        x = u + h
        p.op("v_cvt_pk_bf16_f32", x, x, x)
        p.op("v_and_b32", x, "0xffff0000", x)
        p.op("v_mul_f32", x, f32(LOG2E), x)
    p.dsw("ds_write_b128", PARA, u, 4, 0)
    for i in range(4):
        p.op("v_mov_b32", g2 + i, "0x3f803f80")
    p.dsw("ds_write_b128", V_BIAS, g2, 4, L_ONES - L_BIAS)
    p.cond_end()
    p.label("L_notau")
    sal(p, f"s_cmp_ge_u32 {s(W)}, 10", [W], [])
    p.raw("s_cbranch_scc1 L_nowo", rd=[SCC])
    p.cond_begin()
    uu = 128
    for i in range(12):
        p.op("v_lshlrev_b32", uu + 2 * i, "16", wov + i)
        p.op("v_and_b32", uu + 2 * i + 1, "0xffff0000", wov + i)
    sm = 64
    def pk(name, d, a, b, mods=""):
        p.add(I(f"{name} {v(d, 2)}, {v(a, 2)}, {v(b, 2)}{mods}", "valu", vr(a, 2) + vr(b, 2), vr(d, 2)))
    pk("v_pk_add_f32", sm, uu, uu + 2)
    for i in range(2, 12):
        pk("v_pk_add_f32", sm, sm, uu + 2 * i)
    p.op("v_add_f32", sm, sm, sm + 1)
    for ctl in ("quad_perm:[1,0,3,2]", "quad_perm:[2,3,0,1]"):
        p.add(I(f"v_add_f32_dpp {v(sm)}, {v(sm)}, {v(sm)} {ctl} row_mask:0xf bank_mask:0xf", "dpp", [sm], [sm]))
    p.op("v_mul_f32", sm, f32(-1.0 / 96.0), sm)
    for i in range(12):
        pk("v_pk_add_f32", uu + 2 * i, uu + 2 * i, sm, " op_sel_hi:[1,0]")
    for i in range(12):
        p.op("v_cvt_pk_bf16_f32", wov + i, uu + 2 * i, uu + 2 * i + 1)
    for i in range(3):
        p.dsw("ds_write_b128", WOA, wov + 4 * i, 4, L_WO + 16 * i)
    p.cond_end()
    p.label("L_nowo")
    p.op("v_min_u32", ridx2, "0xa8", ridx2)
    p.op("v_lshl_add_u32", ridx2, ridx2, "2", f"s{S_T0}")
    p.wait(lgkm=0)
    window_map(p, opt, 48, 49, 50, 52, 53, 54, 55)
    gather(p, opt, True)
    sal(p, f"s_cmp_lt_u32 s2, {NS}", [2], [])
    p.salu(f"s_cselect_b32 {s(S_T0)}, {s(W)}, 0", [SCC] + sr(W), sr(S_T0))
    sal(p, f"s_cmp_ge_u32 {s(S_T0)}, 8", [S_T0], [])
    p.raw("s_cbranch_scc1 L_end", rd=[SCC])
    x_loads(p, opt)
    mask_loads(p, opt)
    p.raw("s_branch L_join")


class WBuf:
    def __init__(self, quads):
        self.q = list(quads)
        self.i = 0

    def next(self):
        r = self.q[self.i % len(self.q)]
        self.i += 1
        return r


def ld_wq(p, wb, col, ks):
    r = wb.next()
    off = L_WQ + col * 2 + 16 * ks * 576
    p.dsr("ds_read_b64_tr_b16", r, 2, V_WQ, off)
    p.dsr("ds_read_b64_tr_b16", r + 2, 2, V_WQ, off + 4 * 576)
    return r


def qk_proj(p, hp, X, areas, wb):
    for T in range(3):
        for ks in range(6):
            w = ld_wq(p, wb, hp * 96 + 32 * T, ks)
            p.mfma(areas[T], w, X + 4 * ks, None if ks == 0 else areas[T])


def qk_norm(p, hp, areas, qdst, kdst, order=None):
    Lr = [areas[i // 16] + i % 16 for i in range(48)]
    ss = [V_SC + i for i in range(4)]
    cp = [V_SC + 4, V_SC + 5]
    for g in range(4):
        for i in range(12):
            x = Lr[12 * g + i]
            if i == 0:
                p.op("v_fma_f32", ss[g], x, x, f"s{S_EPSQ}")
            else:
                p.op("v_fmac_f32", ss[g], x, x, rmw=True)
    sc = {}
    for pr in range(2):
        a, b = ss[2 * pr], ss[2 * pr + 1]
        p.swap32(a, b)
        p.op("v_add_f32", a, a, b)
        p.op("v_rsq_f32", a, a, kind="trans")
        if pr == 0:
            p.op("v_mul_f32", a, a, V_TAUV)
        p.op("v_mov_b32", b, a)
        p.swap32(a, b)
        sc[2 * pr], sc[2 * pr + 1] = a, b
    for i in range(48):
        p.op("v_mul_f32", Lr[i], Lr[i], sc[i // 12])
    dst = [qdst + i for i in range(12)] + [kdst + i for i in range(12)]
    pend = list(range(24))
    done_src = set()
    while pend:
        for pi in pend:
            d = dst[pi]
            blockers = [q for q in pend if q != pi and d in (Lr[2 * q], Lr[2 * q + 1])]
            if not blockers:
                p.op("v_cvt_pk_bf16_f32", d, Lr[2 * pi], Lr[2 * pi + 1])
                pend.remove(pi)
                break
        else:
            raise RuntimeError("no legal packing order")


def set_tauv(p, hp):
    def g():
        p.op("v_mov_b32", V_TAUV, f"s{S_TAU + 2 * hp}")
        p.salu(f"s_mov_b64 exec, {s(S_HIMASK, 2)}", sr(S_HIMASK, 2), [EXEC])
        p.op("v_mov_b32", V_TAUV, f"s{S_TAU + 2 * hp + 1}", rmw=True)
        p.salu("s_mov_b64 exec, -1", [], [EXEC])
    p.group(g)


def fill_ones(p, regs_quads, addr=None):
    for (r, n) in regs_quads:
        p.dsr({4: "ds_read_b128", 2: "ds_read_b64"}[n], r, n, V_BIAS, L_ONES - L_BIAS)


def v_proj(p, h, tiles, wb):
    for ks in range(6):
        w = ld_wq(p, wb, 192 + 24 * h, ks)
        for (X, D) in tiles:
            p.mfma(D, X + 4 * ks, w, None if ks == 0 else D)


def v_pack(p, pairs):
    for i in range(0, len(pairs), 5):
        chunk = pairs[i:i + 5]
        def g():
            p.salu(f"s_mov_b64 exec, {s(S_VMASK, 2)}", sr(S_VMASK, 2), [EXEC])
            for d, a in chunk:
                p.op("v_cvt_pk_bf16_f32", d, a, a + 1, rmw=True)
            p.salu("s_mov_b64 exec, -1", [], [EXEC])
        p.group(g)


def unit(p, h, qt, S0, S1, Q, Ka, Kb, Vq, slow, opt):
    boff = (h * 2 + qt) * 7168
    for g in range(4):
        p.dsr("ds_read_b128", S0 + 4 * g, 4, V_BIAS, boff + 1024 * g)
    for g in range(3):
        p.dsr("ds_read_b128", S1 + 4 * g, 4, V_BIAS, boff + 1024 * (4 + g))
    if slow:
        M = [WB, WB + 2, WB + 4, WB + 6, V_SC, V_SC + 2]
        M6 = V_SC + 4
        ad = V_SP
        p.op("v_subrev_u32", ad, str(L_BIAS), V_BIAS)
        p.op("v_bfe_u32", V_SC + 5, ad, "4", "5")
        if qt:
            p.op("v_add_u32", V_SC + 5, "32", V_SC + 5)
            p.op("v_min_u32", V_SC + 5, "48", V_SC + 5)
        p.op("v_mul_u32_u24", V_SC + 5, "0x62", V_SC + 5)
        p.op("v_lshrrev_b32", ad, "9", ad)
        p.op("v_lshl_add_u32", ad, ad, "3", V_SC + 5)
        p.op("v_add_u32", ad, f"s{S_MBASE}", ad)
        for g in range(6):
            p.vld("buffer_load_dwordx2", M[g], 2, ad, SRD_MASK, 16 * g)
        p.op("v_add_u32", V_SC + 5, f"s{S_MBASE}", V_SC + 5)
        p.vld("buffer_load_ushort", M6, 1, V_SC + 5, SRD_MASK, 96)
    p.mfma(S0, Ka, Q, S0)
    p.mfma(S0, Ka + 4, Q + 4, S0, k=8)
    p.mfma(S1, Kb, Q, S1)
    p.mfma(S1, Kb + 4, Q + 4, S1, k=8)
    regs = [S0 + i for i in range(16)] + [S1 + i for i in range(9)]
    if slow:
        tmp = V_SP
        for g in range(6):
            for e in range(4):
                r = regs[4 * g + e]
                src = M[g] + (e >> 1)
                if e & 1:
                    p.op("v_and_b32", tmp, "0xffff0000", src)
                else:
                    p.op("v_lshlrev_b32", tmp, "16", src)
                p.op("v_fmamk_f32", r, tmp, f32(LOG2E), r)
        p.op("v_lshlrev_b32", tmp, "16", M6)
        p.op("v_fmamk_f32", regs[24], tmp, f32(LOG2E), regs[24])
        mx, m2 = V_SC, V_SC + 1
        p.op("v_max3_f32", mx, regs[0], regs[1], regs[2])
        for i in range(3, 25, 2):
            p.op("v_max3_f32", mx, mx, regs[i], regs[i + 1])
        p.op("v_mov_b32", m2, mx)
        p.swap32(mx, m2)
        p.op("v_max_f32", mx, mx, m2)
        for r in regs:
            p.op("v_sub_f32", r, r, mx)
    for r in regs:
        p.op("v_exp_f32", r, r, kind="trans")
    for i in range(8):
        p.op("v_cvt_pk_bf16_f32", S0 + i, S0 + 2 * i, S0 + 2 * i + 1)
    for i in range(4):
        p.op("v_cvt_pk_bf16_f32", S0 + 8 + i, S1 + 2 * i, S1 + 2 * i + 1)
    p.op("v_cvt_pk_bf16_f32", V_PZ, S1 + 8, "0")
    O = S1
    p.mfma(O, Vq[0], S0, None)
    p.mfma(O, Vq[1], S0 + 4, O)
    p.mfma(O, Vq[2], S0 + 8, O)
    p.mfma(O, Vq[3], V_PZ, O, k=8)
    p.op("v_rcp_f32", O + 12, O + 12, kind="trans")
    for i in range(12):
        p.op("v_mul_f32", O + i, O + i, O + 12)
    for i in range(6):
        p.op("v_cvt_pk_bf16_f32", Q + i, O + 2 * i, O + 2 * i + 1)


def prefix(p, opt):
    set_tauv(p, 0)
    wb = WBuf([WB, WB + 4, K0R, K0R + 4, K0R + 8])
    areas = [OQ0, OQ0 + 16, OQ0 + 32]
    qk_proj(p, 0, XA, areas, wb)
    qk_norm(p, 0, areas, OQ0, K0R)


def mask_check(p, opt):
    m = MASK_REGS
    a = V_SC
    stamp(p, opt, 6)
    if opt.mask_check:
        regs = [r + i for r in m for i in range(4)]
        p.op("v_or3_b32", a, regs[0], regs[1], regs[2])
        for i in range(3, 19, 2):
            p.op("v_or3_b32", a, a, regs[i], regs[i + 1])
        p.op("v_or_b32", a, a, regs[19])
        p.op("v_and_b32", a, "0x7fff7fff", a)
        p.add(I(f"v_cmp_ne_u32 vcc, 0, {v(a)}", "valu", [a], [VCC]))
        p.salu(f"s_or_b32 {s(S_T0)}, vcc_lo, vcc_hi", [VCC], sr(S_T0) + [SCC])
        p.salu(f"s_or_b32 {s(S_T0)}, {s(S_T0)}, {s(S_UNSAFE)}", sr(S_T0) + sr(S_UNSAFE), sr(S_T0) + [SCC])
    else:
        p.salu(f"s_or_b32 {s(S_T0)}, {s(S_KILL)}, {s(S_UNSAFE)}", sr(S_KILL) + sr(S_UNSAFE), sr(S_T0) + [SCC])
    if getattr(opt, "loop2", False):
        p.salu("s_cmp_eq_u32 s47, 0", sr(47), [SCC])
        p.salu(f"s_cselect_b32 s46, {s(S_T0)}, s46", [SCC] + sr(S_T0) + sr(46), sr(46))
        p.salu("s_cmp_lg_u32 s46, 0", sr(46), [SCC])
    p.raw("s_cbranch_scc1 L_slow", rd=[SCC])


def body(p, slow, opt):
    S0a, S1a = OQ0 + 12, OQ1 + 12
    ones_addr = V_SP
    stamp(p, opt, 7)
    wb = WBuf([WB, WB + 4, VA, VA + 4, VA + 8])
    areas = [OQ1, OQ0 + 12, OQ1 + 16]
    qk_proj(p, 0, XB, areas, wb)
    qk_norm(p, 0, areas, OQ1, K1R)
    fill_ones(p, [(VA, 4), (VA + 4, 4), (VA + 8, 4), (VA + 12, 2)], ones_addr)
    Vq = [VA, VA + 4, VA + 8, VA + 12]
    for h in (0, 1):
        wb = WBuf([WB, WB + 4, UR] if not slow else [UR, UR])
        if slow:
            wb = WBuf([WB, WB + 4, UR])
        v_proj(p, h, [(XA, S0a), (XB, S1a)], wb)
        v_pack(p, [(VA + i, S0a + 2 * i) for i in range(8)] + [(VA + 8 + i, S1a + 2 * i) for i in range(5)])
        for qt in (0, 1):
            unit(p, h, qt, S0a, S1a, (OQ0, OQ1)[qt] + 6 * h, K0R + 6 * h, K1R + 6 * h, Vq, slow, opt)
    stamp(p, opt, 8)
    set_tauv(p, 1)
    wb = WBuf([WB, WB + 4, UR, K0R, K0R + 4, K0R + 8])
    v_proj(p, 2, [(XA, S0a), (XB, S1a)], wb)
    v_pack(p, [(VA + i, S0a + 2 * i) for i in range(8)] + [(VA + 8 + i, S1a + 2 * i) for i in range(5)])
    wb = WBuf([WB, WB + 4, K0R, K0R + 4, K0R + 8])
    areas = [S0a, S1a, K1R]
    qk_proj(p, 1, XA, areas, wb)
    qk_norm(p, 1, areas, OQ0 + 12, K0R)
    wb = WBuf([WB, WB + 4, K1R, K1R + 4, K1R + 8, UR])
    v_proj(p, 3, [(XA, S1a)], wb)
    VB0 = XA + 16
    fill_ones(p, [(VB0, 4), (VB0 + 4, 4)], ones_addr)
    v_pack(p, [(VB0 + i, S1a + 2 * i) for i in range(8)])
    wb = WBuf([WB, WB + 4, T0R])
    areas = [S1a, XA, K1R]
    qk_proj(p, 1, XB, areas, wb)
    qk_norm(p, 1, areas, OQ1 + 12, K1R)
    wb = WBuf([WB, WB + 4, T0R, T1R, UR])
    v_proj(p, 3, [(XB, XA)], wb)
    VB1 = XB
    fill_ones(p, [(VB1, 4), (VB1 + 4, 2)], ones_addr)
    v_pack(p, [(VB1 + i, XA + 2 * i) for i in range(5)])
    S0b, S1b = XA, XB + 8
    for h in (2, 3):
        vq = Vq if h == 2 else [VB0, VB0 + 4, VB1, VB1 + 4]
        for qt in (0, 1):
            unit(p, h, qt, S0b, S1b, (OQ0, OQ1)[qt] + 6 * h, K0R + 6 * (h - 2), K1R + 6 * (h - 2), vq, slow, opt)
    stamp(p, opt, 9)
    vwo = V_SP
    a, b = V_SC, V_SC + 1
    p.op("v_subrev_u32", a, str(L_BIAS), V_BIAS)
    p.op("v_bfe_u32", b, a, "6", "2")
    p.op("v_lshrrev_b32", vwo, "9", a)
    p.op("v_lshl_add_u32", b, vwo, "2", b)
    p.op("v_mul_u32_u24", b, "0xc0", b)
    p.op("v_bfe_u32", vwo, a, "8", "1")
    p.op("v_lshl_add_u32", b, vwo, "5", b)
    p.op("v_bfe_u32", vwo, a, "4", "1")
    p.op("v_lshl_add_u32", b, vwo, "4", b)
    p.op("v_bfe_u32", vwo, a, "5", "1")
    p.op("v_lshl_add_u32", b, vwo, "3", b)
    p.op("v_add_u32", vwo, str(L_WO), b)
    Y = [[XA, XA + 16, XA + 32], [K1R, K1R + 16, K1R + 32]]
    wb = WBuf([T0R, T1R, WB + 6 - 2])
    wb = WBuf([T0R, T1R, V_SC + 2])
    for T in range(3):
        for ks in range(6):
            w = wb.next()
            p.dsr("ds_read_b64_tr_b16", w, 2, vwo, (16 * ks) * 192 + 64 * T)
            p.dsr("ds_read_b64_tr_b16", w + 2, 2, vwo, (16 * ks + 8) * 192 + 64 * T)
            for tt in (0, 1):
                p.mfma(Y[tt][T], w, (OQ0, OQ1)[tt] + 4 * ks, None if ks == 0 else Y[tt][T])
    for tt in (0, 1):
        y = [Y[tt][i // 16] + i % 16 for i in range(48)]
        ss, cp = (V_SC, V_SC + 1) if tt == 0 else (V_PZ, V_PZ + 1)
        for i in range(48):
            if i == 0:
                p.op("v_fma_f32", ss, y[0], y[0], f"s{S_EPSLN}")
            else:
                p.op("v_fmac_f32", ss, y[i], y[i], rmw=True)
        p.op("v_mov_b32", cp, ss)
        p.swap32(ss, cp)
        p.op("v_add_f32", ss, ss, cp)
        p.op("v_rsq_f32", ss, ss, kind="trans")
        p.op("v_mul_f32", ss, f32(math.sqrt(96.0)), ss)
        for i in range(48):
            p.op("v_mul_f32", y[i], y[i], ss)
        for T in range(3):
            for jj in range(2):
                base = Y[tt][T] + 8 * jj
                for i in range(4):
                    p.op("v_cvt_pk_bf16_f32", base + i, base + 2 * i, base + 2 * i + 1)
                p.vst("buffer_store_dwordx4", base, 4, (V_OFFA, V_OFFB)[tt], SRD_OUT, 64 * T + 32 * jj, opt.sflag)
    stamp(p, opt, 10)
    if getattr(opt, "twice", 0):
        lbl = "L_done_" + ("s" if slow else "f")
        p.salu("s_add_u32 s47, s47, 1", sr(47), sr(47) + [SCC]).tag = "fence"
        p.salu(f"s_cmp_ge_u32 s47, {opt.twice}", sr(47), [SCC]).tag = "fence"
        p.raw(f"s_cbranch_scc1 {lbl}", rd=[SCC])
        p.raw("s_nop 4")
        x_loads(p, opt)
        p.op("v_mov_b32", V_PZ + 1, "0")
        p.raw("s_branch L_join")
        p.label(lbl)
    if getattr(opt, "loop2", False):
        p.salu("s_add_u32 s47, s47, 1", sr(47), sr(47) + [SCC]).tag = "fence"
        p.salu("s_cmp_lt_u32 s47, 2", sr(47), [SCC]).tag = "fence"
        p.raw("s_cbranch_scc1 L_again", rd=[SCC])
    if opt.debug:
        p.wait(vm=0)
    stamp_flush(p, opt)
    p.raw("s_endpgm")


HEADER = open("standalone__window_attn_swin_v2__vision.s.ref").read().split("; Override")[0]


def generate(opt, sched=None):
    segs = {}
    p = Prog(); pro_common(p, opt); segs["com"] = p.ins
    p = Prog(); path_o(p, opt); segs["po"] = p.ins
    p = Prog(); path_y(p, opt); segs["py"] = p.ins
    p = Prog()
    if opt.debug:
        p.wait(vm=5 if opt.mask_check else 0)
        stamp(p, opt, 5)
    prefix(p, opt); segs["pre"] = p.ins
    p = Prog(); mask_check(p, opt); segs["chk"] = p.ins
    p = Prog(); body(p, False, opt); segs["fast"] = p.ins
    p = Prog(); body(p, True, opt); segs["slow"] = p.ins
    if sched:
        for k in ("pre", "fast", "slow"):
            segs[k] = sched(segs[k])
    if getattr(opt, "drop", None):
        for k in ("fast",):
            segs[k] = [i for i in flatten(segs[k]) if not (i.kind in opt.drop and not i.text.startswith("v_mov_b32 v6") and not i.text.startswith("v_mov_b32 v7"))]
    st = WaitState()
    com = insert_nops(insert_waits(flatten(segs["com"]), st))
    sty = st.copy()
    po = insert_nops(insert_waits(flatten(segs["po"]), st), com)
    py = insert_nops(insert_waits(flatten(segs["py"]), sty), com)
    tail = lambda w: [(x.text) for x in w.vm[-(17 if opt.mask_check else 12):]]
    assert tail(st) == tail(sty), (tail(st), tail(sty))
    assert not st.lg and not sty.lg
    st.vm = st.vm[-(17 if opt.mask_check else 12):]
    mid = insert_nops(insert_waits(flatten(segs["pre"] + segs["chk"]), st), [I("s_nop 15", "nop", states=16)])
    head = com + po + mid
    fast = insert_nops(insert_waits(flatten(segs["fast"]), st.copy()), head)
    slow = insert_nops(insert_waits(flatten(segs["slow"]), st.copy()), head)
    name = "standalone__window_attn_swin_v2__vision_kernel"
    txt = HEADER
    txt += f"; @launch grid=({NWG},1,1) block=({64 * WPW},1,1) lds={LDS_BYTES}\n"
    txt += f""".amdgcn_target "amdgcn-amd-amdhsa--gfx950"
.text
.globl {name}
.p2align 8
.type {name},@function
{name}:
"""
    txt += render(head) + "\n" + render(fast) + "\nL_slow:\n" + render(slow) + "\n" + render(py) + "\nL_end:\n    s_endpgm\n"
    txt += f""".section .rodata,"a"
.p2align 6
.amdhsa_kernel {name}
  .amdhsa_next_free_vgpr {NVGPR}
  .amdhsa_next_free_sgpr 102
  .amdhsa_accum_offset {NVGPR}
  .amdhsa_group_segment_fixed_size 0
  .amdhsa_kernarg_size 96
  .amdhsa_user_sgpr_count 2
  .amdhsa_user_sgpr_kernarg_segment_ptr 1
  .amdhsa_system_sgpr_workgroup_id_x 1
.end_amdhsa_kernel
"""
    stats = {}
    for nm, seq in (("head", head), ("py", py), ("fast", fast), ("slow", slow)):
        c = {}
        for i in seq:
            c[i.kind] = c.get(i.kind, 0) + 1
        c["nopstates"] = sum(i.states for i in seq if i.kind == "nop")
        stats[nm] = c
    return txt, stats


if __name__ == "__main__":
    opt = Opt()
    if "--debug" in sys.argv:
        opt.debug = True
        sys.argv.remove("--debug")
    args = [a for a in sys.argv[1:] if not a.startswith("--")]
    out = args[0] if args else "standalone__window_attn_swin_v2__vision.s"
    for a in sys.argv:
        if a.startswith("--drop="):
            opt.drop = a[7:].split(",")
    if "--loop2" in sys.argv:
        opt.loop2 = True
    for a in sys.argv:
        for fl in ("xflag", "mflag", "sflag"):
            if a.startswith(f"--{fl}="):
                setattr(opt, fl, " " + a.split("=")[1].replace(",", " "))
    for a in sys.argv:
        if a.startswith("--twice="):
            opt.twice = int(a[8:])
    if "--nomask" in sys.argv:
        opt.mask_check = False
    if "--pf" in sys.argv:
        opt.prefetch = True
    import sched
    sc = None if "--nosched" in sys.argv else (lambda x: sched.schedule(x, verbose=True))
    txt, stats = generate(opt, sc)
    open(out, "w").write(txt)
    for k, c in stats.items():
        print(k, c)
```

```python
import sys, struct, math
sys.path.insert(0, "gen")
from asmlib import *

def f32(x):
    return "0x%08x" % struct.unpack("<I", struct.pack("<f", x))[0]

LOG2E = 1.4426950408889634
NWG = 252
NS = 27
WPW = 12
X_BYTES = 378 * 378 * 96 * 2
MASK_BYTES = 2916 * 49 * 49 * 2

L_WQ = 0
L_WO = 55296
L_BIAS = 73728
L_ONES = L_BIAS + 57344
L_TAB = L_ONES + 1024
L_PAR = L_TAB + 3072
L_END = L_PAR + 64
LDS_BYTES = L_END

S_W = 3
SRD_X, SRD_OUT, SRD_WQ, SRD_WO, SRD_MASK, SRD_RIDX, SRD_RC = 4, 8, 12, 16, 20, 24, 28
S_PTR = 32
S_W1 = 48
S_W2 = 64
S_LS = 96
S_T0, S_T1, S_T2, S_T3 = 98, 99, 100, 101
S_TAU = 32
S_EPSQ, S_EPSLN = 36, 37
S_VMASK = 38
S_HIMASK = 40
S_UNSAFE = 42
S_WIN = 43
S_MBASE = 44
S_KILL, S_G2 = 45, 46

V_OFFA, V_OFFB, V_WQ, V_BIAS = 0, 1, 2, 3
V_PZ = 4
V_SC = 6
XA, XB = 12, 36
OQ0, T0R, OQ1, T1R = 60, 84, 88, 112
K1R, UR, K0R, VA, WB = 116, 128, 132, 144, 158
V_TAUV, V_SP = 166, 167
NVGPR = 168

TAU_THR = 24.0
NEG_BIG = -30000.0


class Opt:
    mask_check = True
    debug = None
    xflag = ""
    mflag = ""
    sflag = ""
    prefetch = False


S_STAMP = 64
NSTAMP = 12


def stamp(p, opt, idx, early=False):
    if not opt.debug:
        return
    if early:
        p.add(I(f"s_memtime {s(S_T2, 2)}", "smem", [], sr(S_T2, 2)))
        p.op("v_mov_b32", WB + idx, f"s{S_T2}")
        return
    p.add(I(f"s_memtime {s(S_T2, 2)}", "smem", [], sr(S_T2, 2)))
    p.salu(f"s_mov_b32 {s(S_STAMP + idx)}, {s(S_T2)}", sr(S_T2), sr(S_STAMP + idx)).tag = "fence"
    p.raw("; stamp fence", kind="label") if False else None


def stamp_flush(p, opt):
    if not opt.debug:
        return
    stamp(p, opt, NSTAMP - 1)
    if opt.debug == 2:
        p.smem("s_load_dwordx2", 48, 2, 0, 80)
        build_srd(p, 52, 48, 256)
        p.add(I(f"s_memrealtime {s(S_STAMP + 14, 2)}", "smem", [], sr(S_STAMP + 14, 2)))
        p.salu("s_mov_b64 exec, 1", [], [EXEC])
        p.op("v_mov_b32", 60, "0")
        p.op("v_mov_b32", 61, f"s{S_STAMP + 14}")
        p.op("v_not_b32", 62, f"s{S_STAMP + 16}")
        p.add(I(f"buffer_atomic_umax {v(61)}, {v(60)}, {s(52, 4)}, 0 offen offset:56", "vst", [60, 61] + sr(52, 4), []))
        p.add(I(f"buffer_atomic_umax {v(62)}, {v(60)}, {s(52, 4)}, 0 offen offset:60", "vst", [60, 62] + sr(52, 4), []))
        lbl = f"L_dbgskip{len(p.ins)}"
        p.salu("s_cmp_lg_u32 s2, 100", sr(2), [SCC])
        p.raw(f"s_cbranch_scc1 {lbl}", rd=[SCC])
        p.salu(f"s_and_b32 {s(S_T0)}, {s(S_W)}, 3", sr(S_W), sr(S_T0) + [SCC])
        p.raw(f"s_cbranch_scc1 {lbl}", rd=[SCC])
        for i in range(1, 12):
            p.salu(f"s_sub_u32 {s(S_STAMP + i)}, {s(S_STAMP + i)}, {s(S_STAMP)}", sr(S_STAMP + i) + sr(S_STAMP), sr(S_STAMP + i) + [SCC])
        p.salu(f"s_cmp_lg_u32 {s(S_W)}, 0", sr(S_W), [SCC])
        p.raw(f"s_cbranch_scc1 {lbl}y", rd=[SCC])
        for k, i in enumerate((1, 2, 3, 4, 5, 6, 8, 9, 11)):
            p.op("v_mov_b32", 61, f"s{S_STAMP + i}")
            p.vst("buffer_store_dword", 61, 1, 60, 52, 4 * k)
            p.raw("s_nop 1")
        p.salu(f"s_sub_u32 {s(S_T0)}, {s(S_STAMP + 14)}, {s(S_STAMP + 16)}", sr(S_STAMP + 14) + sr(S_STAMP + 16), sr(S_T0) + [SCC])
        p.op("v_mov_b32", 61, f"s{S_T0}")
        p.vst("buffer_store_dword", 61, 1, 60, 52, 52)
        p.raw(f"s_branch {lbl}")
        p.label(lbl + "y")
        p.salu(f"s_lshl_b32 {s(S_T0)}, {s(S_W)}, 1", sr(S_W), sr(S_T0) + [SCC])
        p.op("v_mov_b32", 60, f"s{S_T0}")
        for k, i in enumerate((5, 11)):
            p.op("v_mov_b32", 61, f"s{S_STAMP + i}")
            p.vst("buffer_store_dword", 61, 1, 60, 52, 28 + 4 * k)
            p.raw("s_nop 1")
        p.label(lbl)
        return
    p.smem("s_load_dwordx2", 48, 2, 0, 88)
    build_srd(p, 52, 48, 1 << 22)
    p.salu(f"s_lshl_b32 {s(S_T0)}, {s(S_WIN)}, 6", sr(S_WIN), sr(S_T0) + [SCC])
    p.add(I(f"s_getreg_b32 {s(S_STAMP + 12)}, hwreg(HW_REG_HW_ID)", "salu", [], sr(S_STAMP + 12)))
    p.salu(f"s_lshl_b32 {s(S_STAMP + 13)}, s2, 4", sr(2), sr(S_STAMP + 13) + [SCC])
    p.salu(f"s_add_u32 {s(S_STAMP + 13)}, {s(S_STAMP + 13)}, {s(S_W)}", sr(S_STAMP + 13) + sr(S_W), sr(S_STAMP + 13) + [SCC])
    p.add(I(f"s_memrealtime {s(S_STAMP + 14, 2)}", "smem", [], sr(S_STAMP + 14, 2)))
    p.op("v_mov_b32", 60, f"s{S_T0}")
    for i in range(15):
        p.op("v_mov_b32", 64 + i, f"s{S_STAMP + i}")
    p.op("v_mov_b32", 64 + 15, f"s{S_STAMP + 16}")
    p.salu("s_mov_b64 exec, 1", [], [EXEC]).tag = "fence"
    for i in range(4):
        p.vst("buffer_store_dwordx4", 64 + 4 * i, 4, 60, 52, 16 * i)


def build_srd(p, srd, ptr, nbytes):
    p.salu(f"s_mov_b32 {s(srd)}, {s(ptr)}", sr(ptr), sr(srd))
    p.salu(f"s_and_b32 {s(srd + 1)}, {s(ptr + 1)}, 0xffff", sr(ptr + 1), sr(srd + 1) + [SCC])
    p.salu(f"s_mov_b32 {s(srd + 2)}, {nbytes}", [], sr(srd + 2))
    p.salu(f"s_mov_b32 {s(srd + 3)}, 0x00020000", [], sr(srd + 3))


MASK_REGS = [VA, VA + 4, VA + 8, UR, K1R + 4]


def sal(p, text, rd=(), wr=(), scc=True):
    return p.salu(text, [SB + x for x in rd], [SB + x for x in wr] + ([SCC] if scc else []))


L, HI16, N31, L16 = 60, 61, 62, 67
ta, tb, tc, td = 63, 64, 65, 66
DMA, WOA, TE, GA, GB, MO0, MO4, GDST, PARA = 68, 69, 70, 71, 72, 73, 74, 75, 77
wov, rcv, ridx2, ridx, u, g2 = 116, 86, 87, 88, 92, 108
W = S_W


def window_map(p, opt, sA, sB, sC, sD, sf, swi, swj):
    sal(p, f"s_mul_i32 {s(sA)}, s2, 12", [2], [sA], False)
    sal(p, f"s_add_u32 {s(sA)}, {s(sA)}, {s(W)}", [sA, W], [sA])
    sal(p, f"s_sub_u32 {s(sA)}, {s(sA)}, {12 * NS}", [sA], [sA])
    sal(p, f"s_lshl_b32 {s(sB)}, s2, 2", [2], [sB])
    sal(p, f"s_add_u32 {s(sB)}, {s(sB)}, {s(W)}", [sB, W], [sB])
    sal(p, f"s_add_u32 {s(sC)}, {s(sB)}, {12 * (NWG - NS) - 4}", [sB], [sC])
    sal(p, f"s_cmp_lt_u32 {s(W)}, 4", [W], [])
    p.salu(f"s_cselect_b32 {s(sC)}, 2808, {s(sC)}", [SCC] + sr(sC), sr(sC))
    p.salu(f"s_cselect_b32 {s(sD)}, {s(sB)}, 999", [SCC] + sr(sB), sr(sD))
    sal(p, f"s_cmp_lt_u32 s2, {NS}", [2], [])
    p.salu(f"s_cselect_b32 {s(sf)}, {s(sC)}, {s(sA)}", [SCC] + sr(sC) + sr(sA), sr(sf))
    p.salu(f"s_cselect_b32 {s(sD)}, {s(sD)}, 999", [SCC] + sr(sD), sr(sD))
    sal(p, f"s_mul_i32 {s(swi)}, {s(sf)}, 19785", [sf], [swi], False)
    sal(p, f"s_lshr_b32 {s(swi)}, {s(swi)}, 20", [swi], [swi])
    sal(p, f"s_mul_i32 {s(swj)}, {s(swi)}, 53", [swi], [swj], False)
    sal(p, f"s_sub_u32 {s(swj)}, {s(sf)}, {s(swj)}", [sf, swj], [swj])
    sal(p, f"s_sub_u32 {s(sA)}, {s(sD)}, 54", [sD], [sA])
    sal(p, f"s_cmp_lt_u32 {s(sD)}, 54", [sD], [])
    p.salu(f"s_cselect_b32 {s(sA)}, 53, {s(sA)}", [SCC] + sr(sA), sr(sA))
    p.salu(f"s_cselect_b32 {s(sB)}, {s(sD)}, 53", [SCC] + sr(sD), sr(sB))
    sal(p, f"s_cmp_lt_u32 {s(sD)}, 107", [sD], [])
    p.salu(f"s_cselect_b32 {s(swi)}, {s(sA)}, {s(swi)}", [SCC] + sr(sA) + sr(swi), sr(swi))
    p.salu(f"s_cselect_b32 {s(swj)}, {s(sB)}, {s(swj)}", [SCC] + sr(sB) + sr(swj), sr(swj))
    p.salu(f"s_cselect_b32 {s(S_KILL)}, 1, 0", [SCC], sr(S_KILL))
    sal(p, f"s_mul_i32 {s(S_WIN)}, {s(swi)}, 54", [swi], [S_WIN], False)
    sal(p, f"s_add_u32 {s(S_WIN)}, {s(S_WIN)}, {s(swj)}", [S_WIN, swj], [S_WIN])
    sal(p, f"s_mul_i32 {s(S_MBASE)}, {s(S_WIN)}, 4802", [S_WIN], [S_MBASE], False)
    sal(p, f"s_mul_i32 {s(swi)}, {s(swi)}, 7", [swi], [swi], False)
    sal(p, f"s_add_u32 {s(swi)}, {s(swi)}, 3", [swi], [swi])
    sal(p, f"s_mul_i32 {s(swj)}, {s(swj)}, 7", [swj], [swj], False)
    sal(p, f"s_add_u32 {s(swj)}, {s(swj)}, 3", [swj], [swj])
    sal(p, f"s_movk_i32 {s(sA)}, 378", [], [sA], False)
    p.add(I(f"v_cmp_gt_u32 {s(sC, 2)}, 17, {v(N31)}", "valu", [N31], sr(sC, 2)))
    xa, xb, xc, xd = 78, 79, 80, 81
    for tt, dst in ((0, V_OFFA), (1, V_OFFB)):
        n, ty, tx, a = xa, xb, xc, xd
        if tt == 0:
            n = N31
        else:
            p.op("v_add_u32", n, "32", N31)
        p.op("v_mul_u32_u24", ty, "37", n)
        p.op("v_lshrrev_b32", ty, "8", ty)
        p.op("v_mad_i32_i24", tx, ty, "-7", n)
        p.op("v_add_u32", ty, f"s{swi}", ty)
        p.op("v_add_u32", tx, f"s{swj}", tx)
        p.op("v_subrev_u32", a, f"s{sA}", ty)
        p.op("v_min_u32", ty, ty, a)
        p.op("v_subrev_u32", a, f"s{sA}", tx)
        p.op("v_min_u32", tx, tx, a)
        p.op("v_mad_u32_u24", a, ty, f"s{sA}", tx)
        p.op("v_mul_u32_u24", a, "0xc0", a)
        if tt == 0:
            p.op("v_add_u32", dst, a, HI16)
        else:
            p.op("v_add_u32", a, a, HI16)
            p.op("v_bfrev_b32", ty, "1")
            p.add(I(f"v_cndmask_b32 {v(dst)}, {v(ty)}, {v(a)}, {s(sC, 2)}", "valu", [ty, a] + sr(sC, 2), [dst]))
    if opt.mask_check:
        p.op("v_add_u32", MO0, f"s{S_MBASE}", L16)
        p.op("v_add_u32", xa, "4096", L16)
        p.op("v_min_u32", xa, "4786", xa)
        p.op("v_add_u32", MO4, f"s{S_MBASE}", xa)


def x_loads(p, opt):
    for tt, off in ((0, V_OFFA), (1, V_OFFB)):
        for k in range(6):
            p.vld("buffer_load_dwordx4", (XA, XB)[tt] + 4 * k, 4, off, SRD_X, 32 * k, opt.xflag)


def mask_loads(p, opt):
    if opt.mask_check:
        for i in range(5):
            if i < 4:
                p.vld("buffer_load_dwordx4", MASK_REGS[i], 4, MO0, SRD_MASK, 1024 * i, opt.mflag)
            else:
                p.vld("buffer_load_dwordx4", MASK_REGS[i], 4, MO4, SRD_MASK, 0, opt.mflag)


def pro_common(p, opt):
    p.salu(f"s_cmp_ge_u32 s2, {NWG}", sr(2), [SCC])
    p.raw("s_cbranch_scc1 L_end", rd=[SCC])
    if opt.debug:
        p.add(I(f"s_memtime {s(S_T2, 2)}", "smem", [], sr(S_T2, 2)))
        p.op("v_mov_b32", WB + 7, f"s{S_T2}")
        p.add(I(f"s_memrealtime {s(S_T2, 2)}", "smem", [], sr(S_T2, 2)))
        p.op("v_mov_b32", WB + 6, f"s{S_T2}")
    for srd, off in ((SRD_WQ, 8), (SRD_WO, 16), (SRD_RC, 48), (SRD_RIDX, 56), (SRD_X, 0), (SRD_MASK, 64), (SRD_OUT, 72)):
        p.smem("s_load_dwordx2", srd, 2, 0, off)
    p.smem("s_load_dwordx2", 32, 2, 0, 24)
    p.smem("s_load_dwordx4", 36, 4, 0, 32)
    p.op("v_lshrrev_b32", ta, "6", 0)
    p.op("v_and_b32", L, "63", 0)
    p.add(I(f"v_readfirstlane_b32 {s(W)}, {v(ta)}", "rdlane", [ta], sr(W)))
    for srd, nb in ((SRD_WQ, 96 * 288 * 2), (SRD_WO, 96 * 96 * 2), (SRD_RC, 169 * 4), (SRD_RIDX, 49 * 49 * 4), (SRD_X, X_BYTES),
                    (SRD_MASK, MASK_BYTES), (SRD_OUT, X_BYTES)):
        sal(p, f"s_mov_b32 {s(srd + 2)}, {nb}", [], [srd + 2], False)
        sal(p, f"s_mov_b32 {s(srd + 3)}, 0x00020000", [], [srd + 3], False)
    p.op("v_lshrrev_b32", HI16, "5", L)
    p.op("v_lshlrev_b32", HI16, "4", HI16)
    p.op("v_and_b32", N31, "31", L)
    p.op("v_lshlrev_b32", L16, "4", L)
    sA, sB, sC, sD = 48, 49, 50, 51
    sal(p, f"s_sub_u32 {s(sB)}, {s(W)}, 3", [W], [sB])
    sal(p, f"s_max_i32 {s(sB)}, {s(sB)}, 0", [sB], [sB])
    sal(p, f"s_lshl_b32 {s(sA)}, {s(sB)}, 6", [sB], [sA])
    p.op("v_add_u32", ta, f"s{sA}", L)
    p.op("v_mul_u32_u24", tb, "1821", ta)
    p.op("v_lshrrev_b32", tb, "16", tb)
    p.op("v_mul_u32_u24", tb, "36", tb)
    p.op("v_sub_u32", tb, ta, tb)
    p.op("v_subrev_u32", tc, "6", tb)
    p.add(I(f"v_cmp_gt_u32 {s(54, 2)}, 6, {v(tc)}", "valu", [tc], sr(54, 2)))
    p.op("v_subrev_u32", tc, "12", tb)
    p.add(I(f"v_cmp_gt_u32 {s(56, 2)}, 6, {v(tc)}", "valu", [tc], sr(56, 2)))
    p.op("v_add_u32", tb, "6", ta)
    p.op("v_subrev_u32", tc, "6", ta)
    p.add(I(f"v_cndmask_b32 {v(ta)}, {v(ta)}, {v(tb)}, {s(54, 2)}", "valu", [ta, tb] + sr(54, 2), [ta]))
    p.add(I(f"v_cndmask_b32 {v(ta)}, {v(ta)}, {v(tc)}, {s(56, 2)}", "valu", [ta, tc] + sr(56, 2), [ta]))
    p.op("v_lshlrev_b32", DMA, "4", ta)
    sal(p, f"s_lshl_b32 {s(sC)}, {s(sB)}, 10", [sB], [sC])
    sal(p, f"s_mov_b32 {s(sD)}, 0", [], [sD], False)
    sqt, sgrp = 58, 59
    sal(p, f"s_cmp_ge_u32 {s(W)}, 6", [W], [])
    p.salu(f"s_cselect_b32 {s(sqt)}, 1, 0", [SCC], sr(sqt))
    sal(p, f"s_mul_i32 {s(sgrp)}, {s(sqt)}, 6", [sqt], [sgrp], False)
    sal(p, f"s_sub_u32 {s(sgrp)}, {s(W)}, {s(sgrp)}", [W, sgrp], [sgrp])
    sal(p, f"s_lshl_b32 {s(sA)}, {s(sqt)}, 5", [sqt], [sA])
    p.op("v_add_u32", ta, f"s{sA}", N31)
    p.op("v_min_u32", ta, "48", ta)
    p.op("v_mul_u32_u24", ta, "0xc4", ta)
    sal(p, f"s_lshl_b32 {s(sA)}, {s(sgrp)}, 5", [sgrp], [sA])
    p.op("v_add3_u32", GA, ta, HI16, f"s{sA}")
    sal(p, f"s_mul_i32 {s(sA)}, {s(sqt)}, 7", [sqt], [sA], False)
    sal(p, f"s_add_u32 {s(sA)}, {s(sA)}, {s(sgrp)}", [sA, sgrp], [sA])
    sal(p, f"s_lshl_b32 {s(S_G2)}, {s(sA)}, 10", [sA], [S_G2])
    sal(p, f"s_cmp_lt_u32 {s(W)}, 4", [W], [])
    p.raw("s_cbranch_scc0 L_pathY", rd=[SCC])


def dma_w(p, opt, lbl):
    sC, sD = 50, 51
    sal(p, f"s_cmp_lt_u32 {s(W)}, 3", [W], [])
    p.raw(f"s_cbranch_scc1 {lbl}", rd=[SCC])
    p.cond_begin()
    for i in range(6):
        p.salu(f"s_mov_b32 m0, {s(sC)}", sr(sC), [M0])
        p.dma(DMA, SRD_WQ, sD).tag = "w"
        if i < 5:
            sal(p, f"s_addk_i32 {s(sC)}, 9216", [sC], [sC])
            sal(p, f"s_addk_i32 {s(sD)}, 9216", [sD], [sD])
    p.cond_end()
    p.label(lbl)


def lds_bases(p, opt):
    p.op("v_bfe_u32", ta, L, "2", "2")
    p.op("v_lshrrev_b32", tb, "1", HI16)
    p.op("v_add_u32", ta, ta, tb)
    p.op("v_mul_u32_u24", ta, "0x240", ta)
    p.op("v_bfe_u32", tb, L, "4", "1")
    p.op("v_lshl_add_u32", ta, tb, "5", ta)
    p.op("v_and_b32", tb, "3", L)
    p.op("v_lshl_add_u32", V_WQ, tb, "3", ta)
    p.op("v_add_u32", V_BIAS, str(L_BIAS), L16)
    p.op("v_mov_b32", V_PZ + 1, "0")
    p.op("v_add_u32", GDST, f"s{S_G2}", V_BIAS)
    p.op("v_mov_b32", PARA, str(L_PAR))
    sal(p, f"s_mov_b32 {s(S_HIMASK)}, 0", [], [S_HIMASK], False)
    sal(p, f"s_mov_b32 {s(S_HIMASK + 1)}, -1", [], [S_HIMASK + 1], False)
    sal(p, f"s_mov_b32 {s(S_T0)}, {L_TAB}", [], [S_T0], False)


def gather(p, opt, extra):
    for r in range(4):
        p.op("v_min_u32", ridx + r, "0xa8", ridx + r)
        p.op("v_lshl_add_u32", ridx + r, ridx + r, "2", f"s{S_T0}")
    p.wait(lgkm=0)
    if opt.debug:
        for k, r in ((0, 7), (16, 6), (1, 1), (2, 2)):
            p.add(I(f"v_readfirstlane_b32 {s(S_STAMP + k)}, {v(WB + r)}", "rdlane", [WB + r], sr(S_STAMP + k)))
    p.wait_tag("w")
    p.raw("s_barrier")
    stamp(p, opt, 3)
    g = u
    p.dsr("ds_read_b128", 64, 4, PARA, 0) if False else None
    p.dsr("ds_read_b128", 112, 4, PARA, 0)
    for h in range(4):
        for r in range(4):
            p.dsr("ds_read_b32", g + 4 * h + r, 1, ridx + r, 768 * h)
    for h in range(4):
        p.add(I(f"v_readfirstlane_b32 {s(S_TAU + h)}, {v(112 + h)}", "rdlane", [112 + h], sr(S_TAU + h)))
    for h in range(4):
        p.dsw("ds_write_b128", GDST, g + 4 * h, 4, 14336 * h)
    if extra:
        sal(p, f"s_sub_u32 {s(S_T1)}, {s(W)}, 4", [W], [S_T1])
        sal(p, f"s_cmp_ge_u32 {s(S_T1)}, 2", [S_T1], [])
        p.raw("s_cbranch_scc1 L_nog2", rd=[SCC])
        p.cond_begin()
        for h in range(4):
            p.dsr("ds_read_b32", g2 + h, 1, ridx2, 768 * h)
        sal(p, f"s_mul_i32 {s(S_T1)}, {s(S_T1)}, 7168", [S_T1], [S_T1], False)
        p.op("v_add_u32", ta, f"s{S_T1}", V_BIAS)
        p.op("v_mov_b32", tb, f32(NEG_BIG))
        for h in range(4):
            p.add(I(f"v_cndmask_b32 {v(g2 + h)}, {v(g2 + h)}, {v(tb)}, {s(S_HIMASK, 2)}", "valu",
                    [g2 + h, tb] + sr(S_HIMASK, 2), [g2 + h]))
            p.dsw("ds_write_b32", ta, g2 + h, 1, 14336 * h + 6144)
        p.cond_end()
        p.label("L_nog2")
    sal(p, f"s_mov_b32 s47, 0", [], [47], False)
    sal(p, f"s_mov_b32 {s(S_EPSQ)}, {f32(0.5e-12)}", [], [S_EPSQ], False)
    sal(p, f"s_mov_b32 {s(S_EPSLN)}, {f32(48e-5)}", [], [S_EPSLN], False)
    sal(p, f"s_mov_b32 {s(S_VMASK)}, 0x00ffffff", [], [S_VMASK], False)
    sal(p, f"s_mov_b32 {s(S_VMASK + 1)}, 0x00ffffff", [], [S_VMASK + 1], False)
    sal(p, f"s_max_u32 {s(S_T0)}, {s(S_TAU)}, {s(S_TAU + 1)}", [S_TAU, S_TAU + 1], [S_T0])
    sal(p, f"s_max_u32 {s(S_T1)}, {s(S_TAU + 2)}, {s(S_TAU + 3)}", [S_TAU + 2, S_TAU + 3], [S_T1])
    sal(p, f"s_max_u32 {s(S_T0)}, {s(S_T0)}, {s(S_T1)}", [S_T0, S_T1], [S_T0])
    sal(p, f"s_cmp_gt_u32 {s(S_T0)}, {f32(TAU_THR * LOG2E)}", [S_T0], [])
    p.salu(f"s_cselect_b32 {s(S_UNSAFE)}, 1, 0", [SCC], sr(S_UNSAFE))
    p.wait(lgkm=0)
    p.raw("s_barrier")
    stamp(p, opt, 4)


def path_o(p, opt):
    if opt.prefetch:
        p.add(I(f"s_getpc_b64 {s(68, 2)}", "salu", [], sr(68, 2)))
        sal(p, f"s_lshl_b32 {s(70)}, {s(W)}, 13", [W], [70])
        p.op("v_lshl_add_u32", 82, L, "7", "s70")
        p.add(I(f"global_load_dword {v(83)}, {v(82)}, {s(68, 2)}", "vld", [82] + sr(68, 2), [83]))
    window_map(p, opt, 60, 61, 62, 64, 65, 66, 67)
    p.wait(lgkm=0)
    stamp(p, opt, 1, early=True)
    dma_w(p, opt, "L_nodma")
    p.vld("buffer_load_dwordx4", ridx, 4, GA, SRD_RIDX, 0)
    p.raw("s_barrier")
    x_loads(p, opt)
    stamp(p, opt, 2, early=True)
    lds_bases(p, opt)
    gather(p, opt, False)
    mask_loads(p, opt)
    p.label("L_join")


def path_y(p, opt):
    p.label("L_pathY")
    sA, sB = 48, 49
    p.op("v_lshrrev_b32", ta, "2", L)
    sal(p, f"s_sub_u32 {s(sB)}, {s(W)}, 4", [W], [sB])
    sal(p, f"s_lshl_b32 {s(sA)}, {s(sB)}, 4", [sB], [sA])
    p.op("v_add_u32", ta, f"s{sA}", ta)
    p.op("v_mul_u32_u24", ta, "0xc0", ta)
    p.op("v_and_b32", tb, "3", L)
    p.op("v_mad_u32_u24", WOA, tb, "48", ta)
    sal(p, f"s_sub_u32 {s(sA)}, {s(W)}, 9", [W], [sA])
    sal(p, f"s_lshl_b32 {s(sA)}, {s(sA)}, 8", [sA], [sA])
    p.op("v_lshl_add_u32", TE, L, "2", f"s{sA}")
    sal(p, f"s_lshl_b32 {s(sB)}, {s(sB)}, 5", [sB], [sB])
    p.op("v_add_u32", GB, f"s{sB}", N31)
    p.op("v_min_u32", GB, "48", GB)
    p.op("v_mul_u32_u24", GB, "0xc4", GB)
    p.wait(lgkm=0)
    stamp(p, opt, 1, early=True)
    p.smem("s_load_dwordx2", S_LS, 2, 32, 0)
    p.smem("s_load_dwordx16", S_W2, 16, 38, 0)
    p.smem("s_load_dwordx16", S_W2 + 16, 16, 38, 64)
    p.vld("buffer_load_dword", rcv, 1, TE, SRD_RC, 0)
    for i in range(6):
        p.salu(f"s_mov_b32 m0, {s(50)}", sr(50), [M0])
        p.dma(DMA, SRD_WQ, 51).tag = "w"
        if i < 5:
            sal(p, f"s_addk_i32 {s(50)}, 9216", [50], [50])
            sal(p, f"s_addk_i32 {s(51)}, 9216", [51], [51])
    for i in range(3):
        p.vld("buffer_load_dwordx4", wov + 4 * i, 4, WOA, SRD_WO, 16 * i)
    p.vld("buffer_load_dwordx4", ridx, 4, GA, SRD_RIDX, 0)
    p.vld("buffer_load_dword", ridx2, 1, GB, SRD_RIDX, 192)
    p.smem("s_load_dwordx16", S_W1, 16, 36, 0)
    p.raw("s_barrier")
    stamp(p, opt, 2, early=True)
    lds_bases(p, opt)
    sal(p, f"s_cmp_lt_u32 {s(W)}, 9", [W], [])
    p.raw("s_cbranch_scc1 L_notab", rd=[SCC])
    p.cond_begin()
    p.raw("s_setprio 3", kind="salu")
    p.wait(lgkm=0)
    hb = u
    tmps = [S_LS, S_T1, S_T2, S_T3]
    for j in range(16):
        st = tmps[j % 4]
        nm = "s_pack_hh_b32_b16" if j & 1 else "s_pack_ll_b32_b16"
        sal(p, f"{nm} {s(st)}, {s(S_W1 + (j >> 1))}, {s(S_W1 + 8 + (j >> 1))}", [S_W1 + (j >> 1), S_W1 + 8 + (j >> 1)], [st], False)
        p.op("v_dot2_f32_bf16", hb + j, rcv, f"s{st}", "0", kind="dot")
    for j in range(8):
        p.op("v_cvt_pk_bf16_f32", hb + j, hb + 2 * j, hb + 2 * j + 1)
    for j in range(8):
        p.op("v_pk_max_i16", hb + j, hb + j, "0")
    acc = hb + 8
    k = 0
    for jp in range(8):
        for h in range(4):
            st = tmps[k % 4]
            k += 1
            r0, r1 = S_W2 + 4 * jp + (h >> 1), S_W2 + 4 * jp + 2 + (h >> 1)
            nm = "s_pack_hh_b32_b16" if h & 1 else "s_pack_ll_b32_b16"
            sal(p, f"{nm} {s(st)}, {s(r0)}, {s(r1)}", [r0, r1], [st], False)
            if jp == 0:
                p.op("v_dot2_f32_bf16", acc + h, hb, f"s{st}", "0", kind="dot")
            else:
                p.op("v_dot2_f32_bf16", acc + h, hb + jp, f"s{st}", acc + h, kind="dot").tag = "acc"
    p.op("v_mov_b32", ta, f32(16.0 * LOG2E))
    p.op("v_add_u32", TE, str(L_TAB), TE)
    for step in range(9):
        for h in range(4):
            a = acc + h
            if step == 0: p.op("v_cvt_pk_bf16_f32", a, a, a)
            if step == 1: p.op("v_and_b32", a, "0xffff0000", a)
            if step == 2: p.op("v_mul_f32", a, f32(-LOG2E), a)
            if step == 3: p.op("v_exp_f32", a, a, kind="trans")
            if step == 4: p.op("v_add_f32", a, "1.0", a)
            if step == 5: p.op("v_rcp_f32", a, a, kind="trans")
            if step == 6: p.op("v_cvt_pk_bf16_f32", a, a, a)
            if step == 7: p.op("v_and_b32", a, "0xffff0000", a)
            if step == 8:
                p.op("v_fmaak_f32", a, a, ta, f32(-8.0 * LOG2E))
                p.dsw("ds_write_b32", TE, a, 1, 768 * h)
    p.raw("s_setprio 0", kind="salu")
    p.cond_end()
    p.label("L_notab")
    sal(p, f"s_cmp_lg_u32 {s(W)}, 8", [W], [])
    p.raw("s_cbranch_scc1 L_notau", rd=[SCC])
    p.cond_begin()
    p.wait(lgkm=0)
    for h in range(4):
        src = S_LS + (h >> 1)
        st = S_W1 + h
        if h & 1:
            sal(p, f"s_and_b32 {s(st)}, {s(src)}, 0xffff0000", [src], [st])
        else:
            sal(p, f"s_lshl_b32 {s(st)}, {s(src)}, 16", [src], [st])
        p.op("v_mov_b32", u + h, f"s{st}")
    for h in range(4):
        x = u + h
        p.op("v_min_f32", x, "0x40930000", x)
        p.op("v_max_f32", x, "0xc2c80000", x)
        p.op("v_mul_f32", x, f32(LOG2E), x)
        p.op("v_exp_f32", x, x, kind="trans")
    for h in range(4):
        x = u + h
        p.op("v_cvt_pk_bf16_f32", x, x, x)
        p.op("v_and_b32", x, "0xffff0000", x)
        p.op("v_mul_f32", x, f32(LOG2E), x)
    p.dsw("ds_write_b128", PARA, u, 4, 0)
    for i in range(4):
        p.op("v_mov_b32", g2 + i, "0x3f803f80")
    p.dsw("ds_write_b128", V_BIAS, g2, 4, L_ONES - L_BIAS)
    p.cond_end()
    p.label("L_notau")
    sal(p, f"s_cmp_ge_u32 {s(W)}, 10", [W], [])
    p.raw("s_cbranch_scc1 L_nowo", rd=[SCC])
    p.cond_begin()
    uu = 128
    for i in range(12):
        p.op("v_lshlrev_b32", uu + 2 * i, "16", wov + i)
        p.op("v_and_b32", uu + 2 * i + 1, "0xffff0000", wov + i)
    sm = 64
    def pk(name, d, a, b, mods=""):
        p.add(I(f"{name} {v(d, 2)}, {v(a, 2)}, {v(b, 2)}{mods}", "valu", vr(a, 2) + vr(b, 2), vr(d, 2)))
    pk("v_pk_add_f32", sm, uu, uu + 2)
    for i in range(2, 12):
        pk("v_pk_add_f32", sm, sm, uu + 2 * i)
    p.op("v_add_f32", sm, sm, sm + 1)
    for ctl in ("quad_perm:[1,0,3,2]", "quad_perm:[2,3,0,1]"):
        p.add(I(f"v_add_f32_dpp {v(sm)}, {v(sm)}, {v(sm)} {ctl} row_mask:0xf bank_mask:0xf", "dpp", [sm], [sm]))
    p.op("v_mul_f32", sm, f32(-1.0 / 96.0), sm)
    for i in range(12):
        pk("v_pk_add_f32", uu + 2 * i, uu + 2 * i, sm, " op_sel_hi:[1,0]")
    for i in range(12):
        p.op("v_cvt_pk_bf16_f32", wov + i, uu + 2 * i, uu + 2 * i + 1)
    for i in range(3):
        p.dsw("ds_write_b128", WOA, wov + 4 * i, 4, L_WO + 16 * i)
    p.cond_end()
    p.label("L_nowo")
    p.op("v_min_u32", ridx2, "0xa8", ridx2)
    p.op("v_lshl_add_u32", ridx2, ridx2, "2", f"s{S_T0}")
    p.wait(lgkm=0)
    window_map(p, opt, 48, 49, 50, 52, 53, 54, 55)
    gather(p, opt, True)
    sal(p, f"s_cmp_lt_u32 s2, {NS}", [2], [])
    p.salu(f"s_cselect_b32 {s(S_T0)}, {s(W)}, 0", [SCC] + sr(W), sr(S_T0))
    sal(p, f"s_cmp_ge_u32 {s(S_T0)}, 8", [S_T0], [])
    p.raw("s_cbranch_scc1 L_end", rd=[SCC])
    x_loads(p, opt)
    mask_loads(p, opt)
    p.raw("s_branch L_join")


class WBuf:
    def __init__(self, quads):
        self.q = list(quads)
        self.i = 0

    def next(self):
        r = self.q[self.i % len(self.q)]
        self.i += 1
        return r


def ld_wq(p, wb, col, ks):
    r = wb.next()
    off = L_WQ + col * 2 + 16 * ks * 576
    p.dsr("ds_read_b64_tr_b16", r, 2, V_WQ, off)
    p.dsr("ds_read_b64_tr_b16", r + 2, 2, V_WQ, off + 4 * 576)
    return r


def qk_proj(p, hp, X, areas, wb):
    for T in range(3):
        for ks in range(6):
            w = ld_wq(p, wb, hp * 96 + 32 * T, ks)
            p.mfma(areas[T], w, X + 4 * ks, None if ks == 0 else areas[T])


def qk_norm(p, hp, areas, qdst, kdst, order=None):
    Lr = [areas[i // 16] + i % 16 for i in range(48)]
    ss = [V_SC + i for i in range(4)]
    cp = [V_SC + 4, V_SC + 5]
    for g in range(4):
        for i in range(12):
            x = Lr[12 * g + i]
            if i == 0:
                p.op("v_fma_f32", ss[g], x, x, f"s{S_EPSQ}")
            else:
                p.op("v_fmac_f32", ss[g], x, x, rmw=True)
    sc = {}
    for pr in range(2):
        a, b = ss[2 * pr], ss[2 * pr + 1]
        p.swap32(a, b)
        p.op("v_add_f32", a, a, b)
        p.op("v_rsq_f32", a, a, kind="trans")
        if pr == 0:
            p.op("v_mul_f32", a, a, V_TAUV)
        p.op("v_mov_b32", b, a)
        p.swap32(a, b)
        sc[2 * pr], sc[2 * pr + 1] = a, b
    for i in range(48):
        p.op("v_mul_f32", Lr[i], Lr[i], sc[i // 12])
    dst = [qdst + i for i in range(12)] + [kdst + i for i in range(12)]
    pend = list(range(24))
    done_src = set()
    while pend:
        for pi in pend:
            d = dst[pi]
            blockers = [q for q in pend if q != pi and d in (Lr[2 * q], Lr[2 * q + 1])]
            if not blockers:
                p.op("v_cvt_pk_bf16_f32", d, Lr[2 * pi], Lr[2 * pi + 1])
                pend.remove(pi)
                break
        else:
            raise RuntimeError("no legal packing order")


def set_tauv(p, hp):
    def g():
        p.op("v_mov_b32", V_TAUV, f"s{S_TAU + 2 * hp}")
        p.salu(f"s_mov_b64 exec, {s(S_HIMASK, 2)}", sr(S_HIMASK, 2), [EXEC])
        p.op("v_mov_b32", V_TAUV, f"s{S_TAU + 2 * hp + 1}", rmw=True)
        p.salu("s_mov_b64 exec, -1", [], [EXEC])
    p.group(g)


def fill_ones(p, regs_quads, addr=None):
    for (r, n) in regs_quads:
        p.dsr({4: "ds_read_b128", 2: "ds_read_b64"}[n], r, n, V_BIAS, L_ONES - L_BIAS)


def v_proj(p, h, tiles, wb):
    for ks in range(6):
        w = ld_wq(p, wb, 192 + 24 * h, ks)
        for (X, D) in tiles:
            p.mfma(D, X + 4 * ks, w, None if ks == 0 else D)


def v_pack(p, pairs):
    for i in range(0, len(pairs), 5):
        chunk = pairs[i:i + 5]
        def g():
            p.salu(f"s_mov_b64 exec, {s(S_VMASK, 2)}", sr(S_VMASK, 2), [EXEC])
            for d, a in chunk:
                p.op("v_cvt_pk_bf16_f32", d, a, a + 1, rmw=True)
            p.salu("s_mov_b64 exec, -1", [], [EXEC])
        p.group(g)


def unit(p, h, qt, S0, S1, Q, Ka, Kb, Vq, slow, opt):
    boff = (h * 2 + qt) * 7168
    for g in range(4):
        p.dsr("ds_read_b128", S0 + 4 * g, 4, V_BIAS, boff + 1024 * g)
    for g in range(3):
        p.dsr("ds_read_b128", S1 + 4 * g, 4, V_BIAS, boff + 1024 * (4 + g))
    if slow:
        M = [WB, WB + 2, WB + 4, WB + 6, V_SC, V_SC + 2]
        M6 = V_SC + 4
        ad = V_SP
        p.op("v_subrev_u32", ad, str(L_BIAS), V_BIAS)
        p.op("v_bfe_u32", V_SC + 5, ad, "4", "5")
        if qt:
            p.op("v_add_u32", V_SC + 5, "32", V_SC + 5)
            p.op("v_min_u32", V_SC + 5, "48", V_SC + 5)
        p.op("v_mul_u32_u24", V_SC + 5, "0x62", V_SC + 5)
        p.op("v_lshrrev_b32", ad, "9", ad)
        p.op("v_lshl_add_u32", ad, ad, "3", V_SC + 5)
        p.op("v_add_u32", ad, f"s{S_MBASE}", ad)
        for g in range(6):
            p.vld("buffer_load_dwordx2", M[g], 2, ad, SRD_MASK, 16 * g)
        p.op("v_add_u32", V_SC + 5, f"s{S_MBASE}", V_SC + 5)
        p.vld("buffer_load_ushort", M6, 1, V_SC + 5, SRD_MASK, 96)
    p.mfma(S0, Ka, Q, S0)
    p.mfma(S0, Ka + 4, Q + 4, S0, k=8)
    p.mfma(S1, Kb, Q, S1)
    p.mfma(S1, Kb + 4, Q + 4, S1, k=8)
    regs = [S0 + i for i in range(16)] + [S1 + i for i in range(9)]
    if slow:
        tmp = V_SP
        for g in range(6):
            for e in range(4):
                r = regs[4 * g + e]
                src = M[g] + (e >> 1)
                if e & 1:
                    p.op("v_and_b32", tmp, "0xffff0000", src)
                else:
                    p.op("v_lshlrev_b32", tmp, "16", src)
                p.op("v_fmamk_f32", r, tmp, f32(LOG2E), r)
        p.op("v_lshlrev_b32", tmp, "16", M6)
        p.op("v_fmamk_f32", regs[24], tmp, f32(LOG2E), regs[24])
        mx, m2 = V_SC, V_SC + 1
        p.op("v_max3_f32", mx, regs[0], regs[1], regs[2])
        for i in range(3, 25, 2):
            p.op("v_max3_f32", mx, mx, regs[i], regs[i + 1])
        p.op("v_mov_b32", m2, mx)
        p.swap32(mx, m2)
        p.op("v_max_f32", mx, mx, m2)
        for r in regs:
            p.op("v_sub_f32", r, r, mx)
    for r in regs:
        p.op("v_exp_f32", r, r, kind="trans")
    for i in range(8):
        p.op("v_cvt_pk_bf16_f32", S0 + i, S0 + 2 * i, S0 + 2 * i + 1)
    for i in range(4):
        p.op("v_cvt_pk_bf16_f32", S0 + 8 + i, S1 + 2 * i, S1 + 2 * i + 1)
    p.op("v_cvt_pk_bf16_f32", V_PZ, S1 + 8, "0")
    O = S1
    p.mfma(O, Vq[0], S0, None)
    p.mfma(O, Vq[1], S0 + 4, O)
    p.mfma(O, Vq[2], S0 + 8, O)
    p.mfma(O, Vq[3], V_PZ, O, k=8)
    p.op("v_rcp_f32", O + 12, O + 12, kind="trans")
    for i in range(12):
        p.op("v_mul_f32", O + i, O + i, O + 12)
    for i in range(6):
        p.op("v_cvt_pk_bf16_f32", Q + i, O + 2 * i, O + 2 * i + 1)


def prefix(p, opt):
    set_tauv(p, 0)
    wb = WBuf([WB, WB + 4, K0R, K0R + 4, K0R + 8])
    areas = [OQ0, OQ0 + 16, OQ0 + 32]
    qk_proj(p, 0, XA, areas, wb)
    qk_norm(p, 0, areas, OQ0, K0R)


def mask_check(p, opt):
    m = MASK_REGS
    a = V_SC
    stamp(p, opt, 6)
    if opt.mask_check:
        regs = [r + i for r in m for i in range(4)]
        p.op("v_or3_b32", a, regs[0], regs[1], regs[2])
        for i in range(3, 19, 2):
            p.op("v_or3_b32", a, a, regs[i], regs[i + 1])
        p.op("v_or_b32", a, a, regs[19])
        p.op("v_and_b32", a, "0x7fff7fff", a)
        p.add(I(f"v_cmp_ne_u32 vcc, 0, {v(a)}", "valu", [a], [VCC]))
        p.salu(f"s_or_b32 {s(S_T0)}, vcc_lo, vcc_hi", [VCC], sr(S_T0) + [SCC])
        p.salu(f"s_or_b32 {s(S_T0)}, {s(S_T0)}, {s(S_UNSAFE)}", sr(S_T0) + sr(S_UNSAFE), sr(S_T0) + [SCC])
    else:
        p.salu(f"s_or_b32 {s(S_T0)}, {s(S_KILL)}, {s(S_UNSAFE)}", sr(S_KILL) + sr(S_UNSAFE), sr(S_T0) + [SCC])
    if getattr(opt, "loop2", False):
        p.salu("s_cmp_eq_u32 s47, 0", sr(47), [SCC])
        p.salu(f"s_cselect_b32 s46, {s(S_T0)}, s46", [SCC] + sr(S_T0) + sr(46), sr(46))
        p.salu("s_cmp_lg_u32 s46, 0", sr(46), [SCC])
    p.raw("s_cbranch_scc1 L_slow", rd=[SCC])


def body(p, slow, opt):
    S0a, S1a = OQ0 + 12, OQ1 + 12
    ones_addr = V_SP
    stamp(p, opt, 7)
    wb = WBuf([WB, WB + 4, VA, VA + 4, VA + 8])
    areas = [OQ1, OQ0 + 12, OQ1 + 16]
    qk_proj(p, 0, XB, areas, wb)
    qk_norm(p, 0, areas, OQ1, K1R)
    fill_ones(p, [(VA, 4), (VA + 4, 4), (VA + 8, 4), (VA + 12, 2)], ones_addr)
    Vq = [VA, VA + 4, VA + 8, VA + 12]
    for h in (0, 1):
        wb = WBuf([WB, WB + 4, UR] if not slow else [UR, UR])
        if slow:
            wb = WBuf([WB, WB + 4, UR])
        v_proj(p, h, [(XA, S0a), (XB, S1a)], wb)
        v_pack(p, [(VA + i, S0a + 2 * i) for i in range(8)] + [(VA + 8 + i, S1a + 2 * i) for i in range(5)])
        for qt in (0, 1):
            unit(p, h, qt, S0a, S1a, (OQ0, OQ1)[qt] + 6 * h, K0R + 6 * h, K1R + 6 * h, Vq, slow, opt)
    stamp(p, opt, 8)
    set_tauv(p, 1)
    wb = WBuf([WB, WB + 4, UR, K0R, K0R + 4, K0R + 8])
    v_proj(p, 2, [(XA, S0a), (XB, S1a)], wb)
    v_pack(p, [(VA + i, S0a + 2 * i) for i in range(8)] + [(VA + 8 + i, S1a + 2 * i) for i in range(5)])
    wb = WBuf([WB, WB + 4, K0R, K0R + 4, K0R + 8])
    areas = [S0a, S1a, K1R]
    qk_proj(p, 1, XA, areas, wb)
    qk_norm(p, 1, areas, OQ0 + 12, K0R)
    wb = WBuf([WB, WB + 4, K1R, K1R + 4, K1R + 8, UR])
    v_proj(p, 3, [(XA, S1a)], wb)
    VB0 = XA + 16
    fill_ones(p, [(VB0, 4), (VB0 + 4, 4)], ones_addr)
    v_pack(p, [(VB0 + i, S1a + 2 * i) for i in range(8)])
    wb = WBuf([WB, WB + 4, T0R])
    areas = [S1a, XA, K1R]
    qk_proj(p, 1, XB, areas, wb)
    qk_norm(p, 1, areas, OQ1 + 12, K1R)
    wb = WBuf([WB, WB + 4, T0R, T1R, UR])
    v_proj(p, 3, [(XB, XA)], wb)
    VB1 = XB
    fill_ones(p, [(VB1, 4), (VB1 + 4, 2)], ones_addr)
    v_pack(p, [(VB1 + i, XA + 2 * i) for i in range(5)])
    S0b, S1b = XA, XB + 8
    for h in (2, 3):
        vq = Vq if h == 2 else [VB0, VB0 + 4, VB1, VB1 + 4]
        for qt in (0, 1):
            unit(p, h, qt, S0b, S1b, (OQ0, OQ1)[qt] + 6 * h, K0R + 6 * (h - 2), K1R + 6 * (h - 2), vq, slow, opt)
    stamp(p, opt, 9)
    vwo = V_SP
    a, b = V_SC, V_SC + 1
    p.op("v_subrev_u32", a, str(L_BIAS), V_BIAS)
    p.op("v_bfe_u32", b, a, "6", "2")
    p.op("v_lshrrev_b32", vwo, "9", a)
    p.op("v_lshl_add_u32", b, vwo, "2", b)
    p.op("v_mul_u32_u24", b, "0xc0", b)
    p.op("v_bfe_u32", vwo, a, "8", "1")
    p.op("v_lshl_add_u32", b, vwo, "5", b)
    p.op("v_bfe_u32", vwo, a, "4", "1")
    p.op("v_lshl_add_u32", b, vwo, "4", b)
    p.op("v_bfe_u32", vwo, a, "5", "1")
    p.op("v_lshl_add_u32", b, vwo, "3", b)
    p.op("v_add_u32", vwo, str(L_WO), b)
    Y = [[XA, XA + 16, XA + 32], [K1R, K1R + 16, K1R + 32]]
    wb = WBuf([T0R, T1R, WB + 6 - 2])
    wb = WBuf([T0R, T1R, V_SC + 2])
    for T in range(3):
        for ks in range(6):
            w = wb.next()
            p.dsr("ds_read_b64_tr_b16", w, 2, vwo, (16 * ks) * 192 + 64 * T)
            p.dsr("ds_read_b64_tr_b16", w + 2, 2, vwo, (16 * ks + 8) * 192 + 64 * T)
            for tt in (0, 1):
                p.mfma(Y[tt][T], w, (OQ0, OQ1)[tt] + 4 * ks, None if ks == 0 else Y[tt][T])
    for tt in (0, 1):
        y = [Y[tt][i // 16] + i % 16 for i in range(48)]
        ss, cp = (V_SC, V_SC + 1) if tt == 0 else (V_PZ, V_PZ + 1)
        for i in range(48):
            if i == 0:
                p.op("v_fma_f32", ss, y[0], y[0], f"s{S_EPSLN}")
            else:
                p.op("v_fmac_f32", ss, y[i], y[i], rmw=True)
        p.op("v_mov_b32", cp, ss)
        p.swap32(ss, cp)
        p.op("v_add_f32", ss, ss, cp)
        p.op("v_rsq_f32", ss, ss, kind="trans")
        p.op("v_mul_f32", ss, f32(math.sqrt(96.0)), ss)
        for i in range(48):
            p.op("v_mul_f32", y[i], y[i], ss)
        for T in range(3):
            for jj in range(2):
                base = Y[tt][T] + 8 * jj
                for i in range(4):
                    p.op("v_cvt_pk_bf16_f32", base + i, base + 2 * i, base + 2 * i + 1)
                p.vst("buffer_store_dwordx4", base, 4, (V_OFFA, V_OFFB)[tt], SRD_OUT, 64 * T + 32 * jj, opt.sflag)
    stamp(p, opt, 10)
    if getattr(opt, "twice", 0):
        lbl = "L_done_" + ("s" if slow else "f")
        p.salu("s_add_u32 s47, s47, 1", sr(47), sr(47) + [SCC]).tag = "fence"
        p.salu(f"s_cmp_ge_u32 s47, {opt.twice}", sr(47), [SCC]).tag = "fence"
        p.raw(f"s_cbranch_scc1 {lbl}", rd=[SCC])
        p.raw("s_nop 4")
        x_loads(p, opt)
        p.op("v_mov_b32", V_PZ + 1, "0")
        p.raw("s_branch L_join")
        p.label(lbl)
    if getattr(opt, "loop2", False):
        p.salu("s_add_u32 s47, s47, 1", sr(47), sr(47) + [SCC]).tag = "fence"
        p.salu("s_cmp_lt_u32 s47, 2", sr(47), [SCC]).tag = "fence"
        p.raw("s_cbranch_scc1 L_again", rd=[SCC])
    if opt.debug:
        p.wait(vm=0)
    n0 = len(p.ins)
    stamp_flush(p, opt)
    for i in p.ins[n0:]:
        i.tag = "fence" if i.tag is None else i.tag
    p.raw("s_endpgm")


HEADER = open("standalone__window_attn_swin_v2__vision.s.ref").read().split("; Override")[0]


def generate(opt, sched=None):
    segs = {}
    p = Prog(); pro_common(p, opt); segs["com"] = p.ins
    p = Prog(); path_o(p, opt); segs["po"] = p.ins
    p = Prog(); path_y(p, opt); segs["py"] = p.ins
    p = Prog()
    if opt.debug:
        p.wait(vm=5 if opt.mask_check else 0)
        stamp(p, opt, 5)
    prefix(p, opt); segs["pre"] = p.ins
    p = Prog(); mask_check(p, opt); segs["chk"] = p.ins
    p = Prog(); body(p, False, opt); segs["fast"] = p.ins
    p = Prog(); body(p, True, opt); segs["slow"] = p.ins
    if sched:
        for k in ("pre", "fast", "slow"):
            segs[k] = sched(segs[k])
    if getattr(opt, "drop", None):
        for k in ("fast",):
            segs[k] = [i for i in flatten(segs[k]) if not (i.kind in opt.drop and not i.text.startswith("v_mov_b32 v6") and not i.text.startswith("v_mov_b32 v7"))]
    st = WaitState()
    com = insert_nops(insert_waits(flatten(segs["com"]), st))
    sty = st.copy()
    po = insert_nops(insert_waits(flatten(segs["po"]), st), com)
    py = insert_nops(insert_waits(flatten(segs["py"]), sty), com)
    tail = lambda w: [(x.text) for x in w.vm[-(17 if opt.mask_check else 12):]]
    assert tail(st) == tail(sty), (tail(st), tail(sty))
    assert not st.lg and not sty.lg
    st.vm = st.vm[-(17 if opt.mask_check else 12):]
    mid = insert_nops(insert_waits(flatten(segs["pre"] + segs["chk"]), st), [I("s_nop 15", "nop", states=16)])
    head = com + po + mid
    fast = insert_nops(insert_waits(flatten(segs["fast"]), st.copy()), head)
    slow = insert_nops(insert_waits(flatten(segs["slow"]), st.copy()), head)
    name = "standalone__window_attn_swin_v2__vision_kernel"
    txt = HEADER
    txt += f"; @launch grid=({NWG},1,1) block=({64 * WPW},1,1) lds={LDS_BYTES}\n"
    txt += f""".amdgcn_target "amdgcn-amd-amdhsa--gfx950"
.text
.globl {name}
.p2align 8
.type {name},@function
{name}:
"""
    txt += render(head) + "\n" + render(fast) + "\nL_slow:\n" + render(slow) + "\n" + render(py) + "\nL_end:\n    s_endpgm\n"
    txt += f""".section .rodata,"a"
.p2align 6
.amdhsa_kernel {name}
  .amdhsa_next_free_vgpr {NVGPR}
  .amdhsa_next_free_sgpr 102
  .amdhsa_accum_offset {NVGPR}
  .amdhsa_group_segment_fixed_size 0
  .amdhsa_kernarg_size 96
  .amdhsa_user_sgpr_count 2
  .amdhsa_user_sgpr_kernarg_segment_ptr 1
  .amdhsa_system_sgpr_workgroup_id_x 1
.end_amdhsa_kernel
"""
    stats = {}
    for nm, seq in (("head", head), ("py", py), ("fast", fast), ("slow", slow)):
        c = {}
        for i in seq:
            c[i.kind] = c.get(i.kind, 0) + 1
        c["nopstates"] = sum(i.states for i in seq if i.kind == "nop")
        stats[nm] = c
    return txt, stats


if __name__ == "__main__":
    opt = Opt()
    if "--debug" in sys.argv:
        opt.debug = True
        sys.argv.remove("--debug")
    if "--debug2" in sys.argv:
        opt.debug = 2
    args = [a for a in sys.argv[1:] if not a.startswith("--")]
    out = args[0] if args else "standalone__window_attn_swin_v2__vision.s"
    for a in sys.argv:
        if a.startswith("--drop="):
            opt.drop = a[7:].split(",")
    if "--loop2" in sys.argv:
        opt.loop2 = True
    for a in sys.argv:
        for fl in ("xflag", "mflag", "sflag"):
            if a.startswith(f"--{fl}="):
                setattr(opt, fl, " " + a.split("=")[1].replace(",", " "))
    for a in sys.argv:
        if a.startswith("--twice="):
            opt.twice = int(a[8:])
    if "--nomask" in sys.argv:
        opt.mask_check = False
    if "--pf" in sys.argv:
        opt.prefetch = True
    import sched
    sc = None if "--nosched" in sys.argv else (lambda x: sched.schedule(x, verbose=True))
    txt, stats = generate(opt, sc)
    open(out, "w").write(txt)
    for k, c in stats.items():
        print(k, c)
```

```python
import sys, struct, math
sys.path.insert(0, "gen")
from asmlib import *

def f32(x):
    return "0x%08x" % struct.unpack("<I", struct.pack("<f", x))[0]

LOG2E = 1.4426950408889634
NWG = 252
NS = 27
WPW = 12
X_BYTES = 378 * 378 * 96 * 2
MASK_BYTES = 2916 * 49 * 49 * 2

L_WQ = 0
L_WO = 55296
L_BIAS = 73728
L_ONES = L_BIAS + 57344
L_TAB = L_ONES + 1024
L_PAR = L_TAB + 3072
L_END = L_PAR + 64
LDS_BYTES = L_END

S_W = 3
SRD_X, SRD_OUT, SRD_WQ, SRD_WO, SRD_MASK, SRD_RIDX, SRD_RC = 4, 8, 12, 16, 20, 24, 28
S_PTR = 32
S_W1 = 48
S_W2 = 64
S_LS = 96
S_T0, S_T1, S_T2, S_T3 = 98, 99, 100, 101
S_TAU = 32
S_EPSQ, S_EPSLN = 36, 37
S_VMASK = 38
S_HIMASK = 40
S_UNSAFE = 42
S_WIN = 43
S_MBASE = 44
S_KILL, S_G2 = 45, 46

V_OFFA, V_OFFB, V_WQ, V_BIAS = 0, 1, 2, 3
V_PZ = 4
V_SC = 6
XA, XB = 12, 36
OQ0, T0R, OQ1, T1R = 60, 84, 88, 112
K1R, UR, K0R, VA, WB = 116, 128, 132, 144, 158
V_TAUV, V_SP = 166, 167
NVGPR = 168

TAU_THR = 24.0
NEG_BIG = -30000.0


class Opt:
    mask_check = True
    debug = None
    xflag = ""
    mflag = ""
    sflag = ""
    prefetch = False


S_STAMP = 64
NSTAMP = 12


def stamp(p, opt, idx, early=False):
    if not opt.debug:
        return
    if early:
        p.add(I(f"s_memtime {s(S_T2, 2)}", "smem", [], sr(S_T2, 2)))
        p.op("v_mov_b32", WB + idx, f"s{S_T2}")
        return
    p.add(I(f"s_memtime {s(S_T2, 2)}", "smem", [], sr(S_T2, 2)))
    p.salu(f"s_mov_b32 {s(S_STAMP + idx)}, {s(S_T2)}", sr(S_T2), sr(S_STAMP + idx)).tag = "fence"
    p.raw("; stamp fence", kind="label") if False else None


def stamp_flush(p, opt):
    if not opt.debug:
        return
    stamp(p, opt, NSTAMP - 1)
    if opt.debug == 2:
        p.smem("s_load_dwordx2", 48, 2, 0, 80)
        build_srd(p, 52, 48, 256)
        p.add(I(f"s_memrealtime {s(S_STAMP + 14, 2)}", "smem", [], sr(S_STAMP + 14, 2)))
        p.salu("s_mov_b64 exec, 1", [], [EXEC])
        p.op("v_mov_b32", 60, "0")
        p.op("v_mov_b32", 61, f"s{S_STAMP + 14}")
        p.op("v_not_b32", 62, f"s{S_STAMP + 16}")
        lbl = f"L_dbgskip{len(p.ins)}"
        p.salu(f"s_cmp_lg_u32 {s(S_W)}, 9", sr(S_W), [SCC])
        p.raw(f"s_cbranch_scc1 {lbl}a", rd=[SCC])
        p.add(I(f"buffer_atomic_umax {v(61)}, {v(60)}, {s(52, 4)}, 0 offen offset:56", "vst", [60, 61] + sr(52, 4), []))
        p.add(I(f"buffer_atomic_umax {v(62)}, {v(60)}, {s(52, 4)}, 0 offen offset:60", "vst", [60, 62] + sr(52, 4), []))
        p.label(lbl + "a")
        p.salu("s_cmp_lg_u32 s2, 100", sr(2), [SCC])
        p.raw(f"s_cbranch_scc1 {lbl}", rd=[SCC])
        p.salu(f"s_and_b32 {s(S_T0)}, {s(S_W)}, 3", sr(S_W), sr(S_T0) + [SCC])
        p.raw(f"s_cbranch_scc1 {lbl}", rd=[SCC])
        for i in range(1, 12):
            p.salu(f"s_sub_u32 {s(S_STAMP + i)}, {s(S_STAMP + i)}, {s(S_STAMP)}", sr(S_STAMP + i) + sr(S_STAMP), sr(S_STAMP + i) + [SCC])
        p.salu(f"s_cmp_lg_u32 {s(S_W)}, 0", sr(S_W), [SCC])
        p.raw(f"s_cbranch_scc1 {lbl}y", rd=[SCC])
        for k, i in enumerate((1, 2, 3, 4, 5, 6, 8, 9, 11)):
            p.op("v_mov_b32", 61, f"s{S_STAMP + i}")
            p.vst("buffer_store_dword", 61, 1, 60, 52, 4 * k)
            p.raw("s_nop 1")
        p.salu(f"s_sub_u32 {s(S_T0)}, {s(S_STAMP + 14)}, {s(S_STAMP + 16)}", sr(S_STAMP + 14) + sr(S_STAMP + 16), sr(S_T0) + [SCC])
        p.op("v_mov_b32", 61, f"s{S_T0}")
        p.vst("buffer_store_dword", 61, 1, 60, 52, 52)
        p.raw(f"s_branch {lbl}")
        p.label(lbl + "y")
        p.salu(f"s_lshl_b32 {s(S_T0)}, {s(S_W)}, 1", sr(S_W), sr(S_T0) + [SCC])
        p.op("v_mov_b32", 60, f"s{S_T0}")
        for k, i in enumerate((5, 11)):
            p.op("v_mov_b32", 61, f"s{S_STAMP + i}")
            p.vst("buffer_store_dword", 61, 1, 60, 52, 28 + 4 * k)
            p.raw("s_nop 1")
        p.label(lbl)
        return
    p.smem("s_load_dwordx2", 48, 2, 0, 88)
    build_srd(p, 52, 48, 1 << 22)
    p.salu(f"s_lshl_b32 {s(S_T0)}, {s(S_WIN)}, 6", sr(S_WIN), sr(S_T0) + [SCC])
    p.add(I(f"s_getreg_b32 {s(S_STAMP + 12)}, hwreg(HW_REG_HW_ID)", "salu", [], sr(S_STAMP + 12)))
    p.salu(f"s_lshl_b32 {s(S_STAMP + 13)}, s2, 4", sr(2), sr(S_STAMP + 13) + [SCC])
    p.salu(f"s_add_u32 {s(S_STAMP + 13)}, {s(S_STAMP + 13)}, {s(S_W)}", sr(S_STAMP + 13) + sr(S_W), sr(S_STAMP + 13) + [SCC])
    p.add(I(f"s_memrealtime {s(S_STAMP + 14, 2)}", "smem", [], sr(S_STAMP + 14, 2)))
    p.op("v_mov_b32", 60, f"s{S_T0}")
    for i in range(15):
        p.op("v_mov_b32", 64 + i, f"s{S_STAMP + i}")
    p.op("v_mov_b32", 64 + 15, f"s{S_STAMP + 16}")
    p.salu("s_mov_b64 exec, 1", [], [EXEC]).tag = "fence"
    for i in range(4):
        p.vst("buffer_store_dwordx4", 64 + 4 * i, 4, 60, 52, 16 * i)


def build_srd(p, srd, ptr, nbytes):
    p.salu(f"s_mov_b32 {s(srd)}, {s(ptr)}", sr(ptr), sr(srd))
    p.salu(f"s_and_b32 {s(srd + 1)}, {s(ptr + 1)}, 0xffff", sr(ptr + 1), sr(srd + 1) + [SCC])
    p.salu(f"s_mov_b32 {s(srd + 2)}, {nbytes}", [], sr(srd + 2))
    p.salu(f"s_mov_b32 {s(srd + 3)}, 0x00020000", [], sr(srd + 3))


MASK_REGS = [VA, VA + 4, VA + 8, UR, K1R + 4]


def sal(p, text, rd=(), wr=(), scc=True):
    return p.salu(text, [SB + x for x in rd], [SB + x for x in wr] + ([SCC] if scc else []))


L, HI16, N31, L16 = 60, 61, 62, 67
ta, tb, tc, td = 63, 64, 65, 66
DMA, WOA, TE, GA, GB, MO0, MO4, GDST, PARA = 68, 69, 70, 71, 72, 73, 74, 75, 77
wov, rcv, ridx2, ridx, u, g2 = 116, 86, 87, 88, 92, 108
W = S_W


def window_map(p, opt, sA, sB, sC, sD, sf, swi, swj):
    sal(p, f"s_mul_i32 {s(sA)}, s2, 12", [2], [sA], False)
    sal(p, f"s_add_u32 {s(sA)}, {s(sA)}, {s(W)}", [sA, W], [sA])
    sal(p, f"s_sub_u32 {s(sA)}, {s(sA)}, {12 * NS}", [sA], [sA])
    sal(p, f"s_lshl_b32 {s(sB)}, s2, 2", [2], [sB])
    sal(p, f"s_add_u32 {s(sB)}, {s(sB)}, {s(W)}", [sB, W], [sB])
    sal(p, f"s_add_u32 {s(sC)}, {s(sB)}, {12 * (NWG - NS) - 4}", [sB], [sC])
    sal(p, f"s_cmp_lt_u32 {s(W)}, 4", [W], [])
    p.salu(f"s_cselect_b32 {s(sC)}, 2808, {s(sC)}", [SCC] + sr(sC), sr(sC))
    p.salu(f"s_cselect_b32 {s(sD)}, {s(sB)}, 999", [SCC] + sr(sB), sr(sD))
    sal(p, f"s_cmp_lt_u32 s2, {NS}", [2], [])
    p.salu(f"s_cselect_b32 {s(sf)}, {s(sC)}, {s(sA)}", [SCC] + sr(sC) + sr(sA), sr(sf))
    p.salu(f"s_cselect_b32 {s(sD)}, {s(sD)}, 999", [SCC] + sr(sD), sr(sD))
    sal(p, f"s_mul_i32 {s(swi)}, {s(sf)}, 19785", [sf], [swi], False)
    sal(p, f"s_lshr_b32 {s(swi)}, {s(swi)}, 20", [swi], [swi])
    sal(p, f"s_mul_i32 {s(swj)}, {s(swi)}, 53", [swi], [swj], False)
    sal(p, f"s_sub_u32 {s(swj)}, {s(sf)}, {s(swj)}", [sf, swj], [swj])
    sal(p, f"s_sub_u32 {s(sA)}, {s(sD)}, 54", [sD], [sA])
    sal(p, f"s_cmp_lt_u32 {s(sD)}, 54", [sD], [])
    p.salu(f"s_cselect_b32 {s(sA)}, 53, {s(sA)}", [SCC] + sr(sA), sr(sA))
    p.salu(f"s_cselect_b32 {s(sB)}, {s(sD)}, 53", [SCC] + sr(sD), sr(sB))
    sal(p, f"s_cmp_lt_u32 {s(sD)}, 107", [sD], [])
    p.salu(f"s_cselect_b32 {s(swi)}, {s(sA)}, {s(swi)}", [SCC] + sr(sA) + sr(swi), sr(swi))
    p.salu(f"s_cselect_b32 {s(swj)}, {s(sB)}, {s(swj)}", [SCC] + sr(sB) + sr(swj), sr(swj))
    p.salu(f"s_cselect_b32 {s(S_KILL)}, 1, 0", [SCC], sr(S_KILL))
    sal(p, f"s_mul_i32 {s(S_WIN)}, {s(swi)}, 54", [swi], [S_WIN], False)
    sal(p, f"s_add_u32 {s(S_WIN)}, {s(S_WIN)}, {s(swj)}", [S_WIN, swj], [S_WIN])
    sal(p, f"s_mul_i32 {s(S_MBASE)}, {s(S_WIN)}, 4802", [S_WIN], [S_MBASE], False)
    sal(p, f"s_mul_i32 {s(swi)}, {s(swi)}, 7", [swi], [swi], False)
    sal(p, f"s_add_u32 {s(swi)}, {s(swi)}, 3", [swi], [swi])
    sal(p, f"s_mul_i32 {s(swj)}, {s(swj)}, 7", [swj], [swj], False)
    sal(p, f"s_add_u32 {s(swj)}, {s(swj)}, 3", [swj], [swj])
    sal(p, f"s_movk_i32 {s(sA)}, 378", [], [sA], False)
    p.add(I(f"v_cmp_gt_u32 {s(sC, 2)}, 17, {v(N31)}", "valu", [N31], sr(sC, 2)))
    xa, xb, xc, xd = 78, 79, 80, 81
    for tt, dst in ((0, V_OFFA), (1, V_OFFB)):
        n, ty, tx, a = xa, xb, xc, xd
        if tt == 0:
            n = N31
        else:
            p.op("v_add_u32", n, "32", N31)
        p.op("v_mul_u32_u24", ty, "37", n)
        p.op("v_lshrrev_b32", ty, "8", ty)
        p.op("v_mad_i32_i24", tx, ty, "-7", n)
        p.op("v_add_u32", ty, f"s{swi}", ty)
        p.op("v_add_u32", tx, f"s{swj}", tx)
        p.op("v_subrev_u32", a, f"s{sA}", ty)
        p.op("v_min_u32", ty, ty, a)
        p.op("v_subrev_u32", a, f"s{sA}", tx)
        p.op("v_min_u32", tx, tx, a)
        p.op("v_mad_u32_u24", a, ty, f"s{sA}", tx)
        p.op("v_mul_u32_u24", a, "0xc0", a)
        if tt == 0:
            p.op("v_add_u32", dst, a, HI16)
        else:
            p.op("v_add_u32", a, a, HI16)
            p.op("v_bfrev_b32", ty, "1")
            p.add(I(f"v_cndmask_b32 {v(dst)}, {v(ty)}, {v(a)}, {s(sC, 2)}", "valu", [ty, a] + sr(sC, 2), [dst]))
    if opt.mask_check:
        p.op("v_add_u32", MO0, f"s{S_MBASE}", L16)
        p.op("v_add_u32", xa, "4096", L16)
        p.op("v_min_u32", xa, "4786", xa)
        p.op("v_add_u32", MO4, f"s{S_MBASE}", xa)


def x_loads(p, opt):
    for tt, off in ((0, V_OFFA), (1, V_OFFB)):
        for k in range(6):
            p.vld("buffer_load_dwordx4", (XA, XB)[tt] + 4 * k, 4, off, SRD_X, 32 * k, opt.xflag)


def mask_loads(p, opt):
    if opt.mask_check:
        for i in range(5):
            if i < 4:
                p.vld("buffer_load_dwordx4", MASK_REGS[i], 4, MO0, SRD_MASK, 1024 * i, opt.mflag)
            else:
                p.vld("buffer_load_dwordx4", MASK_REGS[i], 4, MO4, SRD_MASK, 0, opt.mflag)


def pro_common(p, opt):
    p.salu(f"s_cmp_ge_u32 s2, {NWG}", sr(2), [SCC])
    p.raw("s_cbranch_scc1 L_end", rd=[SCC])
    if opt.debug:
        p.add(I(f"s_memtime {s(S_T2, 2)}", "smem", [], sr(S_T2, 2)))
        p.op("v_mov_b32", WB + 7, f"s{S_T2}")
        p.add(I(f"s_memrealtime {s(S_T2, 2)}", "smem", [], sr(S_T2, 2)))
        p.op("v_mov_b32", WB + 6, f"s{S_T2}")
    for srd, off in ((SRD_WQ, 8), (SRD_WO, 16), (SRD_RC, 48), (SRD_RIDX, 56), (SRD_X, 0), (SRD_MASK, 64), (SRD_OUT, 72)):
        p.smem("s_load_dwordx2", srd, 2, 0, off)
    p.smem("s_load_dwordx2", 32, 2, 0, 24)
    p.smem("s_load_dwordx4", 36, 4, 0, 32)
    p.op("v_lshrrev_b32", ta, "6", 0)
    p.op("v_and_b32", L, "63", 0)
    p.add(I(f"v_readfirstlane_b32 {s(W)}, {v(ta)}", "rdlane", [ta], sr(W)))
    for srd, nb in ((SRD_WQ, 96 * 288 * 2), (SRD_WO, 96 * 96 * 2), (SRD_RC, 169 * 4), (SRD_RIDX, 49 * 49 * 4), (SRD_X, X_BYTES),
                    (SRD_MASK, MASK_BYTES), (SRD_OUT, X_BYTES)):
        sal(p, f"s_mov_b32 {s(srd + 2)}, {nb}", [], [srd + 2], False)
        sal(p, f"s_mov_b32 {s(srd + 3)}, 0x00020000", [], [srd + 3], False)
    p.op("v_lshrrev_b32", HI16, "5", L)
    p.op("v_lshlrev_b32", HI16, "4", HI16)
    p.op("v_and_b32", N31, "31", L)
    p.op("v_lshlrev_b32", L16, "4", L)
    sA, sB, sC, sD = 48, 49, 50, 51
    sal(p, f"s_sub_u32 {s(sB)}, {s(W)}, 3", [W], [sB])
    sal(p, f"s_max_i32 {s(sB)}, {s(sB)}, 0", [sB], [sB])
    sal(p, f"s_lshl_b32 {s(sA)}, {s(sB)}, 6", [sB], [sA])
    p.op("v_add_u32", ta, f"s{sA}", L)
    p.op("v_mul_u32_u24", tb, "1821", ta)
    p.op("v_lshrrev_b32", tb, "16", tb)
    p.op("v_mul_u32_u24", tb, "36", tb)
    p.op("v_sub_u32", tb, ta, tb)
    p.op("v_subrev_u32", tc, "6", tb)
    p.add(I(f"v_cmp_gt_u32 {s(54, 2)}, 6, {v(tc)}", "valu", [tc], sr(54, 2)))
    p.op("v_subrev_u32", tc, "12", tb)
    p.add(I(f"v_cmp_gt_u32 {s(56, 2)}, 6, {v(tc)}", "valu", [tc], sr(56, 2)))
    p.op("v_add_u32", tb, "6", ta)
    p.op("v_subrev_u32", tc, "6", ta)
    p.add(I(f"v_cndmask_b32 {v(ta)}, {v(ta)}, {v(tb)}, {s(54, 2)}", "valu", [ta, tb] + sr(54, 2), [ta]))
    p.add(I(f"v_cndmask_b32 {v(ta)}, {v(ta)}, {v(tc)}, {s(56, 2)}", "valu", [ta, tc] + sr(56, 2), [ta]))
    p.op("v_lshlrev_b32", DMA, "4", ta)
    sal(p, f"s_lshl_b32 {s(sC)}, {s(sB)}, 10", [sB], [sC])
    sal(p, f"s_mov_b32 {s(sD)}, 0", [], [sD], False)
    sqt, sgrp = 58, 59
    sal(p, f"s_cmp_ge_u32 {s(W)}, 6", [W], [])
    p.salu(f"s_cselect_b32 {s(sqt)}, 1, 0", [SCC], sr(sqt))
    sal(p, f"s_mul_i32 {s(sgrp)}, {s(sqt)}, 6", [sqt], [sgrp], False)
    sal(p, f"s_sub_u32 {s(sgrp)}, {s(W)}, {s(sgrp)}", [W, sgrp], [sgrp])
    sal(p, f"s_lshl_b32 {s(sA)}, {s(sqt)}, 5", [sqt], [sA])
    p.op("v_add_u32", ta, f"s{sA}", N31)
    p.op("v_min_u32", ta, "48", ta)
    p.op("v_mul_u32_u24", ta, "0xc4", ta)
    sal(p, f"s_lshl_b32 {s(sA)}, {s(sgrp)}, 5", [sgrp], [sA])
    p.op("v_add3_u32", GA, ta, HI16, f"s{sA}")
    sal(p, f"s_mul_i32 {s(sA)}, {s(sqt)}, 7", [sqt], [sA], False)
    sal(p, f"s_add_u32 {s(sA)}, {s(sA)}, {s(sgrp)}", [sA, sgrp], [sA])
    sal(p, f"s_lshl_b32 {s(S_G2)}, {s(sA)}, 10", [sA], [S_G2])
    sal(p, f"s_cmp_lt_u32 {s(W)}, 4", [W], [])
    p.raw("s_cbranch_scc0 L_pathY", rd=[SCC])


def dma_w(p, opt, lbl):
    sC, sD = 50, 51
    sal(p, f"s_cmp_lt_u32 {s(W)}, 3", [W], [])
    p.raw(f"s_cbranch_scc1 {lbl}", rd=[SCC])
    p.cond_begin()
    for i in range(6):
        p.salu(f"s_mov_b32 m0, {s(sC)}", sr(sC), [M0])
        p.dma(DMA, SRD_WQ, sD).tag = "w"
        if i < 5:
            sal(p, f"s_addk_i32 {s(sC)}, 9216", [sC], [sC])
            sal(p, f"s_addk_i32 {s(sD)}, 9216", [sD], [sD])
    p.cond_end()
    p.label(lbl)


def lds_bases(p, opt):
    p.op("v_bfe_u32", ta, L, "2", "2")
    p.op("v_lshrrev_b32", tb, "1", HI16)
    p.op("v_add_u32", ta, ta, tb)
    p.op("v_mul_u32_u24", ta, "0x240", ta)
    p.op("v_bfe_u32", tb, L, "4", "1")
    p.op("v_lshl_add_u32", ta, tb, "5", ta)
    p.op("v_and_b32", tb, "3", L)
    p.op("v_lshl_add_u32", V_WQ, tb, "3", ta)
    p.op("v_add_u32", V_BIAS, str(L_BIAS), L16)
    p.op("v_mov_b32", V_PZ + 1, "0")
    p.op("v_add_u32", GDST, f"s{S_G2}", V_BIAS)
    p.op("v_mov_b32", PARA, str(L_PAR))
    sal(p, f"s_mov_b32 {s(S_HIMASK)}, 0", [], [S_HIMASK], False)
    sal(p, f"s_mov_b32 {s(S_HIMASK + 1)}, -1", [], [S_HIMASK + 1], False)
    sal(p, f"s_mov_b32 {s(S_T0)}, {L_TAB}", [], [S_T0], False)


def gather(p, opt, extra):
    for r in range(4):
        p.op("v_min_u32", ridx + r, "0xa8", ridx + r)
        p.op("v_lshl_add_u32", ridx + r, ridx + r, "2", f"s{S_T0}")
    p.wait(lgkm=0)
    if opt.debug:
        for k, r in ((0, 7), (16, 6), (1, 1), (2, 2)):
            p.add(I(f"v_readfirstlane_b32 {s(S_STAMP + k)}, {v(WB + r)}", "rdlane", [WB + r], sr(S_STAMP + k)))
    p.wait_tag("w")
    p.raw("s_barrier")
    stamp(p, opt, 3)
    g = u
    p.dsr("ds_read_b128", 64, 4, PARA, 0) if False else None
    p.dsr("ds_read_b128", 112, 4, PARA, 0)
    for h in range(4):
        for r in range(4):
            p.dsr("ds_read_b32", g + 4 * h + r, 1, ridx + r, 768 * h)
    for h in range(4):
        p.add(I(f"v_readfirstlane_b32 {s(S_TAU + h)}, {v(112 + h)}", "rdlane", [112 + h], sr(S_TAU + h)))
    for h in range(4):
        p.dsw("ds_write_b128", GDST, g + 4 * h, 4, 14336 * h)
    if extra:
        sal(p, f"s_sub_u32 {s(S_T1)}, {s(W)}, 4", [W], [S_T1])
        sal(p, f"s_cmp_ge_u32 {s(S_T1)}, 2", [S_T1], [])
        p.raw("s_cbranch_scc1 L_nog2", rd=[SCC])
        p.cond_begin()
        for h in range(4):
            p.dsr("ds_read_b32", g2 + h, 1, ridx2, 768 * h)
        sal(p, f"s_mul_i32 {s(S_T1)}, {s(S_T1)}, 7168", [S_T1], [S_T1], False)
        p.op("v_add_u32", ta, f"s{S_T1}", V_BIAS)
        p.op("v_mov_b32", tb, f32(NEG_BIG))
        for h in range(4):
            p.add(I(f"v_cndmask_b32 {v(g2 + h)}, {v(g2 + h)}, {v(tb)}, {s(S_HIMASK, 2)}", "valu",
                    [g2 + h, tb] + sr(S_HIMASK, 2), [g2 + h]))
            p.dsw("ds_write_b32", ta, g2 + h, 1, 14336 * h + 6144)
        p.cond_end()
        p.label("L_nog2")
    sal(p, f"s_mov_b32 s47, 0", [], [47], False)
    sal(p, f"s_mov_b32 {s(S_EPSQ)}, {f32(0.5e-12)}", [], [S_EPSQ], False)
    sal(p, f"s_mov_b32 {s(S_EPSLN)}, {f32(48e-5)}", [], [S_EPSLN], False)
    sal(p, f"s_mov_b32 {s(S_VMASK)}, 0x00ffffff", [], [S_VMASK], False)
    sal(p, f"s_mov_b32 {s(S_VMASK + 1)}, 0x00ffffff", [], [S_VMASK + 1], False)
    sal(p, f"s_max_u32 {s(S_T0)}, {s(S_TAU)}, {s(S_TAU + 1)}", [S_TAU, S_TAU + 1], [S_T0])
    sal(p, f"s_max_u32 {s(S_T1)}, {s(S_TAU + 2)}, {s(S_TAU + 3)}", [S_TAU + 2, S_TAU + 3], [S_T1])
    sal(p, f"s_max_u32 {s(S_T0)}, {s(S_T0)}, {s(S_T1)}", [S_T0, S_T1], [S_T0])
    sal(p, f"s_cmp_gt_u32 {s(S_T0)}, {f32(TAU_THR * LOG2E)}", [S_T0], [])
    p.salu(f"s_cselect_b32 {s(S_UNSAFE)}, 1, 0", [SCC], sr(S_UNSAFE))
    p.wait(lgkm=0)
    p.raw("s_barrier")
    stamp(p, opt, 4)


def path_o(p, opt):
    if opt.prefetch:
        p.add(I(f"s_getpc_b64 {s(68, 2)}", "salu", [], sr(68, 2)))
        sal(p, f"s_lshl_b32 {s(70)}, {s(W)}, 13", [W], [70])
        p.op("v_lshl_add_u32", 82, L, "7", "s70")
        p.add(I(f"global_load_dword {v(83)}, {v(82)}, {s(68, 2)}", "vld", [82] + sr(68, 2), [83]))
    window_map(p, opt, 60, 61, 62, 64, 65, 66, 67)
    p.wait(lgkm=0)
    stamp(p, opt, 1, early=True)
    dma_w(p, opt, "L_nodma")
    p.vld("buffer_load_dwordx4", ridx, 4, GA, SRD_RIDX, 0)
    p.raw("s_barrier")
    x_loads(p, opt)
    stamp(p, opt, 2, early=True)
    lds_bases(p, opt)
    gather(p, opt, False)
    mask_loads(p, opt)
    p.label("L_join")


def path_y(p, opt):
    p.label("L_pathY")
    sA, sB = 48, 49
    p.op("v_lshrrev_b32", ta, "2", L)
    sal(p, f"s_sub_u32 {s(sB)}, {s(W)}, 4", [W], [sB])
    sal(p, f"s_lshl_b32 {s(sA)}, {s(sB)}, 4", [sB], [sA])
    p.op("v_add_u32", ta, f"s{sA}", ta)
    p.op("v_mul_u32_u24", ta, "0xc0", ta)
    p.op("v_and_b32", tb, "3", L)
    p.op("v_mad_u32_u24", WOA, tb, "48", ta)
    sal(p, f"s_sub_u32 {s(sA)}, {s(W)}, 9", [W], [sA])
    sal(p, f"s_lshl_b32 {s(sA)}, {s(sA)}, 8", [sA], [sA])
    p.op("v_lshl_add_u32", TE, L, "2", f"s{sA}")
    sal(p, f"s_lshl_b32 {s(sB)}, {s(sB)}, 5", [sB], [sB])
    p.op("v_add_u32", GB, f"s{sB}", N31)
    p.op("v_min_u32", GB, "48", GB)
    p.op("v_mul_u32_u24", GB, "0xc4", GB)
    p.wait(lgkm=0)
    stamp(p, opt, 1, early=True)
    p.smem("s_load_dwordx2", S_LS, 2, 32, 0)
    p.smem("s_load_dwordx16", S_W2, 16, 38, 0)
    p.smem("s_load_dwordx16", S_W2 + 16, 16, 38, 64)
    p.vld("buffer_load_dword", rcv, 1, TE, SRD_RC, 0)
    for i in range(6):
        p.salu(f"s_mov_b32 m0, {s(50)}", sr(50), [M0])
        p.dma(DMA, SRD_WQ, 51).tag = "w"
        if i < 5:
            sal(p, f"s_addk_i32 {s(50)}, 9216", [50], [50])
            sal(p, f"s_addk_i32 {s(51)}, 9216", [51], [51])
    for i in range(3):
        p.vld("buffer_load_dwordx4", wov + 4 * i, 4, WOA, SRD_WO, 16 * i)
    p.vld("buffer_load_dwordx4", ridx, 4, GA, SRD_RIDX, 0)
    p.vld("buffer_load_dword", ridx2, 1, GB, SRD_RIDX, 192)
    p.smem("s_load_dwordx16", S_W1, 16, 36, 0)
    p.raw("s_barrier")
    stamp(p, opt, 2, early=True)
    lds_bases(p, opt)
    sal(p, f"s_cmp_lt_u32 {s(W)}, 9", [W], [])
    p.raw("s_cbranch_scc1 L_notab", rd=[SCC])
    p.cond_begin()
    p.raw("s_setprio 3", kind="salu")
    p.wait(lgkm=0)
    hb = u
    tmps = [S_LS, S_T1, S_T2, S_T3]
    for j in range(16):
        st = tmps[j % 4]
        nm = "s_pack_hh_b32_b16" if j & 1 else "s_pack_ll_b32_b16"
        sal(p, f"{nm} {s(st)}, {s(S_W1 + (j >> 1))}, {s(S_W1 + 8 + (j >> 1))}", [S_W1 + (j >> 1), S_W1 + 8 + (j >> 1)], [st], False)
        p.op("v_dot2_f32_bf16", hb + j, rcv, f"s{st}", "0", kind="dot")
    for j in range(8):
        p.op("v_cvt_pk_bf16_f32", hb + j, hb + 2 * j, hb + 2 * j + 1)
    for j in range(8):
        p.op("v_pk_max_i16", hb + j, hb + j, "0")
    acc = hb + 8
    k = 0
    for jp in range(8):
        for h in range(4):
            st = tmps[k % 4]
            k += 1
            r0, r1 = S_W2 + 4 * jp + (h >> 1), S_W2 + 4 * jp + 2 + (h >> 1)
            nm = "s_pack_hh_b32_b16" if h & 1 else "s_pack_ll_b32_b16"
            sal(p, f"{nm} {s(st)}, {s(r0)}, {s(r1)}", [r0, r1], [st], False)
            if jp == 0:
                p.op("v_dot2_f32_bf16", acc + h, hb, f"s{st}", "0", kind="dot")
            else:
                p.op("v_dot2_f32_bf16", acc + h, hb + jp, f"s{st}", acc + h, kind="dot").tag = "acc"
    p.op("v_mov_b32", ta, f32(16.0 * LOG2E))
    p.op("v_add_u32", TE, str(L_TAB), TE)
    for step in range(9):
        for h in range(4):
            a = acc + h
            if step == 0: p.op("v_cvt_pk_bf16_f32", a, a, a)
            if step == 1: p.op("v_and_b32", a, "0xffff0000", a)
            if step == 2: p.op("v_mul_f32", a, f32(-LOG2E), a)
            if step == 3: p.op("v_exp_f32", a, a, kind="trans")
            if step == 4: p.op("v_add_f32", a, "1.0", a)
            if step == 5: p.op("v_rcp_f32", a, a, kind="trans")
            if step == 6: p.op("v_cvt_pk_bf16_f32", a, a, a)
            if step == 7: p.op("v_and_b32", a, "0xffff0000", a)
            if step == 8:
                p.op("v_fmaak_f32", a, a, ta, f32(-8.0 * LOG2E))
                p.dsw("ds_write_b32", TE, a, 1, 768 * h)
    p.raw("s_setprio 0", kind="salu")
    p.cond_end()
    p.label("L_notab")
    sal(p, f"s_cmp_lg_u32 {s(W)}, 8", [W], [])
    p.raw("s_cbranch_scc1 L_notau", rd=[SCC])
    p.cond_begin()
    p.wait(lgkm=0)
    for h in range(4):
        src = S_LS + (h >> 1)
        st = S_W1 + h
        if h & 1:
            sal(p, f"s_and_b32 {s(st)}, {s(src)}, 0xffff0000", [src], [st])
        else:
            sal(p, f"s_lshl_b32 {s(st)}, {s(src)}, 16", [src], [st])
        p.op("v_mov_b32", u + h, f"s{st}")
    for h in range(4):
        x = u + h
        p.op("v_min_f32", x, "0x40930000", x)
        p.op("v_max_f32", x, "0xc2c80000", x)
        p.op("v_mul_f32", x, f32(LOG2E), x)
        p.op("v_exp_f32", x, x, kind="trans")
    for h in range(4):
        x = u + h
        p.op("v_cvt_pk_bf16_f32", x, x, x)
        p.op("v_and_b32", x, "0xffff0000", x)
        p.op("v_mul_f32", x, f32(LOG2E), x)
    p.dsw("ds_write_b128", PARA, u, 4, 0)
    for i in range(4):
        p.op("v_mov_b32", g2 + i, "0x3f803f80")
    p.dsw("ds_write_b128", V_BIAS, g2, 4, L_ONES - L_BIAS)
    p.cond_end()
    p.label("L_notau")
    sal(p, f"s_cmp_ge_u32 {s(W)}, 10", [W], [])
    p.raw("s_cbranch_scc1 L_nowo", rd=[SCC])
    p.cond_begin()
    uu = 128
    for i in range(12):
        p.op("v_lshlrev_b32", uu + 2 * i, "16", wov + i)
        p.op("v_and_b32", uu + 2 * i + 1, "0xffff0000", wov + i)
    sm = 64
    def pk(name, d, a, b, mods=""):
        p.add(I(f"{name} {v(d, 2)}, {v(a, 2)}, {v(b, 2)}{mods}", "valu", vr(a, 2) + vr(b, 2), vr(d, 2)))
    pk("v_pk_add_f32", sm, uu, uu + 2)
    for i in range(2, 12):
        pk("v_pk_add_f32", sm, sm, uu + 2 * i)
    p.op("v_add_f32", sm, sm, sm + 1)
    for ctl in ("quad_perm:[1,0,3,2]", "quad_perm:[2,3,0,1]"):
        p.add(I(f"v_add_f32_dpp {v(sm)}, {v(sm)}, {v(sm)} {ctl} row_mask:0xf bank_mask:0xf", "dpp", [sm], [sm]))
    p.op("v_mul_f32", sm, f32(-1.0 / 96.0), sm)
    for i in range(12):
        pk("v_pk_add_f32", uu + 2 * i, uu + 2 * i, sm, " op_sel_hi:[1,0]")
    for i in range(12):
        p.op("v_cvt_pk_bf16_f32", wov + i, uu + 2 * i, uu + 2 * i + 1)
    for i in range(3):
        p.dsw("ds_write_b128", WOA, wov + 4 * i, 4, L_WO + 16 * i)
    p.cond_end()
    p.label("L_nowo")
    p.op("v_min_u32", ridx2, "0xa8", ridx2)
    p.op("v_lshl_add_u32", ridx2, ridx2, "2", f"s{S_T0}")
    p.wait(lgkm=0)
    window_map(p, opt, 48, 49, 50, 52, 53, 54, 55)
    gather(p, opt, True)
    sal(p, f"s_cmp_lt_u32 s2, {NS}", [2], [])
    p.salu(f"s_cselect_b32 {s(S_T0)}, {s(W)}, 0", [SCC] + sr(W), sr(S_T0))
    sal(p, f"s_cmp_ge_u32 {s(S_T0)}, 8", [S_T0], [])
    p.raw("s_cbranch_scc1 L_end", rd=[SCC])
    x_loads(p, opt)
    mask_loads(p, opt)
    p.raw("s_branch L_join")


class WBuf:
    def __init__(self, quads):
        self.q = list(quads)
        self.i = 0

    def next(self):
        r = self.q[self.i % len(self.q)]
        self.i += 1
        return r


def ld_wq(p, wb, col, ks):
    r = wb.next()
    off = L_WQ + col * 2 + 16 * ks * 576
    p.dsr("ds_read_b64_tr_b16", r, 2, V_WQ, off)
    p.dsr("ds_read_b64_tr_b16", r + 2, 2, V_WQ, off + 4 * 576)
    return r


def qk_proj(p, hp, X, areas, wb):
    for T in range(3):
        for ks in range(6):
            w = ld_wq(p, wb, hp * 96 + 32 * T, ks)
            p.mfma(areas[T], w, X + 4 * ks, None if ks == 0 else areas[T])


def qk_norm(p, hp, areas, qdst, kdst, order=None):
    Lr = [areas[i // 16] + i % 16 for i in range(48)]
    ss = [V_SC + i for i in range(4)]
    cp = [V_SC + 4, V_SC + 5]
    for g in range(4):
        for i in range(12):
            x = Lr[12 * g + i]
            if i == 0:
                p.op("v_fma_f32", ss[g], x, x, f"s{S_EPSQ}")
            else:
                p.op("v_fmac_f32", ss[g], x, x, rmw=True)
    sc = {}
    for pr in range(2):
        a, b = ss[2 * pr], ss[2 * pr + 1]
        p.swap32(a, b)
        p.op("v_add_f32", a, a, b)
        p.op("v_rsq_f32", a, a, kind="trans")
        if pr == 0:
            p.op("v_mul_f32", a, a, V_TAUV)
        p.op("v_mov_b32", b, a)
        p.swap32(a, b)
        sc[2 * pr], sc[2 * pr + 1] = a, b
    for i in range(48):
        p.op("v_mul_f32", Lr[i], Lr[i], sc[i // 12])
    dst = [qdst + i for i in range(12)] + [kdst + i for i in range(12)]
    pend = list(range(24))
    done_src = set()
    while pend:
        for pi in pend:
            d = dst[pi]
            blockers = [q for q in pend if q != pi and d in (Lr[2 * q], Lr[2 * q + 1])]
            if not blockers:
                p.op("v_cvt_pk_bf16_f32", d, Lr[2 * pi], Lr[2 * pi + 1])
                pend.remove(pi)
                break
        else:
            raise RuntimeError("no legal packing order")


def set_tauv(p, hp):
    def g():
        p.op("v_mov_b32", V_TAUV, f"s{S_TAU + 2 * hp}")
        p.salu(f"s_mov_b64 exec, {s(S_HIMASK, 2)}", sr(S_HIMASK, 2), [EXEC])
        p.op("v_mov_b32", V_TAUV, f"s{S_TAU + 2 * hp + 1}", rmw=True)
        p.salu("s_mov_b64 exec, -1", [], [EXEC])
    p.group(g)


def fill_ones(p, regs_quads, addr=None):
    for (r, n) in regs_quads:
        p.dsr({4: "ds_read_b128", 2: "ds_read_b64"}[n], r, n, V_BIAS, L_ONES - L_BIAS)


def v_proj(p, h, tiles, wb):
    for ks in range(6):
        w = ld_wq(p, wb, 192 + 24 * h, ks)
        for (X, D) in tiles:
            p.mfma(D, X + 4 * ks, w, None if ks == 0 else D)


def v_pack(p, pairs):
    for i in range(0, len(pairs), 5):
        chunk = pairs[i:i + 5]
        def g():
            p.salu(f"s_mov_b64 exec, {s(S_VMASK, 2)}", sr(S_VMASK, 2), [EXEC])
            for d, a in chunk:
                p.op("v_cvt_pk_bf16_f32", d, a, a + 1, rmw=True)
            p.salu("s_mov_b64 exec, -1", [], [EXEC])
        p.group(g)


def unit(p, h, qt, S0, S1, Q, Ka, Kb, Vq, slow, opt):
    boff = (h * 2 + qt) * 7168
    for g in range(4):
        p.dsr("ds_read_b128", S0 + 4 * g, 4, V_BIAS, boff + 1024 * g)
    for g in range(3):
        p.dsr("ds_read_b128", S1 + 4 * g, 4, V_BIAS, boff + 1024 * (4 + g))
    if slow:
        M = [WB, WB + 2, WB + 4, WB + 6, V_SC, V_SC + 2]
        M6 = V_SC + 4
        ad = V_SP
        p.op("v_subrev_u32", ad, str(L_BIAS), V_BIAS)
        p.op("v_bfe_u32", V_SC + 5, ad, "4", "5")
        if qt:
            p.op("v_add_u32", V_SC + 5, "32", V_SC + 5)
            p.op("v_min_u32", V_SC + 5, "48", V_SC + 5)
        p.op("v_mul_u32_u24", V_SC + 5, "0x62", V_SC + 5)
        p.op("v_lshrrev_b32", ad, "9", ad)
        p.op("v_lshl_add_u32", ad, ad, "3", V_SC + 5)
        p.op("v_add_u32", ad, f"s{S_MBASE}", ad)
        for g in range(6):
            p.vld("buffer_load_dwordx2", M[g], 2, ad, SRD_MASK, 16 * g)
        p.op("v_add_u32", V_SC + 5, f"s{S_MBASE}", V_SC + 5)
        p.vld("buffer_load_ushort", M6, 1, V_SC + 5, SRD_MASK, 96)
    p.mfma(S0, Ka, Q, S0)
    p.mfma(S0, Ka + 4, Q + 4, S0, k=8)
    p.mfma(S1, Kb, Q, S1)
    p.mfma(S1, Kb + 4, Q + 4, S1, k=8)
    regs = [S0 + i for i in range(16)] + [S1 + i for i in range(9)]
    if slow:
        tmp = V_SP
        for g in range(6):
            for e in range(4):
                r = regs[4 * g + e]
                src = M[g] + (e >> 1)
                if e & 1:
                    p.op("v_and_b32", tmp, "0xffff0000", src)
                else:
                    p.op("v_lshlrev_b32", tmp, "16", src)
                p.op("v_fmamk_f32", r, tmp, f32(LOG2E), r)
        p.op("v_lshlrev_b32", tmp, "16", M6)
        p.op("v_fmamk_f32", regs[24], tmp, f32(LOG2E), regs[24])
        mx, m2 = V_SC, V_SC + 1
        p.op("v_max3_f32", mx, regs[0], regs[1], regs[2])
        for i in range(3, 25, 2):
            p.op("v_max3_f32", mx, mx, regs[i], regs[i + 1])
        p.op("v_mov_b32", m2, mx)
        p.swap32(mx, m2)
        p.op("v_max_f32", mx, mx, m2)
        for r in regs:
            p.op("v_sub_f32", r, r, mx)
    for r in regs:
        p.op("v_exp_f32", r, r, kind="trans")
    for i in range(8):
        p.op("v_cvt_pk_bf16_f32", S0 + i, S0 + 2 * i, S0 + 2 * i + 1)
    for i in range(4):
        p.op("v_cvt_pk_bf16_f32", S0 + 8 + i, S1 + 2 * i, S1 + 2 * i + 1)
    p.op("v_cvt_pk_bf16_f32", V_PZ, S1 + 8, "0")
    O = S1
    p.mfma(O, Vq[0], S0, None)
    p.mfma(O, Vq[1], S0 + 4, O)
    p.mfma(O, Vq[2], S0 + 8, O)
    p.mfma(O, Vq[3], V_PZ, O, k=8)
    p.op("v_rcp_f32", O + 12, O + 12, kind="trans")
    for i in range(12):
        p.op("v_mul_f32", O + i, O + i, O + 12)
    for i in range(6):
        p.op("v_cvt_pk_bf16_f32", Q + i, O + 2 * i, O + 2 * i + 1)


def prefix(p, opt):
    set_tauv(p, 0)
    wb = WBuf([WB, WB + 4, K0R, K0R + 4, K0R + 8])
    areas = [OQ0, OQ0 + 16, OQ0 + 32]
    qk_proj(p, 0, XA, areas, wb)
    qk_norm(p, 0, areas, OQ0, K0R)


def mask_check(p, opt):
    m = MASK_REGS
    a = V_SC
    stamp(p, opt, 6)
    if opt.mask_check:
        regs = [r + i for r in m for i in range(4)]
        p.op("v_or3_b32", a, regs[0], regs[1], regs[2])
        for i in range(3, 19, 2):
            p.op("v_or3_b32", a, a, regs[i], regs[i + 1])
        p.op("v_or_b32", a, a, regs[19])
        p.op("v_and_b32", a, "0x7fff7fff", a)
        p.add(I(f"v_cmp_ne_u32 vcc, 0, {v(a)}", "valu", [a], [VCC]))
        p.salu(f"s_or_b32 {s(S_T0)}, vcc_lo, vcc_hi", [VCC], sr(S_T0) + [SCC])
        p.salu(f"s_or_b32 {s(S_T0)}, {s(S_T0)}, {s(S_UNSAFE)}", sr(S_T0) + sr(S_UNSAFE), sr(S_T0) + [SCC])
    else:
        p.salu(f"s_or_b32 {s(S_T0)}, {s(S_KILL)}, {s(S_UNSAFE)}", sr(S_KILL) + sr(S_UNSAFE), sr(S_T0) + [SCC])
    if getattr(opt, "loop2", False):
        p.salu("s_cmp_eq_u32 s47, 0", sr(47), [SCC])
        p.salu(f"s_cselect_b32 s46, {s(S_T0)}, s46", [SCC] + sr(S_T0) + sr(46), sr(46))
        p.salu("s_cmp_lg_u32 s46, 0", sr(46), [SCC])
    p.raw("s_cbranch_scc1 L_slow", rd=[SCC])


def body(p, slow, opt):
    S0a, S1a = OQ0 + 12, OQ1 + 12
    ones_addr = V_SP
    stamp(p, opt, 7)
    wb = WBuf([WB, WB + 4, VA, VA + 4, VA + 8])
    areas = [OQ1, OQ0 + 12, OQ1 + 16]
    qk_proj(p, 0, XB, areas, wb)
    qk_norm(p, 0, areas, OQ1, K1R)
    fill_ones(p, [(VA, 4), (VA + 4, 4), (VA + 8, 4), (VA + 12, 2)], ones_addr)
    Vq = [VA, VA + 4, VA + 8, VA + 12]
    for h in (0, 1):
        wb = WBuf([WB, WB + 4, UR] if not slow else [UR, UR])
        if slow:
            wb = WBuf([WB, WB + 4, UR])
        v_proj(p, h, [(XA, S0a), (XB, S1a)], wb)
        v_pack(p, [(VA + i, S0a + 2 * i) for i in range(8)] + [(VA + 8 + i, S1a + 2 * i) for i in range(5)])
        for qt in (0, 1):
            unit(p, h, qt, S0a, S1a, (OQ0, OQ1)[qt] + 6 * h, K0R + 6 * h, K1R + 6 * h, Vq, slow, opt)
    stamp(p, opt, 8)
    set_tauv(p, 1)
    wb = WBuf([WB, WB + 4, UR, K0R, K0R + 4, K0R + 8])
    v_proj(p, 2, [(XA, S0a), (XB, S1a)], wb)
    v_pack(p, [(VA + i, S0a + 2 * i) for i in range(8)] + [(VA + 8 + i, S1a + 2 * i) for i in range(5)])
    wb = WBuf([WB, WB + 4, K0R, K0R + 4, K0R + 8])
    areas = [S0a, S1a, K1R]
    qk_proj(p, 1, XA, areas, wb)
    qk_norm(p, 1, areas, OQ0 + 12, K0R)
    wb = WBuf([WB, WB + 4, K1R, K1R + 4, K1R + 8, UR])
    v_proj(p, 3, [(XA, S1a)], wb)
    VB0 = XA + 16
    fill_ones(p, [(VB0, 4), (VB0 + 4, 4)], ones_addr)
    v_pack(p, [(VB0 + i, S1a + 2 * i) for i in range(8)])
    wb = WBuf([WB, WB + 4, T0R])
    areas = [S1a, XA, K1R]
    qk_proj(p, 1, XB, areas, wb)
    qk_norm(p, 1, areas, OQ1 + 12, K1R)
    wb = WBuf([WB, WB + 4, T0R, T1R, UR])
    v_proj(p, 3, [(XB, XA)], wb)
    VB1 = XB
    fill_ones(p, [(VB1, 4), (VB1 + 4, 2)], ones_addr)
    v_pack(p, [(VB1 + i, XA + 2 * i) for i in range(5)])
    S0b, S1b = XA, XB + 8
    for h in (2, 3):
        vq = Vq if h == 2 else [VB0, VB0 + 4, VB1, VB1 + 4]
        for qt in (0, 1):
            unit(p, h, qt, S0b, S1b, (OQ0, OQ1)[qt] + 6 * h, K0R + 6 * (h - 2), K1R + 6 * (h - 2), vq, slow, opt)
    stamp(p, opt, 9)
    vwo = V_SP
    a, b = V_SC, V_SC + 1
    p.op("v_subrev_u32", a, str(L_BIAS), V_BIAS)
    p.op("v_bfe_u32", b, a, "6", "2")
    p.op("v_lshrrev_b32", vwo, "9", a)
    p.op("v_lshl_add_u32", b, vwo, "2", b)
    p.op("v_mul_u32_u24", b, "0xc0", b)
    p.op("v_bfe_u32", vwo, a, "8", "1")
    p.op("v_lshl_add_u32", b, vwo, "5", b)
    p.op("v_bfe_u32", vwo, a, "4", "1")
    p.op("v_lshl_add_u32", b, vwo, "4", b)
    p.op("v_bfe_u32", vwo, a, "5", "1")
    p.op("v_lshl_add_u32", b, vwo, "3", b)
    p.op("v_add_u32", vwo, str(L_WO), b)
    Y = [[XA, XA + 16, XA + 32], [K1R, K1R + 16, K1R + 32]]
    wb = WBuf([T0R, T1R, WB + 6 - 2])
    wb = WBuf([T0R, T1R, V_SC + 2])
    for T in range(3):
        for ks in range(6):
            w = wb.next()
            p.dsr("ds_read_b64_tr_b16", w, 2, vwo, (16 * ks) * 192 + 64 * T)
            p.dsr("ds_read_b64_tr_b16", w + 2, 2, vwo, (16 * ks + 8) * 192 + 64 * T)
            for tt in (0, 1):
                p.mfma(Y[tt][T], w, (OQ0, OQ1)[tt] + 4 * ks, None if ks == 0 else Y[tt][T])
    for tt in (0, 1):
        y = [Y[tt][i // 16] + i % 16 for i in range(48)]
        ss, cp = (V_SC, V_SC + 1) if tt == 0 else (V_PZ, V_PZ + 1)
        for i in range(48):
            if i == 0:
                p.op("v_fma_f32", ss, y[0], y[0], f"s{S_EPSLN}")
            else:
                p.op("v_fmac_f32", ss, y[i], y[i], rmw=True)
        p.op("v_mov_b32", cp, ss)
        p.swap32(ss, cp)
        p.op("v_add_f32", ss, ss, cp)
        p.op("v_rsq_f32", ss, ss, kind="trans")
        p.op("v_mul_f32", ss, f32(math.sqrt(96.0)), ss)
        for i in range(48):
            p.op("v_mul_f32", y[i], y[i], ss)
        for T in range(3):
            for jj in range(2):
                base = Y[tt][T] + 8 * jj
                for i in range(4):
                    p.op("v_cvt_pk_bf16_f32", base + i, base + 2 * i, base + 2 * i + 1)
                p.vst("buffer_store_dwordx4", base, 4, (V_OFFA, V_OFFB)[tt], SRD_OUT, 64 * T + 32 * jj, opt.sflag)
    stamp(p, opt, 10)
    if getattr(opt, "twice", 0):
        lbl = "L_done_" + ("s" if slow else "f")
        p.salu("s_add_u32 s47, s47, 1", sr(47), sr(47) + [SCC]).tag = "fence"
        p.salu(f"s_cmp_ge_u32 s47, {opt.twice}", sr(47), [SCC]).tag = "fence"
        p.raw(f"s_cbranch_scc1 {lbl}", rd=[SCC])
        p.raw("s_nop 4")
        x_loads(p, opt)
        p.op("v_mov_b32", V_PZ + 1, "0")
        p.raw("s_branch L_join")
        p.label(lbl)
    if getattr(opt, "loop2", False):
        p.salu("s_add_u32 s47, s47, 1", sr(47), sr(47) + [SCC]).tag = "fence"
        p.salu("s_cmp_lt_u32 s47, 2", sr(47), [SCC]).tag = "fence"
        p.raw("s_cbranch_scc1 L_again", rd=[SCC])
    if opt.debug:
        p.wait(vm=0)
    n0 = len(p.ins)
    stamp_flush(p, opt)
    for i in p.ins[n0:]:
        i.tag = "fence" if i.tag is None else i.tag
    p.raw("s_endpgm")


HEADER = open("standalone__window_attn_swin_v2__vision.s.ref").read().split("; Override")[0]


def generate(opt, sched=None):
    segs = {}
    p = Prog(); pro_common(p, opt); segs["com"] = p.ins
    p = Prog(); path_o(p, opt); segs["po"] = p.ins
    p = Prog(); path_y(p, opt); segs["py"] = p.ins
    p = Prog()
    if opt.debug:
        p.wait(vm=5 if opt.mask_check else 0)
        stamp(p, opt, 5)
    prefix(p, opt); segs["pre"] = p.ins
    p = Prog(); mask_check(p, opt); segs["chk"] = p.ins
    p = Prog(); body(p, False, opt); segs["fast"] = p.ins
    p = Prog(); body(p, True, opt); segs["slow"] = p.ins
    if sched:
        for k in ("pre", "fast", "slow"):
            segs[k] = sched(segs[k])
    if getattr(opt, "drop", None):
        for k in ("fast",):
            segs[k] = [i for i in flatten(segs[k]) if not (i.kind in opt.drop and not i.text.startswith("v_mov_b32 v6") and not i.text.startswith("v_mov_b32 v7"))]
    st = WaitState()
    com = insert_nops(insert_waits(flatten(segs["com"]), st))
    sty = st.copy()
    po = insert_nops(insert_waits(flatten(segs["po"]), st), com)
    py = insert_nops(insert_waits(flatten(segs["py"]), sty), com)
    tail = lambda w: [(x.text) for x in w.vm[-(17 if opt.mask_check else 12):]]
    assert tail(st) == tail(sty), (tail(st), tail(sty))
    assert not st.lg and not sty.lg
    st.vm = st.vm[-(17 if opt.mask_check else 12):]
    mid = insert_nops(insert_waits(flatten(segs["pre"] + segs["chk"]), st), [I("s_nop 15", "nop", states=16)])
    head = com + po + mid
    fast = insert_nops(insert_waits(flatten(segs["fast"]), st.copy()), head)
    slow = insert_nops(insert_waits(flatten(segs["slow"]), st.copy()), head)
    name = "standalone__window_attn_swin_v2__vision_kernel"
    txt = HEADER
    txt += f"; @launch grid=({NWG},1,1) block=({64 * WPW},1,1) lds={LDS_BYTES}\n"
    txt += f""".amdgcn_target "amdgcn-amd-amdhsa--gfx950"
.text
.globl {name}
.p2align 8
.type {name},@function
{name}:
"""
    txt += render(head) + "\n" + render(fast) + "\nL_slow:\n" + render(slow) + "\n" + render(py) + "\nL_end:\n    s_endpgm\n"
    txt += f""".section .rodata,"a"
.p2align 6
.amdhsa_kernel {name}
  .amdhsa_next_free_vgpr {NVGPR}
  .amdhsa_next_free_sgpr 102
  .amdhsa_accum_offset {NVGPR}
  .amdhsa_group_segment_fixed_size 0
  .amdhsa_kernarg_size 96
  .amdhsa_user_sgpr_count 2
  .amdhsa_user_sgpr_kernarg_segment_ptr 1
  .amdhsa_system_sgpr_workgroup_id_x 1
.end_amdhsa_kernel
"""
    stats = {}
    for nm, seq in (("head", head), ("py", py), ("fast", fast), ("slow", slow)):
        c = {}
        for i in seq:
            c[i.kind] = c.get(i.kind, 0) + 1
        c["nopstates"] = sum(i.states for i in seq if i.kind == "nop")
        stats[nm] = c
    return txt, stats


if __name__ == "__main__":
    opt = Opt()
    if "--debug" in sys.argv:
        opt.debug = True
        sys.argv.remove("--debug")
    if "--debug2" in sys.argv:
        opt.debug = 2
    args = [a for a in sys.argv[1:] if not a.startswith("--")]
    out = args[0] if args else "standalone__window_attn_swin_v2__vision.s"
    for a in sys.argv:
        if a.startswith("--drop="):
            opt.drop = a[7:].split(",")
    if "--loop2" in sys.argv:
        opt.loop2 = True
    for a in sys.argv:
        for fl in ("xflag", "mflag", "sflag"):
            if a.startswith(f"--{fl}="):
                setattr(opt, fl, " " + a.split("=")[1].replace(",", " "))
    for a in sys.argv:
        if a.startswith("--twice="):
            opt.twice = int(a[8:])
    if "--nomask" in sys.argv:
        opt.mask_check = False
    if "--pf" in sys.argv:
        opt.prefetch = True
    import sched
    sc = None if "--nosched" in sys.argv else (lambda x: sched.schedule(x, verbose=True))
    txt, stats = generate(opt, sc)
    open(out, "w").write(txt)
    for k, c in stats.items():
        print(k, c)
```

```python
import sys, struct, math
sys.path.insert(0, "gen")
from asmlib import *

def f32(x):
    return "0x%08x" % struct.unpack("<I", struct.pack("<f", x))[0]

LOG2E = 1.4426950408889634
NWG = 252
NS = 27
WPW = 12
X_BYTES = 378 * 378 * 96 * 2
MASK_BYTES = 2916 * 49 * 49 * 2

L_WQ = 0
L_WO = 55296
L_BIAS = 73728
L_ONES = L_BIAS + 57344
L_TAB = L_ONES + 1024
L_PAR = L_TAB + 3072
L_CNT = L_PAR + 32
L_END = L_PAR + 64
LDS_BYTES = L_END

S_W = 3
SRD_X, SRD_OUT, SRD_WQ, SRD_WO, SRD_MASK, SRD_RIDX, SRD_RC = 4, 8, 12, 16, 20, 24, 28
S_PTR = 32
S_W1 = 48
S_W2 = 64
S_LS = 96
S_T0, S_T1, S_T2, S_T3 = 98, 99, 100, 101
S_TAU = 32
S_EPSQ, S_EPSLN = 36, 37
S_VMASK = 38
S_HIMASK = 40
S_UNSAFE = 42
S_WIN = 43
S_MBASE = 44
S_KILL, S_G2 = 45, 46

V_OFFA, V_OFFB, V_WQ, V_BIAS = 0, 1, 2, 3
V_PZ = 4
XA, XB = 6, 30
OQ0, T0R, OQ1, T1R = 54, 78, 82, 106
K1R, UR, K0R, VA, WB = 110, 122, 126, 138, 152
V_SC = 160
V_TAUV, V_SP = 166, 167
NVGPR = 168
AR_A, AR_B, AR_C, AR_D, AR_E = OQ0 + 12, OQ1 + 12, WB, K1R, VA
SRD_MCHK = 48
S_MACC = 52
S_MTMP = 54
S_C7F, S_C4096 = 56, 57
S_B2 = 58

TAU_THR = 24.0
NEG_BIG = -30000.0


class Opt:
    mask_check = True
    debug = None
    xflag = ""
    mflag = ""
    sflag = ""
    prefetch = False
    prio = False
    xfirst = False
    b2at = 30


S_STAMP = 64
NSTAMP = 12


def stamp(p, opt, idx, early=False):
    if not opt.debug:
        return
    if opt.debug == 3 and idx not in (1, 2, 3, 4, 11):
        return
    if early:
        p.add(I(f"s_memtime {s(S_T2, 2)}", "smem", [], sr(S_T2, 2)))
        p.op("v_mov_b32", WB + idx, f"s{S_T2}")
        return
    p.add(I(f"s_memtime {s(S_T2, 2)}", "smem", [], sr(S_T2, 2)))
    p.salu(f"s_mov_b32 {s(S_STAMP + idx)}, {s(S_T2)}", sr(S_T2), sr(S_STAMP + idx)).tag = "fence"
    p.raw("; stamp fence", kind="label") if False else None


def stamp_flush(p, opt):
    if not opt.debug:
        return
    stamp(p, opt, NSTAMP - 1)
    if opt.debug == 2:
        p.smem("s_load_dwordx2", 48, 2, 0, 80)
        build_srd(p, 52, 48, 256)
        p.add(I(f"s_memrealtime {s(S_STAMP + 14, 2)}", "smem", [], sr(S_STAMP + 14, 2)))
        p.salu("s_mov_b64 exec, 1", [], [EXEC])
        p.op("v_mov_b32", 60, "0")
        p.op("v_mov_b32", 61, f"s{S_STAMP + 14}")
        p.op("v_not_b32", 62, f"s{S_STAMP + 16}")
        lbl = f"L_dbgskip{len(p.ins)}"
        p.salu(f"s_cmp_lg_u32 {s(S_W)}, 9", sr(S_W), [SCC])
        p.raw(f"s_cbranch_scc1 {lbl}a", rd=[SCC])
        p.add(I(f"buffer_atomic_umax {v(61)}, {v(60)}, {s(52, 4)}, 0 offen offset:56", "vst", [60, 61] + sr(52, 4), []))
        p.add(I(f"buffer_atomic_umax {v(62)}, {v(60)}, {s(52, 4)}, 0 offen offset:60", "vst", [60, 62] + sr(52, 4), []))
        p.label(lbl + "a")
        p.salu("s_cmp_lg_u32 s2, 100", sr(2), [SCC])
        p.raw(f"s_cbranch_scc1 {lbl}", rd=[SCC])
        p.salu(f"s_and_b32 {s(S_T0)}, {s(S_W)}, 3", sr(S_W), sr(S_T0) + [SCC])
        p.raw(f"s_cbranch_scc1 {lbl}", rd=[SCC])
        for i in range(1, 12):
            p.salu(f"s_sub_u32 {s(S_STAMP + i)}, {s(S_STAMP + i)}, {s(S_STAMP)}", sr(S_STAMP + i) + sr(S_STAMP), sr(S_STAMP + i) + [SCC])
        p.salu(f"s_cmp_lg_u32 {s(S_W)}, 0", sr(S_W), [SCC])
        p.raw(f"s_cbranch_scc1 {lbl}y", rd=[SCC])
        for k, i in enumerate((1, 2, 3, 4, 5, 6, 8, 9, 11)):
            p.op("v_mov_b32", 61, f"s{S_STAMP + i}")
            p.vst("buffer_store_dword", 61, 1, 60, 52, 4 * k)
            p.raw("s_nop 1")
        p.salu(f"s_sub_u32 {s(S_T0)}, {s(S_STAMP + 14)}, {s(S_STAMP + 16)}", sr(S_STAMP + 14) + sr(S_STAMP + 16), sr(S_T0) + [SCC])
        p.op("v_mov_b32", 61, f"s{S_T0}")
        p.vst("buffer_store_dword", 61, 1, 60, 52, 52)
        p.raw(f"s_branch {lbl}")
        p.label(lbl + "y")
        p.salu(f"s_lshl_b32 {s(S_T0)}, {s(S_W)}, 1", sr(S_W), sr(S_T0) + [SCC])
        p.op("v_mov_b32", 60, f"s{S_T0}")
        for k, i in enumerate((5, 11)):
            p.op("v_mov_b32", 61, f"s{S_STAMP + i}")
            p.vst("buffer_store_dword", 61, 1, 60, 52, 28 + 4 * k)
            p.raw("s_nop 1")
        p.label(lbl)
        return
    p.smem("s_load_dwordx2", 48, 2, 0, 88)
    build_srd(p, 52, 48, 1 << 22)
    p.salu(f"s_lshl_b32 {s(S_T0)}, {s(S_WIN)}, 6", sr(S_WIN), sr(S_T0) + [SCC])
    p.add(I(f"s_getreg_b32 {s(S_STAMP + 12)}, hwreg(HW_REG_HW_ID)", "salu", [], sr(S_STAMP + 12)))
    p.salu(f"s_lshl_b32 {s(S_STAMP + 13)}, s2, 4", sr(2), sr(S_STAMP + 13) + [SCC])
    p.salu(f"s_add_u32 {s(S_STAMP + 13)}, {s(S_STAMP + 13)}, {s(S_W)}", sr(S_STAMP + 13) + sr(S_W), sr(S_STAMP + 13) + [SCC])
    p.add(I(f"s_memrealtime {s(S_STAMP + 14, 2)}", "smem", [], sr(S_STAMP + 14, 2)))
    p.op("v_mov_b32", 60, f"s{S_T0}")
    for i in range(15):
        p.op("v_mov_b32", 64 + i, f"s{S_STAMP + i}")
    p.op("v_mov_b32", 64 + 15, f"s{S_STAMP + 16}")
    p.salu("s_mov_b64 exec, 1", [], [EXEC]).tag = "fence"
    for i in range(4):
        p.vst("buffer_store_dwordx4", 64 + 4 * i, 4, 60, 52, 16 * i)


def build_srd(p, srd, ptr, nbytes):
    p.salu(f"s_mov_b32 {s(srd)}, {s(ptr)}", sr(ptr), sr(srd))
    p.salu(f"s_and_b32 {s(srd + 1)}, {s(ptr + 1)}, 0xffff", sr(ptr + 1), sr(srd + 1) + [SCC])
    p.salu(f"s_mov_b32 {s(srd + 2)}, {nbytes}", [], sr(srd + 2))
    p.salu(f"s_mov_b32 {s(srd + 3)}, 0x00020000", [], sr(srd + 3))


def sal(p, text, rd=(), wr=(), scc=True):
    return p.salu(text, [SB + x for x in rd], [SB + x for x in wr] + ([SCC] if scc else []))


L, HI16, N31, L16 = 60, 61, 62, 67
ta, tb, tc, td = 63, 64, 65, 66
DMA, WOA, TE, GA, GB, MO0, MO4, GDST, PARA = 68, 69, 70, 71, 72, 73, 74, 75, 77
wov, rcv, ridx, u, g2, ridxb = 116, 86, 88, 92, 108, 82
W = S_W


def window_map(p, opt, sA, sB, sC, sD, sf, swi, swj):
    sal(p, f"s_mul_i32 {s(sA)}, s2, 12", [2], [sA], False)
    sal(p, f"s_add_u32 {s(sA)}, {s(sA)}, {s(W)}", [sA, W], [sA])
    sal(p, f"s_sub_u32 {s(sA)}, {s(sA)}, {12 * NS}", [sA], [sA])
    sal(p, f"s_lshl_b32 {s(sB)}, s2, 2", [2], [sB])
    sal(p, f"s_add_u32 {s(sB)}, {s(sB)}, {s(W)}", [sB, W], [sB])
    sal(p, f"s_add_u32 {s(sC)}, {s(sB)}, {12 * (NWG - NS) - 4}", [sB], [sC])
    sal(p, f"s_cmp_lt_u32 {s(W)}, 4", [W], [])
    p.salu(f"s_cselect_b32 {s(sC)}, 2808, {s(sC)}", [SCC] + sr(sC), sr(sC))
    p.salu(f"s_cselect_b32 {s(sD)}, {s(sB)}, 999", [SCC] + sr(sB), sr(sD))
    sal(p, f"s_cmp_lt_u32 s2, {NS}", [2], [])
    p.salu(f"s_cselect_b32 {s(sf)}, {s(sC)}, {s(sA)}", [SCC] + sr(sC) + sr(sA), sr(sf))
    p.salu(f"s_cselect_b32 {s(sD)}, {s(sD)}, 999", [SCC] + sr(sD), sr(sD))
    sal(p, f"s_mul_i32 {s(swi)}, {s(sf)}, 19785", [sf], [swi], False)
    sal(p, f"s_lshr_b32 {s(swi)}, {s(swi)}, 20", [swi], [swi])
    sal(p, f"s_mul_i32 {s(swj)}, {s(swi)}, 53", [swi], [swj], False)
    sal(p, f"s_sub_u32 {s(swj)}, {s(sf)}, {s(swj)}", [sf, swj], [swj])
    sal(p, f"s_sub_u32 {s(sA)}, {s(sD)}, 54", [sD], [sA])
    sal(p, f"s_cmp_lt_u32 {s(sD)}, 54", [sD], [])
    p.salu(f"s_cselect_b32 {s(sA)}, 53, {s(sA)}", [SCC] + sr(sA), sr(sA))
    p.salu(f"s_cselect_b32 {s(sB)}, {s(sD)}, 53", [SCC] + sr(sD), sr(sB))
    sal(p, f"s_cmp_lt_u32 {s(sD)}, 107", [sD], [])
    p.salu(f"s_cselect_b32 {s(swi)}, {s(sA)}, {s(swi)}", [SCC] + sr(sA) + sr(swi), sr(swi))
    p.salu(f"s_cselect_b32 {s(swj)}, {s(sB)}, {s(swj)}", [SCC] + sr(sB) + sr(swj), sr(swj))
    p.salu(f"s_cselect_b32 {s(S_KILL)}, 1, 0", [SCC], sr(S_KILL))
    sal(p, f"s_mul_i32 {s(S_WIN)}, {s(swi)}, 54", [swi], [S_WIN], False)
    sal(p, f"s_add_u32 {s(S_WIN)}, {s(S_WIN)}, {s(swj)}", [S_WIN, swj], [S_WIN])
    sal(p, f"s_mul_i32 {s(S_MBASE)}, {s(S_WIN)}, 4802", [S_WIN], [S_MBASE], False)
    sal(p, f"s_mul_i32 {s(swi)}, {s(swi)}, 7", [swi], [swi], False)
    sal(p, f"s_add_u32 {s(swi)}, {s(swi)}, 3", [swi], [swi])
    sal(p, f"s_mul_i32 {s(swj)}, {s(swj)}, 7", [swj], [swj], False)
    sal(p, f"s_add_u32 {s(swj)}, {s(swj)}, 3", [swj], [swj])
    sal(p, f"s_movk_i32 {s(sA)}, 378", [], [sA], False)
    p.add(I(f"v_cmp_gt_u32 {s(sC, 2)}, 17, {v(N31)}", "valu", [N31], sr(sC, 2)))
    xa, xb, xc, xd = 78, 79, 80, 81
    for tt, dst in ((0, V_OFFA), (1, V_OFFB)):
        n, ty, tx, a = xa, xb, xc, xd
        if tt == 0:
            n = N31
        else:
            p.op("v_add_u32", n, "32", N31)
        p.op("v_mul_u32_u24", ty, "37", n)
        p.op("v_lshrrev_b32", ty, "8", ty)
        p.op("v_mad_i32_i24", tx, ty, "-7", n)
        p.op("v_add_u32", ty, f"s{swi}", ty)
        p.op("v_add_u32", tx, f"s{swj}", tx)
        p.op("v_subrev_u32", a, f"s{sA}", ty)
        p.op("v_min_u32", ty, ty, a)
        p.op("v_subrev_u32", a, f"s{sA}", tx)
        p.op("v_min_u32", tx, tx, a)
        p.op("v_mad_u32_u24", a, ty, f"s{sA}", tx)
        p.op("v_mul_u32_u24", a, "0xc0", a)
        if tt == 0:
            p.op("v_add_u32", dst, a, HI16)
        else:
            p.op("v_add_u32", a, a, HI16)
            p.op("v_bfrev_b32", ty, "1")
            p.add(I(f"v_cndmask_b32 {v(dst)}, {v(ty)}, {v(a)}, {s(sC, 2)}", "valu", [ty, a] + sr(sC, 2), [dst]))


def x_loads(p, opt, tiles=(0, 1)):
    for tt in tiles:
        off = (V_OFFA, V_OFFB)[tt]
        for k in range(6):
            p.vld("buffer_load_dwordx4", (XA, XB)[tt] + 4 * k, 4, off, SRD_X, 32 * k, opt.xflag)


def mask_srd(p, opt):
    if not opt.mask_check:
        return
    sal(p, f"s_sub_u32 {s(SRD_MCHK)}, {s(SRD_MASK)}, {L_BIAS}", [SRD_MASK], [SRD_MCHK])
    p.salu(f"s_subb_u32 {s(SRD_MCHK + 1)}, {s(SRD_MASK + 1)}, 0", sr(SRD_MASK + 1) + [SCC], sr(SRD_MCHK + 1) + [SCC])
    sal(p, f"s_add_u32 {s(SRD_MCHK)}, {s(SRD_MCHK)}, {s(S_MBASE)}", [SRD_MCHK, S_MBASE], [SRD_MCHK])
    p.salu(f"s_addc_u32 {s(SRD_MCHK + 1)}, {s(SRD_MCHK + 1)}, 0", sr(SRD_MCHK + 1) + [SCC], sr(SRD_MCHK + 1) + [SCC])
    sal(p, f"s_mov_b32 {s(SRD_MCHK + 2)}, {L_BIAS + 4804}", [], [SRD_MCHK + 2], False)
    sal(p, f"s_mov_b32 {s(SRD_MCHK + 3)}, 0x00020000", [], [SRD_MCHK + 3], False)
    sal(p, f"s_mov_b64 {s(S_MACC, 2)}, 0", [], [S_MACC, S_MACC + 1], False)
    sal(p, f"s_mov_b32 {s(S_C7F)}, 0x7fff7fff", [], [S_C7F], False)
    sal(p, f"s_movk_i32 {s(S_C4096)}, 4096", [], [S_C4096], False)


def pro_common(p, opt):
    p.salu(f"s_cmp_ge_u32 s2, {NWG}", sr(2), [SCC])
    p.raw("s_cbranch_scc1 L_end", rd=[SCC])
    if opt.debug:
        p.add(I(f"s_memtime {s(S_T2, 2)}", "smem", [], sr(S_T2, 2)))
        p.op("v_mov_b32", WB + 7, f"s{S_T2}")
        p.add(I(f"s_memrealtime {s(S_T2, 2)}", "smem", [], sr(S_T2, 2)))
        p.op("v_mov_b32", WB + 6, f"s{S_T2}")
    for srd, off in ((SRD_WQ, 8), (SRD_WO, 16), (SRD_RC, 48), (SRD_RIDX, 56), (SRD_X, 0), (SRD_MASK, 64), (SRD_OUT, 72)):
        p.smem("s_load_dwordx2", srd, 2, 0, off)
    p.smem("s_load_dwordx2", 32, 2, 0, 24)
    p.smem("s_load_dwordx4", 36, 4, 0, 32)
    p.op("v_lshrrev_b32", ta, "6", 0)
    p.op("v_and_b32", L, "63", 0)
    p.add(I(f"v_readfirstlane_b32 {s(W)}, {v(ta)}", "rdlane", [ta], sr(W)))
    for srd, nb in ((SRD_WQ, 96 * 288 * 2), (SRD_WO, 96 * 96 * 2), (SRD_RC, 169 * 4), (SRD_RIDX, 49 * 49 * 4), (SRD_X, X_BYTES),
                    (SRD_MASK, MASK_BYTES), (SRD_OUT, X_BYTES)):
        sal(p, f"s_mov_b32 {s(srd + 2)}, {nb}", [], [srd + 2], False)
        sal(p, f"s_mov_b32 {s(srd + 3)}, 0x00020000", [], [srd + 3], False)
    p.op("v_lshrrev_b32", HI16, "5", L)
    p.op("v_lshlrev_b32", HI16, "4", HI16)
    p.op("v_and_b32", N31, "31", L)
    p.op("v_lshlrev_b32", L16, "4", L)
    sA, sB, sC, sD = 48, 49, 50, 51
    sal(p, f"s_sub_u32 {s(sB)}, {s(W)}, 3", [W], [sB])
    sal(p, f"s_max_i32 {s(sB)}, {s(sB)}, 0", [sB], [sB])
    sal(p, f"s_lshl_b32 {s(sA)}, {s(sB)}, 6", [sB], [sA])
    p.op("v_add_u32", ta, f"s{sA}", L)
    p.op("v_mul_u32_u24", tb, "1821", ta)
    p.op("v_lshrrev_b32", tb, "16", tb)
    p.op("v_mul_u32_u24", tb, "36", tb)
    p.op("v_sub_u32", tb, ta, tb)
    p.op("v_subrev_u32", tc, "6", tb)
    p.add(I(f"v_cmp_gt_u32 {s(54, 2)}, 6, {v(tc)}", "valu", [tc], sr(54, 2)))
    p.op("v_subrev_u32", tc, "12", tb)
    p.add(I(f"v_cmp_gt_u32 {s(56, 2)}, 6, {v(tc)}", "valu", [tc], sr(56, 2)))
    p.op("v_add_u32", tb, "6", ta)
    p.op("v_subrev_u32", tc, "6", ta)
    p.add(I(f"v_cndmask_b32 {v(ta)}, {v(ta)}, {v(tb)}, {s(54, 2)}", "valu", [ta, tb] + sr(54, 2), [ta]))
    p.add(I(f"v_cndmask_b32 {v(ta)}, {v(ta)}, {v(tc)}, {s(56, 2)}", "valu", [ta, tc] + sr(56, 2), [ta]))
    p.op("v_lshlrev_b32", DMA, "4", ta)
    sal(p, f"s_lshl_b32 {s(sC)}, {s(sB)}, 10", [sB], [sC])
    sal(p, f"s_mov_b32 {s(sD)}, 0", [], [sD], False)
    sal(p, f"s_cmp_lt_u32 {s(W)}, 4", [W], [])
    p.raw("s_cbranch_scc1 L_pathO", rd=[SCC])


def dma_w(p, opt, lbl):
    sC, sD = 50, 51
    sal(p, f"s_cmp_lt_u32 {s(W)}, 3", [W], [])
    p.raw(f"s_cbranch_scc1 {lbl}", rd=[SCC])
    p.cond_begin()
    for i in range(6):
        p.salu(f"s_mov_b32 m0, {s(sC)}", sr(sC), [M0])
        p.dma(DMA, SRD_WQ, sD).tag = "w"
        if i < 5:
            sal(p, f"s_addk_i32 {s(sC)}, 9216", [sC], [sC])
            sal(p, f"s_addk_i32 {s(sD)}, 9216", [sD], [sD])
    p.cond_end()
    p.label(lbl)


def wq_base(p, a, b):
    p.op("v_subrev_u32", a, str(L_BIAS), V_BIAS)
    p.op("v_bfe_u32", b, a, "6", "2")
    p.op("v_lshrrev_b32", V_WQ, "9", a)
    p.op("v_lshl_add_u32", b, V_WQ, "3", b)
    p.op("v_mul_u32_u24", b, "0x240", b)
    p.op("v_bfe_u32", V_WQ, a, "8", "1")
    p.op("v_lshl_add_u32", b, V_WQ, "5", b)
    p.op("v_bfe_u32", V_WQ, a, "4", "2")
    p.op("v_lshl_add_u32", V_WQ, V_WQ, "3", b)


def lds_bases(p, opt):
    p.op("v_bfe_u32", ta, L, "2", "2")
    p.op("v_lshrrev_b32", tb, "1", HI16)
    p.op("v_add_u32", ta, ta, tb)
    p.op("v_mul_u32_u24", ta, "0x240", ta)
    p.op("v_bfe_u32", tb, L, "4", "1")
    p.op("v_lshl_add_u32", ta, tb, "5", ta)
    p.op("v_and_b32", tb, "3", L)
    p.op("v_lshl_add_u32", V_WQ, tb, "3", ta)
    p.op("v_add_u32", V_BIAS, str(L_BIAS), L16)
    p.op("v_mov_b32", V_PZ + 1, "0")
    p.op("v_mov_b32", PARA, str(L_PAR))
    sal(p, f"s_mov_b32 {s(S_HIMASK)}, 0", [], [S_HIMASK], False)
    sal(p, f"s_mov_b32 {s(S_HIMASK + 1)}, -1", [], [S_HIMASK + 1], False)
    sal(p, f"s_mov_b32 {s(S_T0)}, {L_TAB}", [], [S_T0], False)


def post_bar1(p, opt):
    p.dsr("ds_read_b128", 112, 4, PARA, 0)
    sal(p, f"s_mov_b32 s47, 0", [], [47], False)
    sal(p, f"s_mov_b32 {s(S_EPSQ)}, {f32(0.5e-12)}", [], [S_EPSQ], False)
    sal(p, f"s_mov_b32 {s(S_EPSLN)}, {f32(48e-5)}", [], [S_EPSLN], False)
    sal(p, f"s_mov_b32 {s(S_VMASK)}, 0x00ffffff", [], [S_VMASK], False)
    sal(p, f"s_mov_b32 {s(S_VMASK + 1)}, 0x00ffffff", [], [S_VMASK + 1], False)


def post_bar1b(p, opt):
    for h in range(4):
        p.add(I(f"v_readfirstlane_b32 {s(S_TAU + h)}, {v(112 + h)}", "rdlane", [112 + h], sr(S_TAU + h)))
    sal(p, f"s_max_u32 {s(S_T0)}, {s(S_TAU)}, {s(S_TAU + 1)}", [S_TAU, S_TAU + 1], [S_T0])
    sal(p, f"s_max_u32 {s(S_T1)}, {s(S_TAU + 2)}, {s(S_TAU + 3)}", [S_TAU + 2, S_TAU + 3], [S_T1])
    sal(p, f"s_max_u32 {s(S_T0)}, {s(S_T0)}, {s(S_T1)}", [S_T0, S_T1], [S_T0])
    sal(p, f"s_cmp_gt_u32 {s(S_T0)}, {f32(TAU_THR * LOG2E)}", [S_T0], [])
    p.salu(f"s_cselect_b32 {s(S_UNSAFE)}, 1, 0", [SCC], sr(S_UNSAFE))


def dbg_early(p, opt):
    if opt.debug:
        for k, r in ((0, 7), (16, 6), (1, 1), (2, 2)):
            p.add(I(f"v_readfirstlane_b32 {s(S_STAMP + k)}, {v(WB + r)}", "rdlane", [WB + r], sr(S_STAMP + k)))


def path_o(p, opt):
    p.label("L_pathO")
    if opt.prefetch:
        p.add(I(f"s_getpc_b64 {s(68, 2)}", "salu", [], sr(68, 2)))
        sal(p, f"s_lshl_b32 {s(70)}, {s(W)}, 13", [W], [70])
        p.op("v_lshl_add_u32", 82, L, "7", "s70")
        p.add(I(f"global_load_dword {v(83)}, {v(82)}, {s(68, 2)}", "vld", [82] + sr(68, 2), [83]))
    window_map(p, opt, 60, 61, 62, 64, 65, 66, 67)
    p.wait(lgkm=0)
    stamp(p, opt, 1, early=True)
    dma_w(p, opt, "L_nodma")
    if opt.xfirst:
        x_loads(p, opt, (0,))
    p.raw("s_barrier")
    x_loads(p, opt, (1,) if opt.xfirst else (0, 1))
    stamp(p, opt, 2, early=True)
    lds_bases(p, opt)
    dbg_early(p, opt)
    p.wait_tag("w")
    p.raw("s_barrier")
    stamp(p, opt, 3)
    post_bar1(p, opt)
    post_bar1b(p, opt)
    p.wait(vm=12)
    stamp(p, opt, 4)
    p.label("L_join")


def path_y(p, opt):
    sA, sB = 48, 49
    p.op("v_lshrrev_b32", ta, "2", L)
    sal(p, f"s_sub_u32 {s(sB)}, {s(W)}, 4", [W], [sB])
    sal(p, f"s_lshl_b32 {s(sA)}, {s(sB)}, 4", [sB], [sA])
    p.op("v_add_u32", ta, f"s{sA}", ta)
    p.op("v_mul_u32_u24", ta, "0xc0", ta)
    p.op("v_and_b32", tb, "3", L)
    p.op("v_mad_u32_u24", WOA, tb, "48", ta)
    sal(p, f"s_sub_u32 {s(sA)}, {s(W)}, 9", [W], [sA])
    sal(p, f"s_lshl_b32 {s(sA)}, {s(sA)}, 8", [sA], [sA])
    p.op("v_lshl_add_u32", TE, L, "2", f"s{sA}")
    for k, (dst, spos) in enumerate(((GA, 60), (GB, 61))):
        if k == 0:
            sal(p, f"s_mov_b32 {s(spos)}, {s(sB)}", [sB], [spos], False)
        else:
            sal(p, f"s_add_u32 {s(spos)}, {s(sB)}, 8", [sB], [spos])
        sal(p, f"s_cmp_ge_u32 {s(spos)}, 7", [spos], [])
        p.salu(f"s_cselect_b32 {s(sA)}, 32, 0", [SCC], sr(sA))
        p.salu(f"s_cselect_b32 {s(62)}, 7, 0", [SCC], sr(62))
        sal(p, f"s_sub_u32 {s(62)}, {s(spos)}, {s(62)}", [spos, 62], [62])
        sal(p, f"s_lshl_b32 {s(62)}, {s(62)}, 5", [62], [62])
        p.op("v_add_u32", ta, f"s{sA}", N31)
        p.op("v_min_u32", ta, "48", ta)
        p.op("v_mul_u32_u24", ta, "0xc4", ta)
        p.op("v_add3_u32", dst, ta, HI16, "s62")
    sal(p, f"s_lshl_b32 {s(S_G2)}, {s(sB)}, 10", [sB], [S_G2])
    p.wait(lgkm=0)
    stamp(p, opt, 1, early=True)
    p.smem("s_load_dwordx2", S_LS, 2, 32, 0)
    p.smem("s_load_dwordx16", S_W2, 16, 38, 0)
    p.smem("s_load_dwordx16", S_W2 + 16, 16, 38, 64)
    p.vld("buffer_load_dword", rcv, 1, TE, SRD_RC, 0)
    for i in range(6):
        p.salu(f"s_mov_b32 m0, {s(50)}", sr(50), [M0])
        p.dma(DMA, SRD_WQ, 51).tag = "w"
        if i < 5:
            sal(p, f"s_addk_i32 {s(50)}, 9216", [50], [50])
            sal(p, f"s_addk_i32 {s(51)}, 9216", [51], [51])
    p.vld("buffer_load_dwordx4", ridx, 4, GA, SRD_RIDX, 0)
    p.vld("buffer_load_dwordx4", ridxb, 4, GB, SRD_RIDX, 0)
    p.smem("s_load_dwordx16", S_W1, 16, 36, 0)
    p.raw("s_barrier")
    stamp(p, opt, 2, early=True)
    lds_bases(p, opt)
    sal(p, f"s_cmp_lt_u32 {s(W)}, 9", [W], [])
    p.raw("s_cbranch_scc1 L_notab", rd=[SCC])
    p.cond_begin()
    p.raw("s_setprio 3", kind="salu")
    p.wait(lgkm=0)
    hb = u
    tmps = [S_LS, S_T1, S_T2, S_T3]
    for j in range(16):
        st = tmps[j % 4]
        nm = "s_pack_hh_b32_b16" if j & 1 else "s_pack_ll_b32_b16"
        sal(p, f"{nm} {s(st)}, {s(S_W1 + (j >> 1))}, {s(S_W1 + 8 + (j >> 1))}", [S_W1 + (j >> 1), S_W1 + 8 + (j >> 1)], [st], False)
        p.op("v_dot2_f32_bf16", hb + j, rcv, f"s{st}", "0", kind="dot")
    for j in range(8):
        p.op("v_cvt_pk_bf16_f32", hb + j, hb + 2 * j, hb + 2 * j + 1)
    for j in range(8):
        p.op("v_pk_max_i16", hb + j, hb + j, "0")
    acc = hb + 8
    k = 0
    for jp in range(8):
        for h in range(4):
            st = tmps[k % 4]
            k += 1
            r0, r1 = S_W2 + 4 * jp + (h >> 1), S_W2 + 4 * jp + 2 + (h >> 1)
            nm = "s_pack_hh_b32_b16" if h & 1 else "s_pack_ll_b32_b16"
            sal(p, f"{nm} {s(st)}, {s(r0)}, {s(r1)}", [r0, r1], [st], False)
            if jp == 0:
                p.op("v_dot2_f32_bf16", acc + h, hb, f"s{st}", "0", kind="dot")
            else:
                p.op("v_dot2_f32_bf16", acc + h, hb + jp, f"s{st}", acc + h, kind="dot").tag = "acc"
    p.op("v_mov_b32", ta, f32(16.0 * LOG2E))
    p.op("v_add_u32", TE, str(L_TAB), TE)
    for step in range(9):
        for h in range(4):
            a = acc + h
            if step == 0: p.op("v_cvt_pk_bf16_f32", a, a, a)
            if step == 1: p.op("v_and_b32", a, "0xffff0000", a)
            if step == 2: p.op("v_mul_f32", a, f32(-LOG2E), a)
            if step == 3: p.op("v_exp_f32", a, a, kind="trans")
            if step == 4: p.op("v_add_f32", a, "1.0", a)
            if step == 5: p.op("v_rcp_f32", a, a, kind="trans")
            if step == 6: p.op("v_cvt_pk_bf16_f32", a, a, a)
            if step == 7: p.op("v_and_b32", a, "0xffff0000", a)
            if step == 8:
                p.op("v_fmaak_f32", a, a, ta, f32(-8.0 * LOG2E))
                p.dsw("ds_write_b32", TE, a, 1, 768 * h)
    p.raw("s_setprio 0", kind="salu")
    p.cond_end()
    p.label("L_notab")
    sal(p, f"s_cmp_lg_u32 {s(W)}, 8", [W], [])
    p.raw("s_cbranch_scc1 L_notau", rd=[SCC])
    p.cond_begin()
    p.wait(lgkm=0)
    for h in range(4):
        src = S_LS + (h >> 1)
        st = S_W1 + h
        if h & 1:
            sal(p, f"s_and_b32 {s(st)}, {s(src)}, 0xffff0000", [src], [st])
        else:
            sal(p, f"s_lshl_b32 {s(st)}, {s(src)}, 16", [src], [st])
        p.op("v_mov_b32", u + h, f"s{st}")
    for h in range(4):
        x = u + h
        p.op("v_min_f32", x, "0x40930000", x)
        p.op("v_max_f32", x, "0xc2c80000", x)
        p.op("v_mul_f32", x, f32(LOG2E), x)
        p.op("v_exp_f32", x, x, kind="trans")
    for h in range(4):
        x = u + h
        p.op("v_cvt_pk_bf16_f32", x, x, x)
        p.op("v_and_b32", x, "0xffff0000", x)
        p.op("v_mul_f32", x, f32(LOG2E), x)
    p.dsw("ds_write_b128", PARA, u, 4, 0)
    p.op("v_mov_b32", u + 4, "0")
    p.op("v_mov_b32", u + 5, "0")
    p.dsw("ds_write_b64", PARA, u + 4, 2, L_CNT - L_PAR)
    for i in range(4):
        p.op("v_mov_b32", g2 + i, "0x3f803f80")
    p.dsw("ds_write_b128", V_BIAS, g2, 4, L_ONES - L_BIAS)
    p.cond_end()
    p.label("L_notau")
    for r in range(4):
        for base in (ridx, ridxb):
            p.op("v_min_u32", base + r, "0xa8", base + r)
            p.op("v_lshl_add_u32", base + r, base + r, "2", f"s{S_T0}")
    p.op("v_add_u32", GDST, f"s{S_G2}", V_BIAS)
    p.op("v_mov_b32", tb, f32(NEG_BIG))
    p.wait(lgkm=0)
    dbg_early(p, opt)
    p.wait_tag("w")
    p.raw("s_barrier")
    stamp(p, opt, 3)
    for i in range(3):
        p.vld("buffer_load_dwordx4", wov + 4 * i, 4, WOA, SRD_WO, 16 * i)
    p.raw("s_setprio 3", kind="salu")
    post_bar1(p, opt)
    g = u
    for h in range(4):
        for r in range(4):
            p.dsr("ds_read_b32", g + 4 * h + r, 1, ridx + r, 768 * h)
    post_bar1b(p, opt)
    sal(p, f"s_cmp_lg_u32 {s(W)}, 10", [W], [])
    p.raw("s_cbranch_scc1 L_g1", rd=[SCC])
    p.cond_begin()
    for h in range(4):
        p.add(I(f"v_cndmask_b32 {v(g + 4 * h)}, {v(g + 4 * h)}, {v(tb)}, {s(S_HIMASK, 2)}", "valu",
                [g + 4 * h, tb] + sr(S_HIMASK, 2), [g + 4 * h]))
    p.cond_end()
    p.label("L_g1")
    for h in range(4):
        p.dsw("ds_write_b128", GDST, g + 4 * h, 4, 14336 * h)
    sal(p, f"s_cmp_ge_u32 {s(W)}, 10", [W], [])
    p.raw("s_cbranch_scc1 L_g3", rd=[SCC])
    p.cond_begin()
    g = 128
    for h in range(4):
        for r in range(4):
            p.dsr("ds_read_b32", g + 4 * h + r, 1, ridxb + r, 768 * h)
    sal(p, f"s_cmp_eq_u32 {s(W)}, 9", [W], [])
    p.salu(f"s_cselect_b64 {s(48, 2)}, {s(S_HIMASK, 2)}, 0", [SCC] + sr(S_HIMASK, 2), sr(48, 2))
    for h in range(4):
        p.add(I(f"v_cndmask_b32 {v(g + 4 * h)}, {v(g + 4 * h)}, {v(tb)}, {s(48, 2)}", "valu",
                [g + 4 * h, tb] + sr(48, 2), [g + 4 * h]))
        p.dsw("ds_write_b128", GDST, g + 4 * h, 4, 14336 * h + 8192)
    p.cond_end()
    p.label("L_g3")
    ONE = 76
    p.op("v_mov_b32", ONE, "1")
    p.salu("s_mov_b64 exec, 1", [], [EXEC])
    p.add(I(f"ds_add_u32 {v(PARA)}, {v(ONE)} offset:{L_CNT - L_PAR}", "dsw", [PARA, ONE], []))
    p.salu("s_mov_b64 exec, -1", [], [EXEC])
    window_map(p, opt, 48, 49, 50, 52, 53, 54, 55)
    stamp(p, opt, 4)
    sal(p, f"s_cmp_lt_u32 s2, {NS}", [2], [])
    p.salu(f"s_cselect_b32 {s(S_T0)}, {s(W)}, 0", [SCC] + sr(W), sr(S_T0))
    sal(p, f"s_cmp_ge_u32 {s(S_T0)}, 8", [S_T0], [])
    p.salu(f"s_cselect_b32 {s(S_T1)}, 0x80000000, 0", [SCC], sr(S_T1))
    p.op("v_or_b32", V_OFFA, f"s{S_T1}", V_OFFA)
    p.op("v_or_b32", V_OFFB, f"s{S_T1}", V_OFFB)
    x_loads(p, opt)
    sal(p, f"s_cmp_ge_u32 {s(W)}, 10", [W], [])
    p.raw("s_cbranch_scc1 L_nowo", rd=[SCC])
    p.cond_begin()
    uu = 128
    for i in range(12):
        p.op("v_lshlrev_b32", uu + 2 * i, "16", wov + i)
        p.op("v_and_b32", uu + 2 * i + 1, "0xffff0000", wov + i)
    sm = 78
    def pk(name, d, a, b, mods=""):
        p.add(I(f"{name} {v(d, 2)}, {v(a, 2)}, {v(b, 2)}{mods}", "valu", vr(a, 2) + vr(b, 2), vr(d, 2)))
    pk("v_pk_add_f32", sm, uu, uu + 2)
    for i in range(2, 12):
        pk("v_pk_add_f32", sm, sm, uu + 2 * i)
    p.op("v_add_f32", sm, sm, sm + 1)
    for ctl in ("quad_perm:[1,0,3,2]", "quad_perm:[2,3,0,1]"):
        p.add(I(f"v_add_f32_dpp {v(sm)}, {v(sm)}, {v(sm)} {ctl} row_mask:0xf bank_mask:0xf", "dpp", [sm], [sm]))
    p.op("v_mul_f32", sm, f32(-1.0 / 96.0), sm)
    for i in range(12):
        pk("v_pk_add_f32", uu + 2 * i, uu + 2 * i, sm, " op_sel_hi:[1,0]")
    for i in range(12):
        p.op("v_cvt_pk_bf16_f32", wov + i, uu + 2 * i, uu + 2 * i + 1)
    for i in range(3):
        p.dsw("ds_write_b128", WOA, wov + 4 * i, 4, L_WO + 16 * i)
    p.salu("s_mov_b64 exec, 1", [], [EXEC])
    p.add(I(f"ds_add_u32 {v(PARA)}, {v(ONE)} offset:{L_CNT - L_PAR + 4}", "dsw", [PARA, ONE], []))
    p.salu("s_mov_b64 exec, -1", [], [EXEC])
    p.cond_end()
    p.label("L_nowo")
    p.wait(vm=12, lgkm=0)
    p.raw("s_setprio 0", kind="salu")
    sal(p, f"s_cmp_lg_u32 {s(S_T1)}, 0", [S_T1], [])
    p.raw("s_cbranch_scc1 L_end", rd=[SCC])
    p.raw("s_branch L_join")


class WBuf:
    def __init__(self, quads):
        self.q = list(quads)
        self.i = 0

    def next(self):
        r = self.q[self.i % len(self.q)]
        self.i += 1
        return r


def ld_wq(p, wb, col, ks):
    r = wb.next()
    off = L_WQ + col * 2 + 16 * ks * 576
    p.dsr("ds_read_b64_tr_b16", r, 2, V_WQ, off)
    p.dsr("ds_read_b64_tr_b16", r + 2, 2, V_WQ, off + 4 * 576)
    return r


def qk_proj(p, hp, X, areas, wb, order=(0, 1, 2)):
    for T in order:
        for ks in range(6):
            w = ld_wq(p, wb, hp * 96 + 32 * T, ks)
            p.mfma(areas[T], w, X + 4 * ks, None if ks == 0 else areas[T])


def qk_norm(p, hp, areas, qdst, kdst, order=None):
    Lr = [areas[i // 16] + i % 16 for i in range(48)]
    ss = [V_SC + i for i in range(4)]
    cp = [V_SC + 4, V_SC + 5]
    for g in range(4):
        for i in range(12):
            x = Lr[12 * g + i]
            if i == 0:
                p.op("v_fma_f32", ss[g], x, x, f"s{S_EPSQ}")
            else:
                p.op("v_fmac_f32", ss[g], x, x, rmw=True)
    sc = {}
    for pr in range(2):
        a, b = ss[2 * pr], ss[2 * pr + 1]
        p.swap32(a, b)
        p.op("v_add_f32", a, a, b)
        p.op("v_rsq_f32", a, a, kind="trans")
        if pr == 0:
            p.op("v_mul_f32", a, a, V_TAUV)
        p.op("v_mov_b32", b, a)
        p.swap32(a, b)
        sc[2 * pr], sc[2 * pr + 1] = a, b
    for i in range(48):
        p.op("v_mul_f32", Lr[i], Lr[i], sc[i // 12])
    dst = [qdst + i for i in range(12)] + [kdst + i for i in range(12)]
    pend = list(range(24))
    done_src = set()
    while pend:
        for pi in pend:
            d = dst[pi]
            blockers = [q for q in pend if q != pi and d in (Lr[2 * q], Lr[2 * q + 1])]
            if not blockers:
                p.op("v_cvt_pk_bf16_f32", d, Lr[2 * pi], Lr[2 * pi + 1])
                pend.remove(pi)
                break
        else:
            raise RuntimeError("no legal packing order")


def set_tauv(p, hp):
    def g():
        p.op("v_mov_b32", V_TAUV, f"s{S_TAU + 2 * hp}")
        p.salu(f"s_mov_b64 exec, {s(S_HIMASK, 2)}", sr(S_HIMASK, 2), [EXEC])
        p.op("v_mov_b32", V_TAUV, f"s{S_TAU + 2 * hp + 1}", rmw=True)
        p.salu("s_mov_b64 exec, -1", [], [EXEC])
    p.group(g)


def fill_ones(p, regs_quads, addr=None):
    for (r, n) in regs_quads:
        p.dsr({4: "ds_read_b128", 2: "ds_read_b64"}[n], r, n, V_BIAS, L_ONES - L_BIAS)


def v_proj(p, h, tiles, wb):
    for ks in range(6):
        w = ld_wq(p, wb, 192 + 24 * h, ks)
        for (X, D) in tiles:
            p.mfma(D, X + 4 * ks, w, None if ks == 0 else D)


def v_pack(p, pairs):
    for i in range(0, len(pairs), 5):
        chunk = pairs[i:i + 5]
        def g():
            p.salu(f"s_mov_b64 exec, {s(S_VMASK, 2)}", sr(S_VMASK, 2), [EXEC])
            for d, a in chunk:
                p.op("v_cvt_pk_bf16_f32", d, a, a + 1, rmw=True)
            p.salu("s_mov_b64 exec, -1", [], [EXEC])
        p.group(g)


def unit(p, h, qt, S0, S1, Q, Ka, Kb, Vq, slow, opt):
    boff = (h * 2 + qt) * 7168
    for g in range(4):
        x = p.dsr("ds_read_b128", S0 + 4 * g, 4, V_BIAS, boff + 1024 * g)
        x.rd = x.rd | {3003}
    for g in range(3):
        x = p.dsr("ds_read_b128", S1 + 4 * g, 4, V_BIAS, boff + 1024 * (4 + g))
        x.rd = x.rd | {3003}
    if slow:
        M = [WB, WB + 2, WB + 4, WB + 6, V_SC, V_SC + 2]
        M6 = V_SC + 4
        ad = V_SP
        p.op("v_subrev_u32", ad, str(L_BIAS), V_BIAS)
        p.op("v_bfe_u32", V_SC + 5, ad, "4", "5")
        if qt:
            p.op("v_add_u32", V_SC + 5, "32", V_SC + 5)
            p.op("v_min_u32", V_SC + 5, "48", V_SC + 5)
        p.op("v_mul_u32_u24", V_SC + 5, "0x62", V_SC + 5)
        p.op("v_lshrrev_b32", ad, "9", ad)
        p.op("v_lshl_add_u32", ad, ad, "3", V_SC + 5)
        p.op("v_add_u32", ad, f"s{S_MBASE}", ad)
        for g in range(6):
            p.vld("buffer_load_dwordx2", M[g], 2, ad, SRD_MASK, 16 * g)
        p.op("v_add_u32", V_SC + 5, f"s{S_MBASE}", V_SC + 5)
        p.vld("buffer_load_ushort", M6, 1, V_SC + 5, SRD_MASK, 96)
    p.mfma(S0, Ka, Q, S0)
    p.mfma(S0, Ka + 4, Q + 4, S0, k=8)
    p.mfma(S1, Kb, Q, S1)
    p.mfma(S1, Kb + 4, Q + 4, S1, k=8)
    regs = [S0 + i for i in range(16)] + [S1 + i for i in range(9)]
    if slow:
        tmp = V_SP
        for g in range(6):
            for e in range(4):
                r = regs[4 * g + e]
                src = M[g] + (e >> 1)
                if e & 1:
                    p.op("v_and_b32", tmp, "0xffff0000", src)
                else:
                    p.op("v_lshlrev_b32", tmp, "16", src)
                p.op("v_fmamk_f32", r, tmp, f32(LOG2E), r)
        p.op("v_lshlrev_b32", tmp, "16", M6)
        p.op("v_fmamk_f32", regs[24], tmp, f32(LOG2E), regs[24])
        mx, m2 = V_SC, V_SC + 1
        p.op("v_max3_f32", mx, regs[0], regs[1], regs[2])
        for i in range(3, 25, 2):
            p.op("v_max3_f32", mx, mx, regs[i], regs[i + 1])
        p.op("v_mov_b32", m2, mx)
        p.swap32(mx, m2)
        p.op("v_max_f32", mx, mx, m2)
        for r in regs:
            p.op("v_sub_f32", r, r, mx)
    for r in regs:
        p.op("v_exp_f32", r, r, kind="trans")
    for i in range(8):
        p.op("v_cvt_pk_bf16_f32", S0 + i, S0 + 2 * i, S0 + 2 * i + 1)
    for i in range(4):
        p.op("v_cvt_pk_bf16_f32", S0 + 8 + i, S1 + 2 * i, S1 + 2 * i + 1)
    p.op("v_cvt_pk_bf16_f32", V_PZ, S1 + 8, "0")
    O = S1
    p.mfma(O, Vq[0], S0, None)
    p.mfma(O, Vq[1], S0 + 4, O)
    p.mfma(O, Vq[2], S0 + 8, O)
    p.mfma(O, Vq[3], V_PZ, O, k=8)
    p.op("v_rcp_f32", O + 12, O + 12, kind="trans")
    for i in range(12):
        p.op("v_mul_f32", O + i, O + i, O + 12)
    for i in range(6):
        p.op("v_cvt_pk_bf16_f32", Q + i, O + 2 * i, O + 2 * i + 1)


def mask_ld(p, opt, i, r):
    if not opt.mask_check:
        return
    if i < 4:
        p.vld("buffer_load_dwordx4", r, 4, V_BIAS, SRD_MCHK, 1024 * i, opt.mflag)
    else:
        p.add(I(f"buffer_load_dwordx4 {v(r, 4)}, {v(V_BIAS)}, {s(SRD_MCHK, 4)}, {s(S_C4096)} offen{opt.mflag}", "vld",
                [V_BIAS] + sr(SRD_MCHK, 4) + sr(S_C4096), vr(r, 4)))


def mask_use(p, opt, r):
    if not opt.mask_check:
        return
    p.op("v_or3_b32", r, r, r + 1, r + 2)
    p.op("v_bitop3_b32", r, r, r + 3, f"s{S_C7F}", extra=" bitop3:0xa8")
    p.add(I(f"v_cmp_ne_u32 {s(S_MTMP, 2)}, 0, {v(r)}", "valu", [r], sr(S_MTMP, 2)))
    p.salu(f"s_or_b64 {s(S_MACC, 2)}, {s(S_MACC, 2)}, {s(S_MTMP, 2)}", sr(S_MACC, 2) + sr(S_MTMP, 2), sr(S_MACC, 2) + [SCC])


_pid = [3100]


def setprio(p, opt, stage):
    if not opt.prio:
        return
    n = opt.prio[stage]
    rd = [3000]
    if p.ins:
        _pid[0] += 1
        p.ins[-1].wr = p.ins[-1].wr | {_pid[0]}
        rd.append(_pid[0])
    p.raw(f"s_setprio {n}", kind="salu", rd=rd, wr=[3000])


def dispatch(p, opt):
    mask_srd(p, opt)
    p.salu(f"s_or_b32 {s(S_T0)}, {s(S_KILL)}, {s(S_UNSAFE)}", sr(S_KILL) + sr(S_UNSAFE), sr(S_T0) + [SCC])
    p.raw("s_cbranch_scc1 L_slow", rd=[SCC])


def poll(p, slow, which, target, r, res):
    lbl = f"L_poll{which}" + ("s" if slow else "f")
    def gg():
        p.label(lbl)
        p.op("v_mov_b32", r, str(L_CNT + 4 * which))
        p.dsr("ds_read_b32", r, 1, r, 0)
        p.add(I(f"v_readfirstlane_b32 {s(S_B2)}, {v(r)}", "rdlane", [r], sr(S_B2)))
        p.salu(f"s_cmp_lt_u32 {s(S_B2)}, {target}", sr(S_B2), [SCC])
        p.raw(f"s_cbranch_scc1 {lbl}", kind="salu", rd=[SCC])
    gr = p.group(gg)
    gr.wr = gr.wr | {res}
    return gr


def vp_pairs(dst, src, n):
    return [(dst + i, src + 2 * i) for i in range(n)]


def body(p, slow, opt):
    A, B, C, D, E = AR_A, AR_B, AR_C, AR_D, AR_E
    chk = (not slow) and opt.mask_check
    Vq = [VA, VA + 4, VA + 8, VA + 12]
    setprio(p, opt, 0)
    set_tauv(p, 0)
    areas = [OQ0, OQ0 + 16, OQ0 + 32]
    qk_proj(p, 0, XA, areas, WBuf([WB, WB + 4, K0R, K0R + 4, K0R + 8]))
    qk_norm(p, 0, areas, OQ0, K0R)
    stamp(p, opt, 6)
    areas = [A, E, D]
    qk_proj(p, 0, XB, areas, WBuf([WB + 4, OQ1 + 20, T1R]), order=(2, 1, 0))
    qk_norm(p, 0, areas, OQ1, K1R)
    stamp(p, opt, 7)
    gb = poll(p, slow, 0, 8, V_PZ, 3003)
    anchor = [i for i in p.ins if i.kind == "mfma"][opt.b2at]
    anchor.wr = anchor.wr | {3004}
    gb.rd = gb.rd | {3004}
    fill_ones(p, [(VA, 4), (VA + 4, 4), (VA + 8, 4), (VA + 12, 2)])
    v_proj(p, 0, [(XA, B), (XB, A)], WBuf([WB, WB + 4]))
    v_pack(p, vp_pairs(VA, B, 8) + vp_pairs(VA + 8, A, 5))
    setprio(p, opt, 1)
    if chk: mask_ld(p, opt, 0, UR)
    rot = [(C, B), (A, C), (C, B), (A, C)] if not slow else [(A, B)] * 4
    unit(p, 0, 0, *rot[0], OQ0, K0R, K1R, Vq, slow, opt)
    unit(p, 0, 1, *rot[1], OQ1, K0R, K1R, Vq, slow, opt)
    if chk: mask_use(p, opt, UR); mask_ld(p, opt, 1, UR)
    wbv = WBuf([K0R, K1R])
    v_proj(p, 1, [(XA, B)], wbv)
    v_proj(p, 1, [(XB, A)], wbv)
    v_pack(p, vp_pairs(VA, B, 8) + vp_pairs(VA + 8, A, 5))
    unit(p, 1, 0, *rot[2], OQ0 + 6, K0R + 6, K1R + 6, Vq, slow, opt)
    unit(p, 1, 1, *rot[3], OQ1 + 6, K0R + 6, K1R + 6, Vq, slow, opt)
    if chk: mask_use(p, opt, UR)
    setprio(p, opt, 2)
    stamp(p, opt, 8)
    v_proj(p, 2, [(XA, B)], wbv)
    v_proj(p, 2, [(XB, A)], wbv)
    v_pack(p, vp_pairs(VA, B, 8) + vp_pairs(VA + 8, A, 5))
    set_tauv(p, 1)
    areas = [A, B, D]
    qk_proj(p, 1, XA, areas, WBuf([K0R, K0R + 4, K0R + 8, WB, WB + 4]), order=(2, 1, 0))
    qk_norm(p, 1, areas, OQ0 + 12, K0R)
    VB0, VB1 = XA + 16, XB
    v_proj(p, 3, [(XA, B)], WBuf([WB, WB + 4, T0R]))
    fill_ones(p, [(VB0, 4), (VB0 + 4, 4)])
    v_pack(p, vp_pairs(VB0, B, 8))
    areas = [B, XA, D]
    qk_proj(p, 1, XB, areas, WBuf([WB, WB + 4, T0R]), order=(2, 1, 0))
    qk_norm(p, 1, areas, OQ1 + 12, K1R)
    v_proj(p, 3, [(XB, XA)], WBuf([WB, WB + 4, T0R]))
    fill_ones(p, [(VB1, 4), (VB1 + 4, 2)])
    v_pack(p, vp_pairs(VB1, XA, 5))
    if chk:
        mask_ld(p, opt, 2, UR); mask_ld(p, opt, 3, T1R); mask_ld(p, opt, 4, T0R)
    setprio(p, opt, 3)
    F, G = XA, XB + 8
    rot = [(C, G), (F, C), (G, F), (C, G)] if not slow else [(F, G)] * 4
    k = 0
    for h in (2, 3):
        vq = Vq if h == 2 else [VB0, VB0 + 4, VB1, VB1 + 4]
        for qt in (0, 1):
            unit(p, h, qt, *rot[k], (OQ0, OQ1)[qt] + 6 * h, K0R + 6 * (h - 2), K1R + 6 * (h - 2), vq, slow, opt)
            k += 1
    if chk:
        mask_use(p, opt, UR); mask_use(p, opt, T1R); mask_use(p, opt, T0R)
    setprio(p, opt, 4)
    stamp(p, opt, 9)
    vwo = V_WQ
    a, b = VA + 8, VA + 9
    poll(p, slow, 1, 6, VA + 10, 3005)
    p.op("v_subrev_u32", a, str(L_BIAS), V_BIAS)
    p.op("v_bfe_u32", b, a, "6", "2")
    p.op("v_lshrrev_b32", vwo, "9", a)
    p.op("v_lshl_add_u32", b, vwo, "2", b)
    p.op("v_mul_u32_u24", b, "0xc0", b)
    p.op("v_bfe_u32", vwo, a, "8", "1")
    p.op("v_lshl_add_u32", b, vwo, "5", b)
    p.op("v_bfe_u32", vwo, a, "4", "1")
    p.op("v_lshl_add_u32", b, vwo, "4", b)
    p.op("v_bfe_u32", vwo, a, "5", "1")
    p.op("v_lshl_add_u32", b, vwo, "3", b)
    p.op("v_add_u32", vwo, str(L_WO), b)
    Y = [[XA, K0R, K1R], [XA + 16, XA + 32, K0R + 16]]
    for tt in (0, 1):
        wb = WBuf([T0R, T1R, VA + 4] if tt == 0 else [T0R, T1R, WB + 10])
        for T in range(3):
            for ks in range(6):
                w = wb.next()
                x = p.dsr("ds_read_b64_tr_b16", w, 2, vwo, (16 * ks) * 192 + 64 * T)
                x.rd = x.rd | {3005}
                x = p.dsr("ds_read_b64_tr_b16", w + 2, 2, vwo, (16 * ks + 8) * 192 + 64 * T)
                x.rd = x.rd | {3005}
                p.mfma(Y[tt][T], w, (OQ0, OQ1)[tt] + 4 * ks, None if ks == 0 else Y[tt][T])
    if chk:
        p.salu(f"s_cmp_lg_u64 {s(S_MACC, 2)}, 0", sr(S_MACC, 2), [SCC, 3001])
        p.add(I("s_cbranch_scc1 L_redo", "salu", [SCC, 3001], [3001, 3002]))
    for tt in (0, 1):
        y = [Y[tt][i // 16] + i % 16 for i in range(48)]
        ss, cp = (WB + 6, WB + 7) if tt == 0 else (WB + 8, WB + 9)
        for i in range(48):
            if i == 0:
                p.op("v_fma_f32", ss, y[0], y[0], f"s{S_EPSLN}")
            else:
                p.op("v_fmac_f32", ss, y[i], y[i], rmw=True)
        p.op("v_mov_b32", cp, ss)
        p.swap32(ss, cp)
        p.op("v_add_f32", ss, ss, cp)
        p.op("v_rsq_f32", ss, ss, kind="trans")
        p.op("v_mul_f32", ss, f32(math.sqrt(96.0)), ss)
        for i in range(48):
            p.op("v_mul_f32", y[i], y[i], ss)
        for T in range(3):
            for jj in range(2):
                base = Y[tt][T] + 8 * jj
                for i in range(4):
                    p.op("v_cvt_pk_bf16_f32", base + i, base + 2 * i, base + 2 * i + 1)
                st = p.vst("buffer_store_dwordx4", base, 4, (V_OFFA, V_OFFB)[tt], SRD_OUT, 64 * T + 32 * jj, opt.sflag)
                st.rd = st.rd | {3002}
    stamp(p, opt, 10)
    if getattr(opt, "twice", 0):
        lbl = "L_done_" + ("s" if slow else "f")
        p.salu("s_add_u32 s47, s47, 1", sr(47), sr(47) + [SCC]).tag = "fence"
        p.salu(f"s_cmp_ge_u32 s47, {opt.twice}", sr(47), [SCC]).tag = "fence"
        p.raw(f"s_cbranch_scc1 {lbl}", rd=[SCC])
        p.raw("s_nop 4")
        x_loads(p, opt)
        wq_base(p, 60, 61)
        p.raw("s_branch L_join")
        p.label(lbl)
    if getattr(opt, "loop2", False):
        p.salu("s_add_u32 s47, s47, 1", sr(47), sr(47) + [SCC]).tag = "fence"
        p.salu("s_cmp_lt_u32 s47, 2", sr(47), [SCC]).tag = "fence"
        p.raw("s_cbranch_scc1 L_again", rd=[SCC])
    if opt.debug:
        p.wait(vm=0)
    n0 = len(p.ins)
    stamp_flush(p, opt)
    for i in p.ins[n0:]:
        i.tag = "fence" if i.tag is None else i.tag
    p.raw("s_endpgm")


HEADER = open("standalone__window_attn_swin_v2__vision.s.ref").read().split("; Override")[0]


def generate(opt, sched=None):
    segs = {}
    p = Prog(); pro_common(p, opt); segs["com"] = p.ins
    p = Prog(); path_o(p, opt); segs["po"] = p.ins
    p = Prog(); path_y(p, opt); segs["py"] = p.ins
    p = Prog()
    if opt.debug and opt.debug != 3:
        p.wait(vm=0)
        stamp(p, opt, 5)
    dispatch(p, opt); segs["dis"] = p.ins
    p = Prog(); body(p, False, opt); segs["fast"] = p.ins
    p = Prog(); body(p, True, opt); segs["slow"] = p.ins
    p = Prog()
    p.label("L_redo")
    p.wait(vm=0, lgkm=0)
    p.raw("s_nop 15", kind="nop", states=16)
    x_loads(p, opt)
    wq_base(p, 60, 61)
    segs["redo"] = p.ins
    if sched:
        for k in ("fast", "slow"):
            segs[k] = sched(segs[k])
    if getattr(opt, "drop", None):
        for k in ("fast",):
            segs[k] = [i for i in flatten(segs[k]) if not (i.kind in opt.drop and not i.text.startswith("v_mov_b32 v6") and not i.text.startswith("v_mov_b32 v7"))]
    st = WaitState()
    com = insert_nops(insert_waits(flatten(segs["com"]), st))
    sty = st.copy()
    po = insert_nops(insert_waits(flatten(segs["po"]), st), com)
    py = insert_nops(insert_waits(flatten(segs["py"]), sty), com)
    tail = lambda w: [(x.text) for x in w.vm[-12:]]
    assert tail(st) == tail(sty), (tail(st), tail(sty))
    assert not st.lg and not sty.lg
    assert len(st.vm) == 12 and len(sty.vm) == 12, (len(st.vm), len(sty.vm))
    st.vm = st.vm[-12:]
    clean = [I("s_nop 15", "nop", states=16)]
    mid = insert_nops(insert_waits(flatten(segs["dis"]), st), clean)
    head = com + py + po + mid
    fast = insert_nops(insert_waits(flatten(segs["fast"]), st.copy()), head)
    str_ = WaitState()
    str_.vm = [I("x", "vst")]
    str_.lg = [I("x", "dsw")]
    redo = insert_nops(insert_waits(flatten(segs["redo"]), str_), clean)
    slow = insert_nops(insert_waits(flatten(segs["slow"]), st.copy() if opt.debug in (None, 3) else str_), clean)
    py = redo
    name = "standalone__window_attn_swin_v2__vision_kernel"
    txt = HEADER
    txt += f"; @launch grid=({NWG},1,1) block=({64 * WPW},1,1) lds={LDS_BYTES}\n"
    txt += f""".amdgcn_target "amdgcn-amd-amdhsa--gfx950"
.text
.globl {name}
.p2align 8
.type {name},@function
{name}:
"""
    txt += render(head) + "\n" + render(fast) + "\n" + render(redo) + "\nL_slow:\n" + render(slow) + "\nL_end:\n    s_endpgm\n"
    txt += f""".section .rodata,"a"
.p2align 6
.amdhsa_kernel {name}
  .amdhsa_next_free_vgpr {NVGPR}
  .amdhsa_next_free_sgpr 102
  .amdhsa_accum_offset {NVGPR}
  .amdhsa_group_segment_fixed_size 0
  .amdhsa_kernarg_size 96
  .amdhsa_user_sgpr_count 2
  .amdhsa_user_sgpr_kernarg_segment_ptr 1
  .amdhsa_system_sgpr_workgroup_id_x 1
.end_amdhsa_kernel
"""
    stats = {}
    for nm, seq in (("head", head), ("py", py), ("fast", fast), ("slow", slow)):
        c = {}
        for i in seq:
            c[i.kind] = c.get(i.kind, 0) + 1
        c["nopstates"] = sum(i.states for i in seq if i.kind == "nop")
        stats[nm] = c
    return txt, stats


if __name__ == "__main__":
    opt = Opt()
    if "--debug" in sys.argv:
        opt.debug = True
        sys.argv.remove("--debug")
    if "--debug2" in sys.argv:
        opt.debug = 2
    if "--debug3" in sys.argv:
        opt.debug = 3
    args = [a for a in sys.argv[1:] if not a.startswith("--")]
    out = args[0] if args else "standalone__window_attn_swin_v2__vision.s"
    for a in sys.argv:
        if a.startswith("--drop="):
            opt.drop = a[7:].split(",")
    if "--loop2" in sys.argv:
        opt.loop2 = True
    for a in sys.argv:
        for fl in ("xflag", "mflag", "sflag"):
            if a.startswith(f"--{fl}="):
                setattr(opt, fl, " " + a.split("=")[1].replace(",", " "))
    for a in sys.argv:
        if a.startswith("--twice="):
            opt.twice = int(a[8:])
    if "--nomask" in sys.argv:
        opt.mask_check = False
    for a in sys.argv:
        if a.startswith("--prio="):
            opt.prio = [int(c) for c in a[7:]]
        if a.startswith("--ldslat="):
            import sched as _s
            _s.Params.lds_lat = int(a[9:])
    if "--xfirst" in sys.argv:
        opt.xfirst = True
    for a in sys.argv:
        if a.startswith("--b2at="):
            opt.b2at = int(a[7:])
    if "--pf" in sys.argv:
        opt.prefetch = True
    import sched
    sc = None if "--nosched" in sys.argv else (lambda x: sched.schedule(x, verbose=True))
    txt, stats = generate(opt, sc)
    open(out, "w").write(txt)
    for k, c in stats.items():
        print(k, c)
```

```python
VCC, EXEC, M0, SCC = 2000, 2002, 2003, 2004
SB = 1000


def v(i, n=1):
    return f"v{i}" if n == 1 else f"v[{i}:{i + n - 1}]"


def s(i, n=1):
    return f"s{i}" if n == 1 else f"s[{i}:{i + n - 1}]"


def vr(i, n=1):
    return list(range(i, i + n))


def sr(i, n=1):
    return list(range(SB + i, SB + i + n))


VALU_KINDS = ("valu", "trans", "perm", "dpp", "rdlane", "dot")


class I:
    __slots__ = ("text", "kind", "rd", "wr", "c", "sub", "cond", "wide", "states", "prio", "tag", "passes")

    def __init__(self, text, kind, rd=(), wr=(), c=None, sub=None, wide=False, states=1, tag=None):
        self.text = text
        self.kind = kind
        self.rd = frozenset(rd)
        self.wr = frozenset(wr)
        self.c = c
        self.sub = sub
        self.cond = False
        self.wide = wide
        self.states = states
        self.prio = 0
        self.tag = tag
        self.passes = 8

    def __repr__(self):
        return self.text


class Prog:
    def __init__(self):
        self.ins = []
        self._cond = False

    def add(self, i):
        i.cond = self._cond
        self.ins.append(i)
        return i

    def raw(self, text, kind="ctrl", rd=(), wr=(), **kw):
        return self.add(I(text, kind, rd, wr, **kw))

    def label(self, name):
        return self.add(I(name + ":", "label", states=0))

    def comment(self, t):
        return self.add(I("; " + t, "label", states=0))

    def salu(self, text, rd=(), wr=()):
        return self.add(I(text, "salu", rd, wr))

    def valu(self, text, rd=(), wr=(), kind="valu"):
        return self.add(I(text, kind, rd, wr))

    @staticmethod
    def _op(x):
        if isinstance(x, int):
            return v(x), [x]
        if isinstance(x, str) and x.startswith("s") and x[1:].isdigit():
            return x, [SB + int(x[1:])]
        return str(x), []

    def op(self, name, dst, *srcs, kind="valu", rmw=False, extra="", xrd=(), xwr=()):
        ts, rd = [], []
        for x in srcs:
            t, r = self._op(x)
            ts.append(t)
            rd += r
        if rmw:
            rd.append(dst)
        return self.add(I(f"{name} {v(dst)}, " + ", ".join(ts) + extra, kind, rd + list(xrd), [dst] + list(xwr)))

    def mfma(self, d, a, b, c=None, k=16):
        n = 4 if k == 16 else 2
        name = "v_mfma_f32_32x32x16_bf16" if k == 16 else "v_mfma_f32_32x32x8_bf16"
        ct = "0" if c is None else v(c, 16)
        rd = vr(a, n) + vr(b, n) + ([] if c is None else vr(c, 16))
        return self.add(I(f"{name} {v(d, 16)}, {v(a, n)}, {v(b, n)}, {ct}", "mfma", rd, vr(d, 16),
                          c=None if c is None else (c, 16)))

    def mfma16(self, d, a, b, c=None):
        ct = "0" if c is None else v(c, 4)
        rd = vr(a, 4) + vr(b, 4) + ([] if c is None else vr(c, 4))
        i = self.add(I(f"v_mfma_f32_16x16x32_bf16 {v(d, 4)}, {v(a, 4)}, {v(b, 4)}, {ct}", "mfma", rd, vr(d, 4),
                       c=None if c is None else (c, 4)))
        i.passes = 4
        return i

    def dsr(self, name, d, n, addr, off=0):
        return self.add(I(f"{name} {v(d, n)}, {v(addr)} offset:{off}", "dsr", [addr], vr(d, n)))

    def dsw(self, name, addr, src, n, off=0):
        return self.add(I(f"{name} {v(addr)}, {v(src, n)} offset:{off}", "dsw", [addr] + vr(src, n), []))

    def vld(self, name, d, n, addr, srd, off=0, extra=""):
        return self.add(I(f"{name} {v(d, n)}, {v(addr)}, {s(srd, 4)}, 0 offen offset:{off}{extra}", "vld",
                          [addr] + sr(srd, 4), vr(d, n)))

    def vst(self, name, src, n, addr, srd, off=0, extra=""):
        return self.add(I(f"{name} {v(src, n)}, {v(addr)}, {s(srd, 4)}, 0 offen offset:{off}{extra}", "vst",
                          [addr] + vr(src, n) + sr(srd, 4), [], wide=n > 2))

    def dma(self, addr, srd, soff=None):
        so = "0" if soff is None else s(soff)
        return self.add(I(f"buffer_load_dwordx4 {v(addr)}, {s(srd, 4)}, {so} offen lds", "dma",
                          [addr, M0] + sr(srd, 4) + ([] if soff is None else sr(soff)), []))

    def smem(self, name, d, n, base, off):
        return self.add(I(f"{name} {s(d, n)}, {s(base, 2)}, {off}", "smem", sr(base, 2), sr(d, n)))

    def swap32(self, a, b):
        return self.add(I(f"v_permlane32_swap_b32 {v(a)}, {v(b)}", "perm", [a, b], [a, b]))

    def group(self, fn):
        save = self.ins
        self.ins = []
        fn()
        sub = self.ins
        self.ins = save
        rd, wr = set(), set()
        for i in sub:
            rd |= (i.rd - wr)
            wr |= i.wr
        rd.discard(EXEC)
        wr.discard(EXEC)
        return self.add(I("<group>", "group", rd, wr, sub=sub))

    def cond_begin(self):
        self.ins.append(I("", "condbegin", states=0))
        self._cond = True

    def cond_end(self):
        self._cond = False
        self.ins.append(I("", "condend", states=0))

    def wait(self, vm=None, lgkm=None):
        return self.add(I("<wait>", "wait", tag=(vm, lgkm)))

    def wait_tag(self, tag):
        return self.add(I("<waittag>", "waittag", tag=tag))


def flatten(ins):
    out = []
    for i in ins:
        if i.kind == "group":
            for x in i.sub:
                x.cond = i.cond
                out.append(x)
        else:
            out.append(i)
    return out


class WaitState:
    def __init__(self):
        self.vm = []
        self.lg = []

    def copy(self):
        w = WaitState()
        w.vm = list(self.vm)
        w.lg = list(self.lg)
        return w


def _younger(lst, idx):
    return sum(1 for x in lst[idx + 1:] if not x.cond)


def _keep_youngest(lst, n):
    keep, cnt = [], 0
    for x in reversed(lst):
        if cnt >= n:
            break
        keep.append(x)
        if not x.cond:
            cnt += 1
    return list(reversed(keep))


def insert_waits(ins, st):
    out = []
    snap = None
    for i in ins:
        if i.kind == "condbegin":
            snap = st.copy()
            continue
        if i.kind == "condend":
            st.vm = snap.vm + [x for x in st.vm if x not in snap.vm]
            st.lg = snap.lg + [x for x in st.lg if x not in snap.lg]
            snap = None
            continue
        needvm, needlg = None, None
        if i.kind == "wait":
            needvm, needlg = i.tag
        elif i.kind == "waittag":
            last = -1
            for k, x in enumerate(st.vm):
                if x.tag == i.tag:
                    last = k
            if last >= 0:
                needvm = _younger(st.vm, last)
        else:
            touched = i.rd | i.wr
            last = -1
            for k, x in enumerate(st.vm):
                if x.wr & touched:
                    last = k
            if last >= 0:
                needvm = _younger(st.vm, last)
            last = -1
            for k, x in enumerate(st.lg):
                if x.wr & touched:
                    last = k
            if last >= 0:
                if any(x.kind == "smem" for x in st.lg):
                    needlg = 0
                else:
                    needlg = _younger(st.lg, last)
        parts = []
        if needvm is not None:
            needvm = min(needvm, 63)
            if len(st.vm) > needvm:
                parts.append(f"vmcnt({needvm})")
                st.vm = _keep_youngest(st.vm, needvm)
        if needlg is not None:
            needlg = min(needlg, 15)
            if len(st.lg) > needlg:
                parts.append(f"lgkmcnt({needlg})")
                st.lg = _keep_youngest(st.lg, needlg)
        if parts:
            w = I("s_waitcnt " + " ".join(parts), "salu")
            w.cond = i.cond
            out.append(w)
        if i.kind in ("wait", "waittag"):
            continue
        out.append(i)
        if i.kind in ("vld", "vst", "dma"):
            st.vm.append(i)
        elif i.kind in ("dsr", "dsw", "smem"):
            st.lg.append(i)
    return out


def insert_nops(ins, hist=None):
    out = list(hist[-200:]) if hist else []
    base = len(out)
    for i in ins:
        if i.kind == "label":
            out.append(i)
            continue
        need = 0
        dist = 0
        isvalu = i.kind in VALU_KINDS
        for p in reversed(out):
            if dist >= 13:
                break
            req = 0
            if p.kind in VALU_KINDS:
                vw = {r for r in p.wr if r < SB}
                sw = {r for r in p.wr if r >= SB}
                if vw & i.rd:
                    if i.kind == "mfma":
                        req = max(req, 2)
                    if i.kind in ("perm", "dpp"):
                        req = max(req, 2)
                    if i.kind == "rdlane":
                        req = max(req, 1)
                    if p.kind == "trans":
                        req = max(req, 1)
                if p.kind == "dot" and (vw & (i.rd | i.wr)):
                    if not (i.kind == "dot" and i.tag == "acc" and not (vw & (i.rd - i.wr))):
                        req = max(req, 3)
                if sw & i.rd:
                    if isvalu:
                        req = max(req, 4 if i.kind == "rdlane" else 2)
                    elif i.kind in ("vld", "vst", "dma"):
                        req = max(req, 5)
                    else:
                        req = max(req, 2)
            elif p.kind == "mfma":
                d = {r for r in p.wr if r < SB}
                big = p.passes == 8
                if i.kind == "mfma":
                    cset = set(vr(*i.c)) if i.c is not None else set()
                    abset = _ab_regs(i)
                    if d & abset:
                        req = max(req, 12 if big else 8)
                    if d & cset:
                        if not (cset == d and i.passes == p.passes):
                            req = max(req, 10 if big else 6)
                    elif d & i.wr:
                        req = max(req, 10 if big else 6)
                else:
                    if d & (i.rd | i.wr):
                        req = max(req, 12 if big else 8)
                if p.c is not None and isvalu and (set(vr(*p.c)) & i.wr):
                    req = max(req, 7 if big else 3)
            elif p.kind == "salu":
                if M0 in p.wr and i.kind == "dma":
                    req = max(req, 1)
            elif p.kind == "vst" and p.wide:
                if {r for r in p.rd if r < SB} & i.wr:
                    req = max(req, 2)
            if req > dist:
                need = max(need, req - dist)
            dist += 0 if (p.cond and not i.cond) else p.states
        while need > 0:
            n = min(need, 16)
            x = I(f"s_nop {n - 1}", "nop", states=n)
            x.cond = i.cond
            out.append(x)
            need -= n
        out.append(i)
    return out[base:]


def _ab_regs(i):
    ops = i.text.split(None, 1)[1].split(", ")
    res = set()
    for o in ops[1:3]:
        a, b = o[2:-1].split(":")
        res |= set(range(int(a), int(b) + 1))
    return res


def render(ins):
    lines = []
    for i in ins:
        if i.kind == "label":
            lines.append(i.text if i.text.endswith(":") else "    " + i.text)
        else:
            lines.append("    " + i.text)
    return "\n".join(lines)
```

```python
import sys, struct, math
sys.path.insert(0, "gen")
from asmlib import *

def f32(x):
    return "0x%08x" % struct.unpack("<I", struct.pack("<f", x))[0]

LOG2E = 1.4426950408889634
WS = 608
WOS = 224
L_WI = 0
L_WO = 96 * WS
L_BIAS = L_WO + 96 * WOS
L_B48 = L_BIAS + 49152
L_SEL = L_B48 + 1024
L_ONES = L_SEL + 2048
L_TAB = L_ONES + 1024
L_PAR = L_TAB + 3072
L_CNT = L_PAR + 32
L_OFF48 = L_PAR + 64
L_X = L_PAR + 384
XST = 1280
X_KQ, X_V48, X_P48, X_O48 = 0, 512, 768, 896
L_END = L_X + 12 * XST

SRD_X, SRD_OUT, SRD_MASK = 4, 8, 20
S_W = 3
S_TAU, S_EPSQ, S_EPSLN = 32, 36, 37
S_MA, S_MB = 38, 40
S_UNSAFE, S_WIN, S_MBASE, S_KILL = 42, 43, 44, 45
SRD_MCHK, S_MACC, S_MTMP, S_C7F, S_C4096, S_B2 = 48, 52, 54, 56, 57, 58
S_T0, S_T1, S_T2, S_T3 = 98, 99, 100, 101

OFF = [0, 1, 2]
V_WQ, V_BIAS, V_TH, V_TV, V_PW = 3, 4, 5, 6, 7
XR, OR_, VF, VSA, VSB, LR, K3, SA, OA = 8, 44, 80, 88, 96, 104, 140, 144, 160
NEG_BIG = -30000.0


class WBuf:
    def __init__(self, quads):
        self.q = list(quads); self.i = 0
    def next(self):
        r = self.q[self.i % len(self.q)]; self.i += 1
        return r


def dep(i, *ids):
    i.rd = i.rd | set(ids)
    return i


def ld_w(p, wb, col, ks):
    r = wb.next()
    off = L_WI + 32 * ks * WS + col * 2
    p.dsr("ds_read_b64_tr_b16", r, 2, V_WQ, off)
    p.dsr("ds_read_b64_tr_b16", r + 2, 2, V_WQ, off + 16 * WS)
    return r


def zero(p, r, opt):
    if opt.ldszero:
        p.dsr("ds_read_b32", r, 1, V_BIAS, L_SEL - L_BIAS + 8)
    else:
        p.op("v_mov_b32", r, "0")


def X(tt, ks):
    return XR + 12 * tt + 4 * ks


def qk(p, h, opt):
    wb = WBuf([SA, SA + 4, SA + 8, SA + 12])
    for T in range(3):
        for ks in range(3):
            w = ld_w(p, wb, 48 * h + 16 * T, ks)
            for tt in range(3):
                d = LR + 12 * tt + 4 * T
                p.mfma16(d, w, X(tt, ks), None if ks == 0 else d)
    ss = [OA + i for i in range(6)]
    for tt in range(3):
        for e in range(2):
            for i in range(6):
                x = LR + 12 * tt + 6 * e + i
                if i == 0:
                    p.op("v_fma_f32", ss[2 * tt + e], x, x, f"s{S_EPSQ}")
                else:
                    p.op("v_fmac_f32", ss[2 * tt + e], x, x, rmw=True)
    NP, D1, D2, SL = SA, SA + 4, SA + 8, SA + 12
    for i in range(3):
        p.op("v_cvt_pk_bf16_f32", NP + i, ss[2 * i], ss[2 * i + 1])
    zero(p, NP + 3, opt)
    p.dsr("ds_read_b128", SL, 4, V_BIAS, L_SEL - L_BIAS)
    p.dsr("ds_read_b128", K3, 4, V_BIAS, L_SEL + 1024 - L_BIAS)
    p.mfma16(D1, SL, NP, None)
    p.mfma16(D2, K3, NP, None)
    sc = [D1, D1 + 1, D1 + 2, D1 + 3, D2, D2 + 1]
    for i in range(6):
        p.op("v_rsq_f32", sc[i], sc[i], kind="trans")
        if i % 2 == 0:
            p.op("v_mul_f32", sc[i], f"s{S_TAU + h}", sc[i])
    for tt in range(3):
        b = LR + 12 * tt
        for i in range(12):
            p.op("v_mul_f32", b + i, b + i, sc[2 * tt + i // 6])
        for i in range(3):
            p.op("v_cvt_pk_bf16_f32", b + i, b + 2 * i, b + 2 * i + 1)
        zero(p, b + 3, opt)
        for i in range(3):
            p.op("v_cvt_pk_bf16_f32", b + 4 + i, b + 6 + 2 * i, b + 7 + 2 * i)
        zero(p, b + 7, opt)
        if tt < (1 if SLOWPQ else 2):
            zero(p, b + 11, opt)
    dep(p.dsr("ds_read_b128", K3, 4, V_TH, X_KQ + 128 * h), 3003)


def vproj(p, col, dsts, tv, opt):
    wb = WBuf([OA, OA + 4, SA + 12])
    for ks in range(3):
        w = ld_w(p, wb, col, ks)
        for tt in range(3):
            d = SA + 4 * tt
            p.mfma16(d, X(tt, ks), w, None if ks == 0 else d)
    for dst, m, t in dsts:
        if m is None:
            for i in range(6):
                p.op("v_cvt_pk_bf16_f32", dst + i, SA + 2 * i, SA + 2 * i + 1)
        else:
            def g():
                p.salu(f"s_mov_b64 exec, {s(m, 2)}", sr(m, 2), [EXEC])
                for i in range(6):
                    p.op("v_cvt_pk_bf16_f32", dst + i, SA + 2 * i, SA + 2 * i + 1, rmw=True)
                p.salu("s_mov_b64 exec, -1", [], [EXEC])
            p.group(g)
        dep(p.dsr("ds_read_u16", dst + 6, 1, V_TV, X_V48 + 32 * t), 3003)


_u = [0]
SLOWPQ = False


def next_pq():
    r = LR + (0 if SLOWPQ else 12 * (_u[0] % 2)) + 8
    _u[0] += 1
    return r


def pv_norm(p, h, P0, PQ, VS, dst):
    OF, OS = OA, OA + 4
    p.mfma16(OF, VF, P0, None)
    p.mfma16(OS, VS, P0, None)
    p.mfma16(OF, VF + 4, PQ, OF)
    p.mfma16(OS, VS + 4, PQ, OS)
    lreg, r0 = (OS + 2, OS) if h % 2 == 0 else (OS, OS + 2)
    p.op("v_rcp_f32", lreg, lreg, kind="trans")
    for x in (OF, OF + 1, OF + 2, OF + 3, r0, r0 + 1):
        p.op("v_mul_f32", x, x, lreg)
    p.op("v_cvt_pk_bf16_f32", dst[0], OF, OF + 1)
    p.op("v_cvt_pk_bf16_f32", dst[1], OF + 2, OF + 3)
    p.op("v_cvt_pk_bf16_f32", dst[2], r0, r0 + 1)


def unit(p, h, qt, slow, opt):
    VS = VSA if h % 2 == 0 else VSB
    boff = (h * 3 + qt) * 4096
    for kt in range(4):
        dep(p.dsr("ds_read_b128", SA + 4 * kt, 4, V_BIAS, boff + 1024 * kt), 3003)
    Q = LR + 12 * qt
    for kt in range(4):
        K = LR + 12 * kt + 4 if kt < 3 else K3
        p.mfma16(SA + 4 * kt, K, Q, SA + 4 * kt)
    regs = [SA + i for i in range(13)]
    if slow:
        opt.slow_softmax(p, h, qt, regs)
    for r in regs:
        p.op("v_exp_f32", r, r, kind="trans")
    P0 = LR + 24 + 8
    PQ = next_pq()
    for i in range(4):
        p.op("v_cvt_pk_bf16_f32", P0 + i, SA + 2 * i, SA + 2 * i + 1)
    p.op("v_cvt_pk_bf16_f32", PQ, SA + 8, SA + 9)
    p.op("v_cvt_pk_bf16_f32", PQ + 1, SA + 10, SA + 11)
    p.op("v_cvt_pk_bf16_f32", PQ + 2, SA + 12, "0")
    o = OR_ + 12 * qt + 3 * h
    pv_norm(p, h, P0, PQ, VS, [o, o + 1, o + 2])


def thin(p, h, slow, opt):
    VS = VSA if h % 2 == 0 else VSB
    Q48 = OA
    dep(p.dsr("ds_read_b128", Q48, 4, V_TH, X_KQ + 128 * h + 64), 3003)
    dep(p.dsr("ds_read_b32", OA + 4, 1, V_BIAS, L_B48 - L_BIAS + 4 * h), 3003)
    for kt in range(4):
        K = LR + 12 * kt + 4 if kt < 3 else K3
        p.mfma16(SA + 4 * kt, Q48, K, None)
    for kt in range(1, 4):
        p.add(I(f"v_mov_b32_dpp {v(SA)}, {v(SA + 4 * kt)} quad_perm:[0,1,2,3] row_mask:{1 << kt} bank_mask:0xf", "dpp",
                [SA, SA + 4 * kt], [SA]))
    p.op("v_add_f32", SA, SA, OA + 4)
    if slow:
        opt.slow_thin(p, h, SA)
    p.op("v_exp_f32", SA, SA, kind="trans")
    p.op("v_cvt_pk_bf16_f32", SA, SA, SA)
    w = p.dsw("ds_write_b16", V_PW, SA, 1, 0)
    w.wr = w.wr | {3010}
    w.rd = w.rd | {3011}
    P0 = LR + 24 + 8
    PQ = next_pq()
    for r, off in ((P0, 0), (PQ, 64)):
        x = dep(p.dsr("ds_read_b128", r, 4, V_TH, X_P48 + off), 3010)
        x.wr = x.wr | {3011}
    t = SA + 4
    if h % 2 == 0:
        dst = [t, t + 1, t + 2]
    else:
        dst = [t + 1, t + 2, t + 3]
    pv_norm(p, h, P0, PQ, VS, dst)
    a = SA + 8
    p.op("v_lshrrev_b32", a, "8", V_BIAS) if False else None
    p.op("v_and_b32", a, "0x300", V_PWG(p))
    p.op("v_lshrrev_b32", a, "3", a)
    p.op("v_add_u32", a, a, V_TH)
    if h % 2 == 0:
        ws = [p.dsw("ds_write_b64", a, t, 2, X_O48 + 12 * h), p.dsw("ds_write_b32", a, t + 2, 1, X_O48 + 12 * h + 8)]
    else:
        ws = [p.dsw("ds_write_b32", a, t + 1, 1, X_O48 + 12 * h), p.dsw("ds_write_b64", a, t + 2, 2, X_O48 + 12 * h + 4)]
    for w in ws:
        w.wr = w.wr | {3012}


def V_PWG(p):
    assert L_BIAS % 1024 == 0
    return V_BIAS


def body(p, slow, opt):
    chk = (not slow) and opt.mask_check
    _u[0] = 0
    opt.hook(p, "start", slow)
    for r in (VSA, VSA + 4, VSB, VSB + 4, VF + 4):
        p.dsr("ds_read_b128", r, 4, V_BIAS, L_ONES - L_BIAS)
    for hp in range(2):
        ha, hb = 2 * hp, 2 * hp + 1
        c0 = 192 + 48 * hp
        qk(p, ha, opt)
        if hp == 0:
            opt.hook(p, "poll0", slow)
        vproj(p, c0, [(VF, None, 4 * hp)], 0, opt)
        vproj(p, c0 + 16, [(VSA, S_MA, 4 * hp + 1), (VSB, S_MB, 4 * hp + 2)], 0, opt)
        opt.hook(p, f"pre{ha}", slow)
        thin(p, ha, slow, opt)
        opt.hook(p, f"thin{ha}", slow)
        for qt in range(3):
            unit(p, ha, qt, slow, opt)
        opt.hook(p, f"post{ha}", slow)
        qk(p, hb, opt)
        vproj(p, c0 + 32, [(VF, None, 4 * hp + 3)], 0, opt)
        opt.hook(p, f"pre{hb}", slow)
        thin(p, hb, slow, opt)
        if hb == 3:
            opt.hook(p, "o48done", slow)
        for qt in range(3):
            unit(p, hb, qt, slow, opt)
            opt.hook(p, f"u{hb}{qt}", slow)
            if hb == 3 and qt == 0:
                outproj(p, [0], [XR], WBuf([XR + 24, XR + 28, XR + 32]), slow, opt, first=True)
        opt.hook(p, f"post{hb}", slow)
    outproj(p, [1, 2], [LR, VF], WBuf([SA, SA + 4, SA + 8, SA + 12]), slow, opt)
    opt.hook(p, "prestore", slow)
    Y = [XR, LR, VF]
    ss = [OA, OA + 1, OA + 2]
    for tt in range(3):
        for i in range(24):
            y = Y[tt] + i
            if i == 0:
                p.op("v_fma_f32", ss[tt], y, y, f"s{S_EPSLN}")
            else:
                p.op("v_fmac_f32", ss[tt], y, y, rmw=True)
    NP0, D0, SL0 = XR + 24, XR + 28, XR + 32
    p.op("v_cvt_pk_bf16_f32", NP0, ss[0], ss[0])
    for r in (NP0 + 1, NP0 + 2, NP0 + 3):
        zero(p, r, opt)
    p.dsr("ds_read_b128", SL0, 4, V_BIAS, L_SEL - L_BIAS)
    p.mfma16(D0, SL0, NP0, None)
    NP1, D1 = K3, OA + 4
    p.op("v_cvt_pk_bf16_f32", NP1, ss[1], ss[2])
    for r in (NP1 + 1, NP1 + 2):
        zero(p, r, opt)
    p.mfma16(D1, SL0, NP1, None)
    rs = [D0, D1, D1 + 1]
    for tt in range(3):
        p.op("v_rsq_f32", rs[tt], rs[tt], kind="trans")
        p.op("v_mul_f32", rs[tt], f32(math.sqrt(96.0)), rs[tt])
        for i in range(24):
            p.op("v_mul_f32", Y[tt] + i, Y[tt] + i, rs[tt])
        for u in range(3):
            base = Y[tt] + 8 * u
            for i in range(4):
                p.op("v_cvt_pk_bf16_f32", base + i, base + 2 * i, base + 2 * i + 1)
            st = p.vst("buffer_store_dwordx4", base, 4, OFF[tt], SRD_OUT, 64 * u, opt.sflag)
            st.rd = st.rd | {3002}
    opt.hook(p, "end", slow)


def outproj(p, tiles, Ys, wb, slow, opt, first=False):
    if first:
        opt.hook(p, "poll1", slow)
        a, b = XR + 32, XR + 33
        p.op("v_subrev_u32", a, str(L_BIAS), V_BIAS)
        p.op("v_lshrrev_b32", b, "6", a)
        p.op("v_mul_u32_u24", b, str(WOS), b)
        p.op("v_bfe_u32", a, a, "4", "2")
        p.op("v_lshl_add_u32", b, a, "3", b)
        p.op("v_add_u32", V_WQ, str(L_WO), b)
    for T in range(6):
        for ks in range(3):
            w = wb.next()
            off = 32 * ks * WOS + 32 * T
            dep(p.dsr("ds_read_b64_tr_b16", w, 2, V_WQ, off), 3005)
            dep(p.dsr("ds_read_b64_tr_b16", w + 2, 2, V_WQ, off + 16 * WOS), 3005)
            for tt, Y in zip(tiles, Ys):
                d = Y + 4 * T
                p.mfma16(d, w, OR_ + 12 * tt + 4 * ks, None if ks == 0 else d)


if __name__ == "__main__":
    import sched, sim
    class O:
        mask_check = False; sflag = ""; ldszero = "--vz" not in sys.argv
        def hook(self, p, name, slow): pass
    for a in sys.argv:
        if a.startswith("--ldslat="): sched.Params.lds_lat = int(a[9:])
    p = Prog(); body(p, False, O())
    seq = sched.schedule(p.ins, verbose=True)
    fin = insert_nops(insert_waits(flatten(seq), WaitState()))
    c = {}
    for i in fin: c[i.kind] = c.get(i.kind, 0) + 1
    print(c, "nopstates", sum(i.states for i in fin if i.kind == "nop"), "LDS end", L_END)
    txt = render(fin)
    open("body2.txt", "w").write("\n".join(l for l in txt.split("\n") if "buffer_store" not in l))
    st = sim.parse(txt.split("\n"))
    for starts in ([0], [0, 0, 0], [0, 2500, 4000], [0, 5000, 10000]):
        e, bp, bm = sim.simulate(st, starts, verbose=(len(starts) == 3 and starts[1] == 2500))
        print(starts, "->", e, "port busy", bp, "mfma busy", bm)
```

```python
from asmlib import *

ISSUE = {"dot": 4, "valu": 4, "dpp": 4, "rdlane": 4, "trans": 8, "perm": 8, "mfma": 8, "dsr": 4, "dsw": 4, "vld": 4, "vst": 4,
         "dma": 4, "salu": 4, "smem": 4, "ctrl": 4, "label": 0, "wait": 4, "waittag": 4}


def icost(i):
    if i.kind == "group":
        return sum(ISSUE[x.kind] for x in i.sub)
    return ISSUE[i.kind]


class Params:
    lds_lat = 140
    vm_lat = 1500
    mfma_lat = 64
    mfma_lat16 = 44
    max_lds_out = 12


def raw_latency(p, c, P):
    k = p.kind
    if k == "mfma":
        pw = {r for r in p.wr if r < SB}
        if c.kind == "mfma" and c.c is not None and set(vr(*c.c)) == pw and not (pw & _ab(c)):
            return 4 * p.passes
        return P.mfma_lat if p.passes == 8 else P.mfma_lat16
    if k == "dsr":
        return P.lds_lat
    if k == "vld":
        return P.vm_lat
    if k == "smem":
        return 200
    base = icost(p)
    if c.kind in ("mfma", "perm", "dpp"):
        return base + 8
    if k == "trans":
        return base + 4
    return base


def _ab(i):
    from asmlib import _ab_regs
    return _ab_regs(i)


def schedule(ins, P=Params, verbose=False):
    out, cur = [], []
    total = 0
    for i in ins:
        if i.kind in ("ctrl", "label", "wait", "waittag", "condbegin", "condend", "smem") or getattr(i, "tag", None) == "fence":
            o, t = _sched_block(cur, P)
            out += o
            total += t
            cur = []
            out.append(i)
        else:
            cur.append(i)
    o, t = _sched_block(cur, P)
    out += o
    total += t
    if verbose:
        print("  modeled single-wave cycles:", total)
    return out


def _sched_block(ins, P):
    n = len(ins)
    if n == 0:
        return [], 0
    succ = [[] for _ in range(n)]
    npred = [0] * n
    lastw, readers = {}, {}
    lastmem = {"vm": None}
    edges = {}

    def edge(a, b, lat):
        if a == b:
            return
        if (a, b) in edges:
            edges[(a, b)] = max(edges[(a, b)], lat)
        else:
            edges[(a, b)] = lat

    prev_store = None
    for j, i in enumerate(ins):
        for r in i.rd:
            if r in lastw:
                edge(lastw[r], j, raw_latency(ins[lastw[r]], i, P))
        for r in i.wr:
            if r in lastw:
                p = ins[lastw[r]]
                lat = (P.mfma_lat if p.passes == 8 else P.mfma_lat16) if (p.kind == "mfma" and not (i.kind == "mfma" and i.c is not None and set(vr(*i.c)) == {r for r in p.wr if r < SB})) else icost(p)
                if p.kind in ("dsr", "vld"):
                    lat = P.lds_lat
                edge(lastw[r], j, lat)
            for q in readers.get(r, ()):
                p = ins[q]
                lat = icost(p)
                if p.kind == "mfma" and p.c is not None and r in vr(*p.c):
                    lat = 36 if p.passes == 8 else 20
                if p.kind == "vst":
                    lat = 12
                edge(q, j, lat)
        for r in i.rd:
            readers.setdefault(r, []).append(j)
        for r in i.wr:
            lastw[r] = j
            readers[r] = []
        if i.kind == "vst":
            if prev_store is not None:
                edge(prev_store, j, 4)
            prev_store = j
    for (a, b), lat in edges.items():
        succ[a].append((b, lat))
        npred[b] += 1
    cp = [0] * n
    for j in range(n - 1, -1, -1):
        c = icost(ins[j])
        for b, lat in succ[j]:
            c = max(c, lat + cp[b])
        cp[j] = c
    est = [0] * n
    ready = [j for j in range(n) if npred[j] == 0]
    t = 0
    mfree = 0
    order = []
    lds_out = []
    while ready:
        lds_out = [x for x in lds_out if x > t]
        avail = [j for j in ready if est[j] <= t and not (ins[j].kind == "mfma" and mfree > t)
                 and not (ins[j].kind == "dsr" and len(lds_out) >= P.max_lds_out)]
        if not avail:
            nt = min([max(est[j], mfree if ins[j].kind == "mfma" else 0,
                          (min(lds_out) if (ins[j].kind == "dsr" and len(lds_out) >= P.max_lds_out) else 0)) for j in ready])
            t = max(t + 1, nt)
            continue
        mf = [j for j in avail if ins[j].kind == "mfma"]
        mem = [j for j in avail if ins[j].kind in ("dsr", "vld")]
        if mf:
            j = max(mf, key=lambda x: (cp[x], -x))
        elif mem:
            j = max(mem, key=lambda x: (cp[x], -x))
        else:
            j = max(avail, key=lambda x: (cp[x], -x))
        ready.remove(j)
        order.append(ins[j])
        if ins[j].kind == "mfma":
            mfree = t + 4 * ins[j].passes
        if ins[j].kind == "dsr":
            lds_out.append(t + P.lds_lat)
        for b, lat in succ[j]:
            est[b] = max(est[b], t + lat)
            npred[b] -= 1
            if npred[b] == 0:
                ready.append(b)
        t += icost(ins[j])
    return order, t
```

```python
import re, sys
sys.path.insert(0, "gen")

def parse(lines):
    out = []
    for l in lines:
        l = l.strip()
        if not l or l.startswith(";") or l.endswith(":"):
            continue
        op = l.split()[0]
        if op.startswith("v_mfma"): k = ("mfma", 16 if "16x16" in op else 32)
        elif op in ("v_exp_f32", "v_rcp_f32", "v_rsq_f32", "v_permlane32_swap_b32", "v_permlane16_swap_b32"): k = ("valu", 8)
        elif op.startswith("v_"): k = ("valu", 4)
        elif op.startswith("ds_read"): k = ("ds", 16 if "b128" in op else 8.5)
        elif op.startswith("ds_"): k = ("ds", 12)
        elif op.startswith("buffer_load"): k = ("vld",)
        elif op.startswith("buffer_store"): k = ("vst",)
        elif op == "s_waitcnt":
            vm = re.search(r"vmcnt\((\d+)\)", l); lg = re.search(r"lgkmcnt\((\d+)\)", l)
            k = ("wait", int(vm.group(1)) if vm else None, int(lg.group(1)) if lg else None)
        elif op == "s_nop": k = ("nop", int(l.split()[1]) + 1)
        elif op == "s_setprio": k = ("prio", int(l.split()[1]))
        elif op == "s_endpgm": break
        else: k = ("salu",)
        out.append(k)
    return out

def simulate(st, starts, lds_lat=60, vm_lat=1500, lone=1, verbose=False, ldsscale=1.0):
    n = len(starts)
    pc = [0] * n; rdy = list(starts); lg = [[] for _ in range(n)]; vm = [[] for _ in range(n)]; prio = [0] * n
    end = [None] * n
    port = 0; mf = 0; lds = 0; salu = 0
    t = min(starts)
    busy_port = 0; busy_m = 0; idle = {}
    while any(e is None for e in end):
        order = sorted(range(n), key=lambda w: (-prio[w], w))
        for w in order:
            if end[w] is not None or rdy[w] > t: continue
            if pc[w] >= len(st):
                end[w] = t; continue
            k = st[pc[w]]
            if k[0] == "valu":
                if port > t: continue
                port = t + k[1]; rdy[w] = t + k[1] + lone; busy_port += k[1]
            elif k[0] == "mfma":
                if port > t or mf > t: continue
                port = t + 8; mf = t + k[1]; rdy[w] = t + 8; busy_port += 8; busy_m += k[1]
            elif k[0] == "ds":
                if lds > t + 64: continue
                lds = max(lds, t) + k[1] * ldsscale
                lg[w].append(lds + lds_lat); rdy[w] = t + 4 + lone
            elif k[0] == "vld":
                vm[w].append(t + vm_lat); rdy[w] = t + 16
            elif k[0] == "vst":
                vm[w].append(t + 500); rdy[w] = t + 64
            elif k[0] == "wait":
                lg[w] = [x for x in lg[w] if x > t]; vm[w] = [x for x in vm[w] if x > t]
                if k[1] is not None and len(vm[w]) > k[1]: continue
                if k[2] is not None and len(lg[w]) > k[2]: continue
                rdy[w] = t + 4 + lone
            elif k[0] == "nop":
                rdy[w] = t + 4 * k[1]
            elif k[0] == "prio":
                prio[w] = k[1]; rdy[w] = t + 4
            else:
                if salu > t: continue
                salu = t + 4; rdy[w] = t + 4 + lone
            pc[w] += 1
        if port <= t:
            key = []
            for w in range(n):
                if end[w] is not None or starts[w] > t: key.append("-"); continue
                k = st[pc[w]][0] if pc[w] < len(st) else "end"
                if rdy[w] > t:
                    pk = st[pc[w] - 1][0] if pc[w] else "?"
                    key.append("n" if pk == "nop" else ("i" if pk in ("valu", "mfma") else "o"))
                else:
                    key.append({"mfma": "M", "wait": "W", "ds": "D", "salu": "S"}.get(k, "?"))
            kk = "".join(sorted(key)) + ("|Mbusy" if mf > t else "|Midle")
            idle[kk] = idle.get(kk, 0) + 1
        t += 1
    if verbose:
        for kk, c in sorted(idle.items(), key=lambda x: -x[1])[:14]:
            print("   idle", kk, c)
    return end, busy_port, busy_m

if __name__ == "__main__":
    src = open(sys.argv[1]).read()
    a = src.index("s_cbranch_scc1 L_slow"); b = src.index("L_redo:")
    st = parse(src[a:b].split("\n")[1:])
    print("instrs", len(st))
    for starts in ([0], [0, 0, 0], [0, 2500, 4000], [0, 5000, 10000]):
        e, bp, bm = simulate(st, starts, verbose=(len(starts) == 3 and starts[1] == 2500))
        print(starts, "->", e, "port busy", bp, "mfma busy", bm)
```

```python
import sys, math
sys.path.insert(0, "gen")
from asmlib import *
from g2body import *
import g2body as B

NWG, NS, WPW = 252, 27, 12
X_BYTES = 378 * 378 * 96 * 2
MASK_BYTES = 2916 * 49 * 49 * 2
SRD_WQ, SRD_WO, SRD_RIDX, SRD_RC = 12, 16, 24, 28
S_W1, S_W2, S_LS = 48, 64, 96
S_HI48 = 60
S_N12 = 62
S_SWI, S_SWJ, S_IDLE = 46, 47, 59
S_NWIN = 64
S_JO = 65
S_STAMP, NSTAMP = 66, 12
TAU_THR = 24.0
W = S_W
NVGPR = 168

L, G16, N15, L16 = 44, 45, 46, 47
ta, tb, tc, td = 48, 49, 50, 51
WSRC, WA, WD = 52, 53, 60
TBL = 58
TE, GA, GB, GDST, PARA, ONE, rcv = 84, 85, 86, 87, 88, 89, 90
ridx, ridxb, ridxc = 92, 96, 148
u = 100
wov, uu = 116, 128
WOA = 152
X48 = 8
DBG = 160


class Opt:
    mask_check = True
    debug = None
    xflag = mflag = sflag = ""
    ldszero = True
    prio = None
    b2at = 28
    mk1 = "post1"
    mk0 = "post0"


def sal(p, text, rd=(), wr=(), scc=True):
    return p.salu(text, [SB + x for x in rd], [SB + x for x in wr] + ([SCC] if scc else []))


def csel(p, d, a, b, n=1):
    rd = [SCC]
    for x in (a, b):
        if isinstance(x, int):
            rd += sr(x, n)
    f = lambda x: s(x, n) if isinstance(x, int) else x
    return p.salu(f"s_cselect_b{32 * n} {s(d, n)}, {f(a)}, {f(b)}", rd, sr(d, n))


def stamp(p, opt, idx, early=False):
    if not opt.debug or (opt.debug == 3 and idx not in (1, 2, 3, 4, 11)):
        return
    p.add(I(f"s_memtime {s(S_T2, 2)}", "smem", [], sr(S_T2, 2)))
    if early:
        p.op("v_mov_b32", DBG + idx, f"s{S_T2}")
    else:
        p.salu(f"s_mov_b32 {s(S_STAMP + idx)}, {s(S_T2)}", sr(S_T2), sr(S_STAMP + idx)).tag = "fence"


def dbg_early(p, opt):
    if opt.debug:
        for k, r in ((0, 7), (16, 6), (1, 1), (2, 2), (17, 3), (18, 4), (19, 5)):
            p.add(I(f"v_readfirstlane_b32 {s(S_STAMP + k)}, {v(DBG + r)}", "rdlane", [DBG + r], sr(S_STAMP + k)))


def stamp_flush(p, opt):
    if not opt.debug:
        return
    p.wait(vm=0)
    stamp(p, opt, NSTAMP - 1)
    p.smem("s_load_dwordx2", 48, 2, 0, 88)
    sal(p, f"s_mov_b32 s52, s48", [48], [52], False)
    sal(p, f"s_mov_b32 s53, s49", [49], [53], False)
    sal(p, f"s_mov_b32 s54, {1 << 22}", [], [54], False)
    sal(p, f"s_mov_b32 s55, 0x00020000", [], [55], False)
    sal(p, f"s_lshl_b32 {s(S_T0)}, {s(S_WIN)}, 6", [S_WIN], [S_T0])
    sal(p, f"s_mov_b32 {s(S_STAMP + 7)}, {s(S_STAMP + 17)}", [S_STAMP + 17], [S_STAMP + 7], False)
    sal(p, f"s_mov_b32 {s(S_STAMP + 10)}, {s(S_STAMP + 18)}", [S_STAMP + 18], [S_STAMP + 10], False)
    sal(p, f"s_sub_u32 {s(S_STAMP + 12)}, {s(S_STAMP + 19)}, {s(S_STAMP)}", [S_STAMP + 19, S_STAMP], [S_STAMP + 12])
    sal(p, f"s_lshl_b32 {s(S_STAMP + 13)}, s2, 4", [2], [S_STAMP + 13])
    sal(p, f"s_add_u32 {s(S_STAMP + 13)}, {s(S_STAMP + 13)}, {s(W)}", [S_STAMP + 13, W], [S_STAMP + 13])
    p.add(I(f"s_memrealtime {s(S_STAMP + 14, 2)}", "smem", [], sr(S_STAMP + 14, 2)))
    p.op("v_mov_b32", 60, f"s{S_T0}")
    for i in range(15):
        p.op("v_mov_b32", 64 + i, f"s{S_STAMP + i}")
    p.op("v_mov_b32", 64 + 15, f"s{S_STAMP + 16}")
    p.salu("s_mov_b64 exec, 1", [], [EXEC])
    for i in range(4):
        p.vst("buffer_store_dwordx4", 64 + 4 * i, 4, 60, 52, 16 * i)
    p.salu("s_mov_b64 exec, -1", [], [EXEC])


def w_table():
    out = []
    for wp in range(9):
        for lane in range(64):
            c = 64 * wp + lane
            k0, cc = divmod(c, 36)
            rho = 16 * ((k0 >> 2) & 1) + 4 * (k0 >> 3) + (k0 & 3)
            for d in range(4):
                col = 8 * cc + 2 * d
                sec, r = divmod(col, 96)
                h, rem = divmod(r, 24)
                g, i = divmod(rem, 6)
                if sec < 2:
                    i2 = i + 6 * sec
                    ic = 48 * h + 16 * (i2 >> 2) + 4 * g + (i2 & 3)
                else:
                    hp, b = h >> 1, h & 1
                    ic = 192 + 48 * hp + (32 * b + 4 * g + i if i < 4 else 16 + 4 * g + 2 * b + (i - 4))
                out.append(rho * WS + 2 * ic)
    return out


def wo_table():
    out = []
    for wp in range(6):
        for lane in range(64):
            f, l4 = 16 * wp + (lane >> 2), lane & 3
            h, rem = divmod(f, 24)
            g, j = divmod(rem, 6)
            i = 6 * h + j
            rho = 32 * (i >> 3) + 16 * ((i >> 2) & 1) + 4 * g + (i & 3)
            for jj in range(3):
                z = 3 * l4 + jj
                out.append(rho * WOS + 64 * (z >> 2) + 8 * (z & 3))
            out.append(0)
    return out


def window_map_s(p, opt, temps=(66, 67, 68, 69, 70)):
    sA, sB, sC, sD, sf = temps
    swi, swj = S_SWI, S_SWJ
    sal(p, f"s_mul_i32 {s(sA)}, s2, 12", [2], [sA], False)
    sal(p, f"s_add_u32 {s(sA)}, {s(sA)}, {s(W)}", [sA, W], [sA])
    sal(p, f"s_sub_u32 {s(sA)}, {s(sA)}, {12 * NS}", [sA], [sA])
    sal(p, f"s_lshl_b32 {s(sB)}, s2, 2", [2], [sB])
    sal(p, f"s_add_u32 {s(sB)}, {s(sB)}, {s(W)}", [sB, W], [sB])
    sal(p, f"s_add_u32 {s(sC)}, {s(sB)}, {12 * (NWG - NS) - 4}", [sB], [sC])
    sal(p, f"s_cmp_lt_u32 {s(W)}, 4", [W], [])
    csel(p, sC, "2808", sC)
    csel(p, sD, sB, "999")
    sal(p, f"s_cmp_ge_u32 {s(W)}, 8", [W], [])
    csel(p, S_IDLE, "0x80000000", "0")
    csel(p, sC, "0", sC)
    sal(p, f"s_cmp_lt_u32 s2, {NS}", [2], [])
    csel(p, sf, sC, sA)
    csel(p, sD, sD, "999")
    csel(p, S_IDLE, S_IDLE, "0")
    sal(p, f"s_mul_i32 {s(swi)}, {s(sf)}, 19785", [sf], [swi], False)
    sal(p, f"s_lshr_b32 {s(swi)}, {s(swi)}, 20", [swi], [swi])
    sal(p, f"s_mul_i32 {s(swj)}, {s(swi)}, 53", [swi], [swj], False)
    sal(p, f"s_sub_u32 {s(swj)}, {s(sf)}, {s(swj)}", [sf, swj], [swj])
    sal(p, f"s_sub_u32 {s(sA)}, {s(sD)}, 54", [sD], [sA])
    sal(p, f"s_cmp_lt_u32 {s(sD)}, 54", [sD], [])
    csel(p, sA, "53", sA)
    csel(p, sB, sD, "53")
    sal(p, f"s_cmp_lt_u32 {s(sD)}, 107", [sD], [])
    csel(p, swi, sA, swi)
    csel(p, swj, sB, swj)
    csel(p, S_KILL, "1", "0")
    sal(p, f"s_mul_i32 {s(S_WIN)}, {s(swi)}, 54", [swi], [S_WIN], False)
    sal(p, f"s_add_u32 {s(S_WIN)}, {s(S_WIN)}, {s(swj)}", [S_WIN, swj], [S_WIN])
    sal(p, f"s_mul_i32 {s(S_MBASE)}, {s(S_WIN)}, 4802", [S_WIN], [S_MBASE], False)
    sal(p, f"s_mul_i32 {s(swi)}, {s(swi)}, 7", [swi], [swi], False)
    sal(p, f"s_add_u32 {s(swi)}, {s(swi)}, 3", [swi], [swi])
    sal(p, f"s_mul_i32 {s(swj)}, {s(swj)}, 7", [swj], [swj], False)
    sal(p, f"s_add_u32 {s(swj)}, {s(swj)}, 3", [swj], [swj])


O48R = 91


def thin_offsets(p, opt):
    sF, sN, sS, s4b = 70, 71, 74, 75
    sal(p, f"s_lshl_b32 {s(s4b)}, s2, 2", [2], [s4b])
    sal(p, f"s_mul_i32 {s(sF)}, s2, 12", [2], [sF], False)
    sal(p, f"s_sub_u32 {s(sF)}, {s(sF)}, {12 * NS}", [sF], [sF])
    sal(p, f"s_add_u32 {s(sN)}, {s(s4b)}, {12 * (NWG - NS) - 4}", [s4b], [sN])
    sal(p, f"s_cmp_lt_u32 s2, {NS}", [2], [])
    csel(p, sF, sN, sF)
    csel(p, sN, "8", "12")
    csel(p, sS, "4", "0")
    sal(p, f"s_cmp_lt_u32 {s(W)}, 8", [W], [])
    csel(p, sN, "0", sN)
    f, wi, wj, sx = ta, tb, tc, td
    def cmp(op, dst, x, y):
        rd = [r for r in (x, y) if isinstance(r, int)] + [SB + int(r[1:]) for r in (x, y) if isinstance(r, str) and r[0] == "s"]
        t = lambda r: v(r) if isinstance(r, int) else r
        p.add(I(f"{op} {s(dst, 2)}, {t(x)}, {t(y)}", "valu", rd, sr(dst, 2)))
    def cnd(d, x, y, m):
        rd = [r for r in (x, y) if isinstance(r, int)] + sr(m, 2)
        t = lambda r: v(r) if isinstance(r, int) else r
        p.add(I(f"v_cndmask_b32 {v(d)}, {t(x)}, {t(y)}, {s(m, 2)}", "valu", rd, [d]))
    m1, m2, m3 = 82, 84, 86
    cmp("v_cmp_gt_u32", m1, f"s{sS}", N15)
    p.op("v_add_u32", f, f"s{sF}", N15)
    p.op("v_mov_b32", wi, "0xaf8")
    cnd(f, f, wi, m1)
    p.op("v_mul_u32_u24", wi, "0x4d49", f)
    p.op("v_lshrrev_b32", wi, "20", wi)
    p.op("v_mul_u32_u24", wj, "53", wi)
    p.op("v_sub_u32", wj, f, wj)
    p.op("v_add_u32", sx, f"s{s4b}", N15)
    p.op("v_mov_b32", f, "0x6b")
    cmp("v_cmp_lt_u32", m2, sx, f)
    cmp("v_cmp_gt_u32", m3, "54", sx)
    p.salu(f"s_and_b64 {s(m1, 2)}, {s(m1, 2)}, {s(m2, 2)}", sr(m1, 2) + sr(m2, 2), sr(m1, 2) + [SCC])
    p.op("v_subrev_u32", f, "54", sx)
    cnd(f, f, "53", m3)
    cnd(sx, "53", sx, m3)
    cnd(wi, wi, f, m1)
    cnd(wj, wj, sx, m1)
    sal(p, f"s_movk_i32 {s(sF)}, 378", [], [sF], False)
    for x in (wi, wj):
        p.op("v_mad_u32_u24", x, x, "7", "9")
        p.op("v_subrev_u32", f, f"s{sF}", x)
        p.op("v_min_u32", x, x, f)
    p.op("v_mad_u32_u24", f, wi, f"s{sF}", wj)
    p.op("v_mul_u32_u24", f, "0xc0", f)
    p.op("v_add_u32", f, f, G16)
    cmp("v_cmp_gt_u32", m1, f"s{sN}", N15)
    p.op("v_bfrev_b32", wi, "1")
    cnd(O48R, wi, f, m1)


def window_map_v(p, opt):
    sA = S_T3
    xa, xb, xc, xd = 48, 49, 50, 51
    sal(p, f"s_movk_i32 {s(sA)}, 378", [], [sA], False)
    p.op("v_or_b32", xa, f"s{S_IDLE}", G16)
    for tt in range(3):
        n, ty, tx = OFF[tt], xb, xc
        a = xd
        if tt == 0:
            n = N15
        else:
            p.op("v_add_u32", n, str(16 * tt), N15)
        p.op("v_mul_u32_u24", ty, "37", n)
        p.op("v_lshrrev_b32", ty, "8", ty)
        p.op("v_mad_i32_i24", tx, ty, "-7", n)
        p.op("v_add_u32", ty, f"s{S_SWI}", ty)
        p.op("v_add_u32", tx, f"s{S_SWJ}", tx)
        p.op("v_subrev_u32", a, f"s{sA}", ty)
        p.op("v_min_u32", ty, ty, a)
        p.op("v_subrev_u32", a, f"s{sA}", tx)
        p.op("v_min_u32", tx, tx, a)
        p.op("v_mad_u32_u24", a, ty, f"s{sA}", tx)
        p.op("v_mul_u32_u24", a, "0xc0", a)
        p.op("v_add_u32", OFF[tt], a, xa)


def x_loads(p, opt):
    for tt in range(3):
        for k in range(3):
            p.vld("buffer_load_dwordx4", X(tt, k), 4, OFF[tt], SRD_X, 64 * k, opt.xflag)


def wq_base(p, a, b):
    p.op("v_subrev_u32", a, str(L_BIAS), V_BIAS)
    p.op("v_lshrrev_b32", b, "6", a)
    p.op("v_mul_u32_u24", b, str(WS), b)
    p.op("v_bfe_u32", a, a, "4", "2")
    p.op("v_lshl_add_u32", V_WQ, a, "3", b)


def lds_bases(p, opt):
    p.op("v_add_u32", V_BIAS, str(L_BIAS), L16)
    wq_base(p, ta, tb)
    sal(p, f"s_mul_i32 {s(S_T1)}, {s(W)}, {XST}", [W], [S_T1], False)
    sal(p, f"s_add_u32 {s(S_T1)}, {s(S_T1)}, {L_X}", [S_T1], [S_T1])
    p.op("v_add_u32", V_TH, f"s{S_T1}", G16)
    p.op("v_lshl_add_u32", V_TV, N15, "1", f"s{S_T1}")
    p.op("v_bfe_u32", ta, L, "5", "1")
    p.op("v_lshlrev_b32", ta, "6", ta)
    p.op("v_bfe_u32", tb, L, "2", "2")
    p.op("v_lshl_add_u32", ta, tb, "4", ta)
    p.op("v_bfe_u32", tb, L, "4", "1")
    p.op("v_lshl_add_u32", ta, tb, "3", ta)
    p.op("v_and_b32", tb, "3", L)
    p.op("v_lshl_add_u32", ta, tb, "1", ta)
    sal(p, f"s_add_u32 {s(S_T1)}, {s(S_T1)}, {X_P48}", [S_T1], [S_T1])
    p.op("v_add_u32", V_PW, f"s{S_T1}", ta)
    p.op("v_mov_b32", PARA, str(L_PAR))


def pro_common(p, opt):
    p.salu(f"s_cmp_ge_u32 s2, {NWG}", sr(2), [SCC])
    p.raw("s_cbranch_scc1 L_end", rd=[SCC])
    if opt.debug:
        p.add(I(f"s_memtime {s(S_T2, 2)}", "smem", [], sr(S_T2, 2)))
        p.op("v_mov_b32", DBG + 7, f"s{S_T2}")
        p.add(I(f"s_memrealtime {s(S_T2, 2)}", "smem", [], sr(S_T2, 2)))
        p.op("v_mov_b32", DBG + 6, f"s{S_T2}")
    for srd, off in ((SRD_WQ, 8), (SRD_WO, 16), (SRD_RC, 48), (SRD_RIDX, 56), (SRD_X, 0), (SRD_MASK, 64), (SRD_OUT, 72)):
        p.smem("s_load_dwordx2", srd, 2, 0, off)
    p.smem("s_load_dwordx2", 32, 2, 0, 24)
    p.smem("s_load_dwordx4", 36, 4, 0, 32)
    p.op("v_lshrrev_b32", ta, "6", 0)
    p.op("v_and_b32", L, "63", 0)
    p.add(I(f"v_readfirstlane_b32 {s(W)}, {v(ta)}", "rdlane", [ta], sr(W)))
    p.add(I(f"s_getpc_b64 {s(72, 2)}", "salu", [], sr(72, 2)))
    p.add(I("s_add_u32 s72, s72, wtab@rel32@lo+4", "salu", sr(72), sr(72) + [SCC]))
    p.add(I("s_addc_u32 s73, s73, wtab@rel32@hi+12", "salu", sr(73) + [SCC], sr(73) + [SCC]))
    sal(p, f"s_sub_u32 s74, {s(W)}, 3", [W], [74])
    sal(p, f"s_max_i32 s74, s74, 0", [74], [74])
    sal(p, f"s_lshl_b32 s74, s74, 6", [74], [74])
    p.op("v_add_u32", ta, "s74", L)
    p.op("v_lshlrev_b32", tb, "3", ta)
    p.add(I(f"global_load_dwordx2 {v(TBL, 2)}, {v(tb)}, {s(72, 2)}", "vld", [tb] + sr(72, 2), vr(TBL, 2)))
    p.op("v_lshlrev_b32", WSRC, "4", ta)
    for srd, nb in ((SRD_WQ, 96 * 288 * 2), (SRD_WO, 96 * 96 * 2), (SRD_RC, 169 * 4), (SRD_RIDX, 49 * 49 * 4), (SRD_X, X_BYTES),
                    (SRD_MASK, MASK_BYTES), (SRD_OUT, X_BYTES)):
        sal(p, f"s_mov_b32 {s(srd + 2)}, {nb}", [], [srd + 2], False)
        sal(p, f"s_mov_b32 {s(srd + 3)}, 0x00020000", [], [srd + 3], False)
    for i in range(6):
        sal(p, f"s_mov_b32 {s(76 + i)}, {9216 * i}", [], [76 + i], False)
    p.op("v_and_b32", N15, "15", L)
    p.op("v_and_b32", G16, "48", L)
    p.op("v_lshlrev_b32", L16, "4", L)
    sal(p, f"s_cmp_lt_u32 {s(W)}, 4", [W], [])
    p.raw("s_cbranch_scc1 L_pathO", rd=[SCC])


def w_loads(p):
    for i in range(6):
        p.add(I(f"buffer_load_dwordx4 {v(WD + 4 * i, 4)}, {v(WSRC)}, {s(SRD_WQ, 4)}, {s(76 + i)} offen", "vld",
                [WSRC] + sr(SRD_WQ, 4) + sr(76 + i), vr(WD + 4 * i, 4)))


def w_scatter(p):
    p.op("v_and_b32", WA, "0xffff", TBL)
    p.op("v_lshrrev_b32", WA + 1, "16", TBL)
    p.op("v_and_b32", WA + 2, "0xffff", TBL + 1)
    p.op("v_lshrrev_b32", WA + 3, "16", TBL + 1)
    assert L_WI == 0 and (8 * WS) % 256 == 0
    for i in range(0, 6, 2):
        for d in range(4):
            o0 = (i >> 1) * 32 * WS // 256
            p.add(I(f"ds_write2st64_b32 {v(WA + d)}, {v(WD + 4 * i + d)}, {v(WD + 4 * i + 4 + d)} offset0:{o0} offset1:{o0 + 8 * WS // 256}",
                    "dsw", [WA + d, WD + 4 * i + d, WD + 4 * i + 4 + d], []))


def consts(p, opt):
    sal(p, f"s_mov_b32 {s(S_EPSQ)}, {f32(0.25e-12)}", [], [S_EPSQ], False)
    sal(p, f"s_mov_b32 {s(S_EPSLN)}, {f32(24e-5)}", [], [S_EPSLN], False)
    for r, val in ((S_MA, 0x33333333), (S_MA + 1, 0x33333333), (S_MB, 0xcccccccc), (S_MB + 1, 0xcccccccc)):
        sal(p, f"s_mov_b32 {s(r)}, {val:#x}", [], [r], False)
    sal(p, f"s_cmp_lt_u32 s2, {NS}", [2], [])
    csel(p, S_NWIN, "8", "12")


def tau_rd(p):
    p.dsr("ds_read_b128", 156, 4, PARA, 0)


def tau_use(p):
    for h in range(4):
        p.add(I(f"v_readfirstlane_b32 {s(S_TAU + h)}, {v(156 + h)}", "rdlane", [156 + h], sr(S_TAU + h)))
    sal(p, f"s_max_u32 {s(S_T0)}, {s(S_TAU)}, {s(S_TAU + 1)}", [S_TAU, S_TAU + 1], [S_T0])
    sal(p, f"s_max_u32 {s(S_T1)}, {s(S_TAU + 2)}, {s(S_TAU + 3)}", [S_TAU + 2, S_TAU + 3], [S_T1])
    sal(p, f"s_max_u32 {s(S_T0)}, {s(S_T0)}, {s(S_T1)}", [S_T0, S_T1], [S_T0])
    sal(p, f"s_cmp_gt_u32 {s(S_T0)}, {f32(TAU_THR * LOG2E)}", [S_T0], [])
    csel(p, S_UNSAFE, "1", "0")


def gather_addr(p, dst, spos, base):
    sal(p, f"s_lshr_b32 s69, {s(spos)}, 2", [spos], [69])
    sal(p, f"s_and_b32 s68, {s(spos)}, 3", [spos], [68])
    sal(p, f"s_mul_i32 s69, s69, {16 * 196}", [69], [69], False)
    sal(p, f"s_lshl_b32 s68, s68, 6", [68], [68])
    sal(p, f"s_add_u32 s68, s68, s69", [68, 69], [68])
    p.op("v_add_u32", dst, "s68", base)


def gather_prep(p, regs):
    sal(p, f"s_mov_b32 {s(S_T0)}, {L_TAB}", [], [S_T0], False)
    for base in regs:
        for r in range(4):
            p.op("v_min_u32", base + r, "0xa8", base + r)
            p.op("v_lshl_add_u32", base + r, base + r, "4", f"s{S_T0}")
    p.op("v_mov_b32", NEGR, f32(NEG_BIG))
    p.op("v_mov_b32", ONE, "1")
    sal(p, f"s_and_b32 {s(S_T0)}, {s(W)}, 3", [W], [S_T0])
    sal(p, f"s_cmp_eq_u32 {s(S_T0)}, 3", [S_T0], [])
    csel(p, S_HI48, "0xffff0000", "0")
    csel(p, S_HI48 + 1, "-1", "0")


def gather_rd(p, g, idx):
    for r in range(4):
        p.dsr("ds_read_b128", g + 4 * r, 4, idx + r, 0)


def gather_wr(p, g, extra):
    for h in range(4):
        p.add(I(f"v_cndmask_b32 {v(g + h)}, {v(g + h)}, {v(NEGR)}, {s(S_HI48, 2)}", "valu",
                [g + h, NEGR] + sr(S_HI48, 2), [g + h]))
    for i in range(4):
        for j in range(i + 1, 4):
            a_, b_ = g + 4 * i + j, g + 4 * j + i
            p.add(I(f"v_swap_b32 {v(a_)}, {v(b_)}", "valu", [a_, b_], [a_, b_]))
    for h in range(4):
        p.dsw("ds_write_b128", GDST, g + 4 * h, 4, 12288 * h + extra)


NEGR = 57


def path_o(p, opt):
    p.label("L_pathO")
    window_map_s(p, opt)
    window_map_v(p, opt)
    lds_bases(p, opt)
    p.wait(lgkm=0)
    stamp(p, opt, 1, early=True)
    sal(p, f"s_cmp_lg_u32 {s(W)}, 3", [W], [])
    p.raw("s_cbranch_scc1 L_now1", rd=[SCC])
    p.cond_begin()
    w_loads(p)
    p.cond_end()
    p.label("L_now1")
    p.raw("s_barrier")
    x_loads(p, opt)
    stamp(p, opt, 2, early=True)
    sal(p, f"s_cmp_lg_u32 {s(W)}, 3", [W], [])
    p.raw("s_cbranch_scc1 L_now2", rd=[SCC])
    p.cond_begin()
    w_scatter(p)
    p.cond_end()
    p.label("L_now2")
    consts(p, opt)
    dbg_early(p, opt)
    p.wait(vm=9, lgkm=0)
    p.raw("s_barrier")
    stamp(p, opt, 3)
    tau_rd(p)
    tau_use(p)
    stamp(p, opt, 4)
    p.label("L_join")


def signal(p, which):
    p.salu("s_mov_b64 exec, 1", [], [EXEC])
    p.add(I(f"ds_add_u32 {v(PARA)}, {v(ONE)} offset:{L_CNT - L_PAR + 4 * which}", "dsw", [PARA, ONE], []))
    p.salu("s_mov_b64 exec, -1", [], [EXEC])


def path_y(p, opt):
    sA, sB = 66, 67
    sal(p, f"s_sub_u32 {s(sB)}, {s(W)}, 4", [W], [sB])
    sal(p, f"s_sub_u32 {s(sA)}, {s(W)}, 9", [W], [sA])
    sal(p, f"s_lshl_b32 {s(sA)}, {s(sA)}, 8", [sA], [sA])
    p.op("v_lshl_add_u32", TE, L, "2", f"s{sA}")
    sal(p, f"s_min_u32 {s(sA)}, {s(sB)}, 5", [sB], [sA])
    sal(p, f"s_lshl_b32 {s(sA)}, {s(sA)}, 9", [sA], [sA])
    sal(p, f"s_add_u32 {s(sA)}, {s(sA)}, {9 * 512}", [sA], [sA])
    p.op("v_lshl_add_u32", ta, L, "3", f"s{sA}")
    p.add(I(f"global_load_dwordx2 {v(WOA + 2, 2)}, {v(ta)}, {s(72, 2)}", "vld", [ta] + sr(72, 2), vr(WOA + 2, 2)))
    sal(p, f"s_mul_i32 {s(sA)}, {s(sB)}, 3072", [sB], [sA], False)
    p.op("v_mul_u32_u24", ta, "48", L)
    p.op("v_add_u32", WOA, f"s{sA}", ta)
    p.op("v_mul_u32_u24", ta, "0xc4", N15)
    p.op("v_add_u32", ta, ta, G16)
    gather_addr(p, GA, sB, ta)
    p.op("v_add_u32", GB, str(16 * 196), GA)
    p.op("v_lshlrev_b32", tb, "2", L)
    p.op("v_add_u32", tb, str(48 * 196), tb)
    sal(p, f"s_cmp_eq_u32 {s(W)}, 8", [W], [])
    csel(p, 68, "-1", "0", 2)
    p.add(I(f"v_cndmask_b32 {v(GB)}, {v(GB)}, {v(tb)}, {s(68, 2)}", "valu", [GB, tb] + sr(68, 2), [GB]))
    sal(p, f"s_lshl_b32 {s(S_T0)}, {s(sB)}, 10", [sB], [S_T0])
    p.op("v_add_u32", V_BIAS, str(L_BIAS), L16)
    p.op("v_add_u32", GDST, f"s{S_T0}", V_BIAS)
    thin_offsets(p, opt)
    p.wait(lgkm=0)
    stamp(p, opt, 1, early=True)
    p.vld("buffer_load_dword", rcv, 1, TE, SRD_RC, 0)
    w_loads(p)
    p.smem("s_load_dwordx2", S_LS, 2, 32, 0)
    p.smem("s_load_dwordx16", S_W1, 16, 36, 0)
    p.smem("s_load_dwordx16", S_W2, 16, 38, 0)
    p.smem("s_load_dwordx16", S_W2 + 16, 16, 38, 64)
    p.vld("buffer_load_dwordx4", ridx, 4, GA, SRD_RIDX, 0)
    p.vld("buffer_load_dwordx4", ridxb, 4, GB, SRD_RIDX, 0)
    p.vld("buffer_load_dwordx4", ridxc, 4, GB, SRD_RIDX, 16 * 196)
    for k in range(3):
        p.vld("buffer_load_dwordx4", X48 + 4 * k, 4, O48R, SRD_X, 64 * k)
    p.raw("s_barrier")
    lds_bases(p, opt)
    stamp(p, opt, 2, early=True)
    sal(p, f"s_cmp_lt_u32 {s(W)}, 9", [W], [])
    p.raw("s_cbranch_scc1 L_notab", rd=[SCC])
    p.cond_begin()
    p.raw("s_setprio 3", kind="salu")
    p.wait(lgkm=0)
    hb = u
    tmps = [S_LS, S_LS + 1, S_T0, S_T1, S_T2, S_T3]
    def packs1(jp):
        a_, b_ = S_W1 + jp, S_W1 + 8 + jp
        sal(p, f"s_pack_ll_b32_b16 {s(tmps[jp % 6])}, {s(a_)}, {s(b_)}", [a_, b_], [tmps[jp % 6]], False)
        sal(p, f"s_pack_hh_b32_b16 {s(b_)}, {s(a_)}, {s(b_)}", [a_, b_], [b_], False)
    for jp in range(3):
        packs1(jp)
    for jp in range(8):
        if jp + 3 < 8:
            packs1(jp + 3)
        p.op("v_dot2_f32_bf16", hb + 2 * jp, rcv, f"s{tmps[jp % 6]}", "0", kind="dot")
        p.op("v_dot2_f32_bf16", hb + 2 * jp + 1, rcv, f"s{S_W1 + 8 + jp}", "0", kind="dot")
    acc = hb + 8
    def packs2(jp):
        for h in range(4):
            r0, r1 = S_W2 + 4 * jp + (h >> 1), S_W2 + 4 * jp + 2 + (h >> 1)
            nm = "s_pack_hh_b32_b16" if h & 1 else "s_pack_ll_b32_b16"
            st = S_W1 + (4 * jp + h) % 16
            sal(p, f"{nm} {s(st)}, {s(r0)}, {s(r1)}", [r0, r1], [st], False)
    for j in range(8):
        p.op("v_cvt_pk_bf16_f32", hb + j, hb + 2 * j, hb + 2 * j + 1)
        if j < 3:
            packs2(j)
    for j in range(8):
        p.op("v_pk_max_i16", hb + j, hb + j, "0")
    for jp in range(8):
        for h in range(4):
            st = S_W1 + (4 * jp + h) % 16
            if jp == 0:
                p.op("v_dot2_f32_bf16", acc + h, hb, f"s{st}", "0", kind="dot")
            else:
                p.op("v_dot2_f32_bf16", acc + h, hb + jp, f"s{st}", acc + h, kind="dot").tag = "acc"
        if jp + 3 < 8:
            packs2(jp + 3)
    p.op("v_mov_b32", ta, f32(16.0 * LOG2E))
    p.op("v_lshlrev_b32", TE, "2", TE)
    p.op("v_add_u32", TE, str(L_TAB), TE)
    for step in range(9):
        for h in range(4):
            a = acc + h
            if step == 0: p.op("v_cvt_pk_bf16_f32", a, a, a)
            if step == 1: p.op("v_and_b32", a, "0xffff0000", a)
            if step == 2: p.op("v_mul_f32", a, f32(-LOG2E), a)
            if step == 3: p.op("v_exp_f32", a, a, kind="trans")
            if step == 4: p.op("v_add_f32", a, "1.0", a)
            if step == 5: p.op("v_rcp_f32", a, a, kind="trans")
            if step == 6: p.op("v_cvt_pk_bf16_f32", a, a, a)
            if step == 7: p.op("v_and_b32", a, "0xffff0000", a)
            if step == 8:
                p.op("v_fmaak_f32", a, a, ta, f32(-8.0 * LOG2E))
    p.dsw("ds_write_b128", TE, acc, 4, 0)
    p.raw("s_setprio 0", kind="salu")
    p.cond_end()
    p.label("L_notab")
    sal(p, f"s_cmp_lg_u32 {s(W)}, 4", [W], [])
    p.raw("s_cbranch_scc1 L_notau", rd=[SCC])
    p.cond_begin()
    p.wait(lgkm=0)
    for h in range(4):
        src, st = S_LS + (h >> 1), S_W1 + h
        if h & 1:
            sal(p, f"s_and_b32 {s(st)}, {s(src)}, 0xffff0000", [src], [st])
        else:
            sal(p, f"s_lshl_b32 {s(st)}, {s(src)}, 16", [src], [st])
        p.op("v_mov_b32", u + h, f"s{st}")
    for h in range(4):
        x = u + h
        p.op("v_min_f32", x, "0x40930000", x)
        p.op("v_max_f32", x, "0xc2c80000", x)
        p.op("v_mul_f32", x, f32(LOG2E), x)
        p.op("v_exp_f32", x, x, kind="trans")
    for h in range(4):
        x = u + h
        p.op("v_cvt_pk_bf16_f32", x, x, x)
        p.op("v_and_b32", x, "0xffff0000", x)
        p.op("v_mul_f32", x, f32(LOG2E), x)
    p.dsw("ds_write_b128", PARA, u, 4, 0)
    for i in range(4):
        p.op("v_mov_b32", u + 4 + i, "0")
    p.dsw("ds_write_b128", PARA, u + 4, 4, L_CNT - L_PAR)
    for i in range(4):
        p.op("v_mov_b32", u + 8 + i, "0x3f803f80")
    p.dsw("ds_write_b128", V_BIAS, u + 8, 4, L_ONES - L_BIAS)
    z = u + 10
    p.op("v_and_b32", ta, "1", L)
    p.op("v_lshlrev_b32", ta, "4", ta)
    p.op("v_mov_b32", tb, "0x3f80")
    p.op("v_lshlrev_b32", ta, ta, tb)
    sal(p, f"s_mov_b32 s50, 0x33333333", [], [50], False)
    sal(p, f"s_mov_b32 s51, 0x33333333", [], [51], False)
    p.wait(lgkm=0)
    for r in (z, z + 1, z + 4, z + 5):
        p.op("v_mov_b32", r, "0")
    p.add(I(f"v_cndmask_b32 {v(z + 2)}, 0, {v(ta)}, {s(50, 2)}", "valu", [ta] + sr(50, 2), [z + 2]))
    p.add(I(f"v_cndmask_b32 {v(z + 3)}, {v(ta)}, 0, {s(50, 2)}", "valu", [ta] + sr(50, 2), [z + 3]))
    p.dsw("ds_write_b128", V_BIAS, z + 2, 4, L_SEL - L_BIAS)
    p.dsw("ds_write_b128", V_BIAS, z, 4, L_SEL + 1024 - L_BIAS)
    p.cond_end()
    p.label("L_notau")
    if opt.debug is True:
        stamp(p, opt, 3, early=True)
        p.wait(vm=6)
        stamp(p, opt, 4, early=True)
    w_scatter(p)
    if opt.debug is True:
        p.wait(lgkm=0)
        stamp(p, opt, 5, early=True)
    p.wait(lgkm=0)
    gather_prep(p, [ridx, ridxb, ridxc])
    consts(p, opt)
    sal(p, f"s_mov_b32 {s(S_N12)}, 0x0fff0fff", [], [S_N12], False)
    sal(p, f"s_mov_b32 {s(S_N12 + 1)}, 0x0fff0fff", [], [S_N12 + 1], False)
    dbg_early(p, opt)
    p.raw("s_barrier")
    stamp(p, opt, 3)
    p.raw("s_setprio 3", kind="salu")
    tau_rd(p)
    sal(p, f"s_cmp_ge_u32 {s(W)}, 8", [W], [])
    p.raw("s_cbranch_scc1 L_thin", rd=[SCC])
    p.cond_begin()
    gather_rd(p, u, ridx)
    gather_rd(p, 60, ridxb)
    gather_rd(p, 128, ridxc)
    gather_wr(p, u, 0)
    gather_wr(p, 60, 4096)
    gather_wr(p, 128, 8192)
    p.raw("s_branch L_sig0")
    p.cond_end()
    p.label("L_thin")
    p.cond_begin()
    thin_jobs(p, opt)
    p.cond_end()
    p.label("L_sig0")
    signal(p, 0)
    if opt.debug is True:
        stamp(p, opt, 17)
    for i in range(3):
        p.vld("buffer_load_dwordx4", wov + 4 * i, 4, WOA, SRD_WO, 16 * i)
    tau_use(p)
    window_map_s(p, opt, temps=(48, 49, 50, 51, 52))
    window_map_v(p, opt)
    stamp(p, opt, 4)
    p.wait(vm=3)
    x_loads(p, opt)
    sal(p, f"s_cmp_ge_u32 {s(W)}, 10", [W], [])
    p.raw("s_cbranch_scc1 L_nowo", rd=[SCC])
    p.cond_begin()
    for i in range(12):
        p.op("v_lshlrev_b32", uu + 2 * i, "16", wov + i)
        p.op("v_and_b32", uu + 2 * i + 1, "0xffff0000", wov + i)
    sm = 50
    def pk(name, d, a, b, mods=""):
        p.add(I(f"{name} {v(d, 2)}, {v(a, 2)}, {v(b, 2)}{mods}", "valu", vr(a, 2) + vr(b, 2), vr(d, 2)))
    pk("v_pk_add_f32", sm, uu, uu + 2)
    for i in range(2, 12):
        pk("v_pk_add_f32", sm, sm, uu + 2 * i)
    p.op("v_add_f32", sm, sm, sm + 1)
    for ctl in ("quad_perm:[1,0,3,2]", "quad_perm:[2,3,0,1]"):
        p.add(I(f"v_add_f32_dpp {v(sm)}, {v(sm)}, {v(sm)} {ctl} row_mask:0xf bank_mask:0xf", "dpp", [sm], [sm]))
    p.op("v_mul_f32", sm, f32(-1.0 / 96.0), sm)
    for i in range(12):
        pk("v_pk_add_f32", uu + 2 * i, uu + 2 * i, sm, " op_sel_hi:[1,0]")
    for i in range(12):
        p.op("v_cvt_pk_bf16_f32", wov + i, uu + 2 * i, uu + 2 * i + 1)
    sal(p, f"s_mov_b32 {s(S_T0)}, {L_WO}", [], [S_T0], False)
    p.op("v_and_b32", 60, "0xffff", WOA + 2)
    p.op("v_lshrrev_b32", 61, "16", WOA + 2)
    p.op("v_and_b32", 62, "0xffff", WOA + 3)
    for i in range(3):
        p.op("v_add_u32", 60 + i, f"s{S_T0}", 60 + i)
        p.add(I(f"ds_write2_b64 {v(60 + i)}, {v(wov + 4 * i, 2)}, {v(wov + 4 * i + 2, 2)} offset0:0 offset1:4", "dsw",
                [60 + i] + vr(wov + 4 * i, 4), []))
    signal(p, 1)
    p.cond_end()
    p.label("L_nowo")
    p.wait(vm=9, lgkm=0)
    p.raw("s_setprio 0", kind="salu")
    sal(p, f"s_cmp_lg_u32 {s(S_IDLE)}, 0", [S_IDLE], [])
    p.raw("s_cbranch_scc1 L_end", rd=[SCC])
    p.raw("s_branch L_join")


def thin_jobs(p, opt):
    import sched
    hS = 50
    WQH, DST, TAUV, DKQ, WVF, DVF = 60, 61, 62, 63, 108, 109
    Lh, FD, SD = 64, 76, 80
    wqs = [128, 132, 136, 140, 144, 20, 24, 28, 32]
    wfs = [36, 40, 112]
    SL, NP, D = 100, 104, 20
    ss = [110, 111]
    n0 = len(p.ins)
    sal(p, f"s_sub_u32 {s(hS)}, {s(W)}, 8", [W], [hS])
    sal(p, f"s_mul_i32 {s(S_T0)}, {s(hS)}, 96", [hS], [S_T0], False)
    p.op("v_add_u32", WQH, f"s{S_T0}", V_WQ)
    sal(p, f"s_lshr_b32 s51, {s(hS)}, 1", [hS], [51])
    sal(p, f"s_and_b32 s52, {s(hS)}, 1", [hS], [52])
    sal(p, f"s_mul_i32 {s(S_T1)}, s51, 96", [51], [S_T1], False)
    sal(p, f"s_lshl_b32 {s(S_T2)}, s52, 6", [52], [S_T2])
    sal(p, f"s_add_u32 {s(S_T2)}, {s(S_T2)}, {s(S_T1)}", [S_T2, S_T1], [S_T2])
    p.op("v_add_u32", WVF, f"s{S_T2}", V_WQ)
    for T in range(3):
        for ks in range(3):
            r = wqs[3 * T + ks]
            off = L_WI + 32 * ks * WS + 32 * T
            p.dsr("ds_read_b64_tr_b16", r, 2, WQH, off)
            p.dsr("ds_read_b64_tr_b16", r + 2, 2, WQH, off + 16 * WS)
            p.mfma16(Lh + 4 * T, r, X48 + 4 * ks, None if ks == 0 else Lh + 4 * T)
    for ks in range(3):
        off = L_WI + 32 * ks * WS + 384
        p.dsr("ds_read_b64_tr_b16", wfs[ks], 2, WVF, off)
        p.dsr("ds_read_b64_tr_b16", wfs[ks] + 2, 2, WVF, off + 16 * WS)
        p.mfma16(FD, wfs[ks], X48 + 4 * ks, None if ks == 0 else FD)
    p.op("v_mul_u32_u24", DST, str(XST), N15)
    sal(p, f"s_lshl_b32 {s(S_T0)}, {s(hS)}, 7", [hS], [S_T0])
    sal(p, f"s_add_u32 {s(S_T0)}, {s(S_T0)}, {L_X + X_KQ}", [S_T0], [S_T0])
    p.op("v_add3_u32", DKQ, DST, G16, f"s{S_T0}")
    sal(p, f"s_lshl_b32 {s(S_T3)}, {s(hS)}, 2", [hS], [S_T3])
    p.op("v_add_u32", TAUV, f"s{S_T3}", PARA)
    p.dsr("ds_read_b32", TAUV, 1, TAUV, 0)
    p.dsr("ds_read_b128", SL, 4, V_BIAS, L_SEL - L_BIAS)
    sal(p, f"s_lshl_b32 s53, s51, 7", [51], [53])
    sal(p, f"s_add_u32 s53, s53, {L_X + X_V48}", [53], [53])
    p.op("v_lshrrev_b32", DVF, "1", G16)
    p.op("v_add3_u32", DST, DST, DVF, "s53")
    sal(p, f"s_mul_i32 s54, s52, 96", [52], [54], False)
    p.op("v_add_u32", DVF, "s54", DST)
    for e in range(2):
        for i in range(6):
            x = Lh + 6 * e + i
            if i == 0:
                p.op("v_fma_f32", ss[e], x, x, f"s{S_EPSQ}")
            else:
                p.op("v_fmac_f32", ss[e], x, x, rmw=True)
    p.op("v_cvt_pk_bf16_f32", NP, ss[0], ss[1])
    for r in (NP + 1, NP + 2, NP + 3):
        p.op("v_mov_b32", r, "0")
    p.mfma16(D, SL, NP, None)
    p.op("v_cvt_pk_bf16_f32", FD, FD, FD + 1)
    p.op("v_cvt_pk_bf16_f32", FD + 1, FD + 2, FD + 3)
    p.op("v_rsq_f32", D, D, kind="trans")
    p.op("v_rsq_f32", D + 1, D + 1, kind="trans")
    p.op("v_mul_f32", D, D, TAUV)
    for i in range(12):
        p.op("v_mul_f32", Lh + i, Lh + i, D + i // 6)
    for i in range(3):
        p.op("v_cvt_pk_bf16_f32", Lh + i, Lh + 2 * i, Lh + 2 * i + 1)
    p.op("v_mov_b32", Lh + 3, "0")
    for i in range(3):
        p.op("v_cvt_pk_bf16_f32", Lh + 4 + i, Lh + 6 + 2 * i, Lh + 7 + 2 * i)
    p.op("v_mov_b32", Lh + 7, "0")
    blk = p.ins[n0:]
    p.ins = p.ins[:n0] + sched.schedule(blk)
    p.salu(f"s_mov_b64 exec, {s(S_N12, 2)}", sr(S_N12, 2), [EXEC])
    p.dsw("ds_write_b128", DKQ, Lh + 4, 4, 0)
    p.dsw("ds_write_b128", DKQ, Lh, 4, 64)
    p.dsw("ds_write_b64", DVF, FD, 2, 0)
    p.salu("s_mov_b64 exec, -1", [], [EXEC])
    sal(p, f"s_cmp_eq_u32 s52, 1", [52], [])
    p.raw("s_cbranch_scc1 L_sv48", rd=[SCC])
    sal(p, f"s_cmp_lg_u32 {s(W)}, 8", [W], [])
    p.raw("s_cbranch_scc1 L_sig0", rd=[SCC])
    b = 128
    p.dsr("ds_read_b128", b, 4, ridxb, 0)
    p.op("v_lshlrev_b32", 132, "2", L)
    p.op("v_add_u32", 132, str(L_OFF48), 132)
    p.dsw("ds_write_b32", 132, O48R, 1, 0)
    p.add(I(f"v_cmp_lt_u32 vcc, 48, {v(L)}", "valu", [L], [VCC]))
    for h in range(4):
        p.add(I(f"v_cndmask_b32 {v(b + h)}, {v(b + h)}, {v(NEGR)}, vcc", "valu", [b + h, NEGR, VCC], [b + h]))
    p.dsw("ds_write_b128", V_BIAS, b, 4, L_B48 - L_BIAS)
    p.raw("s_branch L_sig0")
    p.label("L_sv48")
    p.op("v_add_u32", WVF, f"s{S_T1}", V_WQ)
    for ks in range(3):
        off = L_WI + 32 * ks * WS + 384 + 32
        p.dsr("ds_read_b64_tr_b16", wqs[ks], 2, WVF, off)
        p.dsr("ds_read_b64_tr_b16", wqs[ks] + 2, 2, WVF, off + 16 * WS)
    Sa, Sb = 140, 142
    p.op("v_mov_b32", Sa + 1, "0x3f803f80")
    p.op("v_mov_b32", Sb, "0x3f803f80")
    for ks in range(3):
        p.mfma16(SD, wqs[ks], X48 + 4 * ks, None if ks == 0 else SD)
    p.op("v_cvt_pk_bf16_f32", Sa, SD, SD + 1)
    p.op("v_cvt_pk_bf16_f32", Sb + 1, SD + 2, SD + 3)
    p.salu(f"s_mov_b64 exec, {s(S_N12, 2)}", sr(S_N12, 2), [EXEC])
    p.dsw("ds_write_b64", DST, Sa, 2, 32)
    p.dsw("ds_write_b64", DST, Sb, 2, 64)
    p.salu("s_mov_b64 exec, -1", [], [EXEC])


def poll(p, slow, which, target, r, res, sleep=False):
    lbl = f"L_poll{which}" + ("s" if slow else "f")
    def gg():
        p.label(lbl)
        if sleep:
            p.raw("s_sleep 4", kind="salu")
        p.op("v_mov_b32", r, str(L_CNT + 4 * which))
        p.dsr("ds_read_b32", r, 1, r, 0)
        p.add(I(f"v_readfirstlane_b32 {s(S_B2)}, {v(r)}", "rdlane", [r], sr(S_B2)))
        sal(p, f"s_sub_u32 {s(S_JO)}, {s(S_JO)}, 1", [S_JO], [S_JO])
        p.raw(f"s_cbranch_scc1 {lbl}x", kind="salu", rd=[SCC])
        if isinstance(target, int):
            p.salu(f"s_cmp_lt_u32 {s(S_B2)}, {target}", sr(S_B2), [SCC])
        else:
            p.salu(f"s_cmp_lt_u32 {s(S_B2)}, {target}", sr(S_B2) + sr(int(target[1:])), [SCC])
        p.raw(f"s_cbranch_scc1 {lbl}", kind="salu", rd=[SCC])
        p.label(lbl + "x")
    gr = p.group(gg)
    gr.wr = gr.wr | {res}
    return gr


MQ = [OR_ + 8, OR_ + 20, OR_ + 32, OR_ + 8, OR_ + 20]


def mask_ld(p, opt, i):
    r = MQ[i]
    if i < 4:
        p.vld("buffer_load_dwordx4", r, 4, V_BIAS, SRD_MCHK, 1024 * i, opt.mflag)
    else:
        p.add(I(f"buffer_load_dwordx4 {v(r, 4)}, {v(V_BIAS)}, {s(SRD_MCHK, 4)}, {s(S_C4096)} offen{opt.mflag}", "vld",
                [V_BIAS] + sr(SRD_MCHK, 4) + sr(S_C4096), vr(r, 4)))
    return p.ins[-1]


def mask_use(p, opt, i):
    r = MQ[i]
    p.op("v_or3_b32", r, r, r + 1, r + 2)
    p.op("v_bitop3_b32", r, r, r + 3, f"s{S_C7F}", extra=" bitop3:0xa8")
    p.add(I(f"v_cmp_ne_u32 {s(S_MTMP, 2)}, 0, {v(r)}", "valu", [r], sr(S_MTMP, 2)))
    p.salu(f"s_or_b64 {s(S_MACC, 2)}, {s(S_MACC, 2)}, {s(S_MTMP, 2)}", sr(S_MACC, 2) + sr(S_MTMP, 2), sr(S_MACC, 2) + [SCC])


_pid = [3100]


def anchor_after(p, i, k=-2):
    _pid[0] += 1
    a = p.ins[k]
    a.wr = a.wr | {_pid[0]}
    i.rd = i.rd | {_pid[0]}


def make_hooks(opt):
    def hook(p, name, slow):
        chk = (not slow) and opt.mask_check
        if opt.prio and name in opt.prio:
            n0 = len(p.ins)
            i = p.raw(f"s_setprio {opt.prio[name]}", kind="salu", rd=[3000], wr=[3000])
            if n0:
                anchor_after(p, i)
        if name == "poll0":
            gb = poll(p, slow, 0, 8, K3, 3003)
            a = [i for i in p.ins if i.kind == "mfma"][min(opt.b2at, 28)]
            a.wr = a.wr | {3004}
            gb.rd = gb.rd | {3004}
            p.ins.remove(gb)
            p.ins.insert(p.ins.index(a) + 1, gb)
            if opt.debug is True:
                n0 = len(p.ins)
                stamp(p, opt, 19); stamp(p, opt, 18)
                st = p.ins[n0:]
                del p.ins[n0:]
                k = p.ins.index(gb)
                p.ins[k:k + 1] = st[:2] + [gb] + st[2:]
                gb.tag = "fence"
        elif name == "poll1":
            poll(p, slow, 1, 6, XR + 34, 3005)
        if name == opt.mk0 and chk:
            for i in range(3):
                anchor_after(p, mask_ld(p, opt, i), -2 - i)
        if name == "post0":
            stamp(p, opt, 6)
        if name == opt.mk1 and chk:
            n0 = len(p.ins)
            for i in range(3):
                mask_use(p, opt, i)
            for k in (n0, n0 + 4, n0 + 8):
                anchor_after(p, p.ins[k], n0 - 1 - len(p.ins))
            mask_ld(p, opt, 3); mask_ld(p, opt, 4)
        if name == "post1":
            stamp(p, opt, 8)
        elif name == "thin2" and chk:
            n0 = len(p.ins)
            for i in (3, 4):
                mask_use(p, opt, i)
            for k in (n0, n0 + 4):
                anchor_after(p, p.ins[k], n0 - 1 - len(p.ins))
            p.salu(f"s_cmp_lg_u64 {s(S_MACC, 2)}, 0", sr(S_MACC, 2), [SCC, 3001])
            p.add(I("s_cbranch_scc1 L_redo", "salu", [SCC, 3001], [3001, 3002]))
        elif name == "o48done":
            def gg():
                p.op("v_mov_b32", XR + 32, str(L_CNT + 8))
                p.op("v_mov_b32", XR + 33, "1")
                p.salu("s_mov_b64 exec, 1", [], [EXEC])
                p.add(I(f"ds_add_u32 {v(XR + 32)}, {v(XR + 33)}", "dsw", [XR + 32, XR + 33], []))
                p.salu("s_mov_b64 exec, -1", [], [EXEC])
            gr = p.group(gg)
            gr.rd = gr.rd | {3012, 3002}
        elif name == "post3":
            stamp(p, opt, 9)
        elif name == "end":
            stamp(p, opt, 10)
            n0 = len(p.ins)
            if opt.debug:
                stamp_flush(p, opt)
            sal(p, f"s_cmp_eq_u32 {s(W)}, {opt.jowave}", [W], [])
            p.raw("s_cbranch_scc1 L_jo", rd=[SCC])
            p.raw("s_endpgm")
            for i in p.ins[n0:]:
                i.tag = "fence" if i.tag is None else i.tag
    return hook


def mask_srd(p, opt):
    sal(p, f"s_sub_u32 {s(SRD_MCHK)}, {s(SRD_MASK)}, {L_BIAS}", [SRD_MASK], [SRD_MCHK])
    p.salu(f"s_subb_u32 {s(SRD_MCHK + 1)}, {s(SRD_MASK + 1)}, 0", sr(SRD_MASK + 1) + [SCC], sr(SRD_MCHK + 1) + [SCC])
    sal(p, f"s_add_u32 {s(SRD_MCHK)}, {s(SRD_MCHK)}, {s(S_MBASE)}", [SRD_MCHK, S_MBASE], [SRD_MCHK])
    p.salu(f"s_addc_u32 {s(SRD_MCHK + 1)}, {s(SRD_MCHK + 1)}, 0", sr(SRD_MCHK + 1) + [SCC], sr(SRD_MCHK + 1) + [SCC])
    sal(p, f"s_mov_b32 {s(SRD_MCHK + 2)}, {L_BIAS + 4804}", [], [SRD_MCHK + 2], False)
    sal(p, f"s_mov_b32 {s(SRD_MCHK + 3)}, 0x00020000", [], [SRD_MCHK + 3], False)
    sal(p, f"s_mov_b64 {s(S_MACC, 2)}, 0", [], [S_MACC, S_MACC + 1], False)
    sal(p, f"s_mov_b32 {s(S_C7F)}, 0x7fff7fff", [], [S_C7F], False)
    sal(p, f"s_movk_i32 {s(S_C4096)}, 4096", [], [S_C4096], False)


def dispatch(p, opt):
    mask_srd(p, opt)
    sal(p, f"s_mov_b32 {s(S_JO)}, 1000000", [], [S_JO], False)
    p.salu(f"s_or_b32 {s(S_T0)}, {s(S_KILL)}, {s(S_UNSAFE)}", sr(S_KILL) + sr(S_UNSAFE), sr(S_T0) + [SCC])
    p.raw("s_cbranch_scc1 L_slow", rd=[SCC])


def slow_regs(h):
    if h < 3:
        return dict(pairs=[LR + 12 + 8, LR + 12 + 10, OR_ + 10], m6=OR_ + 9, ad=OR_ + 21, tmp=OR_ + 22, mx=OR_ + 23, m2=OR_ + 33)
    return dict(pairs=[XR + 24, XR + 26, XR + 28], m6=XR + 30, ad=XR + 31, tmp=XR + 35, mx=LR + 12 + 8, m2=LR + 12 + 9)


def slow_softmax(p, h, qt, regs):
    R = slow_regs(h)
    ad, tmp, mx, m2 = R["ad"], R["tmp"], R["mx"], R["m2"]
    p.op("v_bfe_u32", tmp, V_BIAS, "4", "4")
    if qt:
        p.op("v_add_u32", tmp, str(16 * qt), tmp)
    p.op("v_mul_u32_u24", tmp, "0x62", tmp)
    p.op("v_add_u32", tmp, f"s{S_MBASE}", tmp)
    p.vld("buffer_load_ushort", R["m6"], 1, tmp, SRD_MASK, 96)
    p.op("v_bfe_u32", ad, V_BIAS, "8", "2")
    p.op("v_lshl_add_u32", ad, ad, "3", tmp)
    for kt in range(3):
        p.vld("buffer_load_dwordx2", R["pairs"][kt], 2, ad, SRD_MASK, 32 * kt)
    for kt in range(3):
        for e in range(4):
            r, src = regs[4 * kt + e], R["pairs"][kt] + (e >> 1)
            if e & 1:
                p.op("v_and_b32", tmp, "0xffff0000", src)
            else:
                p.op("v_lshlrev_b32", tmp, "16", src)
            p.op("v_fmamk_f32", r, tmp, f32(LOG2E), r)
    p.op("v_lshlrev_b32", tmp, "16", R["m6"])
    p.op("v_fmamk_f32", regs[12], tmp, f32(LOG2E), regs[12])
    p.op("v_max3_f32", mx, regs[0], regs[1], regs[2])
    for i in range(3, 13, 2):
        p.op("v_max3_f32", mx, mx, regs[i], regs[i + 1])
    xrow_max(p, mx, m2)
    for r in regs:
        p.op("v_sub_f32", r, r, mx)


def xrow_max(p, mx, m2):
    p.op("v_mov_b32", m2, mx)
    p.swap32(mx, m2)
    p.op("v_max_f32", mx, mx, m2)
    p.op("v_mov_b32", m2, mx)
    p.add(I(f"v_permlane16_swap_b32 {v(mx)}, {v(m2)}", "perm", [mx, m2], [mx, m2]))
    p.op("v_max_f32", mx, mx, m2)


def slow_thin(p, h, r):
    R = slow_regs(h)
    tmp, mx, m2 = R["tmp"], R["mx"], R["m2"]
    p.op("v_bfe_u32", tmp, V_BIAS, "4", "6")
    p.op("v_min_u32", tmp, "48", tmp)
    p.op("v_lshl_add_u32", tmp, tmp, "1", f"s{S_MBASE}")
    p.add(I(f"buffer_load_ushort {v(R['m6'])}, {v(tmp)}, {s(SRD_MASK, 4)}, {s(S_C4096)} offen offset:{48 * 98 - 4096}", "vld",
            [tmp] + sr(SRD_MASK, 4) + sr(S_C4096), [R["m6"]]))
    p.op("v_lshlrev_b32", tmp, "16", R["m6"])
    p.op("v_fmamk_f32", r, tmp, f32(LOG2E), r)
    p.op("v_mov_b32", mx, r)
    for k in (8, 4, 2, 1):
        p.add(I(f"v_max_f32_dpp {v(mx)}, {v(mx)}, {v(mx)} row_ror:{k} row_mask:0xf bank_mask:0xf", "dpp", [mx], [mx]))
    xrow_max(p, mx, m2)
    p.op("v_sub_f32", r, r, mx)


def jo(p, opt):
    p.label("L_jo")
    p.raw("s_setprio 0", kind="salu")
    poll(p, False, 2, f"s{S_NWIN}", 8, 3020, sleep=True).tag = "fence"
    a, b, off = 8, 9, 10
    OB, Y, wq, SL, NP, D = 12, 24, 48, 120, 124, 128
    p.op("v_bfe_u32", a, V_BIAS, "4", "4")
    p.op("v_bfe_u32", b, V_BIAS, "8", "2")
    p.op("v_bfe_u32", off, V_BIAS, "4", "6")
    p.op("v_lshlrev_b32", off, "2", off)
    p.op("v_add_u32", off, str(L_OFF48), off)
    p.dsr("ds_read_b32", off, 1, off, 0)
    p.op("v_min_u32", a, "11", a)
    p.op("v_mul_u32_u24", a, str(XST), a)
    p.op("v_mad_u32_u24", a, b, "48", a)
    p.op("v_add_u32", a, str(L_X + X_O48), a)
    for k in range(3):
        p.dsr("ds_read_b128", OB + 4 * k, 4, a, 16 * k)
    p.dsr("ds_read_b128", SL, 4, V_BIAS, L_SEL - L_BIAS)
    for T in range(6):
        for ks in range(3):
            w = wq + 4 * (3 * T + ks)
            o = 32 * ks * WOS + 32 * T
            p.dsr("ds_read_b64_tr_b16", w, 2, V_WQ, o)
            p.dsr("ds_read_b64_tr_b16", w + 2, 2, V_WQ, o + 16 * WOS)
            p.mfma16(Y + 4 * T, w, OB + 4 * ks, None if ks == 0 else Y + 4 * T)
    ss = 11
    for i in range(24):
        if i == 0:
            p.op("v_fma_f32", ss, Y, Y, f"s{S_EPSLN}")
        else:
            p.op("v_fmac_f32", ss, Y + i, Y + i, rmw=True)
    p.op("v_cvt_pk_bf16_f32", NP, ss, ss)
    for r in (NP + 1, NP + 2, NP + 3):
        p.op("v_mov_b32", r, "0")
    p.mfma16(D, SL, NP, None)
    p.op("v_rsq_f32", D, D, kind="trans")
    p.op("v_mul_f32", D, f32(math.sqrt(96.0)), D)
    for i in range(24):
        p.op("v_mul_f32", Y + i, Y + i, D)
    for uu_ in range(3):
        base = Y + 8 * uu_
        for i in range(4):
            p.op("v_cvt_pk_bf16_f32", base + i, base + 2 * i, base + 2 * i + 1)
        p.vst("buffer_store_dwordx4", base, 4, off, SRD_OUT, 64 * uu_, opt.sflag)
    p.raw("s_endpgm")


HEADER = open("standalone__window_attn_swin_v2__vision.s.ref").read().split("; Override")[0]


def generate(opt, sched=None):
    opt.hook = make_hooks(opt)
    opt.slow_softmax = slow_softmax
    opt.slow_thin = slow_thin
    segs = {}
    for nm, fn in (("com", pro_common), ("po", path_o), ("py", path_y), ("jo", jo)):
        p = Prog(); fn(p, opt); segs[nm] = p.ins
    p = Prog()
    if opt.debug and opt.debug != 3:
        p.wait(vm=0)
        stamp(p, opt, 5)
    dispatch(p, opt); segs["dis"] = p.ins
    B.SLOWPQ = False
    p = Prog(); body(p, False, opt); segs["fast"] = p.ins
    B.SLOWPQ = True
    p = Prog(); body(p, True, opt); segs["slow"] = p.ins
    p = Prog()
    p.label("L_redo")
    p.wait(vm=0, lgkm=0)
    p.raw("s_nop 15", kind="nop", states=16)
    x_loads(p, opt)
    segs["redo"] = p.ins
    if sched:
        for k in ("fast", "slow", "jo"):
            segs[k] = sched(segs[k])
    st = WaitState()
    com = insert_nops(insert_waits(flatten(segs["com"]), st))
    sty = st.copy()
    po = insert_nops(insert_waits(flatten(segs["po"]), st), com)
    py = insert_nops(insert_waits(flatten(segs["py"]), sty), com)
    tail = lambda w: [(x.text) for x in w.vm]
    assert tail(st) == tail(sty) and len(st.vm) == 9, (tail(st), tail(sty))
    assert not st.lg and not sty.lg
    clean = [I("s_nop 15", "nop", states=16)]
    mid = insert_nops(insert_waits(flatten(segs["dis"]), st), clean)
    head = com + py + po + mid
    fast = insert_nops(insert_waits(flatten(segs["fast"]), st.copy()), head)
    str_ = WaitState(); str_.vm = [I("x", "vst")]; str_.lg = [I("x", "dsw")]
    redo = insert_nops(insert_waits(flatten(segs["redo"]), str_), clean)
    slow = insert_nops(insert_waits(flatten(segs["slow"]), st.copy() if opt.debug in (None, 3) else str_), clean)
    stj = WaitState()
    jos = [I("s_nop 7", "nop", states=8)] + insert_nops(insert_waits(flatten(segs["jo"]), stj), clean)
    jos = [jos[1], jos[0]] + jos[2:]
    name = "standalone__window_attn_swin_v2__vision_kernel"
    txt = HEADER
    txt += f"; @launch grid=({NWG},1,1) block=({64 * WPW},1,1) lds={L_END}\n"
    txt += f""".amdgcn_target "amdgcn-amd-amdhsa--gfx950"
.text
.globl {name}
.p2align 8
.type {name},@function
{name}:
"""
    txt += render(head) + "\n" + render(fast) + "\n" + render(jos) + "\n" + render(redo) + "\nL_slow:\n" + render(slow) + "\nL_end:\n    s_endpgm\n"
    txt += f""".section .rodata,"a"
.p2align 6
.amdhsa_kernel {name}
  .amdhsa_next_free_vgpr {NVGPR}
  .amdhsa_next_free_sgpr 102
  .amdhsa_accum_offset {NVGPR}
  .amdhsa_group_segment_fixed_size 0
  .amdhsa_kernarg_size 96
  .amdhsa_user_sgpr_count 2
  .amdhsa_user_sgpr_kernarg_segment_ptr 1
  .amdhsa_system_sgpr_workgroup_id_x 1
.end_amdhsa_kernel
.p2align 6
wtab:
"""
    tb_ = w_table() + wo_table()
    for i in range(0, len(tb_), 16):
        txt += "    .short " + ", ".join(str(x) for x in tb_[i:i + 16]) + "\n"
    stats = {}
    for nm, seq in (("head", head), ("fast", fast), ("slow", slow), ("jo", jos)):
        c = {}
        for i in seq:
            c[i.kind] = c.get(i.kind, 0) + 1
        c["nopstates"] = sum(i.states for i in seq if i.kind == "nop")
        stats[nm] = c
    return txt, stats


if __name__ == "__main__":
    import sched
    opt = Opt()
    opt.jowave = 0
    for a in sys.argv[1:]:
        if a == "--debug": opt.debug = True
        if a == "--debug3": opt.debug = 3
        if a == "--nomask": opt.mask_check = False
        if a == "--vz": opt.ldszero = False
        if a.startswith("--ldslat="): sched.Params.lds_lat = int(a[9:])
        if a.startswith("--b2at="): opt.b2at = int(a[7:])
        if a.startswith("--mk1="): opt.mk1 = a[6:]
        if a.startswith("--mk0="): opt.mk0 = a[6:]
        if a.startswith("--prio="):
            opt.prio = {kv.split(":")[0]: int(kv.split(":")[1]) for kv in a[7:].split(",")}
        for fl in ("xflag", "mflag", "sflag"):
            if a.startswith(f"--{fl}="):
                setattr(opt, fl, " " + a.split("=")[1].replace(",", " "))
    args = [a for a in sys.argv[1:] if not a.startswith("--")]
    out = args[0] if args else "g2.s"
    sc = None if "--nosched" in sys.argv else (lambda x: sched.schedule(x, verbose=True))
    txt, stats = generate(opt, sc)
    open(out, "w").write(txt)
    for k, c in stats.items():
        print(k, c)
```

```python
VCC, EXEC, M0, SCC = 2000, 2002, 2003, 2004
SB = 1000


def v(i, n=1):
    return f"v{i}" if n == 1 else f"v[{i}:{i + n - 1}]"


def s(i, n=1):
    return f"s{i}" if n == 1 else f"s[{i}:{i + n - 1}]"


def vr(i, n=1):
    return list(range(i, i + n))


def sr(i, n=1):
    return list(range(SB + i, SB + i + n))


VALU_KINDS = ("valu", "trans", "perm", "dpp", "rdlane", "dot", "pk")


class I:
    __slots__ = ("text", "kind", "rd", "wr", "c", "sub", "cond", "wide", "states", "prio", "tag", "passes")

    def __init__(self, text, kind, rd=(), wr=(), c=None, sub=None, wide=False, states=1, tag=None):
        self.text = text
        self.kind = kind
        self.rd = frozenset(rd)
        self.wr = frozenset(wr)
        self.c = c
        self.sub = sub
        self.cond = False
        self.wide = wide
        self.states = states
        self.prio = 0
        self.tag = tag
        self.passes = 8

    def __repr__(self):
        return self.text


class Prog:
    _next = 0

    def __init__(self):
        self.ins = []
        self._cond = False
        self._rid = 0

    def add(self, i):
        i.cond = self._cond
        self.ins.append(i)
        return i

    def raw(self, text, kind="ctrl", rd=(), wr=(), **kw):
        return self.add(I(text, kind, rd, wr, **kw))

    def label(self, name):
        return self.add(I(name + ":", "label", states=0))

    def comment(self, t):
        return self.add(I("; " + t, "label", states=0))

    def salu(self, text, rd=(), wr=()):
        return self.add(I(text, "salu", rd, wr))

    def valu(self, text, rd=(), wr=(), kind="valu"):
        return self.add(I(text, kind, rd, wr))

    @staticmethod
    def _op(x):
        if isinstance(x, int):
            return v(x), [x]
        if isinstance(x, str) and x.startswith("s") and x[1:].isdigit():
            return x, [SB + int(x[1:])]
        return str(x), []

    def op(self, name, dst, *srcs, kind="valu", rmw=False, extra="", xrd=(), xwr=()):
        ts, rd = [], []
        for x in srcs:
            t, r = self._op(x)
            ts.append(t)
            rd += r
        if rmw:
            rd.append(dst)
        return self.add(I(f"{name} {v(dst)}, " + ", ".join(ts) + extra, kind, rd + list(xrd), [dst] + list(xwr)))

    def mfma(self, d, a, b, c=None, k=16):
        n = 4 if k == 16 else 2
        name = "v_mfma_f32_32x32x16_bf16" if k == 16 else "v_mfma_f32_32x32x8_bf16"
        ct = "0" if c is None else v(c, 16)
        rd = vr(a, n) + vr(b, n) + ([] if c is None else vr(c, 16))
        return self.add(I(f"{name} {v(d, 16)}, {v(a, n)}, {v(b, n)}, {ct}", "mfma", rd, vr(d, 16),
                          c=None if c is None else (c, 16)))

    def mfma16(self, d, a, b, c=None):
        ct = "0" if c is None else v(c, 4)
        rd = vr(a, 4) + vr(b, 4) + ([] if c is None else vr(c, 4))
        i = self.add(I(f"v_mfma_f32_16x16x32_bf16 {v(d, 4)}, {v(a, 4)}, {v(b, 4)}, {ct}", "mfma", rd, vr(d, 4),
                       c=None if c is None else (c, 4)))
        i.passes = 4
        return i

    def dsr(self, name, d, n, addr, off=0):
        return self.add(I(f"{name} {v(d, n)}, {v(addr)} offset:{off}", "dsr", [addr], vr(d, n)))

    def dsw(self, name, addr, src, n, off=0):
        return self.add(I(f"{name} {v(addr)}, {v(src, n)} offset:{off}", "dsw", [addr] + vr(src, n), []))

    def vld(self, name, d, n, addr, srd, off=0, extra=""):
        return self.add(I(f"{name} {v(d, n)}, {v(addr)}, {s(srd, 4)}, 0 offen offset:{off}{extra}", "vld",
                          [addr] + sr(srd, 4), vr(d, n)))

    def vst(self, name, src, n, addr, srd, off=0, extra=""):
        return self.add(I(f"{name} {v(src, n)}, {v(addr)}, {s(srd, 4)}, 0 offen offset:{off}{extra}", "vst",
                          [addr] + vr(src, n) + sr(srd, 4), [], wide=n > 2))

    def dma(self, addr, srd, soff=None):
        so = "0" if soff is None else s(soff)
        return self.add(I(f"buffer_load_dwordx4 {v(addr)}, {s(srd, 4)}, {so} offen lds", "dma",
                          [addr, M0] + sr(srd, 4) + ([] if soff is None else sr(soff)), []))

    def smem(self, name, d, n, base, off):
        return self.add(I(f"{name} {s(d, n)}, {s(base, 2)}, {off}", "smem", sr(base, 2), sr(d, n)))

    def swap32(self, a, b):
        return self.add(I(f"v_permlane32_swap_b32 {v(a)}, {v(b)}", "perm", [a, b], [a, b]))

    def group(self, fn):
        save = self.ins
        self.ins = []
        fn()
        sub = self.ins
        self.ins = save
        rd, wr = set(), set()
        for i in sub:
            rd |= (i.rd - wr)
            wr |= i.wr
        rd.discard(EXEC)
        wr.discard(EXEC)
        return self.add(I("<group>", "group", rd, wr, sub=sub))

    def cond_begin(self):
        self.ins.append(I("", "condbegin", states=0))
        Prog._next += 1
        self._cond = Prog._next

    def cond_split(self):
        Prog._next += 1
        self._cond = Prog._next

    def cond_end(self):
        self._cond = False
        self.ins.append(I("", "condend", states=0))

    def wait(self, vm=None, lgkm=None):
        return self.add(I("<wait>", "wait", tag=(vm, lgkm)))

    def wait_tag(self, tag):
        return self.add(I("<waittag>", "waittag", tag=tag))


def flatten(ins):
    out = []
    for i in ins:
        if i.kind == "group":
            for x in i.sub:
                x.cond = i.cond
                out.append(x)
        else:
            out.append(i)
    return out


class WaitState:
    def __init__(self):
        self.vm = []
        self.lg = []

    def copy(self):
        w = WaitState()
        w.vm = list(self.vm)
        w.lg = list(self.lg)
        return w


def _younger(lst, idx, cur):
    return sum(1 for x in lst[idx + 1:] if (not x.cond) or x.cond == cur.cond)


def _keep_youngest(lst, n, cur):
    keep, cnt = [], 0
    for x in reversed(lst):
        if cnt >= n:
            break
        keep.append(x)
        if (not x.cond) or x.cond == cur.cond:
            cnt += 1
    return list(reversed(keep))


def insert_waits(ins, st):
    out = []
    snap = None
    for i in ins:
        if i.kind == "condbegin":
            snap = st.copy()
            continue
        if i.kind == "condend":
            st.vm = snap.vm + [x for x in st.vm if x not in snap.vm]
            st.lg = snap.lg + [x for x in st.lg if x not in snap.lg]
            snap = None
            continue
        if i.kind == "dropdma":
            st.vm = [x for x in st.vm if x.kind != "dma"]
            continue
        if i.kind == "forgetv":
            last = max([k for k, x in enumerate(st.vm) if x.wr & i.rd], default=-1)
            st.vm = st.vm[last + 1:]
            continue
        if i.kind == "forget":
            last = max([k for k, x in enumerate(st.vm) if x.wr & i.rd], default=-1)
            st.vm = st.vm[last + 1:]
            st.lg = []
            continue
        if i.kind == "vmreset":
            st.vm = []
            continue
        needvm, needlg = None, None
        if i.kind == "wait":
            needvm, needlg = i.tag
        elif i.kind == "waittag":
            last = -1
            for k, x in enumerate(st.vm):
                if x.tag == i.tag:
                    last = k
            if last >= 0:
                needvm = _younger(st.vm, last, i)
        else:
            touched = i.rd | i.wr
            last = -1
            for k, x in enumerate(st.vm):
                if x.wr & touched:
                    last = k
            if last >= 0:
                needvm = _younger(st.vm, last, i)
            last = -1
            for k, x in enumerate(st.lg):
                if x.wr & touched:
                    last = k
            if last >= 0:
                if any(x.kind == "smem" for x in st.lg):
                    needlg = 0
                else:
                    needlg = _younger(st.lg, last, i)
        parts = []
        if needvm is not None:
            needvm = min(needvm, 63)
            if len(st.vm) > needvm:
                parts.append(f"vmcnt({needvm})")
                st.vm = _keep_youngest(st.vm, needvm, i)
        if needlg is not None:
            needlg = min(needlg, 15)
            if len(st.lg) > needlg:
                parts.append(f"lgkmcnt({needlg})")
                st.lg = _keep_youngest(st.lg, needlg, i)
        if parts:
            w = I("s_waitcnt " + " ".join(parts), "salu")
            w.cond = i.cond
            out.append(w)
        if i.kind in ("wait", "waittag"):
            continue
        out.append(i)
        if i.kind in ("vld", "vst", "dma"):
            st.vm.append(i)
        elif i.kind in ("dsr", "dsw", "smem"):
            st.lg.append(i)
    return out


def insert_nops(ins, hist=None):
    out = list(hist[-200:]) if hist else []
    base = len(out)
    for i in ins:
        if i.kind == "label":
            out.append(i)
            continue
        need = 0
        dist = 0
        isvalu = i.kind in VALU_KINDS
        for p in reversed(out):
            if dist >= 13:
                break
            req = 0
            if p.kind in VALU_KINDS:
                vw = {r for r in p.wr if r < SB}
                sw = {r for r in p.wr if r >= SB}
                if vw & i.rd:
                    if i.kind == "mfma":
                        req = max(req, 2)
                    if i.kind in ("perm", "dpp"):
                        req = max(req, 2)
                    if i.kind == "rdlane":
                        req = max(req, 1)
                    if p.kind == "trans":
                        req = max(req, 1)
                if p.kind == "dot" and (vw & (i.rd | i.wr)):
                    if not (i.kind == "dot" and i.tag == "acc" and not (vw & (i.rd - i.wr))):
                        req = max(req, 3)
                if sw & i.rd:
                    if isvalu:
                        req = max(req, 4 if i.kind == "rdlane" else 2)
                    elif i.kind in ("vld", "vst", "dma"):
                        req = max(req, 5)
                    else:
                        req = max(req, 2)
            elif p.kind == "mfma":
                d = {r for r in p.wr if r < SB}
                big = p.passes == 8
                if i.kind == "mfma":
                    cset = set(vr(*i.c)) if i.c is not None else set()
                    abset = _ab_regs(i)
                    if d & abset:
                        req = max(req, 12 if big else 8)
                    if d & cset:
                        if not (cset == d and i.passes == p.passes):
                            req = max(req, 10 if big else 6)
                    elif d & i.wr:
                        req = max(req, 10 if big else 6)
                else:
                    if d & (i.rd | i.wr):
                        req = max(req, 12 if big else 8)
                if p.c is not None and isvalu and (set(vr(*p.c)) & i.wr):
                    req = max(req, 7 if big else 3)
            elif p.kind == "salu":
                if M0 in p.wr and i.kind == "dma":
                    req = max(req, 1)
            elif p.kind == "vst" and p.wide:
                if {r for r in p.rd if r < SB} & i.wr:
                    req = max(req, 2)
            if req > dist:
                need = max(need, req - dist)
            dist += 0 if (p.cond and p.cond != i.cond) else p.states
        while need > 0:
            n = min(need, 16)
            x = I(f"s_nop {n - 1}", "nop", states=n)
            x.cond = i.cond
            out.append(x)
            need -= n
        out.append(i)
    return out[base:]


def _ab_regs(i):
    ops = i.text.split(None, 1)[1].split(", ")
    res = set()
    for o in ops[1:3]:
        a, b = o[2:-1].split(":")
        res |= set(range(int(a), int(b) + 1))
    return res


def render(ins):
    lines = []
    for i in ins:
        if i.kind == "label":
            lines.append(i.text if i.text.endswith(":") else "    " + i.text)
        else:
            lines.append("    " + i.text)
    return "\n".join(lines)
```

```python
import sys, struct, math
sys.path.insert(0, "gen")
from asmlib import *

def f32(x):
    return "0x%08x" % struct.unpack("<I", struct.pack("<f", x))[0]

LOG2E = 1.4426950408889634
WS = 608
WOS = 224
L_WI = 0
L_WO = 96 * WS
L_BIAS = L_WO + 96 * WOS
L_B48 = L_BIAS + 49152
L_SEL = L_B48 + 1024
L_ONES = L_SEL + 2048
L_TAB = L_ONES + 1024
L_PAR = L_TAB + 3072
L_CNT = L_PAR + 32
L_OFF48 = L_PAR + 64
L_X = L_PAR + 384
XST = 1280
X_KQ, X_V48, X_P48, X_O48, X_Z = 0, 512, 768, 896, 1216
L_END = L_X + 12 * XST

SRD_X, SRD_OUT, SRD_MASK = 4, 8, 20
S_W = 3
S_TAU, S_EPSQ, S_EPSLN = 32, 36, 37
S_MA, S_MB = 38, 40
S_UNSAFE, S_WIN, S_MBASE, S_KILL = 42, 43, 44, 45
SRD_MCHK, S_MACC, S_MTMP, S_C7F, S_C4096, S_B2 = 28, 52, 54, 56, 57, 58
S_T0, S_T1, S_T2, S_T3 = 98, 99, 100, 101

OFF = [0, 1, 2]
V_WQ, V_BIAS, V_TH, V_TV, V_PW = 3, 4, 5, 6, 7
XR, OR_, VF, VSA, VSB, LR, K3, SA, OA = 8, 44, 80, 88, 96, 104, 140, 144, 160
NEG_BIG = -30000.0


class WBuf:
    def __init__(self, quads):
        self.q = list(quads); self.i = 0
    def next(self):
        r = self.q[self.i % len(self.q)]; self.i += 1
        return r


def dep(i, *ids):
    i.rd = i.rd | set(ids)
    return i


def ld_w(p, wb, col, ks):
    r = wb.next()
    off = L_WI + 32 * ks * WS + col * 2
    p.dsr("ds_read_b64_tr_b16", r, 2, V_WQ, off)
    p.dsr("ds_read_b64_tr_b16", r + 2, 2, V_WQ, off + 16 * WS)
    return r


def zero(p, r, opt):
    if opt.ldszero:
        p.dsr("ds_read_b32", r, 1, V_TH, X_Z)
    else:
        p.op("v_mov_b32", r, "0")


def scale(p, regs, sc, opt, lvl):
    i = 0
    while i < len(regs):
        r = regs[i]
        if lvl in opt.pk and i + 1 < len(regs) and regs[i + 1] == r + 1 and r % 2 == 0:
            e = sc & ~1
            mods = " op_sel_hi:[1,0]" if sc % 2 == 0 else " op_sel:[0,1] op_sel_hi:[1,1]"
            p.add(I(f"v_pk_mul_f32 {v(r, 2)}, {v(r, 2)}, {v(e, 2)}{mods}", "pk", [r, r + 1, sc], [r, r + 1]))
            i += 2
        else:
            p.op("v_mul_f32", r, r, sc)
            i += 1


def sumsq(p, dst, regs, eps, opt, lvl, tmp=None):
    if lvl in opt.pk and tmp is not None:
        for i in range(0, len(regs), 2):
            r = regs[i]
            if i == 0:
                p.add(I(f"v_pk_mul_f32 {v(tmp, 2)}, {v(r, 2)}, {v(r, 2)}", "pk", [r, r + 1], [tmp, tmp + 1]))
            else:
                p.add(I(f"v_pk_fma_f32 {v(tmp, 2)}, {v(r, 2)}, {v(r, 2)}, {v(tmp, 2)}", "pk", [r, r + 1, tmp, tmp + 1], [tmp, tmp + 1]))
        p.op("v_add_f32", dst, tmp, tmp + 1)
        p.op("v_add_f32", dst, f"s{eps}", dst)
        return
    for i, x in enumerate(regs):
        if i == 0:
            p.op("v_fma_f32", dst, x, x, f"s{eps}")
        else:
            p.op("v_fmac_f32", dst, x, x, rmw=True)


def X(tt, ks):
    return XR + 12 * tt + 4 * ks


def qk(p, h, opt):
    wb = WBuf([SA, SA + 4, SA + 8, SA + 12])
    for T in range(3):
        for ks in range(3):
            w = ld_w(p, wb, 48 * h + 16 * T, ks)
            for tt in range(3):
                d = LR + 12 * tt + 4 * T
                p.mfma16(d, w, X(tt, ks), None if ks == 0 else d)
    ss = [OA + i for i in range(6)]
    for tt in range(3):
        for e in range(2):
            for i in range(6):
                x = LR + 12 * tt + 6 * e + i
                if i == 0:
                    p.op("v_fma_f32", ss[2 * tt + e], x, x, f"s{S_EPSQ}")
                else:
                    p.op("v_fmac_f32", ss[2 * tt + e], x, x, rmw=True)
    NP, D1, D2, SL = SA, SA + 4, SA + 8, SA + 12
    for i in range(3):
        p.op("v_cvt_pk_bf16_f32", NP + i, ss[2 * i], ss[2 * i + 1])
    zero(p, NP + 3, opt)
    p.dsr("ds_read_b128", SL, 4, V_BIAS, L_SEL - L_BIAS)
    p.dsr("ds_read_b128", K3, 4, V_BIAS, L_SEL + 1024 - L_BIAS)
    p.mfma16(D1, SL, NP, None)
    p.mfma16(D2, K3, NP, None)
    sc = [D1, D1 + 1, D1 + 2, D1 + 3, D2, D2 + 1]
    for i in range(6):
        p.op("v_rsq_f32", sc[i], sc[i], kind="trans")
        if i % 2 == 0:
            p.op("v_mul_f32", sc[i], f"s{S_TAU + h}", sc[i])
    for tt in range(3):
        b = LR + 12 * tt
        scale(p, [b + i for i in range(6)], sc[2 * tt], opt, "q")
        scale(p, [b + 6 + i for i in range(6)], sc[2 * tt + 1], opt, "q")
        for i in range(3):
            p.op("v_cvt_pk_bf16_f32", b + i, b + 2 * i, b + 2 * i + 1)
        zero(p, b + 3, opt)
        for i in range(3):
            p.op("v_cvt_pk_bf16_f32", b + 4 + i, b + 6 + 2 * i, b + 7 + 2 * i)
        zero(p, b + 7, opt)
        if tt < (1 if SLOWPQ else 2):
            zero(p, b + 11, opt)
    dep(p.dsr("ds_read_b128", K3, 4, V_TH, X_KQ + 128 * h), 3003)


def vproj(p, col, dsts, tv, opt):
    wb = WBuf([OA, OA + 4, SA + 12])
    for ks in range(3):
        w = ld_w(p, wb, col, ks)
        for tt in range(3):
            d = SA + 4 * tt
            p.mfma16(d, X(tt, ks), w, None if ks == 0 else d)
    for dst, m, t in dsts:
        if m is None:
            for i in range(6):
                p.op("v_cvt_pk_bf16_f32", dst + i, SA + 2 * i, SA + 2 * i + 1)
        else:
            def g():
                p.salu(f"s_mov_b64 exec, {s(m, 2)}", sr(m, 2), [EXEC])
                for i in range(6):
                    p.op("v_cvt_pk_bf16_f32", dst + i, SA + 2 * i, SA + 2 * i + 1, rmw=True)
                p.salu("s_mov_b64 exec, -1", [], [EXEC])
            p.group(g)
        dep(p.dsr("ds_read_u16", dst + 6, 1, V_TV, X_V48 + 32 * t), 3003)


_u = [0]
SLOWPQ = False


def next_pq():
    r = LR + (0 if SLOWPQ else 12 * (_u[0] % 2)) + 8
    _u[0] += 1
    return r


def pv_norm(p, h, P0, PQ, VS, dst, opt):
    OF, OS = OA, OA + 4
    p.mfma16(OF, VF, P0, None)
    p.mfma16(OS, VS, P0, None)
    p.mfma16(OF, VF + 4, PQ, OF)
    p.mfma16(OS, VS + 4, PQ, OS)
    lreg, r0 = (OS + 2, OS) if h % 2 == 0 else (OS, OS + 2)
    p.op("v_rcp_f32", lreg, lreg, kind="trans")
    scale(p, [OF, OF + 1, OF + 2, OF + 3, r0, r0 + 1], lreg, opt, "o")
    p.op("v_cvt_pk_bf16_f32", dst[0], OF, OF + 1)
    p.op("v_cvt_pk_bf16_f32", dst[1], OF + 2, OF + 3)
    p.op("v_cvt_pk_bf16_f32", dst[2], r0, r0 + 1)


def unit(p, h, qt, slow, opt):
    VS = VSA if h % 2 == 0 else VSB
    boff = (h * 3 + qt) * 4096
    for kt in range(4):
        dep(p.dsr("ds_read_b128", SA + 4 * kt, 4, V_BIAS, boff + 1024 * kt), 3003)
    Q = LR + 12 * qt
    for kt in range(4):
        K = LR + 12 * kt + 4 if kt < 3 else K3
        p.mfma16(SA + 4 * kt, K, Q, SA + 4 * kt)
    regs = [SA + i for i in range(13)]
    if slow:
        opt.slow_softmax(p, h, qt, regs)
    for r in regs:
        p.op("v_exp_f32", r, r, kind="trans")
    P0 = LR + 24 + 8
    PQ = next_pq()
    for i in range(4):
        p.op("v_cvt_pk_bf16_f32", P0 + i, SA + 2 * i, SA + 2 * i + 1)
    p.op("v_cvt_pk_bf16_f32", PQ, SA + 8, SA + 9)
    p.op("v_cvt_pk_bf16_f32", PQ + 1, SA + 10, SA + 11)
    p.op("v_cvt_pk_bf16_f32", PQ + 2, SA + 12, "0")
    o = OR_ + 12 * qt + 3 * h
    pv_norm(p, h, P0, PQ, VS, [o, o + 1, o + 2], opt)


def thin(p, h, slow, opt):
    VS = VSA if h % 2 == 0 else VSB
    Q48 = OA
    dep(p.dsr("ds_read_b128", Q48, 4, V_TH, X_KQ + 128 * h + 64), 3003)
    dep(p.dsr("ds_read_b32", OA + 4, 1, V_BIAS, L_B48 - L_BIAS + 4 * h), 3003)
    for kt in range(4):
        K = LR + 12 * kt + 4 if kt < 3 else K3
        p.mfma16(SA + 4 * kt, Q48, K, None)
    for kt in range(1, 4):
        p.add(I(f"v_mov_b32_dpp {v(SA)}, {v(SA + 4 * kt)} quad_perm:[0,1,2,3] row_mask:{1 << kt} bank_mask:0xf", "dpp",
                [SA, SA + 4 * kt], [SA]))
    p.op("v_add_f32", SA, SA, OA + 4)
    if slow:
        opt.slow_thin(p, h, SA)
    p.op("v_exp_f32", SA, SA, kind="trans")
    p.op("v_cvt_pk_bf16_f32", SA, SA, SA)
    w = p.dsw("ds_write_b16", V_PW, SA, 1, 0)
    w.wr = w.wr | {3010}
    w.rd = w.rd | {3011}
    P0 = LR + 24 + 8
    PQ = next_pq()
    for r, off in ((P0, 0), (PQ, 64)):
        x = dep(p.dsr("ds_read_b128", r, 4, V_TH, X_P48 + off), 3010)
        x.wr = x.wr | {3011}
    t = SA + 4
    if h % 2 == 0:
        dst = [t, t + 1, t + 2]
    else:
        dst = [t + 1, t + 2, t + 3]
    pv_norm(p, h, P0, PQ, VS, dst, opt)
    a = SA + 8
    p.op("v_bfe_u32", a, V_PWG(p), "8", "2")
    p.op("v_lshl_add_u32", a, a, "5", V_TH)
    if h % 2 == 0:
        ws = [p.dsw("ds_write_b64", a, t, 2, X_O48 + 12 * h), p.dsw("ds_write_b32", a, t + 2, 1, X_O48 + 12 * h + 8)]
    else:
        ws = [p.dsw("ds_write_b32", a, t + 1, 1, X_O48 + 12 * h), p.dsw("ds_write_b64", a, t + 2, 2, X_O48 + 12 * h + 4)]
    for w in ws:
        w.wr = w.wr | {3012}


def V_PWG(p):
    assert L_BIAS % 1024 == 0
    return V_BIAS


def body(p, slow, opt):
    chk = (not slow) and opt.mask_check
    _u[0] = 0
    opt.hook(p, "start", slow)
    for r in (VSA, VSA + 4, VSB, VSB + 4, VF + 4):
        p.dsr("ds_read_b128", r, 4, V_BIAS, L_ONES - L_BIAS)
    for hp in range(2):
        ha, hb = 2 * hp, 2 * hp + 1
        c0 = 192 + 48 * hp
        qk(p, ha, opt)
        if hp == 0:
            opt.hook(p, "poll0", slow)
        vproj(p, c0, [(VF, None, 4 * hp)], 0, opt)
        vproj(p, c0 + 16, [(VSA, S_MA, 4 * hp + 1), (VSB, S_MB, 4 * hp + 2)], 0, opt)
        opt.hook(p, f"pre{ha}", slow)
        thin(p, ha, slow, opt)
        opt.hook(p, f"thin{ha}", slow)
        for qt in range(3):
            unit(p, ha, qt, slow, opt)
        opt.hook(p, f"post{ha}", slow)
        qk(p, hb, opt)
        vproj(p, c0 + 32, [(VF, None, 4 * hp + 3)], 0, opt)
        opt.hook(p, f"pre{hb}", slow)
        thin(p, hb, slow, opt)
        if hb == 3:
            opt.hook(p, "o48done", slow)
        for qt in range(3):
            unit(p, hb, qt, slow, opt)
            opt.hook(p, f"u{hb}{qt}", slow)
            if hb == 3 and qt == 0:
                outproj(p, [0], [XR], WBuf([XR + 24, XR + 28, XR + 32]), slow, opt, first=True)
        opt.hook(p, f"post{hb}", slow)
    outproj(p, [1, 2], [LR, VF], WBuf([SA, SA + 4, SA + 8, SA + 12]), slow, opt)
    opt.hook(p, "prestore", slow)
    Y = [XR, LR, VF]
    ss = [OA, OA + 1, OA + 2]
    for tt in range(3):
        sumsq(p, ss[tt], [Y[tt] + i for i in range(24)], S_EPSLN, opt, "s", LR + 24 + 2 * tt)
    NP0, D0, SL0 = XR + 24, XR + 28, XR + 32
    p.op("v_cvt_pk_bf16_f32", NP0, ss[0], ss[0])
    for r in (NP0 + 1, NP0 + 2, NP0 + 3):
        zero(p, r, opt)
    p.dsr("ds_read_b128", SL0, 4, V_BIAS, L_SEL - L_BIAS)
    p.mfma16(D0, SL0, NP0, None)
    NP1, D1 = K3, OA + 4
    p.op("v_cvt_pk_bf16_f32", NP1, ss[1], ss[2])
    for r in (NP1 + 1, NP1 + 2):
        zero(p, r, opt)
    p.mfma16(D1, SL0, NP1, None)
    rs = [D0, D1, D1 + 1]
    for tt in range(3):
        p.op("v_rsq_f32", rs[tt], rs[tt], kind="trans")
        p.op("v_mul_f32", rs[tt], f32(math.sqrt(96.0)), rs[tt])
        scale(p, [Y[tt] + i for i in range(24)], rs[tt], opt, "l")
        for u in range(3):
            base = Y[tt] + 8 * u
            for i in range(4):
                p.op("v_cvt_pk_bf16_f32", base + i, base + 2 * i, base + 2 * i + 1)
            st = p.vst("buffer_store_dwordx4", base, 4, OFF[tt], SRD_OUT, 64 * u, opt.sflag)
            st.rd = st.rd | {3002}
    opt.hook(p, "end", slow)


def outproj(p, tiles, Ys, wb, slow, opt, first=False):
    if first:
        opt.hook(p, "poll1", slow)
        a, b = XR + 32, XR + 33
        p.op("v_subrev_u32", a, str(L_BIAS), V_BIAS)
        p.op("v_lshrrev_b32", b, "6", a)
        p.op("v_mul_u32_u24", b, str(WOS), b)
        p.op("v_bfe_u32", a, a, "4", "2")
        p.op("v_lshl_add_u32", b, a, "3", b)
        p.op("v_add_u32", V_WQ, str(L_WO), b)
    for T in range(6):
        for ks in range(3):
            w = wb.next()
            off = 32 * ks * WOS + 32 * T
            dep(p.dsr("ds_read_b64_tr_b16", w, 2, V_WQ, off), 3005)
            dep(p.dsr("ds_read_b64_tr_b16", w + 2, 2, V_WQ, off + 16 * WOS), 3005)
            for tt, Y in zip(tiles, Ys):
                d = Y + 4 * T
                p.mfma16(d, w, OR_ + 12 * tt + 4 * ks, None if ks == 0 else d)


if __name__ == "__main__":
    import sched, sim
    class O:
        mask_check = False; sflag = ""; ldszero = "--vz" not in sys.argv
        pk = "".join(a[5:] for a in sys.argv if a.startswith("--pk="))
        def hook(self, p, name, slow): pass
    for a in sys.argv:
        if a.startswith("--ldslat="): sched.Params.lds_lat = int(a[9:])
    p = Prog(); body(p, False, O())
    seq = sched.schedule(p.ins, verbose=True)
    fin = insert_nops(insert_waits(flatten(seq), WaitState()))
    c = {}
    for i in fin: c[i.kind] = c.get(i.kind, 0) + 1
    print(c, "nopstates", sum(i.states for i in fin if i.kind == "nop"), "LDS end", L_END)
    txt = render(fin)
    open("body2" + O.pk + ".txt", "w").write("\n".join(l for l in txt.split("\n") if "buffer_store" not in l))
    st = sim.parse(txt.split("\n"))
    for starts in ([0], [0, 0, 0], [0, 2500, 4000], [0, 5000, 10000]):
        e, bp, bm = sim.simulate(st, starts, verbose=(len(starts) == 3 and starts[1] == 2500))
        print(starts, "->", e, "port busy", bp, "mfma busy", bm)
```

```python
from asmlib import *

ISSUE = {"pk": 4, "dot": 4, "valu": 4, "dpp": 4, "rdlane": 4, "trans": 8, "perm": 8, "mfma": 8, "dsr": 4, "dsw": 4, "vld": 4, "vst": 4,
         "dma": 4, "salu": 4, "smem": 4, "ctrl": 4, "label": 0, "wait": 4, "waittag": 4}


def icost(i):
    if i.kind == "group":
        return sum(ISSUE[x.kind] for x in i.sub)
    return ISSUE[i.kind]


class Params:
    lds_lat = 140
    vm_lat = 1500
    mfma_lat = 64
    mfma_lat16 = 44
    max_lds_out = 12


def raw_latency(p, c, P):
    k = p.kind
    if k == "mfma":
        pw = {r for r in p.wr if r < SB}
        if c.kind == "mfma" and c.c is not None and set(vr(*c.c)) == pw and not (pw & _ab(c)):
            return 4 * p.passes
        return P.mfma_lat if p.passes == 8 else P.mfma_lat16
    if k == "dsr":
        return P.lds_lat
    if k == "vld":
        return P.vm_lat
    if k == "smem":
        return 200
    base = icost(p)
    if c.kind in ("mfma", "perm", "dpp"):
        return base + 8
    if k == "trans":
        return base + 4
    return base


def _ab(i):
    from asmlib import _ab_regs
    return _ab_regs(i)


def schedule(ins, P=Params, verbose=False):
    out, cur = [], []
    total = 0
    for i in ins:
        if i.kind in ("ctrl", "label", "wait", "waittag", "condbegin", "condend", "smem") or getattr(i, "tag", None) == "fence":
            o, t = _sched_block(cur, P)
            out += o
            total += t
            cur = []
            out.append(i)
        else:
            cur.append(i)
    o, t = _sched_block(cur, P)
    out += o
    total += t
    if verbose:
        print("  modeled single-wave cycles:", total)
    return out


def _sched_block(ins, P):
    n = len(ins)
    if n == 0:
        return [], 0
    succ = [[] for _ in range(n)]
    npred = [0] * n
    lastw, readers = {}, {}
    lastmem = {"vm": None}
    edges = {}

    def edge(a, b, lat):
        if a == b:
            return
        if (a, b) in edges:
            edges[(a, b)] = max(edges[(a, b)], lat)
        else:
            edges[(a, b)] = lat

    prev_store = None
    for j, i in enumerate(ins):
        for r in i.rd:
            if r in lastw:
                edge(lastw[r], j, raw_latency(ins[lastw[r]], i, P))
        for r in i.wr:
            if r in lastw:
                p = ins[lastw[r]]
                lat = (P.mfma_lat if p.passes == 8 else P.mfma_lat16) if (p.kind == "mfma" and not (i.kind == "mfma" and i.c is not None and set(vr(*i.c)) == {r for r in p.wr if r < SB})) else icost(p)
                if p.kind in ("dsr", "vld"):
                    lat = P.lds_lat
                edge(lastw[r], j, lat)
            for q in readers.get(r, ()):
                p = ins[q]
                lat = icost(p)
                if p.kind == "mfma" and p.c is not None and r in vr(*p.c):
                    lat = 36 if p.passes == 8 else 20
                if p.kind == "vst":
                    lat = 12
                edge(q, j, lat)
        for r in i.rd:
            readers.setdefault(r, []).append(j)
        for r in i.wr:
            lastw[r] = j
            readers[r] = []
        if i.kind == "vst":
            if prev_store is not None:
                edge(prev_store, j, 4)
            prev_store = j
    for (a, b), lat in edges.items():
        succ[a].append((b, lat))
        npred[b] += 1
    cp = [0] * n
    for j in range(n - 1, -1, -1):
        c = icost(ins[j])
        for b, lat in succ[j]:
            c = max(c, lat + cp[b])
        cp[j] = c
    est = [0] * n
    ready = [j for j in range(n) if npred[j] == 0]
    t = 0
    mfree = 0
    pkfree = 0
    order = []
    lds_out = []
    while ready:
        lds_out = [x for x in lds_out if x > t]
        avail = [j for j in ready if est[j] <= t and not (ins[j].kind == "mfma" and mfree > t) and not (ins[j].kind == "pk" and pkfree > t)
                 and not (ins[j].kind == "dsr" and len(lds_out) >= P.max_lds_out)]
        if not avail:
            nt = min([max(est[j], mfree if ins[j].kind == "mfma" else 0, pkfree if ins[j].kind == "pk" else 0,
                          (min(lds_out) if (ins[j].kind == "dsr" and len(lds_out) >= P.max_lds_out) else 0)) for j in ready])
            t = max(t + 1, nt)
            continue
        mf = [j for j in avail if ins[j].kind == "mfma"]
        mem = [j for j in avail if ins[j].kind in ("dsr", "vld")]
        pks = [j for j in avail if ins[j].kind == "pk"]
        if pks and order and order[-1].kind == "pk":
            j = max(pks, key=lambda x: (cp[x], -x))
        elif mf:
            j = max(mf, key=lambda x: (cp[x], -x))
        elif mem:
            j = max(mem, key=lambda x: (cp[x], -x))
        else:
            j = max(avail, key=lambda x: (cp[x], -x))
        ready.remove(j)
        order.append(ins[j])
        if ins[j].kind == "mfma":
            mfree = t + 4 * ins[j].passes
            pkfree = mfree + 12
        if ins[j].kind == "dsr":
            lds_out.append(t + P.lds_lat)
        for b, lat in succ[j]:
            est[b] = max(est[b], t + lat)
            npred[b] -= 1
            if npred[b] == 0:
                ready.append(b)
        t += icost(ins[j])
    return order, t
```

```python
import sys, math
sys.path.insert(0, "gen")
from asmlib import *
from g2body import *
import g2body as B

NWG, NS, WPW = 252, 27, 12
X_BYTES = 378 * 378 * 96 * 2
MASK_BYTES = 2916 * 49 * 49 * 2
SRD_WQ, SRD_WO, SRD_RIDX, SRD_RC = 12, 16, 24, 28
S_W1, S_W2, S_LS = 48, 64, 96
S_HI48 = 60
S_N12 = 62
S_SWI, S_SWJ, S_IDLE = 46, 47, 59
S_NWIN = 64
S_JO = 65
S_STAMP, NSTAMP = 66, 12
TAU_THR = 24.0
W = S_W
NVGPR = 168

L, G16, N15, L16 = 44, 45, 46, 47
ta, tb, tc, td = 48, 49, 50, 51
WSRC, WA, WD = 52, 53, 60
TBL = 58
TE, GA, GB, GDST, PARA, ONE, rcv = 84, 85, 86, 87, 88, 89, 90
ridx, ridxb, ridxc = 92, 96, 148
u = 100
wov, uu = 116, 128
WOA = 152
X48 = 8
DBG = 160


class Opt:
    mask_check = True
    debug = None
    xflag = mflag = sflag = ""
    ldszero = True
    prio = None
    b2at = 28
    mk1 = "post1"
    mk0 = "post0"
    xint = True
    pk = ""
    touch = True
    touchb = False
    tlim = 1500
    tlimb = 20000


def sal(p, text, rd=(), wr=(), scc=True):
    return p.salu(text, [SB + x for x in rd], [SB + x for x in wr] + ([SCC] if scc else []))


def csel(p, d, a, b, n=1):
    rd = [SCC]
    for x in (a, b):
        if isinstance(x, int):
            rd += sr(x, n)
    f = lambda x: s(x, n) if isinstance(x, int) else x
    return p.salu(f"s_cselect_b{32 * n} {s(d, n)}, {f(a)}, {f(b)}", rd, sr(d, n))


def stamp(p, opt, idx, early=False):
    if not opt.debug or (opt.debug == 3 and idx not in (1, 2, 3, 4, 11)):
        return
    p.add(I(f"s_memtime {s(S_T2, 2)}", "smem", [], sr(S_T2, 2)))
    if early:
        p.op("v_mov_b32", DBG + idx, f"s{S_T2}")
    else:
        p.salu(f"s_mov_b32 {s(S_STAMP + idx)}, {s(S_T2)}", sr(S_T2), sr(S_STAMP + idx)).tag = "fence"


def dbg_early(p, opt):
    if opt.debug:
        for k, r in ((0, 7), (16, 6), (1, 1), (2, 2), (17, 3), (18, 4), (19, 5)):
            p.add(I(f"v_readfirstlane_b32 {s(S_STAMP + k)}, {v(DBG + r)}", "rdlane", [DBG + r], sr(S_STAMP + k)))


def stamp_flush(p, opt):
    if not opt.debug:
        return
    p.wait(vm=0)
    stamp(p, opt, NSTAMP - 1)
    p.smem("s_load_dwordx2", 48, 2, 0, 88)
    sal(p, f"s_mov_b32 s52, s48", [48], [52], False)
    sal(p, f"s_mov_b32 s53, s49", [49], [53], False)
    sal(p, f"s_mov_b32 s54, {1 << 22}", [], [54], False)
    sal(p, f"s_mov_b32 s55, 0x00020000", [], [55], False)
    sal(p, f"s_lshl_b32 {s(S_T0)}, {s(S_WIN)}, 6", [S_WIN], [S_T0])
    sal(p, f"s_mov_b32 {s(S_STAMP + 7)}, {s(S_STAMP + 17)}", [S_STAMP + 17], [S_STAMP + 7], False)
    sal(p, f"s_mov_b32 {s(S_STAMP + 10)}, {s(S_STAMP + 18)}", [S_STAMP + 18], [S_STAMP + 10], False)
    sal(p, f"s_sub_u32 {s(S_STAMP + 12)}, {s(S_STAMP + 19)}, {s(S_STAMP)}", [S_STAMP + 19, S_STAMP], [S_STAMP + 12])
    sal(p, f"s_lshl_b32 {s(S_STAMP + 13)}, s2, 4", [2], [S_STAMP + 13])
    sal(p, f"s_add_u32 {s(S_STAMP + 13)}, {s(S_STAMP + 13)}, {s(W)}", [S_STAMP + 13, W], [S_STAMP + 13])
    p.add(I(f"s_memrealtime {s(S_STAMP + 14, 2)}", "smem", [], sr(S_STAMP + 14, 2)))
    p.op("v_mov_b32", 60, f"s{S_T0}")
    for i in range(15):
        p.op("v_mov_b32", 64 + i, f"s{S_STAMP + i}")
    p.op("v_mov_b32", 64 + 15, f"s{S_STAMP + 16}")
    p.salu("s_mov_b64 exec, 1", [], [EXEC])
    for i in range(4):
        p.vst("buffer_store_dwordx4", 64 + 4 * i, 4, 60, 52, 16 * i)
    p.salu("s_mov_b64 exec, -1", [], [EXEC])


def w_table():
    out = []
    for wp in range(9):
        for lane in range(64):
            c = 64 * wp + lane
            k0, cc = divmod(c, 36)
            rho = 16 * ((k0 >> 2) & 1) + 4 * (k0 >> 3) + (k0 & 3)
            for d in range(4):
                col = 8 * cc + 2 * d
                sec, r = divmod(col, 96)
                h, rem = divmod(r, 24)
                g, i = divmod(rem, 6)
                if sec < 2:
                    i2 = i + 6 * sec
                    ic = 48 * h + 16 * (i2 >> 2) + 4 * g + (i2 & 3)
                else:
                    hp, b = h >> 1, h & 1
                    ic = 192 + 48 * hp + (32 * b + 4 * g + i if i < 4 else 16 + 4 * g + 2 * b + (i - 4))
                out.append(rho * WS + 2 * ic)
    return out


def lane_table():
    out = []
    for lane in range(64):
        n, g_ = lane & 15, lane >> 4
        vals = []
        for tt in range(3):
            t = 16 * tt + n
            vals.append(((t // 7) * 378 + t % 7) * 192 + 16 * g_)
        vals.append((lane >> 2) * WS + (lane & 3) * 8)
        vals.append(X_P48 + (g_ >> 1) * 64 + (n >> 2) * 16 + (g_ & 1) * 8 + (n & 3) * 2)
        vals.append(n * 196 + 16 * g_)
        vals += [0, 0]
        for x in vals:
            out += [x & 0xffff, x >> 16]
    return out


T_LANE = 9 * 512 + 6 * 512
LC = 140


def wo_table():
    out = []
    for wp in range(6):
        for lane in range(64):
            f, l4 = 16 * wp + (lane >> 2), lane & 3
            h, rem = divmod(f, 24)
            g, j = divmod(rem, 6)
            i = 6 * h + j
            rho = 32 * (i >> 3) + 16 * ((i >> 2) & 1) + 4 * g + (i & 3)
            for jj in range(3):
                z = 3 * l4 + jj
                out.append(rho * WOS + 64 * (z >> 2) + 8 * (z & 3))
            out.append(0)
    return out


_wm = [0]


def window_map(p, opt, temps=(66, 67, 68, 69, 70)):
    _wm[0] += 1
    k = _wm[0]
    sA, sB, sC, sD, sf = temps
    swi, swj = S_SWI, S_SWJ
    sal(p, f"s_cmp_lt_u32 s2, {NS}", [2], [])
    p.raw(f"s_cbranch_scc1 L_wmS{k}", rd=[SCC])
    p.cond_begin()
    sal(p, f"s_mul_i32 {s(sf)}, s2, 12", [2], [sf], False)
    sal(p, f"s_add_u32 {s(sf)}, {s(sf)}, {s(W)}", [sf, W], [sf])
    sal(p, f"s_sub_u32 {s(sf)}, {s(sf)}, {12 * NS}", [sf], [sf])
    sal(p, f"s_mul_i32 {s(swi)}, {s(sf)}, 19785", [sf], [swi], False)
    sal(p, f"s_lshr_b32 {s(swi)}, {s(swi)}, 20", [swi], [swi])
    sal(p, f"s_add_u32 {s(S_WIN)}, {s(sf)}, {s(swi)}", [sf, swi], [S_WIN])
    sal(p, f"s_mul_i32 {s(sA)}, {s(swi)}, {(7 * 378 - 7 * 53) * 192}", [swi], [sA], False)
    sal(p, f"s_mul_i32 {s(sB)}, {s(sf)}, {7 * 192}", [sf], [sB], False)
    sal(p, f"s_add_u32 {s(sA)}, {s(sA)}, {s(sB)}", [sA, sB], [sA])
    sal(p, f"s_add_u32 {s(sA)}, {s(sA)}, {(3 * 378 + 3) * 192}", [sA], [sA])
    sal(p, f"s_mov_b32 {s(S_KILL)}, 0", [], [S_KILL], False)
    sal(p, f"s_mov_b32 {s(S_IDLE)}, 0", [], [S_IDLE], False)
    for tt in range(3):
        p.op("v_add_u32", OFF[tt], f"s{sA}", LC + tt)
    p.raw(f"s_branch L_wmE{k}")
    p.cond_end()
    p.label(f"L_wmS{k}")
    p.cond_begin()
    window_map_s(p, opt, temps)
    window_map_v(p, opt)
    p.cond_end()
    p.label(f"L_wmE{k}")
    sal(p, f"s_mul_i32 {s(S_MBASE)}, {s(S_WIN)}, 4802", [S_WIN], [S_MBASE], False)


def window_map_s(p, opt, temps=(66, 67, 68, 69, 70)):
    sA, sB, sC, sD, sf = temps
    swi, swj = S_SWI, S_SWJ
    sal(p, f"s_mul_i32 {s(sA)}, s2, 12", [2], [sA], False)
    sal(p, f"s_add_u32 {s(sA)}, {s(sA)}, {s(W)}", [sA, W], [sA])
    sal(p, f"s_sub_u32 {s(sA)}, {s(sA)}, {12 * NS}", [sA], [sA])
    sal(p, f"s_lshl_b32 {s(sB)}, s2, 2", [2], [sB])
    sal(p, f"s_add_u32 {s(sB)}, {s(sB)}, {s(W)}", [sB, W], [sB])
    sal(p, f"s_add_u32 {s(sC)}, {s(sB)}, {12 * (NWG - NS) - 4}", [sB], [sC])
    sal(p, f"s_cmp_lt_u32 {s(W)}, 4", [W], [])
    csel(p, sC, "2808", sC)
    csel(p, sD, sB, "999")
    sal(p, f"s_cmp_ge_u32 {s(W)}, 8", [W], [])
    csel(p, S_IDLE, "0x80000000", "0")
    csel(p, sC, "0", sC)
    sal(p, f"s_cmp_lt_u32 s2, {NS}", [2], [])
    csel(p, sf, sC, sA)
    csel(p, sD, sD, "999")
    csel(p, S_IDLE, S_IDLE, "0")
    sal(p, f"s_mul_i32 {s(swi)}, {s(sf)}, 19785", [sf], [swi], False)
    sal(p, f"s_lshr_b32 {s(swi)}, {s(swi)}, 20", [swi], [swi])
    sal(p, f"s_mul_i32 {s(swj)}, {s(swi)}, 53", [swi], [swj], False)
    sal(p, f"s_sub_u32 {s(swj)}, {s(sf)}, {s(swj)}", [sf, swj], [swj])
    sal(p, f"s_sub_u32 {s(sA)}, {s(sD)}, 54", [sD], [sA])
    sal(p, f"s_cmp_lt_u32 {s(sD)}, 54", [sD], [])
    csel(p, sA, "53", sA)
    csel(p, sB, sD, "53")
    sal(p, f"s_cmp_lt_u32 {s(sD)}, 107", [sD], [])
    csel(p, swi, sA, swi)
    csel(p, swj, sB, swj)
    csel(p, S_KILL, "1", "0")
    sal(p, f"s_mul_i32 {s(S_WIN)}, {s(swi)}, 54", [swi], [S_WIN], False)
    sal(p, f"s_add_u32 {s(S_WIN)}, {s(S_WIN)}, {s(swj)}", [S_WIN, swj], [S_WIN])
    sal(p, f"s_mul_i32 {s(S_MBASE)}, {s(S_WIN)}, 4802", [S_WIN], [S_MBASE], False)
    sal(p, f"s_mul_i32 {s(swi)}, {s(swi)}, 7", [swi], [swi], False)
    sal(p, f"s_add_u32 {s(swi)}, {s(swi)}, 3", [swi], [swi])
    sal(p, f"s_mul_i32 {s(swj)}, {s(swj)}, 7", [swj], [swj], False)
    sal(p, f"s_add_u32 {s(swj)}, {s(swj)}, 3", [swj], [swj])


O48R = 91


def thin_offsets(p, opt):
    sF, sN, sS, s4b = 34, 35, 46, 47
    sal(p, f"s_lshl_b32 {s(s4b)}, s2, 2", [2], [s4b])
    sal(p, f"s_mul_i32 {s(sF)}, s2, 12", [2], [sF], False)
    sal(p, f"s_sub_u32 {s(sF)}, {s(sF)}, {12 * NS}", [sF], [sF])
    sal(p, f"s_add_u32 {s(sN)}, {s(s4b)}, {12 * (NWG - NS) - 4}", [s4b], [sN])
    sal(p, f"s_cmp_lt_u32 s2, {NS}", [2], [])
    csel(p, sF, sN, sF)
    csel(p, sN, "8", "12")
    csel(p, sS, "4", "0")
    f, wi, wj, sx = ta, tb, tc, td
    def cmp(op, dst, x, y):
        rd = [r for r in (x, y) if isinstance(r, int)] + [SB + int(r[1:]) for r in (x, y) if isinstance(r, str) and r[0] == "s"]
        t = lambda r: v(r) if isinstance(r, int) else r
        p.add(I(f"{op} {s(dst, 2)}, {t(x)}, {t(y)}", "valu", rd, sr(dst, 2)))
    def cnd(d, x, y, m):
        rd = [r for r in (x, y) if isinstance(r, int)] + sr(m, 2)
        t = lambda r: v(r) if isinstance(r, int) else r
        p.add(I(f"v_cndmask_b32 {v(d)}, {t(x)}, {t(y)}, {s(m, 2)}", "valu", rd, [d]))
    m1, m2, m3 = 40, 42, 44
    cmp("v_cmp_gt_u32", m1, f"s{sS}", N15)
    p.op("v_add_u32", f, f"s{sF}", N15)
    p.op("v_mov_b32", wi, "0xaf8")
    cnd(f, f, wi, m1)
    p.op("v_mul_u32_u24", wi, "0x4d49", f)
    p.op("v_lshrrev_b32", wi, "20", wi)
    p.op("v_mul_u32_u24", wj, "53", wi)
    p.op("v_sub_u32", wj, f, wj)
    p.op("v_add_u32", sx, f"s{s4b}", N15)
    p.op("v_mov_b32", f, "0x6b")
    cmp("v_cmp_lt_u32", m2, sx, f)
    cmp("v_cmp_gt_u32", m3, "54", sx)
    p.salu(f"s_and_b64 {s(m1, 2)}, {s(m1, 2)}, {s(m2, 2)}", sr(m1, 2) + sr(m2, 2), sr(m1, 2) + [SCC])
    p.op("v_subrev_u32", f, "54", sx)
    cnd(f, f, "53", m3)
    cnd(sx, "53", sx, m3)
    cnd(wi, wi, f, m1)
    cnd(wj, wj, sx, m1)
    sal(p, f"s_movk_i32 {s(sF)}, 378", [], [sF], False)
    for x in (wi, wj):
        p.op("v_mad_u32_u24", x, x, "7", "9")
        p.op("v_subrev_u32", f, f"s{sF}", x)
        p.op("v_min_u32", x, x, f)
    p.op("v_mad_u32_u24", f, wi, f"s{sF}", wj)
    p.op("v_mul_u32_u24", f, "0xc0", f)
    p.op("v_add_u32", f, f, G16)
    cmp("v_cmp_gt_u32", m1, f"s{sN}", N15)
    p.op("v_bfrev_b32", wi, "1")
    cnd(O48R, wi, f, m1)


def window_map_v(p, opt):
    sA = S_T3
    xa, xb, xc, xd = 48, 49, 50, 51
    sal(p, f"s_movk_i32 {s(sA)}, 378", [], [sA], False)
    p.op("v_or_b32", xa, f"s{S_IDLE}", G16)
    for tt in range(3):
        n, ty, tx = OFF[tt], xb, xc
        a = xd
        if tt == 0:
            n = N15
        else:
            p.op("v_add_u32", n, str(16 * tt), N15)
        p.op("v_mul_u32_u24", ty, "37", n)
        p.op("v_lshrrev_b32", ty, "8", ty)
        p.op("v_mad_i32_i24", tx, ty, "-7", n)
        p.op("v_add_u32", ty, f"s{S_SWI}", ty)
        p.op("v_add_u32", tx, f"s{S_SWJ}", tx)
        p.op("v_subrev_u32", a, f"s{sA}", ty)
        p.op("v_min_u32", ty, ty, a)
        p.op("v_subrev_u32", a, f"s{sA}", tx)
        p.op("v_min_u32", tx, tx, a)
        p.op("v_mad_u32_u24", a, ty, f"s{sA}", tx)
        p.op("v_mul_u32_u24", a, "0xc0", a)
        p.op("v_add_u32", OFF[tt], a, xa)


def x_loads(p, opt, tiles=(0, 1, 2)):
    for tt in tiles:
        for k in range(3):
            p.vld("buffer_load_dwordx4", X(tt, k), 4, OFF[tt], SRD_X, 64 * k, opt.xflag)


def wq_base(p, a, b):
    p.op("v_subrev_u32", a, str(L_BIAS), V_BIAS)
    p.op("v_lshrrev_b32", b, "6", a)
    p.op("v_mul_u32_u24", b, str(WS), b)
    p.op("v_bfe_u32", a, a, "4", "2")
    p.op("v_lshl_add_u32", V_WQ, a, "3", b)


def lds_bases(p, opt):
    p.op("v_add_u32", V_BIAS, str(L_BIAS), L16)
    p.op("v_mov_b32", V_WQ, LC + 3)
    sal(p, f"s_mul_i32 {s(S_T1)}, {s(W)}, {XST}", [W], [S_T1], False)
    sal(p, f"s_add_u32 {s(S_T1)}, {s(S_T1)}, {L_X}", [S_T1], [S_T1])
    p.op("v_add_u32", V_TH, f"s{S_T1}", G16)
    p.op("v_lshl_add_u32", V_TV, N15, "1", f"s{S_T1}")
    p.op("v_add_u32", V_PW, f"s{S_T1}", LC + 4)
    p.op("v_mov_b32", PARA, str(L_PAR))


def pro_common(p, opt):
    p.salu(f"s_cmp_ge_u32 s2, {NWG}", sr(2), [SCC])
    p.raw("s_cbranch_scc1 L_end", rd=[SCC])
    if opt.debug:
        p.add(I(f"s_memtime {s(S_T2, 2)}", "smem", [], sr(S_T2, 2)))
        p.op("v_mov_b32", DBG + 7, f"s{S_T2}")
        p.add(I(f"s_memrealtime {s(S_T2, 2)}", "smem", [], sr(S_T2, 2)))
        p.op("v_mov_b32", DBG + 6, f"s{S_T2}")
    for srd, off in ((SRD_WQ, 8), (SRD_WO, 16), (SRD_RC, 48), (SRD_RIDX, 56), (SRD_X, 0), (SRD_MASK, 64), (SRD_OUT, 72)):
        p.smem("s_load_dwordx2", srd, 2, 0, off)
    p.smem("s_load_dwordx2", 32, 2, 0, 24)
    p.smem("s_load_dwordx4", 36, 4, 0, 32)
    p.op("v_lshrrev_b32", ta, "6", 0)
    p.op("v_and_b32", L, "63", 0)
    p.add(I(f"v_readfirstlane_b32 {s(W)}, {v(ta)}", "rdlane", [ta], sr(W)))
    p.add(I(f"s_getpc_b64 {s(72, 2)}", "salu", [], sr(72, 2)))
    p.add(I("s_add_u32 s72, s72, wtab@rel32@lo+4", "salu", sr(72), sr(72) + [SCC]))
    p.add(I("s_addc_u32 s73, s73, wtab@rel32@hi+12", "salu", sr(73) + [SCC], sr(73) + [SCC]))
    sal(p, f"s_min_u32 s74, {s(W)}, 8", [W], [74])
    sal(p, f"s_lshl_b32 s74, s74, 6", [74], [74])
    p.op("v_add_u32", ta, "s74", L)
    p.op("v_lshlrev_b32", tb, "3", ta)
    p.add(I(f"global_load_dwordx2 {v(TBL, 2)}, {v(tb)}, {s(72, 2)}", "vld", [tb] + sr(72, 2), vr(TBL, 2)))
    p.op("v_lshlrev_b32", WSRC, "4", ta)
    sal(p, f"s_add_u32 s74, {s(W)}, 5", [W], [74])
    sal(p, f"s_min_u32 s74, s74, 14", [74], [74])
    sal(p, f"s_lshl_b32 s74, s74, 9", [74], [74])
    p.op("v_lshl_add_u32", td, L, "3", "s74")
    p.add(I(f"global_load_dwordx2 {v(WOA + 2, 2)}, {v(td)}, {s(72, 2)}", "vld", [td] + sr(72, 2), vr(WOA + 2, 2)))
    p.op("v_lshlrev_b32", tc, "5", L)
    p.op("v_add_u32", tc, str(T_LANE), tc)
    p.add(I(f"global_load_dwordx4 {v(LC, 4)}, {v(tc)}, {s(72, 2)}", "vld", [tc] + sr(72, 2), vr(LC, 4)))
    p.add(I(f"global_load_dwordx2 {v(LC + 4, 2)}, {v(tc)}, {s(72, 2)} offset:16", "vld", [tc] + sr(72, 2), vr(LC + 4, 2)))
    for srd, nb in ((SRD_WQ, 96 * 288 * 2), (SRD_WO, 96 * 96 * 2), (SRD_RC, 169 * 4), (SRD_RIDX, 49 * 49 * 4), (SRD_X, X_BYTES),
                    (SRD_MASK, MASK_BYTES), (SRD_OUT, X_BYTES)):
        sal(p, f"s_mov_b32 {s(srd + 2)}, {nb}", [], [srd + 2], False)
        sal(p, f"s_mov_b32 {s(srd + 3)}, 0x00020000", [], [srd + 3], False)
    for i in range(6):
        sal(p, f"s_mov_b32 {s(76 + i)}, {9216 * i}", [], [76 + i], False)
    sal(p, f"s_sub_u32 s74, {s(W)}, 9", [W], [74])
    sal(p, f"s_lshl_b32 s74, s74, 8", [74], [74])
    p.op("v_lshl_add_u32", TE, L, "2", "s74")
    sal(p, f"s_cmp_gt_u32 {s(W)}, 8", [W], [])
    p.wait(lgkm=0)
    p.raw("s_cbranch_scc1 L_c9", rd=[SCC])
    p.cond_begin()
    w_loads(p)
    p.smem("s_load_dwordx2", S_LS, 2, 32, 0)
    p.raw("s_branch L_c10")
    p.cond_end()
    p.label("L_c9")
    p.cond_begin()
    p.vld("buffer_load_dword", rcv, 1, TE, SRD_RC, 0)
    p.smem("s_load_dwordx16", S_W1, 16, 36, 0)
    p.smem("s_load_dwordx16", S_W2, 16, 38, 0)
    p.smem("s_load_dwordx16", S_W2 + 16, 16, 38, 64)
    p.cond_end()
    p.label("L_c10")
    if opt.debug:
        p.add(I(f"s_memtime {s(34, 2)}", "smem", [], sr(34, 2)))
        p.op("v_mov_b32", DBG + 1, "s34")
    if opt.touch:
        p.raw("<touchA>", kind="label")
    p.op("v_and_b32", N15, "15", L)
    p.op("v_and_b32", G16, "48", L)
    p.op("v_lshlrev_b32", L16, "4", L)
    sal(p, f"s_cmp_lt_u32 {s(W)}, 4", [W], [])
    p.raw("s_cbranch_scc1 L_pathO", rd=[SCC])


def w_loads(p):
    for i in range(6):
        p.add(I(f"buffer_load_dwordx4 {v(WD + 4 * i, 4)}, {v(WSRC)}, {s(SRD_WQ, 4)}, {s(76 + i)} offen", "vld",
                [WSRC] + sr(SRD_WQ, 4) + sr(76 + i), vr(WD + 4 * i, 4)))


def w_scatter(p):
    p.op("v_and_b32", WA, "0xffff", TBL)
    p.op("v_lshrrev_b32", WA + 1, "16", TBL)
    p.op("v_and_b32", WA + 2, "0xffff", TBL + 1)
    p.op("v_lshrrev_b32", WA + 3, "16", TBL + 1)
    assert L_WI == 0 and (8 * WS) % 256 == 0
    for i in range(0, 6, 2):
        for d in range(4):
            o0 = (i >> 1) * 32 * WS // 256
            p.add(I(f"ds_write2st64_b32 {v(WA + d)}, {v(WD + 4 * i + d)}, {v(WD + 4 * i + 4 + d)} offset0:{o0} offset1:{o0 + 8 * WS // 256}",
                    "dsw", [WA + d, WD + 4 * i + d, WD + 4 * i + 4 + d], []))


def consts(p, opt):
    sal(p, f"s_mov_b32 {s(S_EPSQ)}, {f32(0.25e-12)}", [], [S_EPSQ], False)
    sal(p, f"s_mov_b32 {s(S_EPSLN)}, {f32(24e-5)}", [], [S_EPSLN], False)
    for r, val in ((S_MA, 0x33333333), (S_MA + 1, 0x33333333), (S_MB, 0xcccccccc), (S_MB + 1, 0xcccccccc)):
        sal(p, f"s_mov_b32 {s(r)}, {val:#x}", [], [r], False)
    sal(p, f"s_cmp_lt_u32 s2, {NS}", [2], [])
    csel(p, S_NWIN, "8", "12")


def tau_rd(p):
    p.dsr("ds_read_b128", 156, 4, PARA, 0)


def tau_use(p):
    for h in range(4):
        p.add(I(f"v_readfirstlane_b32 {s(S_TAU + h)}, {v(156 + h)}", "rdlane", [156 + h], sr(S_TAU + h)))
    sal(p, f"s_max_u32 {s(S_T0)}, {s(S_TAU)}, {s(S_TAU + 1)}", [S_TAU, S_TAU + 1], [S_T0])
    sal(p, f"s_max_u32 {s(S_T1)}, {s(S_TAU + 2)}, {s(S_TAU + 3)}", [S_TAU + 2, S_TAU + 3], [S_T1])
    sal(p, f"s_max_u32 {s(S_T0)}, {s(S_T0)}, {s(S_T1)}", [S_T0, S_T1], [S_T0])
    sal(p, f"s_cmp_gt_u32 {s(S_T0)}, {f32(TAU_THR * LOG2E)}", [S_T0], [])
    csel(p, S_UNSAFE, "1", "0")


def gather_addr(p, dst, spos, base):
    sal(p, f"s_lshr_b32 s69, {s(spos)}, 2", [spos], [69])
    sal(p, f"s_and_b32 s68, {s(spos)}, 3", [spos], [68])
    sal(p, f"s_mul_i32 s69, s69, {16 * 196}", [69], [69], False)
    sal(p, f"s_lshl_b32 s68, s68, 6", [68], [68])
    sal(p, f"s_add_u32 s68, s68, s69", [68, 69], [68])
    p.op("v_add_u32", dst, "s68", base)


def gather_prep(p, regs):
    for base in regs:
        for r in range(4):
            p.op("v_min_u32", base + r, "0xa8", base + r)
            p.op("v_lshl_add_u32", base + r, base + r, "4", f"s{S_T0}")
    sal(p, f"s_and_b32 {s(S_T0)}, {s(W)}, 3", [W], [S_T0])
    sal(p, f"s_cmp_eq_u32 {s(S_T0)}, 3", [S_T0], [])
    csel(p, S_HI48, "0xffff0000", "0")
    csel(p, S_HI48 + 1, "-1", "0")


def gather_rd(p, g, idx):
    for r in range(4):
        p.dsr("ds_read_b128", g + 4 * r, 4, idx + r, 0)


def gather_wr(p, g, extra):
    for h in range(4):
        p.add(I(f"v_cndmask_b32 {v(g + h)}, {v(g + h)}, {v(NEGR)}, {s(S_HI48, 2)}", "valu",
                [g + h, NEGR] + sr(S_HI48, 2), [g + h]))
    for i in range(4):
        for j in range(i + 1, 4):
            a_, b_ = g + 4 * i + j, g + 4 * j + i
            p.add(I(f"v_swap_b32 {v(a_)}, {v(b_)}", "valu", [a_, b_], [a_, b_]))
    for h in range(4):
        p.dsw("ds_write_b128", GDST, g + 4 * h, 4, 12288 * h + extra)


NEGR = 57
GC = 153


def path_o(p, opt):
    p.label("L_pathO")
    p.raw("s_waitcnt vmcnt(6)", kind="salu")
    p.ins.append(I("", "forgetv", rd=[LC + 4], states=0))
    window_map(p, opt)
    p.raw("s_barrier")
    x_loads(p, opt)
    stamp(p, opt, 2, early=True)
    w_scatter(p)
    lds_bases(p, opt)
    consts(p, opt)
    dbg_early(p, opt)
    if opt.touchb:
        p.raw("<touchB>", kind="label")
    p.wait(vm=9, lgkm=0)
    p.raw("s_barrier")
    stamp(p, opt, 3)
    tau_rd(p)
    tau_use(p)
    stamp(p, opt, 4)
    p.label("L_join")


def signal(p, which):
    p.salu("s_mov_b64 exec, 1", [], [EXEC])
    p.add(I(f"ds_add_u32 {v(PARA)}, {v(ONE)} offset:{L_CNT - L_PAR + 4 * which}", "dsw", [PARA, ONE], []))
    p.salu("s_mov_b64 exec, -1", [], [EXEC])


def path_y(p, opt):
    sB = S_T1
    sal(p, f"s_sub_u32 {s(sB)}, {s(W)}, 4", [W], [sB])
    sal(p, f"s_cmp_lt_u32 {s(W)}, 8", [W], [])
    p.raw("s_cbranch_scc1 L_rg", rd=[SCC])
    p.cond_begin()
    thin_offsets(p, opt)
    for k in range(3):
        p.vld("buffer_load_dwordx4", X48 + 4 * k, 4, O48R, SRD_X, 64 * k)
    p.op("v_lshlrev_b32", GB, "2", L)
    p.op("v_add_u32", GB, str(48 * 196), GB)
    p.vld("buffer_load_dword", 116, 1, GB, SRD_RIDX, 0)
    p.raw("s_branch L_re")
    p.cond_end()
    p.label("L_rg")
    p.cond_begin()
    p.op("v_mul_u32_u24", ta, "0xc4", N15)
    sal(p, f"s_lshl_b32 {s(S_T0)}, {s(sB)}, 6", [sB], [S_T0])
    p.op("v_add3_u32", GA, ta, G16, f"s{S_T0}")
    p.op("v_add_u32", GC, str(32 * 196), GA)
    p.vld("buffer_load_dwordx4", ridx, 4, GA, SRD_RIDX, 0)
    p.vld("buffer_load_dwordx4", ridxb, 4, GA, SRD_RIDX, 16 * 196)
    p.vld("buffer_load_dwordx4", ridxc, 4, GC, SRD_RIDX, 0)
    p.cond_end()
    p.label("L_re")
    p.raw("s_barrier")
    sal(p, f"s_mul_i32 {s(S_T0)}, {s(sB)}, 3072", [sB], [S_T0], False)
    p.op("v_mul_u32_u24", ta, "48", L)
    p.op("v_add_u32", WOA, f"s{S_T0}", ta)
    sal(p, f"s_lshl_b32 {s(S_T0)}, {s(sB)}, 10", [sB], [S_T0])
    p.op("v_add_u32", GDST, str(L_BIAS), L16)
    p.op("v_add_u32", GDST, f"s{S_T0}", GDST)
    stamp(p, opt, 2, early=True)
    sal(p, f"s_cmp_lt_u32 {s(W)}, 9", [W], [])
    p.raw("s_cbranch_scc1 L_notab", rd=[SCC])
    p.cond_begin()
    p.raw("s_setprio 3", kind="salu")
    p.raw("s_waitcnt vmcnt(4) lgkmcnt(0)", kind="salu")
    p.ins.append(I("", "forget", rd=[rcv], states=0))
    hb = u
    tmps = [S_LS, S_LS + 1, S_T0, S_T1, S_T2, S_T3]
    def packs1(jp):
        a_, b_ = S_W1 + jp, S_W1 + 8 + jp
        sal(p, f"s_pack_ll_b32_b16 {s(tmps[jp % 6])}, {s(a_)}, {s(b_)}", [a_, b_], [tmps[jp % 6]], False)
        sal(p, f"s_pack_hh_b32_b16 {s(b_)}, {s(a_)}, {s(b_)}", [a_, b_], [b_], False)
    for jp in range(3):
        packs1(jp)
    for jp in range(8):
        if jp + 3 < 8:
            packs1(jp + 3)
        p.op("v_dot2_f32_bf16", hb + 2 * jp, rcv, f"s{tmps[jp % 6]}", "0", kind="dot")
        p.op("v_dot2_f32_bf16", hb + 2 * jp + 1, rcv, f"s{S_W1 + 8 + jp}", "0", kind="dot")
    acc = hb + 8
    def packs2(jp):
        for h in range(4):
            r0, r1 = S_W2 + 4 * jp + (h >> 1), S_W2 + 4 * jp + 2 + (h >> 1)
            nm = "s_pack_hh_b32_b16" if h & 1 else "s_pack_ll_b32_b16"
            st = S_W1 + (4 * jp + h) % 16
            sal(p, f"{nm} {s(st)}, {s(r0)}, {s(r1)}", [r0, r1], [st], False)
    for j in range(8):
        p.op("v_cvt_pk_bf16_f32", hb + j, hb + 2 * j, hb + 2 * j + 1)
        if j < 3:
            packs2(j)
    for j in range(8):
        p.op("v_pk_max_i16", hb + j, hb + j, "0")
    for jp in range(8):
        for h in range(4):
            st = S_W1 + (4 * jp + h) % 16
            if jp == 0:
                p.op("v_dot2_f32_bf16", acc + h, hb, f"s{st}", "0", kind="dot")
            else:
                p.op("v_dot2_f32_bf16", acc + h, hb + jp, f"s{st}", acc + h, kind="dot").tag = "acc"
        if jp + 3 < 8:
            packs2(jp + 3)
    p.op("v_mov_b32", ta, f32(16.0 * LOG2E))
    p.op("v_lshlrev_b32", TE, "2", TE)
    p.op("v_add_u32", TE, str(L_TAB), TE)
    for step in range(9):
        for h in range(4):
            a = acc + h
            if step == 0: p.op("v_cvt_pk_bf16_f32", a, a, a)
            if step == 1: p.op("v_and_b32", a, "0xffff0000", a)
            if step == 2: p.op("v_mul_f32", a, f32(-LOG2E), a)
            if step == 3: p.op("v_exp_f32", a, a, kind="trans")
            if step == 4: p.op("v_add_f32", a, "1.0", a)
            if step == 5: p.op("v_rcp_f32", a, a, kind="trans")
            if step == 6: p.op("v_cvt_pk_bf16_f32", a, a, a)
            if step == 7: p.op("v_and_b32", a, "0xffff0000", a)
            if step == 8:
                p.op("v_fmaak_f32", a, a, ta, f32(-8.0 * LOG2E))
    p.dsw("ds_write_b128", TE, acc, 4, 0)
    p.raw("s_setprio 0", kind="salu")
    p.cond_end()
    p.label("L_notab")
    p.raw("s_waitcnt vmcnt(5)", kind="salu")
    p.ins.append(I("", "forgetv", rd=[LC + 4], states=0))
    lds_bases(p, opt)
    sal(p, f"s_cmp_lg_u32 {s(W)}, 4", [W], [])
    p.raw("s_cbranch_scc1 L_notau", rd=[SCC])
    p.cond_begin()
    p.wait(lgkm=0)
    for h in range(4):
        src, st = S_LS + (h >> 1), S_W1 + h
        if h & 1:
            sal(p, f"s_and_b32 {s(st)}, {s(src)}, 0xffff0000", [src], [st])
        else:
            sal(p, f"s_lshl_b32 {s(st)}, {s(src)}, 16", [src], [st])
        p.op("v_mov_b32", u + h, f"s{st}")
    for h in range(4):
        x = u + h
        p.op("v_min_f32", x, "0x40930000", x)
        p.op("v_max_f32", x, "0xc2c80000", x)
        p.op("v_mul_f32", x, f32(LOG2E), x)
        p.op("v_exp_f32", x, x, kind="trans")
    for h in range(4):
        x = u + h
        p.op("v_cvt_pk_bf16_f32", x, x, x)
        p.op("v_and_b32", x, "0xffff0000", x)
        p.op("v_mul_f32", x, f32(LOG2E), x)
    p.dsw("ds_write_b128", PARA, u, 4, 0)
    for i in range(4):
        p.op("v_mov_b32", u + 4 + i, "0")
    p.dsw("ds_write_b128", PARA, u + 4, 4, L_CNT - L_PAR)
    p.op("v_min_u32", tc, "11", N15)
    p.op("v_mul_u32_u24", tc, str(XST), tc)
    p.op("v_add_u32", tc, tc, G16)
    p.op("v_add_u32", tc, str(L_X + X_Z), tc)
    p.dsw("ds_write_b32", tc, u + 4, 1, 0)
    for i in range(4):
        p.op("v_mov_b32", u + 8 + i, "0x3f803f80")
    p.dsw("ds_write_b128", V_BIAS, u + 8, 4, L_ONES - L_BIAS)
    z = u + 10
    p.op("v_and_b32", ta, "1", L)
    p.op("v_lshlrev_b32", ta, "4", ta)
    p.op("v_mov_b32", tb, "0x3f80")
    p.op("v_lshlrev_b32", ta, ta, tb)
    sal(p, f"s_mov_b32 s50, 0x33333333", [], [50], False)
    sal(p, f"s_mov_b32 s51, 0x33333333", [], [51], False)
    p.wait(lgkm=0)
    for r in (z, z + 1, z + 4, z + 5):
        p.op("v_mov_b32", r, "0")
    p.add(I(f"v_cndmask_b32 {v(z + 2)}, 0, {v(ta)}, {s(50, 2)}", "valu", [ta] + sr(50, 2), [z + 2]))
    p.add(I(f"v_cndmask_b32 {v(z + 3)}, {v(ta)}, 0, {s(50, 2)}", "valu", [ta] + sr(50, 2), [z + 3]))
    p.dsw("ds_write_b128", V_BIAS, z + 2, 4, L_SEL - L_BIAS)
    p.dsw("ds_write_b128", V_BIAS, z, 4, L_SEL + 1024 - L_BIAS)
    p.cond_end()
    p.label("L_notau")
    if opt.debug is True:
        stamp(p, opt, 3, early=True)
        p.wait(vm=6)
        stamp(p, opt, 4, early=True)
    sal(p, f"s_cmp_gt_u32 {s(W)}, 8", [W], [])
    p.raw("s_cbranch_scc1 L_nosc", rd=[SCC])
    p.cond_begin()
    w_scatter(p)
    p.cond_end()
    p.label("L_nosc")
    if opt.debug is True:
        p.wait(lgkm=0)
        stamp(p, opt, 5, early=True)
    p.wait(lgkm=0)
    window_map(p, opt, temps=(48, 49, 50, 51, 52))
    sal(p, f"s_mov_b32 {s(S_T0)}, {L_TAB}", [], [S_T0], False)
    p.op("v_mov_b32", NEGR, f32(NEG_BIG))
    p.op("v_mov_b32", ONE, "1")
    sal(p, f"s_cmp_ge_u32 {s(W)}, 8", [W], [])
    p.raw("s_cbranch_scc1 L_tp", rd=[SCC])
    p.cond_begin()
    gather_prep(p, [ridx, ridxb, ridxc])
    p.raw("s_branch L_tq")
    p.cond_end()
    p.label("L_tp")
    p.cond_begin()
    thin_prep(p, opt)
    p.cond_end()
    p.label("L_tq")
    consts(p, opt)
    sal(p, f"s_mov_b32 {s(S_N12)}, 0x0fff0fff", [], [S_N12], False)
    sal(p, f"s_mov_b32 {s(S_N12 + 1)}, 0x0fff0fff", [], [S_N12 + 1], False)
    dbg_early(p, opt)
    p.raw("s_barrier")
    stamp(p, opt, 3)
    p.raw("s_setprio 3", kind="salu")
    tau_rd(p)
    p.wait(vm=0)
    sal(p, f"s_cmp_ge_u32 {s(W)}, 8", [W], [])
    p.raw("s_cbranch_scc1 L_thin", rd=[SCC])
    p.cond_begin()
    gather_rd(p, u, ridx)
    gather_rd(p, 60, ridxb)
    gather_rd(p, 128, ridxc)
    for i in range(3):
        p.vld("buffer_load_dwordx4", wov + 4 * i, 4, WOA, SRD_WO, 16 * i)
    if opt.xint:
        x_loads(p, opt, (0,))
    gather_wr(p, u, 0)
    if opt.xint:
        x_loads(p, opt, (1,))
    gather_wr(p, 60, 4096)
    gather_wr(p, 128, 8192)
    signal(p, 0)
    if opt.debug is True:
        stamp(p, opt, 17)
    x_loads(p, opt, (2,) if opt.xint else (0, 1, 2))
    p.raw("s_branch L_xdone")
    p.cond_end()
    p.label("L_thin")
    p.cond_begin()
    thin_jobs(p, opt)
    p.cond_end()
    p.label("L_sig0")
    signal(p, 0)
    if opt.debug is True:
        stamp(p, opt, 17)
    p.ins.append(I("", "vmreset", states=0))
    for i in range(3):
        p.vld("buffer_load_dwordx4", wov + 4 * i, 4, WOA, SRD_WO, 16 * i)
    x_loads(p, opt)
    p.label("L_xdone")
    tau_use(p)
    stamp(p, opt, 4)
    sal(p, f"s_cmp_ge_u32 {s(W)}, 10", [W], [])
    p.raw("s_cbranch_scc1 L_nowo", rd=[SCC])
    p.cond_begin()
    for i in range(12):
        p.op("v_lshlrev_b32", uu + 2 * i, "16", wov + i)
        p.op("v_and_b32", uu + 2 * i + 1, "0xffff0000", wov + i)
    sm = 50
    def pk(name, d, a, b, mods=""):
        p.add(I(f"{name} {v(d, 2)}, {v(a, 2)}, {v(b, 2)}{mods}", "valu", vr(a, 2) + vr(b, 2), vr(d, 2)))
    pk("v_pk_add_f32", sm, uu, uu + 2)
    for i in range(2, 12):
        pk("v_pk_add_f32", sm, sm, uu + 2 * i)
    p.op("v_add_f32", sm, sm, sm + 1)
    for ctl in ("quad_perm:[1,0,3,2]", "quad_perm:[2,3,0,1]"):
        p.add(I(f"v_add_f32_dpp {v(sm)}, {v(sm)}, {v(sm)} {ctl} row_mask:0xf bank_mask:0xf", "dpp", [sm], [sm]))
    p.op("v_mul_f32", sm, f32(-1.0 / 96.0), sm)
    for i in range(12):
        pk("v_pk_add_f32", uu + 2 * i, uu + 2 * i, sm, " op_sel_hi:[1,0]")
    for i in range(12):
        p.op("v_cvt_pk_bf16_f32", wov + i, uu + 2 * i, uu + 2 * i + 1)
    sal(p, f"s_mov_b32 {s(S_T0)}, {L_WO}", [], [S_T0], False)
    p.op("v_and_b32", 60, "0xffff", WOA + 2)
    p.op("v_lshrrev_b32", 61, "16", WOA + 2)
    p.op("v_and_b32", 62, "0xffff", WOA + 3)
    for i in range(3):
        p.op("v_add_u32", 60 + i, f"s{S_T0}", 60 + i)
        p.add(I(f"ds_write2_b64 {v(60 + i)}, {v(wov + 4 * i, 2)}, {v(wov + 4 * i + 2, 2)} offset0:0 offset1:4", "dsw",
                [60 + i] + vr(wov + 4 * i, 4), []))
    signal(p, 1)
    p.cond_end()
    p.label("L_nowo")
    p.wait(vm=9, lgkm=0)
    p.raw("s_setprio 0", kind="salu")
    sal(p, f"s_cmp_lg_u32 {s(S_IDLE)}, 0", [S_IDLE], [])
    p.raw("s_cbranch_scc1 L_end", rd=[SCC])
    p.raw("s_branch L_join")


WQH, DST, TAUA, DKQ, WVF, DVF, WVS = 60, 61, 62, 63, 108, 109, 84
RB48 = 90


def thin_prep(p, opt):
    hS = 53
    p.op("v_min_u32", 117, "0xa8", 116)
    p.op("v_lshl_add_u32", RB48, 117, "4", f"s{S_T0}")
    sal(p, f"s_sub_u32 {s(hS)}, {s(W)}, 8", [W], [hS])
    sal(p, f"s_mul_i32 {s(S_T0)}, {s(hS)}, 96", [hS], [S_T0], False)
    p.op("v_add_u32", WQH, f"s{S_T0}", V_WQ)
    sal(p, f"s_lshr_b32 s54, {s(hS)}, 1", [hS], [54])
    sal(p, f"s_and_b32 s55, {s(hS)}, 1", [hS], [55])
    sal(p, f"s_mul_i32 {s(S_T1)}, s54, 96", [54], [S_T1], False)
    p.op("v_add_u32", WVS, f"s{S_T1}", V_WQ)
    sal(p, f"s_lshl_b32 {s(S_T2)}, s55, 6", [55], [S_T2])
    p.op("v_add_u32", WVF, f"s{S_T2}", WVS)
    p.op("v_mul_u32_u24", DST, str(XST), N15)
    sal(p, f"s_lshl_b32 {s(S_T0)}, {s(hS)}, 7", [hS], [S_T0])
    sal(p, f"s_add_u32 {s(S_T0)}, {s(S_T0)}, {L_X + X_KQ}", [S_T0], [S_T0])
    p.op("v_add3_u32", DKQ, DST, G16, f"s{S_T0}")
    sal(p, f"s_lshl_b32 {s(S_T3)}, {s(hS)}, 2", [hS], [S_T3])
    p.op("v_add_u32", TAUA, f"s{S_T3}", PARA)
    sal(p, f"s_lshl_b32 s56, s54, 7", [54], [56])
    sal(p, f"s_add_u32 s56, s56, {L_X + X_V48}", [56], [56])
    p.op("v_lshrrev_b32", DVF, "1", G16)
    p.op("v_add3_u32", DST, DST, DVF, "s56")
    sal(p, f"s_mul_i32 s56, s55, 96", [55], [56], False)
    p.op("v_add_u32", DVF, "s56", DST)
    for r in (105, 106, 107):
        p.op("v_mov_b32", r, "0")
    p.op("v_mov_b32", 85, "0x3f803f80")
    p.op("v_mov_b32", 86, "0x3f803f80")
    p.op("v_lshlrev_b32", 153, "2", L)
    p.op("v_add_u32", 153, str(L_OFF48), 153)
    p.add(I(f"v_cmp_lt_u32 {s(56, 2)}, 48, {v(L)}", "valu", [L], sr(56, 2)))


def thin_jobs(p, opt):
    import sched
    Lh, FD, SD = 64, 76, 80
    wqs = [128, 132, 136, 140, 144, 20, 24, 28, 32]
    wfs = [36, 40, 112]
    wss = [116, 120, 124]
    SL, NP, D, BB = 100, 104, 20, 148
    ss = [110, 111]
    Sa, Sb = 84, 86
    n0 = len(p.ins)
    for T in range(3):
        for ks in range(3):
            r = wqs[3 * T + ks]
            off = L_WI + 32 * ks * WS + 32 * T
            p.dsr("ds_read_b64_tr_b16", r, 2, WQH, off)
            p.dsr("ds_read_b64_tr_b16", r + 2, 2, WQH, off + 16 * WS)
            p.mfma16(Lh + 4 * T, r, X48 + 4 * ks, None if ks == 0 else Lh + 4 * T)
    p.dsr("ds_read_b32", TAUA, 1, TAUA, 0)
    p.dsr("ds_read_b128", SL, 4, V_BIAS, L_SEL - L_BIAS)
    for (ws, ad, o, d) in ((wfs, WVF, 384, FD), (wss, WVS, 416, SD)):
        for ks in range(3):
            off = L_WI + 32 * ks * WS + o
            p.dsr("ds_read_b64_tr_b16", ws[ks], 2, ad, off)
            p.dsr("ds_read_b64_tr_b16", ws[ks] + 2, 2, ad, off + 16 * WS)
            p.mfma16(d, ws[ks], X48 + 4 * ks, None if ks == 0 else d)
    p.dsr("ds_read_b128", BB, 4, RB48, 0)
    for e in range(2):
        for i in range(6):
            x = Lh + 6 * e + i
            if i == 0:
                p.op("v_fma_f32", ss[e], x, x, f"s{S_EPSQ}")
            else:
                p.op("v_fmac_f32", ss[e], x, x, rmw=True)
    p.op("v_cvt_pk_bf16_f32", NP, ss[0], ss[1])
    p.mfma16(D, SL, NP, None)
    p.op("v_cvt_pk_bf16_f32", FD, FD, FD + 1)
    p.op("v_cvt_pk_bf16_f32", FD + 1, FD + 2, FD + 3)
    p.op("v_cvt_pk_bf16_f32", Sa, SD, SD + 1)
    p.op("v_cvt_pk_bf16_f32", Sb + 1, SD + 2, SD + 3)
    for h in range(4):
        p.add(I(f"v_cndmask_b32 {v(BB + h)}, {v(BB + h)}, {v(NEGR)}, {s(56, 2)}", "valu", [BB + h, NEGR] + sr(56, 2), [BB + h]))
    p.dsw("ds_write_b128", V_BIAS, BB, 4, L_B48 - L_BIAS)
    p.dsw("ds_write_b32", 153, O48R, 1, 0)
    p.op("v_rsq_f32", D, D, kind="trans")
    p.op("v_rsq_f32", D + 1, D + 1, kind="trans")
    p.op("v_mul_f32", D, D, TAUA)
    for i in range(12):
        p.op("v_mul_f32", Lh + i, Lh + i, D + i // 6)
    for i in range(3):
        p.op("v_cvt_pk_bf16_f32", Lh + i, Lh + 2 * i, Lh + 2 * i + 1)
    p.op("v_mov_b32", Lh + 3, "0")
    for i in range(3):
        p.op("v_cvt_pk_bf16_f32", Lh + 4 + i, Lh + 6 + 2 * i, Lh + 7 + 2 * i)
    p.op("v_mov_b32", Lh + 7, "0")
    blk = sched.schedule(p.ins[n0:])
    p.ins = p.ins[:n0] + blk
    p.salu(f"s_mov_b64 exec, {s(S_N12, 2)}", sr(S_N12, 2), [EXEC])
    p.dsw("ds_write_b64", DVF, FD, 2, 0)
    p.dsw("ds_write_b64", DST, Sa, 2, 32)
    p.dsw("ds_write_b64", DST, Sb, 2, 64)
    p.dsw("ds_write_b128", DKQ, Lh + 4, 4, 0)
    p.dsw("ds_write_b128", DKQ, Lh, 4, 64)
    p.salu("s_mov_b64 exec, -1", [], [EXEC])


def poll(p, slow, which, target, r, res, sleep=False):
    lbl = f"L_poll{which}" + ("s" if slow else "f")
    def gg():
        p.label(lbl)
        if sleep:
            p.raw("s_sleep 4", kind="salu")
        p.op("v_mov_b32", r, str(L_CNT + 4 * which))
        p.dsr("ds_read_b32", r, 1, r, 0)
        p.add(I(f"v_readfirstlane_b32 {s(S_B2)}, {v(r)}", "rdlane", [r], sr(S_B2)))
        sal(p, f"s_sub_u32 {s(S_JO)}, {s(S_JO)}, 1", [S_JO], [S_JO])
        p.raw(f"s_cbranch_scc1 {lbl}x", kind="salu", rd=[SCC])
        if isinstance(target, int):
            p.salu(f"s_cmp_lt_u32 {s(S_B2)}, {target}", sr(S_B2), [SCC])
        else:
            p.salu(f"s_cmp_lt_u32 {s(S_B2)}, {target}", sr(S_B2) + sr(int(target[1:])), [SCC])
        p.raw(f"s_cbranch_scc1 {lbl}", kind="salu", rd=[SCC])
        p.label(lbl + "x")
    gr = p.group(gg)
    gr.wr = gr.wr | {res}
    return gr


MQ = [OR_ + 8, OR_ + 20, OR_ + 32, OR_ + 8, OR_ + 20]


def mask_ld(p, opt, i):
    r = MQ[i]
    if i < 4:
        p.vld("buffer_load_dwordx4", r, 4, V_BIAS, SRD_MCHK, 1024 * i, opt.mflag)
    else:
        p.add(I(f"buffer_load_dwordx4 {v(r, 4)}, {v(V_BIAS)}, {s(SRD_MCHK, 4)}, {s(S_C4096)} offen{opt.mflag}", "vld",
                [V_BIAS] + sr(SRD_MCHK, 4) + sr(S_C4096), vr(r, 4)))
    return p.ins[-1]


def mask_use(p, opt, i):
    r = MQ[i]
    p.op("v_or3_b32", r, r, r + 1, r + 2)
    p.op("v_bitop3_b32", r, r, r + 3, f"s{S_C7F}", extra=" bitop3:0xa8")
    p.add(I(f"v_cmp_ne_u32 {s(S_MTMP, 2)}, 0, {v(r)}", "valu", [r], sr(S_MTMP, 2)))
    p.salu(f"s_or_b64 {s(S_MACC, 2)}, {s(S_MACC, 2)}, {s(S_MTMP, 2)}", sr(S_MACC, 2) + sr(S_MTMP, 2), sr(S_MACC, 2) + [SCC])


_pid = [3100]


def anchor_after(p, i, k=-2):
    _pid[0] += 1
    a = p.ins[k]
    a.wr = a.wr | {_pid[0]}
    i.rd = i.rd | {_pid[0]}


def make_hooks(opt):
    def hook(p, name, slow):
        chk = (not slow) and opt.mask_check
        if opt.prio and name in opt.prio:
            n0 = len(p.ins)
            i = p.raw(f"s_setprio {opt.prio[name]}", kind="salu", rd=[3000], wr=[3000])
            if n0:
                anchor_after(p, i)
        if name == "poll0":
            gb = poll(p, slow, 0, 8, K3, 3003)
            a = [i for i in p.ins if i.kind == "mfma"][min(opt.b2at, 28)]
            a.wr = a.wr | {3004}
            gb.rd = gb.rd | {3004}
            p.ins.remove(gb)
            p.ins.insert(p.ins.index(a) + 1, gb)
            if opt.debug is True:
                n0 = len(p.ins)
                stamp(p, opt, 19); stamp(p, opt, 18)
                st = p.ins[n0:]
                del p.ins[n0:]
                k = p.ins.index(gb)
                p.ins[k:k + 1] = st[:2] + [gb] + st[2:]
                gb.tag = "fence"
        elif name == "poll1":
            poll(p, slow, 1, 6, XR + 34, 3005)
        if name == opt.mk0 and chk:
            for i in range(3):
                anchor_after(p, mask_ld(p, opt, i), -2 - i)
        if name == "post0":
            stamp(p, opt, 6)
        if name == opt.mk1 and chk:
            n0 = len(p.ins)
            for i in range(3):
                mask_use(p, opt, i)
            for k in (n0, n0 + 4, n0 + 8):
                anchor_after(p, p.ins[k], n0 - 1 - len(p.ins))
            mask_ld(p, opt, 3); mask_ld(p, opt, 4)
        if name == "post1":
            stamp(p, opt, 8)
        elif name == "thin2" and chk:
            n0 = len(p.ins)
            for i in (3, 4):
                mask_use(p, opt, i)
            for k in (n0, n0 + 4):
                anchor_after(p, p.ins[k], n0 - 1 - len(p.ins))
            p.salu(f"s_cmp_lg_u64 {s(S_MACC, 2)}, 0", sr(S_MACC, 2), [SCC, 3001])
            p.add(I("s_cbranch_scc1 L_redo", "salu", [SCC, 3001], [3001, 3002]))
        elif name == "o48done":
            def gg():
                p.op("v_mov_b32", XR + 32, str(L_CNT + 8))
                p.op("v_mov_b32", XR + 33, "1")
                p.salu("s_mov_b64 exec, 1", [], [EXEC])
                p.add(I(f"ds_add_u32 {v(XR + 32)}, {v(XR + 33)}", "dsw", [XR + 32, XR + 33], []))
                p.salu("s_mov_b64 exec, -1", [], [EXEC])
            gr = p.group(gg)
            gr.rd = gr.rd | {3012, 3002}
        elif name == "post3":
            stamp(p, opt, 9)
        elif name == "end":
            stamp(p, opt, 10)
            n0 = len(p.ins)
            if opt.debug:
                stamp_flush(p, opt)
            sal(p, f"s_cmp_eq_u32 {s(W)}, {opt.jowave}", [W], [])
            p.raw("s_cbranch_scc1 L_jo", rd=[SCC])
            p.raw("s_endpgm")
            for i in p.ins[n0:]:
                i.tag = "fence" if i.tag is None else i.tag
    return hook


def mask_srd(p, opt):
    sal(p, f"s_sub_u32 {s(SRD_MCHK)}, {s(SRD_MASK)}, {L_BIAS}", [SRD_MASK], [SRD_MCHK])
    p.salu(f"s_subb_u32 {s(SRD_MCHK + 1)}, {s(SRD_MASK + 1)}, 0", sr(SRD_MASK + 1) + [SCC], sr(SRD_MCHK + 1) + [SCC])
    sal(p, f"s_add_u32 {s(SRD_MCHK)}, {s(SRD_MCHK)}, {s(S_MBASE)}", [SRD_MCHK, S_MBASE], [SRD_MCHK])
    p.salu(f"s_addc_u32 {s(SRD_MCHK + 1)}, {s(SRD_MCHK + 1)}, 0", sr(SRD_MCHK + 1) + [SCC], sr(SRD_MCHK + 1) + [SCC])
    sal(p, f"s_mov_b32 {s(SRD_MCHK + 2)}, {L_BIAS + 4804}", [], [SRD_MCHK + 2], False)
    sal(p, f"s_mov_b32 {s(SRD_MCHK + 3)}, 0x00020000", [], [SRD_MCHK + 3], False)
    sal(p, f"s_mov_b64 {s(S_MACC, 2)}, 0", [], [S_MACC, S_MACC + 1], False)
    sal(p, f"s_mov_b32 {s(S_C7F)}, 0x7fff7fff", [], [S_C7F], False)
    sal(p, f"s_movk_i32 {s(S_C4096)}, 4096", [], [S_C4096], False)


def dispatch(p, opt):
    p.raw("s_waitcnt lgkmcnt(0)", kind="salu")
    mask_srd(p, opt)
    sal(p, f"s_mov_b32 {s(S_JO)}, 1000000", [], [S_JO], False)
    p.salu(f"s_or_b32 {s(S_T0)}, {s(S_KILL)}, {s(S_UNSAFE)}", sr(S_KILL) + sr(S_UNSAFE), sr(S_T0) + [SCC])
    p.raw("s_cbranch_scc1 L_slow", rd=[SCC])


def slow_regs(h):
    if h < 3:
        return dict(pairs=[LR + 12 + 8, LR + 12 + 10, OR_ + 10], m6=OR_ + 9, ad=OR_ + 21, tmp=OR_ + 22, mx=OR_ + 23, m2=OR_ + 33)
    return dict(pairs=[XR + 24, XR + 26, XR + 28], m6=XR + 30, ad=XR + 31, tmp=XR + 35, mx=LR + 12 + 8, m2=LR + 12 + 9)


def slow_softmax(p, h, qt, regs):
    R = slow_regs(h)
    ad, tmp, mx, m2 = R["ad"], R["tmp"], R["mx"], R["m2"]
    p.op("v_bfe_u32", tmp, V_BIAS, "4", "4")
    if qt:
        p.op("v_add_u32", tmp, str(16 * qt), tmp)
    p.op("v_mul_u32_u24", tmp, "0x62", tmp)
    p.op("v_add_u32", tmp, f"s{S_MBASE}", tmp)
    p.vld("buffer_load_ushort", R["m6"], 1, tmp, SRD_MASK, 96)
    p.op("v_bfe_u32", ad, V_BIAS, "8", "2")
    p.op("v_lshl_add_u32", ad, ad, "3", tmp)
    for kt in range(3):
        p.vld("buffer_load_dwordx2", R["pairs"][kt], 2, ad, SRD_MASK, 32 * kt)
    for kt in range(3):
        for e in range(4):
            r, src = regs[4 * kt + e], R["pairs"][kt] + (e >> 1)
            if e & 1:
                p.op("v_and_b32", tmp, "0xffff0000", src)
            else:
                p.op("v_lshlrev_b32", tmp, "16", src)
            p.op("v_fmamk_f32", r, tmp, f32(LOG2E), r)
    p.op("v_lshlrev_b32", tmp, "16", R["m6"])
    p.op("v_fmamk_f32", regs[12], tmp, f32(LOG2E), regs[12])
    p.op("v_max3_f32", mx, regs[0], regs[1], regs[2])
    for i in range(3, 13, 2):
        p.op("v_max3_f32", mx, mx, regs[i], regs[i + 1])
    xrow_max(p, mx, m2)
    for r in regs:
        p.op("v_sub_f32", r, r, mx)


def xrow_max(p, mx, m2):
    p.op("v_mov_b32", m2, mx)
    p.swap32(mx, m2)
    p.op("v_max_f32", mx, mx, m2)
    p.op("v_mov_b32", m2, mx)
    p.add(I(f"v_permlane16_swap_b32 {v(mx)}, {v(m2)}", "perm", [mx, m2], [mx, m2]))
    p.op("v_max_f32", mx, mx, m2)


def slow_thin(p, h, r):
    R = slow_regs(h)
    tmp, mx, m2 = R["tmp"], R["mx"], R["m2"]
    p.op("v_bfe_u32", tmp, V_BIAS, "4", "6")
    p.op("v_min_u32", tmp, "48", tmp)
    p.op("v_lshl_add_u32", tmp, tmp, "1", f"s{S_MBASE}")
    p.add(I(f"buffer_load_ushort {v(R['m6'])}, {v(tmp)}, {s(SRD_MASK, 4)}, {s(S_C4096)} offen offset:{48 * 98 - 4096}", "vld",
            [tmp] + sr(SRD_MASK, 4) + sr(S_C4096), [R["m6"]]))
    p.op("v_lshlrev_b32", tmp, "16", R["m6"])
    p.op("v_fmamk_f32", r, tmp, f32(LOG2E), r)
    p.op("v_mov_b32", mx, r)
    for k in (8, 4, 2, 1):
        p.add(I(f"v_max_f32_dpp {v(mx)}, {v(mx)}, {v(mx)} row_ror:{k} row_mask:0xf bank_mask:0xf", "dpp", [mx], [mx]))
    xrow_max(p, mx, m2)
    p.op("v_sub_f32", r, r, mx)


def jo(p, opt):
    p.label("L_jo")
    p.raw("s_setprio 0", kind="salu")
    poll(p, False, 2, f"s{S_NWIN}", 8, 3020, sleep=True).tag = "fence"
    a, b, off = 8, 9, 10
    OB, Y, wq, SL, NP, D = 12, 24, 48, 120, 124, 128
    p.op("v_bfe_u32", a, V_BIAS, "4", "4")
    p.op("v_bfe_u32", b, V_BIAS, "8", "2")
    p.op("v_bfe_u32", off, V_BIAS, "4", "6")
    p.op("v_lshlrev_b32", off, "2", off)
    p.op("v_add_u32", off, str(L_OFF48), off)
    p.dsr("ds_read_b32", off, 1, off, 0)
    p.op("v_min_u32", a, "11", a)
    p.op("v_mul_u32_u24", a, str(XST), a)
    p.op("v_mad_u32_u24", a, b, "48", a)
    p.op("v_add_u32", a, str(L_X + X_O48), a)
    for k in range(3):
        p.dsr("ds_read_b128", OB + 4 * k, 4, a, 16 * k)
    p.dsr("ds_read_b128", SL, 4, V_BIAS, L_SEL - L_BIAS)
    for T in range(6):
        for ks in range(3):
            w = wq + 4 * (3 * T + ks)
            o = 32 * ks * WOS + 32 * T
            p.dsr("ds_read_b64_tr_b16", w, 2, V_WQ, o)
            p.dsr("ds_read_b64_tr_b16", w + 2, 2, V_WQ, o + 16 * WOS)
            p.mfma16(Y + 4 * T, w, OB + 4 * ks, None if ks == 0 else Y + 4 * T)
    ss = 11
    for i in range(24):
        if i == 0:
            p.op("v_fma_f32", ss, Y, Y, f"s{S_EPSLN}")
        else:
            p.op("v_fmac_f32", ss, Y + i, Y + i, rmw=True)
    p.op("v_cvt_pk_bf16_f32", NP, ss, ss)
    for r in (NP + 1, NP + 2, NP + 3):
        p.op("v_mov_b32", r, "0")
    p.mfma16(D, SL, NP, None)
    p.op("v_rsq_f32", D, D, kind="trans")
    p.op("v_mul_f32", D, f32(math.sqrt(96.0)), D)
    for i in range(24):
        p.op("v_mul_f32", Y + i, Y + i, D)
    for uu_ in range(3):
        base = Y + 8 * uu_
        for i in range(4):
            p.op("v_cvt_pk_bf16_f32", base + i, base + 2 * i, base + 2 * i + 1)
        p.vst("buffer_store_dwordx4", base, 4, off, SRD_OUT, 64 * uu_, opt.sflag)
    p.raw("s_endpgm")


import re as _re


def isize(i):
    t = i.text
    if i.kind == "label":
        return 0
    op = t.split()[0]
    lit = bool(_re.search(r"(?<![\w\[:])(0x[0-9a-f]+|\d{3,}|6[5-9]|[7-9]\d|wtab\S*)(?![\w\]:])", t.split(None, 1)[1] if " " in t else ""))
    if op.startswith("s_"):
        if op.startswith(("s_load", "s_mem")):
            return 8
        if op in ("s_waitcnt", "s_nop", "s_barrier", "s_branch", "s_setprio", "s_sleep", "s_endpgm", "s_movk_i32", "s_addk_i32") or op.startswith("s_cbranch"):
            return 4
        return 8 if lit else 4
    if op in ("v_mov_b32", "v_add_u32", "v_sub_u32", "v_subrev_u32", "v_and_b32", "v_or_b32", "v_lshlrev_b32", "v_lshrrev_b32", "v_mul_f32",
              "v_add_f32", "v_sub_f32", "v_fmac_f32", "v_exp_f32", "v_rcp_f32", "v_rsq_f32", "v_min_u32", "v_max_f32", "v_min_f32",
              "v_mul_u32_u24", "v_bfrev_b32", "v_readfirstlane_b32", "v_swap_b32", "v_permlane32_swap_b32", "v_permlane16_swap_b32"):
        return 8 if lit else 4
    return 8


def add_touch(seq, name, nseg, ret, limit=None, step=120):
    pos, acc, tot = [], step, 0
    for k, i in enumerate(seq):
        if limit is not None and tot >= limit:
            break
        sz = isize(i)
        if acc + sz > step and i.kind != "label" and i.tag != "nt":
            pos.append(k)
            acc = 4
        acc += sz
        tot += sz
    per = -(-len(pos) // nseg)
    out, ent = [], []
    ps = {k: j for j, k in enumerate(pos)}
    for k, i in enumerate(seq):
        if k in ps:
            j = ps[k]
            if j % per == 0:
                ent.append(f"L_{name}{j}")
            last = (j + 1) % per == 0 or j + 1 == len(pos)
            out.append(I(f"L_{name}{j}:", "label", states=0))
            out.append(I(f"s_cbranch_execz {ret if last else f'L_{name}{j + 1}'}", "salu"))
        out.append(i)
    return out, ent


def touch_dispatch(ent, ret, tag):
    out = [I("s_mov_b64 exec, 0", "salu")]
    def tree(lo, hi):
        if hi - lo == 1:
            out.append(I(f"s_branch {ent[lo] if lo < len(ent) else ret}", "salu"))
            return
        mid = (lo + hi) // 2
        lbl = f"L_{tag}d{lo}_{hi}"
        out.append(I(f"s_cmp_ge_u32 {s(W)}, {mid}", "salu"))
        out.append(I(f"s_cbranch_scc1 {lbl}", "salu"))
        tree(lo, mid)
        out.append(I(lbl + ":", "label", states=0))
        tree(mid, hi)
    return out, tree


HEADER = open("standalone__window_attn_swin_v2__vision.s.ref").read().split("; Override")[0]


def generate(opt, sched=None):
    opt.hook = make_hooks(opt)
    opt.slow_softmax = slow_softmax
    opt.slow_thin = slow_thin
    segs = {}
    for nm, fn in (("com", pro_common), ("po", path_o), ("py", path_y), ("jo", jo)):
        p = Prog(); fn(p, opt); segs[nm] = p.ins
    p = Prog()
    if opt.debug and opt.debug != 3:
        p.wait(vm=0)
        stamp(p, opt, 5)
    dispatch(p, opt); segs["dis"] = p.ins
    B.SLOWPQ = False
    p = Prog(); body(p, False, opt); segs["fast"] = p.ins
    B.SLOWPQ = True
    p = Prog(); body(p, True, opt); segs["slow"] = p.ins
    p = Prog()
    p.label("L_redo")
    p.wait(vm=0, lgkm=0)
    p.raw("s_nop 15", kind="nop", states=16)
    x_loads(p, opt)
    segs["redo"] = p.ins
    if sched:
        for k in ("fast", "slow", "jo"):
            segs[k] = sched(segs[k])
    st = WaitState()
    com = insert_nops(insert_waits(flatten(segs["com"]), st))
    sty = st.copy()
    po = insert_nops(insert_waits(flatten(segs["po"]), st), com)
    py = insert_nops(insert_waits(flatten(segs["py"]), sty), com)
    tail = lambda w: [(x.text) for x in w.vm]
    assert tail(st) == tail(sty) and len(st.vm) == 9, (tail(st), tail(sty))
    assert not st.lg and not sty.lg
    clean = [I("s_nop 15", "nop", states=16)]
    mid = insert_nops(insert_waits(flatten(segs["dis"]), st), clean)
    head = com + py + po + mid
    fast = insert_nops(insert_waits(flatten(segs["fast"]), st.copy()), head)
    str_ = WaitState(); str_.vm = [I("x", "vst")]; str_.lg = [I("x", "dsw")]
    redo = insert_nops(insert_waits(flatten(segs["redo"]), str_), clean)
    slow = insert_nops(insert_waits(flatten(segs["slow"]), st.copy() if opt.debug in (None, 3) else str_), clean)
    stj = WaitState()
    jos = [I("s_nop 7", "nop", states=8)] + insert_nops(insert_waits(flatten(segs["jo"]), stj), clean)
    jos = [jos[1], jos[0]] + jos[2:]
    if opt.touchb:
        k0 = 0
        acc = 0
        while acc < opt.tlim:
            acc += isize(fast[k0]); k0 += 1
        tail_, ent = add_touch(fast[k0:], "tb", 4, "L_tbret", limit=opt.tlimb)
        fast = fast[:k0] + tail_
        d, tree = touch_dispatch(ent, "L_tbret", "tb")
        tree(0, 4)
        d += [I("L_tbret:", "label", states=0), I("s_mov_b64 exec, -1", "salu")]
        for x in d[1:]:
            x.tag = "nt"
        k = [j for j, i in enumerate(head) if i.text == "<touchB>"][0]
        head = head[:k] + d + head[k + 1:]
    if opt.touch:
        k = [j for j, i in enumerate(head) if i.text == "<touchA>"][0]
        hb = sum(isize(i) for i in head[k + 1:])
        rest, ent = add_touch(head[k + 1:] + [I("<cut>", "label", states=0)] + fast, "ta", 12, "L_taret", limit=hb + opt.tlim)
        c = [j for j, i in enumerate(rest) if i.text == "<cut>"][0]
        fast = rest[c + 1:]
        d, tree = touch_dispatch(ent, "L_taret", "ta")
        tree(0, 12)
        d += [I("L_taret:", "label", states=0), I("s_mov_b64 exec, -1", "salu")]
        head = head[:k] + d + rest[:c]
    name = "standalone__window_attn_swin_v2__vision_kernel"
    txt = HEADER
    txt += f"; @launch grid=({NWG},1,1) block=({64 * WPW},1,1) lds={L_END}\n"
    txt += f""".amdgcn_target "amdgcn-amd-amdhsa--gfx950"
.text
.globl {name}
.p2align 8
.type {name},@function
{name}:
"""
    txt += render(head) + "\n" + render(fast) + "\n" + render(jos) + "\n" + render(redo) + "\nL_slow:\n" + render(slow) + "\nL_end:\n    s_endpgm\n"
    txt += f""".section .rodata,"a"
.p2align 6
.amdhsa_kernel {name}
  .amdhsa_next_free_vgpr {NVGPR}
  .amdhsa_next_free_sgpr 102
  .amdhsa_accum_offset {NVGPR}
  .amdhsa_group_segment_fixed_size 0
  .amdhsa_kernarg_size 96
  .amdhsa_user_sgpr_count 2
  .amdhsa_user_sgpr_kernarg_segment_ptr 1
  .amdhsa_system_sgpr_workgroup_id_x 1
.end_amdhsa_kernel
.p2align 6
wtab:
"""
    tb_ = w_table() + wo_table() + lane_table()
    for i in range(0, len(tb_), 16):
        txt += "    .short " + ", ".join(str(x) for x in tb_[i:i + 16]) + "\n"
    stats = {}
    for nm, seq in (("head", head), ("fast", fast), ("slow", slow), ("jo", jos)):
        c = {}
        for i in seq:
            c[i.kind] = c.get(i.kind, 0) + 1
        c["nopstates"] = sum(i.states for i in seq if i.kind == "nop")
        stats[nm] = c
    return txt, stats


if __name__ == "__main__":
    import sched
    opt = Opt()
    opt.jowave = 0
    for a in sys.argv[1:]:
        if a == "--debug": opt.debug = True
        if a == "--debug3": opt.debug = 3
        if a == "--nomask": opt.mask_check = False
        if a == "--vz": opt.ldszero = False
        if a == "--noxint": opt.xint = False
        if a.startswith("--pk="): opt.pk = a[5:]
        if a == "--notouch": opt.touch = False
        if a == "--touchb": opt.touchb = True
        if a.startswith("--tlim="): opt.tlim = int(a[7:])
        if a.startswith("--tlimb="): opt.tlimb = int(a[8:])
        if a.startswith("--ldslat="): sched.Params.lds_lat = int(a[9:])
        if a.startswith("--b2at="): opt.b2at = int(a[7:])
        if a.startswith("--mk1="): opt.mk1 = a[6:]
        if a.startswith("--mk0="): opt.mk0 = a[6:]
        if a.startswith("--prio="):
            opt.prio = {kv.split(":")[0]: int(kv.split(":")[1]) for kv in a[7:].split(",")}
        for fl in ("xflag", "mflag", "sflag"):
            if a.startswith(f"--{fl}="):
                setattr(opt, fl, " " + a.split("=")[1].replace(",", " "))
    args = [a for a in sys.argv[1:] if not a.startswith("--")]
    out = args[0] if args else "g2.s"
    sc = None if "--nosched" in sys.argv else (lambda x: sched.schedule(x, verbose=True))
    txt, stats = generate(opt, sc)
    open(out, "w").write(txt)
    for k, c in stats.items():
        print(k, c)
```

```python
import sys, math
sys.path.insert(0, "gen")
from asmlib import *
from g2body import *
import g2body as B

NWG, NS, WPW = 252, 27, 12
X_BYTES = 378 * 378 * 96 * 2
MASK_BYTES = 2916 * 49 * 49 * 2
SRD_WQ, SRD_WO, SRD_RIDX, SRD_RC = 12, 16, 24, 28
S_W1, S_W2, S_LS = 48, 64, 96
S_HI48 = 60
S_N12 = 62
S_SWI, S_SWJ, S_IDLE = 46, 47, 59
S_NWIN = 64
S_JO = 65
S_STAMP, NSTAMP = 66, 12
TAU_THR = 24.0
W = S_W
NVGPR = 168

L, G16, N15, L16 = 44, 45, 46, 47
ta, tb, tc, td = 48, 49, 50, 51
WSRC, WA, WD = 52, 53, 60
TBL = 58
TE, GA, GB, GDST, PARA, ONE, rcv = 84, 85, 86, 87, 88, 89, 90
ridx, ridxb, ridxc = 92, 96, 148
u = 100
wov, uu = 116, 128
WOA = 152
X48 = 8
DBG = 160


class Opt:
    mask_check = True
    debug = None
    xflag = mflag = sflag = ""
    ldszero = True
    prio = None
    b2at = 28
    mk1 = "post1"
    mk0 = "post0"
    xint = True
    pf = 0
    pk = ""
    touch = True
    touchb = False
    tlim = 1500
    tlimb = 20000


def sal(p, text, rd=(), wr=(), scc=True):
    return p.salu(text, [SB + x for x in rd], [SB + x for x in wr] + ([SCC] if scc else []))


def csel(p, d, a, b, n=1):
    rd = [SCC]
    for x in (a, b):
        if isinstance(x, int):
            rd += sr(x, n)
    f = lambda x: s(x, n) if isinstance(x, int) else x
    return p.salu(f"s_cselect_b{32 * n} {s(d, n)}, {f(a)}, {f(b)}", rd, sr(d, n))


def stamp(p, opt, idx, early=False):
    if not opt.debug or (opt.debug == 3 and idx not in (1, 2, 3, 4, 11)):
        return
    p.add(I(f"s_memtime {s(S_T2, 2)}", "smem", [], sr(S_T2, 2)))
    if early:
        p.op("v_mov_b32", DBG + idx, f"s{S_T2}")
    else:
        p.salu(f"s_mov_b32 {s(S_STAMP + idx)}, {s(S_T2)}", sr(S_T2), sr(S_STAMP + idx)).tag = "fence"


def dbg_early(p, opt):
    if opt.debug:
        for k, r in ((0, 7), (16, 6), (1, 1), (2, 2), (17, 3), (18, 4), (19, 5)):
            p.add(I(f"v_readfirstlane_b32 {s(S_STAMP + k)}, {v(DBG + r)}", "rdlane", [DBG + r], sr(S_STAMP + k)))


def stamp_flush(p, opt):
    if not opt.debug:
        return
    p.wait(vm=0)
    stamp(p, opt, NSTAMP - 1)
    p.smem("s_load_dwordx2", 48, 2, 0, 88)
    sal(p, f"s_mov_b32 s52, s48", [48], [52], False)
    sal(p, f"s_mov_b32 s53, s49", [49], [53], False)
    sal(p, f"s_mov_b32 s54, {1 << 22}", [], [54], False)
    sal(p, f"s_mov_b32 s55, 0x00020000", [], [55], False)
    sal(p, f"s_lshl_b32 {s(S_T0)}, {s(S_WIN)}, 6", [S_WIN], [S_T0])
    sal(p, f"s_mov_b32 {s(S_STAMP + 7)}, {s(S_STAMP + 17)}", [S_STAMP + 17], [S_STAMP + 7], False)
    sal(p, f"s_mov_b32 {s(S_STAMP + 10)}, {s(S_STAMP + 18)}", [S_STAMP + 18], [S_STAMP + 10], False)
    sal(p, f"s_sub_u32 {s(S_STAMP + 12)}, {s(S_STAMP + 19)}, {s(S_STAMP)}", [S_STAMP + 19, S_STAMP], [S_STAMP + 12])
    sal(p, f"s_lshl_b32 {s(S_STAMP + 13)}, s2, 4", [2], [S_STAMP + 13])
    sal(p, f"s_add_u32 {s(S_STAMP + 13)}, {s(S_STAMP + 13)}, {s(W)}", [S_STAMP + 13, W], [S_STAMP + 13])
    p.add(I(f"s_memrealtime {s(S_STAMP + 14, 2)}", "smem", [], sr(S_STAMP + 14, 2)))
    p.op("v_mov_b32", 60, f"s{S_T0}")
    for i in range(15):
        p.op("v_mov_b32", 64 + i, f"s{S_STAMP + i}")
    p.op("v_mov_b32", 64 + 15, f"s{S_STAMP + 16}")
    p.salu("s_mov_b64 exec, 1", [], [EXEC])
    for i in range(4):
        p.vst("buffer_store_dwordx4", 64 + 4 * i, 4, 60, 52, 16 * i)
    p.salu("s_mov_b64 exec, -1", [], [EXEC])


def w_table():
    out = []
    for wp in range(9):
        for lane in range(64):
            c = 64 * wp + lane
            k0, cc = divmod(c, 36)
            rho = 16 * ((k0 >> 2) & 1) + 4 * (k0 >> 3) + (k0 & 3)
            for d in range(4):
                col = 8 * cc + 2 * d
                sec, r = divmod(col, 96)
                h, rem = divmod(r, 24)
                g, i = divmod(rem, 6)
                if sec < 2:
                    i2 = i + 6 * sec
                    ic = 48 * h + 16 * (i2 >> 2) + 4 * g + (i2 & 3)
                else:
                    hp, b = h >> 1, h & 1
                    ic = 192 + 48 * hp + (32 * b + 4 * g + i if i < 4 else 16 + 4 * g + 2 * b + (i - 4))
                out.append(rho * WS + 2 * ic)
    return out


def lane_table():
    out = []
    for lane in range(64):
        n, g_ = lane & 15, lane >> 4
        vals = []
        for tt in range(3):
            t = 16 * tt + n
            vals.append(((t // 7) * 378 + t % 7) * 192 + 16 * g_)
        vals.append((lane >> 2) * WS + (lane & 3) * 8)
        vals.append(X_P48 + (g_ >> 1) * 64 + (n >> 2) * 16 + (g_ & 1) * 8 + (n & 3) * 2)
        vals.append(n * 196 + 16 * g_)
        vals += [0, 0]
        for x in vals:
            out += [x & 0xffff, x >> 16]
    return out


T_LANE = 9 * 512 + 6 * 512
LC = 140


def wo_table():
    out = []
    for wp in range(6):
        for lane in range(64):
            f, l4 = 16 * wp + (lane >> 2), lane & 3
            h, rem = divmod(f, 24)
            g, j = divmod(rem, 6)
            i = 6 * h + j
            rho = 32 * (i >> 3) + 16 * ((i >> 2) & 1) + 4 * g + (i & 3)
            for jj in range(3):
                z = 3 * l4 + jj
                out.append(rho * WOS + 64 * (z >> 2) + 8 * (z & 3))
            out.append(0)
    return out


_wm = [0]


def window_map(p, opt, temps=(66, 67, 68, 69, 70)):
    _wm[0] += 1
    k = _wm[0]
    sA, sB, sC, sD, sf = temps
    swi, swj = S_SWI, S_SWJ
    sal(p, f"s_cmp_lt_u32 s2, {NS}", [2], [])
    p.raw(f"s_cbranch_scc1 L_wmS{k}", rd=[SCC])
    p.cond_begin()
    sal(p, f"s_mul_i32 {s(sf)}, s2, 12", [2], [sf], False)
    sal(p, f"s_add_u32 {s(sf)}, {s(sf)}, {s(W)}", [sf, W], [sf])
    sal(p, f"s_sub_u32 {s(sf)}, {s(sf)}, {12 * NS}", [sf], [sf])
    sal(p, f"s_mul_i32 {s(swi)}, {s(sf)}, 19785", [sf], [swi], False)
    sal(p, f"s_lshr_b32 {s(swi)}, {s(swi)}, 20", [swi], [swi])
    sal(p, f"s_add_u32 {s(S_WIN)}, {s(sf)}, {s(swi)}", [sf, swi], [S_WIN])
    sal(p, f"s_mul_i32 {s(sA)}, {s(swi)}, {(7 * 378 - 7 * 53) * 192}", [swi], [sA], False)
    sal(p, f"s_mul_i32 {s(sB)}, {s(sf)}, {7 * 192}", [sf], [sB], False)
    sal(p, f"s_add_u32 {s(sA)}, {s(sA)}, {s(sB)}", [sA, sB], [sA])
    sal(p, f"s_add_u32 {s(sA)}, {s(sA)}, {(3 * 378 + 3) * 192}", [sA], [sA])
    sal(p, f"s_mov_b32 {s(S_KILL)}, 0", [], [S_KILL], False)
    sal(p, f"s_mov_b32 {s(S_IDLE)}, 0", [], [S_IDLE], False)
    for tt in range(3):
        p.op("v_add_u32", OFF[tt], f"s{sA}", LC + tt)
    p.raw(f"s_branch L_wmE{k}")
    p.cond_end()
    p.label(f"L_wmS{k}")
    p.cond_begin()
    window_map_s(p, opt, temps)
    window_map_v(p, opt)
    p.cond_end()
    p.label(f"L_wmE{k}")
    sal(p, f"s_mul_i32 {s(S_MBASE)}, {s(S_WIN)}, 4802", [S_WIN], [S_MBASE], False)


def window_map_s(p, opt, temps=(66, 67, 68, 69, 70)):
    sA, sB, sC, sD, sf = temps
    swi, swj = S_SWI, S_SWJ
    sal(p, f"s_mul_i32 {s(sA)}, s2, 12", [2], [sA], False)
    sal(p, f"s_add_u32 {s(sA)}, {s(sA)}, {s(W)}", [sA, W], [sA])
    sal(p, f"s_sub_u32 {s(sA)}, {s(sA)}, {12 * NS}", [sA], [sA])
    sal(p, f"s_lshl_b32 {s(sB)}, s2, 2", [2], [sB])
    sal(p, f"s_add_u32 {s(sB)}, {s(sB)}, {s(W)}", [sB, W], [sB])
    sal(p, f"s_add_u32 {s(sC)}, {s(sB)}, {12 * (NWG - NS) - 4}", [sB], [sC])
    sal(p, f"s_cmp_lt_u32 {s(W)}, 4", [W], [])
    csel(p, sC, "2808", sC)
    csel(p, sD, sB, "999")
    sal(p, f"s_cmp_ge_u32 {s(W)}, 8", [W], [])
    csel(p, S_IDLE, "0x80000000", "0")
    csel(p, sC, "0", sC)
    sal(p, f"s_cmp_lt_u32 s2, {NS}", [2], [])
    csel(p, sf, sC, sA)
    csel(p, sD, sD, "999")
    csel(p, S_IDLE, S_IDLE, "0")
    sal(p, f"s_mul_i32 {s(swi)}, {s(sf)}, 19785", [sf], [swi], False)
    sal(p, f"s_lshr_b32 {s(swi)}, {s(swi)}, 20", [swi], [swi])
    sal(p, f"s_mul_i32 {s(swj)}, {s(swi)}, 53", [swi], [swj], False)
    sal(p, f"s_sub_u32 {s(swj)}, {s(sf)}, {s(swj)}", [sf, swj], [swj])
    sal(p, f"s_sub_u32 {s(sA)}, {s(sD)}, 54", [sD], [sA])
    sal(p, f"s_cmp_lt_u32 {s(sD)}, 54", [sD], [])
    csel(p, sA, "53", sA)
    csel(p, sB, sD, "53")
    sal(p, f"s_cmp_lt_u32 {s(sD)}, 107", [sD], [])
    csel(p, swi, sA, swi)
    csel(p, swj, sB, swj)
    csel(p, S_KILL, "1", "0")
    sal(p, f"s_mul_i32 {s(S_WIN)}, {s(swi)}, 54", [swi], [S_WIN], False)
    sal(p, f"s_add_u32 {s(S_WIN)}, {s(S_WIN)}, {s(swj)}", [S_WIN, swj], [S_WIN])
    sal(p, f"s_mul_i32 {s(S_MBASE)}, {s(S_WIN)}, 4802", [S_WIN], [S_MBASE], False)
    sal(p, f"s_mul_i32 {s(swi)}, {s(swi)}, 7", [swi], [swi], False)
    sal(p, f"s_add_u32 {s(swi)}, {s(swi)}, 3", [swi], [swi])
    sal(p, f"s_mul_i32 {s(swj)}, {s(swj)}, 7", [swj], [swj], False)
    sal(p, f"s_add_u32 {s(swj)}, {s(swj)}, 3", [swj], [swj])


O48R = 91


def thin_offsets(p, opt):
    sF, sN, sS, s4b = 34, 35, 46, 47
    sal(p, f"s_lshl_b32 {s(s4b)}, s2, 2", [2], [s4b])
    sal(p, f"s_mul_i32 {s(sF)}, s2, 12", [2], [sF], False)
    sal(p, f"s_sub_u32 {s(sF)}, {s(sF)}, {12 * NS}", [sF], [sF])
    sal(p, f"s_add_u32 {s(sN)}, {s(s4b)}, {12 * (NWG - NS) - 4}", [s4b], [sN])
    sal(p, f"s_cmp_lt_u32 s2, {NS}", [2], [])
    csel(p, sF, sN, sF)
    csel(p, sN, "8", "12")
    csel(p, sS, "4", "0")
    f, wi, wj, sx = ta, tb, tc, td
    def cmp(op, dst, x, y):
        rd = [r for r in (x, y) if isinstance(r, int)] + [SB + int(r[1:]) for r in (x, y) if isinstance(r, str) and r[0] == "s"]
        t = lambda r: v(r) if isinstance(r, int) else r
        p.add(I(f"{op} {s(dst, 2)}, {t(x)}, {t(y)}", "valu", rd, sr(dst, 2)))
    def cnd(d, x, y, m):
        rd = [r for r in (x, y) if isinstance(r, int)] + sr(m, 2)
        t = lambda r: v(r) if isinstance(r, int) else r
        p.add(I(f"v_cndmask_b32 {v(d)}, {t(x)}, {t(y)}, {s(m, 2)}", "valu", rd, [d]))
    m1, m2, m3 = 40, 42, 44
    cmp("v_cmp_gt_u32", m1, f"s{sS}", N15)
    p.op("v_add_u32", f, f"s{sF}", N15)
    p.op("v_mov_b32", wi, "0xaf8")
    cnd(f, f, wi, m1)
    p.op("v_mul_u32_u24", wi, "0x4d49", f)
    p.op("v_lshrrev_b32", wi, "20", wi)
    p.op("v_mul_u32_u24", wj, "53", wi)
    p.op("v_sub_u32", wj, f, wj)
    p.op("v_add_u32", sx, f"s{s4b}", N15)
    p.op("v_mov_b32", f, "0x6b")
    cmp("v_cmp_lt_u32", m2, sx, f)
    cmp("v_cmp_gt_u32", m3, "54", sx)
    p.salu(f"s_and_b64 {s(m1, 2)}, {s(m1, 2)}, {s(m2, 2)}", sr(m1, 2) + sr(m2, 2), sr(m1, 2) + [SCC])
    p.op("v_subrev_u32", f, "54", sx)
    cnd(f, f, "53", m3)
    cnd(sx, "53", sx, m3)
    cnd(wi, wi, f, m1)
    cnd(wj, wj, sx, m1)
    sal(p, f"s_movk_i32 {s(sF)}, 378", [], [sF], False)
    for x in (wi, wj):
        p.op("v_mad_u32_u24", x, x, "7", "9")
        p.op("v_subrev_u32", f, f"s{sF}", x)
        p.op("v_min_u32", x, x, f)
    p.op("v_mad_u32_u24", f, wi, f"s{sF}", wj)
    p.op("v_mul_u32_u24", f, "0xc0", f)
    p.op("v_add_u32", f, f, G16)
    cmp("v_cmp_gt_u32", m1, f"s{sN}", N15)
    p.op("v_bfrev_b32", wi, "1")
    cnd(O48R, wi, f, m1)


def window_map_v(p, opt):
    sA = S_T3
    xa, xb, xc, xd = 48, 49, 50, 51
    sal(p, f"s_movk_i32 {s(sA)}, 378", [], [sA], False)
    p.op("v_or_b32", xa, f"s{S_IDLE}", G16)
    for tt in range(3):
        n, ty, tx = OFF[tt], xb, xc
        a = xd
        if tt == 0:
            n = N15
        else:
            p.op("v_add_u32", n, str(16 * tt), N15)
        p.op("v_mul_u32_u24", ty, "37", n)
        p.op("v_lshrrev_b32", ty, "8", ty)
        p.op("v_mad_i32_i24", tx, ty, "-7", n)
        p.op("v_add_u32", ty, f"s{S_SWI}", ty)
        p.op("v_add_u32", tx, f"s{S_SWJ}", tx)
        p.op("v_subrev_u32", a, f"s{sA}", ty)
        p.op("v_min_u32", ty, ty, a)
        p.op("v_subrev_u32", a, f"s{sA}", tx)
        p.op("v_min_u32", tx, tx, a)
        p.op("v_mad_u32_u24", a, ty, f"s{sA}", tx)
        p.op("v_mul_u32_u24", a, "0xc0", a)
        p.op("v_add_u32", OFF[tt], a, xa)


def x_loads(p, opt, tiles=(0, 1, 2)):
    for tt in tiles:
        for k in range(3):
            p.vld("buffer_load_dwordx4", X(tt, k), 4, OFF[tt], SRD_X, 64 * k, opt.xflag)


def wq_base(p, a, b):
    p.op("v_subrev_u32", a, str(L_BIAS), V_BIAS)
    p.op("v_lshrrev_b32", b, "6", a)
    p.op("v_mul_u32_u24", b, str(WS), b)
    p.op("v_bfe_u32", a, a, "4", "2")
    p.op("v_lshl_add_u32", V_WQ, a, "3", b)


def lds_bases(p, opt):
    p.op("v_add_u32", V_BIAS, str(L_BIAS), L16)
    p.op("v_mov_b32", V_WQ, LC + 3)
    sal(p, f"s_mul_i32 {s(S_T1)}, {s(W)}, {XST}", [W], [S_T1], False)
    sal(p, f"s_add_u32 {s(S_T1)}, {s(S_T1)}, {L_X}", [S_T1], [S_T1])
    p.op("v_add_u32", V_TH, f"s{S_T1}", G16)
    p.op("v_lshl_add_u32", V_TV, N15, "1", f"s{S_T1}")
    p.op("v_add_u32", V_PW, f"s{S_T1}", LC + 4)
    p.op("v_mov_b32", PARA, str(L_PAR))


def pro_common(p, opt):
    p.salu(f"s_cmp_ge_u32 s2, {NWG}", sr(2), [SCC])
    p.raw("s_cbranch_scc1 L_end", rd=[SCC])
    if opt.debug:
        p.add(I(f"s_memtime {s(S_T2, 2)}", "smem", [], sr(S_T2, 2)))
        p.op("v_mov_b32", DBG + 7, f"s{S_T2}")
        p.add(I(f"s_memrealtime {s(S_T2, 2)}", "smem", [], sr(S_T2, 2)))
        p.op("v_mov_b32", DBG + 6, f"s{S_T2}")
    for srd, off in ((SRD_WQ, 8), (SRD_WO, 16), (SRD_RC, 48), (SRD_RIDX, 56), (SRD_X, 0), (SRD_MASK, 64), (SRD_OUT, 72)):
        p.smem("s_load_dwordx2", srd, 2, 0, off)
    p.smem("s_load_dwordx2", 32, 2, 0, 24)
    p.smem("s_load_dwordx4", 36, 4, 0, 32)
    p.op("v_lshrrev_b32", ta, "6", 0)
    p.op("v_and_b32", L, "63", 0)
    p.add(I(f"v_readfirstlane_b32 {s(W)}, {v(ta)}", "rdlane", [ta], sr(W)))
    p.add(I(f"s_getpc_b64 {s(72, 2)}", "salu", [], sr(72, 2)))
    p.add(I("s_add_u32 s72, s72, wtab@rel32@lo+4", "salu", sr(72), sr(72) + [SCC]))
    p.add(I("s_addc_u32 s73, s73, wtab@rel32@hi+12", "salu", sr(73) + [SCC], sr(73) + [SCC]))
    if opt.pf:
        p.add(I(f"s_getpc_b64 {s(70, 2)}", "salu", [], sr(70, 2)))
        sal(p, f"s_min_u32 s74, {s(W)}, {opt.pf - 1}", [W], [74])
        sal(p, f"s_lshl_b32 s74, s74, 13", [74], [74])
        p.op("v_lshl_add_u32", tb, L, "7", "s74")
        p.add(I(f"global_load_dword {v(159)}, {v(tb)}, {s(70, 2)}", "vld", [tb] + sr(70, 2), [159]))
    sal(p, f"s_min_u32 s74, {s(W)}, 8", [W], [74])
    sal(p, f"s_lshl_b32 s74, s74, 6", [74], [74])
    p.op("v_add_u32", ta, "s74", L)
    p.op("v_lshlrev_b32", tb, "3", ta)
    p.add(I(f"global_load_dwordx2 {v(TBL, 2)}, {v(tb)}, {s(72, 2)}", "vld", [tb] + sr(72, 2), vr(TBL, 2)))
    p.op("v_lshlrev_b32", WSRC, "4", ta)
    sal(p, f"s_add_u32 s74, {s(W)}, 5", [W], [74])
    sal(p, f"s_min_u32 s74, s74, 14", [74], [74])
    sal(p, f"s_lshl_b32 s74, s74, 9", [74], [74])
    p.op("v_lshl_add_u32", td, L, "3", "s74")
    p.add(I(f"global_load_dwordx2 {v(WOA + 2, 2)}, {v(td)}, {s(72, 2)}", "vld", [td] + sr(72, 2), vr(WOA + 2, 2)))
    p.op("v_lshlrev_b32", tc, "5", L)
    p.op("v_add_u32", tc, str(T_LANE), tc)
    p.add(I(f"global_load_dwordx4 {v(LC, 4)}, {v(tc)}, {s(72, 2)}", "vld", [tc] + sr(72, 2), vr(LC, 4)))
    p.add(I(f"global_load_dwordx2 {v(LC + 4, 2)}, {v(tc)}, {s(72, 2)} offset:16", "vld", [tc] + sr(72, 2), vr(LC + 4, 2)))
    for srd, nb in ((SRD_WQ, 96 * 288 * 2), (SRD_WO, 96 * 96 * 2), (SRD_RC, 169 * 4), (SRD_RIDX, 49 * 49 * 4), (SRD_X, X_BYTES),
                    (SRD_MASK, MASK_BYTES), (SRD_OUT, X_BYTES)):
        sal(p, f"s_mov_b32 {s(srd + 2)}, {nb}", [], [srd + 2], False)
        sal(p, f"s_mov_b32 {s(srd + 3)}, 0x00020000", [], [srd + 3], False)
    for i in range(6):
        sal(p, f"s_mov_b32 {s(76 + i)}, {9216 * i}", [], [76 + i], False)
    sal(p, f"s_sub_u32 s74, {s(W)}, 9", [W], [74])
    sal(p, f"s_lshl_b32 s74, s74, 8", [74], [74])
    p.op("v_lshl_add_u32", TE, L, "2", "s74")
    sal(p, f"s_cmp_gt_u32 {s(W)}, 8", [W], [])
    p.wait(lgkm=0)
    p.raw("s_cbranch_scc1 L_c9", rd=[SCC])
    p.cond_begin()
    w_loads(p)
    p.smem("s_load_dwordx2", S_LS, 2, 32, 0)
    p.raw("s_branch L_c10")
    p.cond_end()
    p.label("L_c9")
    p.cond_begin()
    p.vld("buffer_load_dword", rcv, 1, TE, SRD_RC, 0)
    p.smem("s_load_dwordx16", S_W1, 16, 36, 0)
    p.smem("s_load_dwordx16", S_W2, 16, 38, 0)
    p.smem("s_load_dwordx16", S_W2 + 16, 16, 38, 64)
    p.cond_end()
    p.label("L_c10")
    if opt.debug:
        p.add(I(f"s_memtime {s(34, 2)}", "smem", [], sr(34, 2)))
        p.op("v_mov_b32", DBG + 1, "s34")
    if opt.touch:
        p.raw("<touchA>", kind="label")
    p.op("v_and_b32", N15, "15", L)
    p.op("v_and_b32", G16, "48", L)
    p.op("v_lshlrev_b32", L16, "4", L)
    sal(p, f"s_cmp_lt_u32 {s(W)}, 4", [W], [])
    p.raw("s_cbranch_scc1 L_pathO", rd=[SCC])


def w_loads(p):
    for i in range(6):
        p.add(I(f"buffer_load_dwordx4 {v(WD + 4 * i, 4)}, {v(WSRC)}, {s(SRD_WQ, 4)}, {s(76 + i)} offen", "vld",
                [WSRC] + sr(SRD_WQ, 4) + sr(76 + i), vr(WD + 4 * i, 4)))


def w_scatter(p):
    p.op("v_and_b32", WA, "0xffff", TBL)
    p.op("v_lshrrev_b32", WA + 1, "16", TBL)
    p.op("v_and_b32", WA + 2, "0xffff", TBL + 1)
    p.op("v_lshrrev_b32", WA + 3, "16", TBL + 1)
    assert L_WI == 0 and (8 * WS) % 256 == 0
    for i in range(0, 6, 2):
        for d in range(4):
            o0 = (i >> 1) * 32 * WS // 256
            p.add(I(f"ds_write2st64_b32 {v(WA + d)}, {v(WD + 4 * i + d)}, {v(WD + 4 * i + 4 + d)} offset0:{o0} offset1:{o0 + 8 * WS // 256}",
                    "dsw", [WA + d, WD + 4 * i + d, WD + 4 * i + 4 + d], []))


def consts(p, opt):
    sal(p, f"s_mov_b32 {s(S_EPSQ)}, {f32(0.25e-12)}", [], [S_EPSQ], False)
    sal(p, f"s_mov_b32 {s(S_EPSLN)}, {f32(24e-5)}", [], [S_EPSLN], False)
    for r, val in ((S_MA, 0x33333333), (S_MA + 1, 0x33333333), (S_MB, 0xcccccccc), (S_MB + 1, 0xcccccccc)):
        sal(p, f"s_mov_b32 {s(r)}, {val:#x}", [], [r], False)
    sal(p, f"s_cmp_lt_u32 s2, {NS}", [2], [])
    csel(p, S_NWIN, "8", "12")


def tau_rd(p):
    p.dsr("ds_read_b128", 156, 4, PARA, 0)


def tau_use(p):
    for h in range(4):
        p.add(I(f"v_readfirstlane_b32 {s(S_TAU + h)}, {v(156 + h)}", "rdlane", [156 + h], sr(S_TAU + h)))
    sal(p, f"s_max_u32 {s(S_T0)}, {s(S_TAU)}, {s(S_TAU + 1)}", [S_TAU, S_TAU + 1], [S_T0])
    sal(p, f"s_max_u32 {s(S_T1)}, {s(S_TAU + 2)}, {s(S_TAU + 3)}", [S_TAU + 2, S_TAU + 3], [S_T1])
    sal(p, f"s_max_u32 {s(S_T0)}, {s(S_T0)}, {s(S_T1)}", [S_T0, S_T1], [S_T0])
    sal(p, f"s_cmp_gt_u32 {s(S_T0)}, {f32(TAU_THR * LOG2E)}", [S_T0], [])
    csel(p, S_UNSAFE, "1", "0")


def gather_addr(p, dst, spos, base):
    sal(p, f"s_lshr_b32 s69, {s(spos)}, 2", [spos], [69])
    sal(p, f"s_and_b32 s68, {s(spos)}, 3", [spos], [68])
    sal(p, f"s_mul_i32 s69, s69, {16 * 196}", [69], [69], False)
    sal(p, f"s_lshl_b32 s68, s68, 6", [68], [68])
    sal(p, f"s_add_u32 s68, s68, s69", [68, 69], [68])
    p.op("v_add_u32", dst, "s68", base)


def gather_prep(p, regs):
    for base in regs:
        for r in range(4):
            p.op("v_min_u32", base + r, "0xa8", base + r)
            p.op("v_lshl_add_u32", base + r, base + r, "4", f"s{S_T0}")
    sal(p, f"s_and_b32 {s(S_T0)}, {s(W)}, 3", [W], [S_T0])
    sal(p, f"s_cmp_eq_u32 {s(S_T0)}, 3", [S_T0], [])
    csel(p, S_HI48, "0xffff0000", "0")
    csel(p, S_HI48 + 1, "-1", "0")


def gather_rd(p, g, idx):
    for r in range(4):
        p.dsr("ds_read_b128", g + 4 * r, 4, idx + r, 0)


def gather_wr(p, g, extra):
    for h in range(4):
        p.add(I(f"v_cndmask_b32 {v(g + h)}, {v(g + h)}, {v(NEGR)}, {s(S_HI48, 2)}", "valu",
                [g + h, NEGR] + sr(S_HI48, 2), [g + h]))
    for i in range(4):
        for j in range(i + 1, 4):
            a_, b_ = g + 4 * i + j, g + 4 * j + i
            p.add(I(f"v_swap_b32 {v(a_)}, {v(b_)}", "valu", [a_, b_], [a_, b_]))
    for h in range(4):
        p.dsw("ds_write_b128", GDST, g + 4 * h, 4, 12288 * h + extra)


NEGR = 57
GC = 153


def path_o(p, opt):
    p.label("L_pathO")
    p.raw("s_waitcnt vmcnt(6)", kind="salu")
    p.ins.append(I("", "forgetv", rd=[LC + 4], states=0))
    window_map(p, opt)
    p.raw("s_barrier")
    x_loads(p, opt)
    stamp(p, opt, 2, early=True)
    w_scatter(p)
    lds_bases(p, opt)
    consts(p, opt)
    dbg_early(p, opt)
    if opt.touchb:
        p.raw("<touchB>", kind="label")
    p.wait(vm=9, lgkm=0)
    p.raw("s_barrier")
    stamp(p, opt, 3)
    tau_rd(p)
    tau_use(p)
    stamp(p, opt, 4)
    p.label("L_join")


def signal(p, which):
    p.salu("s_mov_b64 exec, 1", [], [EXEC])
    p.add(I(f"ds_add_u32 {v(PARA)}, {v(ONE)} offset:{L_CNT - L_PAR + 4 * which}", "dsw", [PARA, ONE], []))
    p.salu("s_mov_b64 exec, -1", [], [EXEC])


def path_y(p, opt):
    sB = S_T1
    sal(p, f"s_sub_u32 {s(sB)}, {s(W)}, 4", [W], [sB])
    sal(p, f"s_cmp_lt_u32 {s(W)}, 8", [W], [])
    p.raw("s_cbranch_scc1 L_rg", rd=[SCC])
    p.cond_begin()
    thin_offsets(p, opt)
    for k in range(3):
        p.vld("buffer_load_dwordx4", X48 + 4 * k, 4, O48R, SRD_X, 64 * k)
    p.op("v_lshlrev_b32", GB, "2", L)
    p.op("v_add_u32", GB, str(48 * 196), GB)
    p.vld("buffer_load_dword", 116, 1, GB, SRD_RIDX, 0)
    p.raw("s_branch L_re")
    p.cond_end()
    p.label("L_rg")
    p.cond_begin()
    p.op("v_mul_u32_u24", ta, "0xc4", N15)
    sal(p, f"s_lshl_b32 {s(S_T0)}, {s(sB)}, 6", [sB], [S_T0])
    p.op("v_add3_u32", GA, ta, G16, f"s{S_T0}")
    p.op("v_add_u32", GC, str(32 * 196), GA)
    p.vld("buffer_load_dwordx4", ridx, 4, GA, SRD_RIDX, 0)
    p.vld("buffer_load_dwordx4", ridxb, 4, GA, SRD_RIDX, 16 * 196)
    p.vld("buffer_load_dwordx4", ridxc, 4, GC, SRD_RIDX, 0)
    p.cond_end()
    p.label("L_re")
    p.raw("s_barrier")
    sal(p, f"s_mul_i32 {s(S_T0)}, {s(sB)}, 3072", [sB], [S_T0], False)
    p.op("v_mul_u32_u24", ta, "48", L)
    p.op("v_add_u32", WOA, f"s{S_T0}", ta)
    sal(p, f"s_lshl_b32 {s(S_T0)}, {s(sB)}, 10", [sB], [S_T0])
    p.op("v_add_u32", GDST, str(L_BIAS), L16)
    p.op("v_add_u32", GDST, f"s{S_T0}", GDST)
    stamp(p, opt, 2, early=True)
    sal(p, f"s_cmp_lt_u32 {s(W)}, 9", [W], [])
    p.raw("s_cbranch_scc1 L_notab", rd=[SCC])
    p.cond_begin()
    p.raw("s_setprio 3", kind="salu")
    p.raw("s_waitcnt vmcnt(4) lgkmcnt(0)", kind="salu")
    p.ins.append(I("", "forget", rd=[rcv], states=0))
    hb = u
    tmps = [S_LS, S_LS + 1, S_T0, S_T1, S_T2, S_T3]
    def packs1(jp):
        a_, b_ = S_W1 + jp, S_W1 + 8 + jp
        sal(p, f"s_pack_ll_b32_b16 {s(tmps[jp % 6])}, {s(a_)}, {s(b_)}", [a_, b_], [tmps[jp % 6]], False)
        sal(p, f"s_pack_hh_b32_b16 {s(b_)}, {s(a_)}, {s(b_)}", [a_, b_], [b_], False)
    for jp in range(3):
        packs1(jp)
    for jp in range(8):
        if jp + 3 < 8:
            packs1(jp + 3)
        p.op("v_dot2_f32_bf16", hb + 2 * jp, rcv, f"s{tmps[jp % 6]}", "0", kind="dot")
        p.op("v_dot2_f32_bf16", hb + 2 * jp + 1, rcv, f"s{S_W1 + 8 + jp}", "0", kind="dot")
    acc = hb + 8
    def packs2(jp):
        for h in range(4):
            r0, r1 = S_W2 + 4 * jp + (h >> 1), S_W2 + 4 * jp + 2 + (h >> 1)
            nm = "s_pack_hh_b32_b16" if h & 1 else "s_pack_ll_b32_b16"
            st = S_W1 + (4 * jp + h) % 16
            sal(p, f"{nm} {s(st)}, {s(r0)}, {s(r1)}", [r0, r1], [st], False)
    for j in range(8):
        p.op("v_cvt_pk_bf16_f32", hb + j, hb + 2 * j, hb + 2 * j + 1)
        if j < 3:
            packs2(j)
    for j in range(8):
        p.op("v_pk_max_i16", hb + j, hb + j, "0")
    for jp in range(8):
        for h in range(4):
            st = S_W1 + (4 * jp + h) % 16
            if jp == 0:
                p.op("v_dot2_f32_bf16", acc + h, hb, f"s{st}", "0", kind="dot")
            else:
                p.op("v_dot2_f32_bf16", acc + h, hb + jp, f"s{st}", acc + h, kind="dot").tag = "acc"
        if jp + 3 < 8:
            packs2(jp + 3)
    p.op("v_mov_b32", ta, f32(16.0 * LOG2E))
    p.op("v_lshlrev_b32", TE, "2", TE)
    p.op("v_add_u32", TE, str(L_TAB), TE)
    for step in range(9):
        for h in range(4):
            a = acc + h
            if step == 0: p.op("v_cvt_pk_bf16_f32", a, a, a)
            if step == 1: p.op("v_and_b32", a, "0xffff0000", a)
            if step == 2: p.op("v_mul_f32", a, f32(-LOG2E), a)
            if step == 3: p.op("v_exp_f32", a, a, kind="trans")
            if step == 4: p.op("v_add_f32", a, "1.0", a)
            if step == 5: p.op("v_rcp_f32", a, a, kind="trans")
            if step == 6: p.op("v_cvt_pk_bf16_f32", a, a, a)
            if step == 7: p.op("v_and_b32", a, "0xffff0000", a)
            if step == 8:
                p.op("v_fmaak_f32", a, a, ta, f32(-8.0 * LOG2E))
    p.dsw("ds_write_b128", TE, acc, 4, 0)
    p.raw("s_setprio 0", kind="salu")
    p.cond_end()
    p.label("L_notab")
    p.raw("s_waitcnt vmcnt(5)", kind="salu")
    p.ins.append(I("", "forgetv", rd=[LC + 4], states=0))
    lds_bases(p, opt)
    sal(p, f"s_cmp_lg_u32 {s(W)}, 4", [W], [])
    p.raw("s_cbranch_scc1 L_notau", rd=[SCC])
    p.cond_begin()
    p.wait(lgkm=0)
    for h in range(4):
        src, st = S_LS + (h >> 1), S_W1 + h
        if h & 1:
            sal(p, f"s_and_b32 {s(st)}, {s(src)}, 0xffff0000", [src], [st])
        else:
            sal(p, f"s_lshl_b32 {s(st)}, {s(src)}, 16", [src], [st])
        p.op("v_mov_b32", u + h, f"s{st}")
    for h in range(4):
        x = u + h
        p.op("v_min_f32", x, "0x40930000", x)
        p.op("v_max_f32", x, "0xc2c80000", x)
        p.op("v_mul_f32", x, f32(LOG2E), x)
        p.op("v_exp_f32", x, x, kind="trans")
    for h in range(4):
        x = u + h
        p.op("v_cvt_pk_bf16_f32", x, x, x)
        p.op("v_and_b32", x, "0xffff0000", x)
        p.op("v_mul_f32", x, f32(LOG2E), x)
    p.dsw("ds_write_b128", PARA, u, 4, 0)
    for i in range(4):
        p.op("v_mov_b32", u + 4 + i, "0")
    p.dsw("ds_write_b128", PARA, u + 4, 4, L_CNT - L_PAR)
    p.op("v_min_u32", tc, "11", N15)
    p.op("v_mul_u32_u24", tc, str(XST), tc)
    p.op("v_add_u32", tc, tc, G16)
    p.op("v_add_u32", tc, str(L_X + X_Z), tc)
    p.dsw("ds_write_b32", tc, u + 4, 1, 0)
    for i in range(4):
        p.op("v_mov_b32", u + 8 + i, "0x3f803f80")
    p.dsw("ds_write_b128", V_BIAS, u + 8, 4, L_ONES - L_BIAS)
    z = u + 10
    p.op("v_and_b32", ta, "1", L)
    p.op("v_lshlrev_b32", ta, "4", ta)
    p.op("v_mov_b32", tb, "0x3f80")
    p.op("v_lshlrev_b32", ta, ta, tb)
    sal(p, f"s_mov_b32 s50, 0x33333333", [], [50], False)
    sal(p, f"s_mov_b32 s51, 0x33333333", [], [51], False)
    p.wait(lgkm=0)
    for r in (z, z + 1, z + 4, z + 5):
        p.op("v_mov_b32", r, "0")
    p.add(I(f"v_cndmask_b32 {v(z + 2)}, 0, {v(ta)}, {s(50, 2)}", "valu", [ta] + sr(50, 2), [z + 2]))
    p.add(I(f"v_cndmask_b32 {v(z + 3)}, {v(ta)}, 0, {s(50, 2)}", "valu", [ta] + sr(50, 2), [z + 3]))
    p.dsw("ds_write_b128", V_BIAS, z + 2, 4, L_SEL - L_BIAS)
    p.dsw("ds_write_b128", V_BIAS, z, 4, L_SEL + 1024 - L_BIAS)
    p.cond_end()
    p.label("L_notau")
    if opt.debug is True:
        stamp(p, opt, 3, early=True)
        p.wait(vm=6)
        stamp(p, opt, 4, early=True)
    sal(p, f"s_cmp_gt_u32 {s(W)}, 8", [W], [])
    p.raw("s_cbranch_scc1 L_nosc", rd=[SCC])
    p.cond_begin()
    w_scatter(p)
    p.cond_end()
    p.label("L_nosc")
    if opt.debug is True:
        p.wait(lgkm=0)
        stamp(p, opt, 5, early=True)
    p.wait(lgkm=0)
    window_map(p, opt, temps=(48, 49, 50, 51, 52))
    sal(p, f"s_mov_b32 {s(S_T0)}, {L_TAB}", [], [S_T0], False)
    p.op("v_mov_b32", NEGR, f32(NEG_BIG))
    p.op("v_mov_b32", ONE, "1")
    sal(p, f"s_cmp_ge_u32 {s(W)}, 8", [W], [])
    p.raw("s_cbranch_scc1 L_tp", rd=[SCC])
    p.cond_begin()
    gather_prep(p, [ridx, ridxb, ridxc])
    p.raw("s_branch L_tq")
    p.cond_end()
    p.label("L_tp")
    p.cond_begin()
    thin_prep(p, opt)
    p.cond_end()
    p.label("L_tq")
    consts(p, opt)
    sal(p, f"s_mov_b32 {s(S_N12)}, 0x0fff0fff", [], [S_N12], False)
    sal(p, f"s_mov_b32 {s(S_N12 + 1)}, 0x0fff0fff", [], [S_N12 + 1], False)
    dbg_early(p, opt)
    p.raw("s_barrier")
    stamp(p, opt, 3)
    p.raw("s_setprio 3", kind="salu")
    tau_rd(p)
    p.wait(vm=0)
    sal(p, f"s_cmp_ge_u32 {s(W)}, 8", [W], [])
    p.raw("s_cbranch_scc1 L_thin", rd=[SCC])
    p.cond_begin()
    gather_rd(p, u, ridx)
    gather_rd(p, 60, ridxb)
    gather_rd(p, 128, ridxc)
    for i in range(3):
        p.vld("buffer_load_dwordx4", wov + 4 * i, 4, WOA, SRD_WO, 16 * i)
    if opt.xint:
        x_loads(p, opt, (0,))
    gather_wr(p, u, 0)
    if opt.xint:
        x_loads(p, opt, (1,))
    gather_wr(p, 60, 4096)
    gather_wr(p, 128, 8192)
    signal(p, 0)
    if opt.debug is True:
        stamp(p, opt, 17)
    x_loads(p, opt, (2,) if opt.xint else (0, 1, 2))
    p.raw("s_branch L_xdone")
    p.cond_end()
    p.label("L_thin")
    p.cond_begin()
    thin_jobs(p, opt)
    p.cond_end()
    p.label("L_sig0")
    signal(p, 0)
    if opt.debug is True:
        stamp(p, opt, 17)
    p.ins.append(I("", "vmreset", states=0))
    for i in range(3):
        p.vld("buffer_load_dwordx4", wov + 4 * i, 4, WOA, SRD_WO, 16 * i)
    x_loads(p, opt)
    p.label("L_xdone")
    tau_use(p)
    stamp(p, opt, 4)
    sal(p, f"s_cmp_ge_u32 {s(W)}, 10", [W], [])
    p.raw("s_cbranch_scc1 L_nowo", rd=[SCC])
    p.cond_begin()
    for i in range(12):
        p.op("v_lshlrev_b32", uu + 2 * i, "16", wov + i)
        p.op("v_and_b32", uu + 2 * i + 1, "0xffff0000", wov + i)
    sm = 50
    def pk(name, d, a, b, mods=""):
        p.add(I(f"{name} {v(d, 2)}, {v(a, 2)}, {v(b, 2)}{mods}", "valu", vr(a, 2) + vr(b, 2), vr(d, 2)))
    pk("v_pk_add_f32", sm, uu, uu + 2)
    for i in range(2, 12):
        pk("v_pk_add_f32", sm, sm, uu + 2 * i)
    p.op("v_add_f32", sm, sm, sm + 1)
    for ctl in ("quad_perm:[1,0,3,2]", "quad_perm:[2,3,0,1]"):
        p.add(I(f"v_add_f32_dpp {v(sm)}, {v(sm)}, {v(sm)} {ctl} row_mask:0xf bank_mask:0xf", "dpp", [sm], [sm]))
    p.op("v_mul_f32", sm, f32(-1.0 / 96.0), sm)
    for i in range(12):
        pk("v_pk_add_f32", uu + 2 * i, uu + 2 * i, sm, " op_sel_hi:[1,0]")
    for i in range(12):
        p.op("v_cvt_pk_bf16_f32", wov + i, uu + 2 * i, uu + 2 * i + 1)
    sal(p, f"s_mov_b32 {s(S_T0)}, {L_WO}", [], [S_T0], False)
    p.op("v_and_b32", 60, "0xffff", WOA + 2)
    p.op("v_lshrrev_b32", 61, "16", WOA + 2)
    p.op("v_and_b32", 62, "0xffff", WOA + 3)
    for i in range(3):
        p.op("v_add_u32", 60 + i, f"s{S_T0}", 60 + i)
        p.add(I(f"ds_write2_b64 {v(60 + i)}, {v(wov + 4 * i, 2)}, {v(wov + 4 * i + 2, 2)} offset0:0 offset1:4", "dsw",
                [60 + i] + vr(wov + 4 * i, 4), []))
    signal(p, 1)
    p.cond_end()
    p.label("L_nowo")
    p.wait(vm=9, lgkm=0)
    p.raw("s_setprio 0", kind="salu")
    sal(p, f"s_cmp_lg_u32 {s(S_IDLE)}, 0", [S_IDLE], [])
    p.raw("s_cbranch_scc1 L_end", rd=[SCC])
    p.raw("s_branch L_join")


WQH, DST, TAUA, DKQ, WVF, DVF, WVS = 60, 61, 62, 63, 108, 109, 84
RB48 = 90


def thin_prep(p, opt):
    hS = 53
    p.op("v_min_u32", 117, "0xa8", 116)
    p.op("v_lshl_add_u32", RB48, 117, "4", f"s{S_T0}")
    sal(p, f"s_sub_u32 {s(hS)}, {s(W)}, 8", [W], [hS])
    sal(p, f"s_mul_i32 {s(S_T0)}, {s(hS)}, 96", [hS], [S_T0], False)
    p.op("v_add_u32", WQH, f"s{S_T0}", V_WQ)
    sal(p, f"s_lshr_b32 s54, {s(hS)}, 1", [hS], [54])
    sal(p, f"s_and_b32 s55, {s(hS)}, 1", [hS], [55])
    sal(p, f"s_mul_i32 {s(S_T1)}, s54, 96", [54], [S_T1], False)
    p.op("v_add_u32", WVS, f"s{S_T1}", V_WQ)
    sal(p, f"s_lshl_b32 {s(S_T2)}, s55, 6", [55], [S_T2])
    p.op("v_add_u32", WVF, f"s{S_T2}", WVS)
    p.op("v_mul_u32_u24", DST, str(XST), N15)
    sal(p, f"s_lshl_b32 {s(S_T0)}, {s(hS)}, 7", [hS], [S_T0])
    sal(p, f"s_add_u32 {s(S_T0)}, {s(S_T0)}, {L_X + X_KQ}", [S_T0], [S_T0])
    p.op("v_add3_u32", DKQ, DST, G16, f"s{S_T0}")
    sal(p, f"s_lshl_b32 {s(S_T3)}, {s(hS)}, 2", [hS], [S_T3])
    p.op("v_add_u32", TAUA, f"s{S_T3}", PARA)
    sal(p, f"s_lshl_b32 s56, s54, 7", [54], [56])
    sal(p, f"s_add_u32 s56, s56, {L_X + X_V48}", [56], [56])
    p.op("v_lshrrev_b32", DVF, "1", G16)
    p.op("v_add3_u32", DST, DST, DVF, "s56")
    sal(p, f"s_mul_i32 s56, s55, 96", [55], [56], False)
    p.op("v_add_u32", DVF, "s56", DST)
    for r in (105, 106, 107):
        p.op("v_mov_b32", r, "0")
    p.op("v_mov_b32", 85, "0x3f803f80")
    p.op("v_mov_b32", 86, "0x3f803f80")
    p.op("v_lshlrev_b32", 153, "2", L)
    p.op("v_add_u32", 153, str(L_OFF48), 153)
    p.add(I(f"v_cmp_lt_u32 {s(56, 2)}, 48, {v(L)}", "valu", [L], sr(56, 2)))


def thin_jobs(p, opt):
    import sched
    Lh, FD, SD = 64, 76, 80
    wqs = [128, 132, 136, 140, 144, 20, 24, 28, 32]
    wfs = [36, 40, 112]
    wss = [116, 120, 124]
    SL, NP, D, BB = 100, 104, 20, 148
    ss = [110, 111]
    Sa, Sb = 84, 86
    n0 = len(p.ins)
    for T in range(3):
        for ks in range(3):
            r = wqs[3 * T + ks]
            off = L_WI + 32 * ks * WS + 32 * T
            p.dsr("ds_read_b64_tr_b16", r, 2, WQH, off)
            p.dsr("ds_read_b64_tr_b16", r + 2, 2, WQH, off + 16 * WS)
            p.mfma16(Lh + 4 * T, r, X48 + 4 * ks, None if ks == 0 else Lh + 4 * T)
    p.dsr("ds_read_b32", TAUA, 1, TAUA, 0)
    p.dsr("ds_read_b128", SL, 4, V_BIAS, L_SEL - L_BIAS)
    for (ws, ad, o, d) in ((wfs, WVF, 384, FD), (wss, WVS, 416, SD)):
        for ks in range(3):
            off = L_WI + 32 * ks * WS + o
            p.dsr("ds_read_b64_tr_b16", ws[ks], 2, ad, off)
            p.dsr("ds_read_b64_tr_b16", ws[ks] + 2, 2, ad, off + 16 * WS)
            p.mfma16(d, ws[ks], X48 + 4 * ks, None if ks == 0 else d)
    p.dsr("ds_read_b128", BB, 4, RB48, 0)
    for e in range(2):
        for i in range(6):
            x = Lh + 6 * e + i
            if i == 0:
                p.op("v_fma_f32", ss[e], x, x, f"s{S_EPSQ}")
            else:
                p.op("v_fmac_f32", ss[e], x, x, rmw=True)
    p.op("v_cvt_pk_bf16_f32", NP, ss[0], ss[1])
    p.mfma16(D, SL, NP, None)
    p.op("v_cvt_pk_bf16_f32", FD, FD, FD + 1)
    p.op("v_cvt_pk_bf16_f32", FD + 1, FD + 2, FD + 3)
    p.op("v_cvt_pk_bf16_f32", Sa, SD, SD + 1)
    p.op("v_cvt_pk_bf16_f32", Sb + 1, SD + 2, SD + 3)
    for h in range(4):
        p.add(I(f"v_cndmask_b32 {v(BB + h)}, {v(BB + h)}, {v(NEGR)}, {s(56, 2)}", "valu", [BB + h, NEGR] + sr(56, 2), [BB + h]))
    p.dsw("ds_write_b128", V_BIAS, BB, 4, L_B48 - L_BIAS)
    p.dsw("ds_write_b32", 153, O48R, 1, 0)
    p.op("v_rsq_f32", D, D, kind="trans")
    p.op("v_rsq_f32", D + 1, D + 1, kind="trans")
    p.op("v_mul_f32", D, D, TAUA)
    for i in range(12):
        p.op("v_mul_f32", Lh + i, Lh + i, D + i // 6)
    for i in range(3):
        p.op("v_cvt_pk_bf16_f32", Lh + i, Lh + 2 * i, Lh + 2 * i + 1)
    p.op("v_mov_b32", Lh + 3, "0")
    for i in range(3):
        p.op("v_cvt_pk_bf16_f32", Lh + 4 + i, Lh + 6 + 2 * i, Lh + 7 + 2 * i)
    p.op("v_mov_b32", Lh + 7, "0")
    blk = sched.schedule(p.ins[n0:])
    p.ins = p.ins[:n0] + blk
    p.salu(f"s_mov_b64 exec, {s(S_N12, 2)}", sr(S_N12, 2), [EXEC])
    p.dsw("ds_write_b64", DVF, FD, 2, 0)
    p.dsw("ds_write_b64", DST, Sa, 2, 32)
    p.dsw("ds_write_b64", DST, Sb, 2, 64)
    p.dsw("ds_write_b128", DKQ, Lh + 4, 4, 0)
    p.dsw("ds_write_b128", DKQ, Lh, 4, 64)
    p.salu("s_mov_b64 exec, -1", [], [EXEC])


def poll(p, slow, which, target, r, res, sleep=False):
    lbl = f"L_poll{which}" + ("s" if slow else "f")
    def gg():
        p.label(lbl)
        if sleep:
            p.raw("s_sleep 4", kind="salu")
        p.op("v_mov_b32", r, str(L_CNT + 4 * which))
        p.dsr("ds_read_b32", r, 1, r, 0)
        p.add(I(f"v_readfirstlane_b32 {s(S_B2)}, {v(r)}", "rdlane", [r], sr(S_B2)))
        sal(p, f"s_sub_u32 {s(S_JO)}, {s(S_JO)}, 1", [S_JO], [S_JO])
        p.raw(f"s_cbranch_scc1 {lbl}x", kind="salu", rd=[SCC])
        if isinstance(target, int):
            p.salu(f"s_cmp_lt_u32 {s(S_B2)}, {target}", sr(S_B2), [SCC])
        else:
            p.salu(f"s_cmp_lt_u32 {s(S_B2)}, {target}", sr(S_B2) + sr(int(target[1:])), [SCC])
        p.raw(f"s_cbranch_scc1 {lbl}", kind="salu", rd=[SCC])
        p.label(lbl + "x")
    gr = p.group(gg)
    gr.wr = gr.wr | {res}
    return gr


MQ = [OR_ + 8, OR_ + 20, OR_ + 32, OR_ + 8, OR_ + 20]


def mask_ld(p, opt, i):
    r = MQ[i]
    if i < 4:
        p.vld("buffer_load_dwordx4", r, 4, V_BIAS, SRD_MCHK, 1024 * i, opt.mflag)
    else:
        p.add(I(f"buffer_load_dwordx4 {v(r, 4)}, {v(V_BIAS)}, {s(SRD_MCHK, 4)}, {s(S_C4096)} offen{opt.mflag}", "vld",
                [V_BIAS] + sr(SRD_MCHK, 4) + sr(S_C4096), vr(r, 4)))
    return p.ins[-1]


def mask_use(p, opt, i):
    r = MQ[i]
    p.op("v_or3_b32", r, r, r + 1, r + 2)
    p.op("v_bitop3_b32", r, r, r + 3, f"s{S_C7F}", extra=" bitop3:0xa8")
    p.add(I(f"v_cmp_ne_u32 {s(S_MTMP, 2)}, 0, {v(r)}", "valu", [r], sr(S_MTMP, 2)))
    p.salu(f"s_or_b64 {s(S_MACC, 2)}, {s(S_MACC, 2)}, {s(S_MTMP, 2)}", sr(S_MACC, 2) + sr(S_MTMP, 2), sr(S_MACC, 2) + [SCC])


_pid = [3100]


def anchor_after(p, i, k=-2):
    _pid[0] += 1
    a = p.ins[k]
    a.wr = a.wr | {_pid[0]}
    i.rd = i.rd | {_pid[0]}


def make_hooks(opt):
    def hook(p, name, slow):
        chk = (not slow) and opt.mask_check
        if opt.prio and name in opt.prio:
            n0 = len(p.ins)
            i = p.raw(f"s_setprio {opt.prio[name]}", kind="salu", rd=[3000], wr=[3000])
            if n0:
                anchor_after(p, i)
        if name == "poll0":
            gb = poll(p, slow, 0, 8, K3, 3003)
            a = [i for i in p.ins if i.kind == "mfma"][min(opt.b2at, 28)]
            a.wr = a.wr | {3004}
            gb.rd = gb.rd | {3004}
            p.ins.remove(gb)
            p.ins.insert(p.ins.index(a) + 1, gb)
            if opt.debug is True:
                n0 = len(p.ins)
                stamp(p, opt, 19); stamp(p, opt, 18)
                st = p.ins[n0:]
                del p.ins[n0:]
                k = p.ins.index(gb)
                p.ins[k:k + 1] = st[:2] + [gb] + st[2:]
                gb.tag = "fence"
        elif name == "poll1":
            poll(p, slow, 1, 6, XR + 34, 3005)
        if name == opt.mk0 and chk:
            for i in range(3):
                anchor_after(p, mask_ld(p, opt, i), -2 - i)
        if name == "post0":
            stamp(p, opt, 6)
        if name == opt.mk1 and chk:
            n0 = len(p.ins)
            for i in range(3):
                mask_use(p, opt, i)
            for k in (n0, n0 + 4, n0 + 8):
                anchor_after(p, p.ins[k], n0 - 1 - len(p.ins))
            mask_ld(p, opt, 3); mask_ld(p, opt, 4)
        if name == "post1":
            stamp(p, opt, 8)
        elif name == "thin2" and chk:
            n0 = len(p.ins)
            for i in (3, 4):
                mask_use(p, opt, i)
            for k in (n0, n0 + 4):
                anchor_after(p, p.ins[k], n0 - 1 - len(p.ins))
            p.salu(f"s_cmp_lg_u64 {s(S_MACC, 2)}, 0", sr(S_MACC, 2), [SCC, 3001])
            p.add(I("s_cbranch_scc1 L_redo", "salu", [SCC, 3001], [3001, 3002]))
        elif name == "o48done":
            def gg():
                p.op("v_mov_b32", XR + 32, str(L_CNT + 8))
                p.op("v_mov_b32", XR + 33, "1")
                p.salu("s_mov_b64 exec, 1", [], [EXEC])
                p.add(I(f"ds_add_u32 {v(XR + 32)}, {v(XR + 33)}", "dsw", [XR + 32, XR + 33], []))
                p.salu("s_mov_b64 exec, -1", [], [EXEC])
            gr = p.group(gg)
            gr.rd = gr.rd | {3012, 3002}
        elif name == "post3":
            stamp(p, opt, 9)
        elif name == "end":
            stamp(p, opt, 10)
            n0 = len(p.ins)
            if opt.debug:
                stamp_flush(p, opt)
            sal(p, f"s_cmp_eq_u32 {s(W)}, {opt.jowave}", [W], [])
            p.raw("s_cbranch_scc1 L_jo", rd=[SCC])
            p.raw("s_endpgm")
            for i in p.ins[n0:]:
                i.tag = "fence" if i.tag is None else i.tag
    return hook


def mask_srd(p, opt):
    sal(p, f"s_sub_u32 {s(SRD_MCHK)}, {s(SRD_MASK)}, {L_BIAS}", [SRD_MASK], [SRD_MCHK])
    p.salu(f"s_subb_u32 {s(SRD_MCHK + 1)}, {s(SRD_MASK + 1)}, 0", sr(SRD_MASK + 1) + [SCC], sr(SRD_MCHK + 1) + [SCC])
    sal(p, f"s_add_u32 {s(SRD_MCHK)}, {s(SRD_MCHK)}, {s(S_MBASE)}", [SRD_MCHK, S_MBASE], [SRD_MCHK])
    p.salu(f"s_addc_u32 {s(SRD_MCHK + 1)}, {s(SRD_MCHK + 1)}, 0", sr(SRD_MCHK + 1) + [SCC], sr(SRD_MCHK + 1) + [SCC])
    sal(p, f"s_mov_b32 {s(SRD_MCHK + 2)}, {L_BIAS + 4804}", [], [SRD_MCHK + 2], False)
    sal(p, f"s_mov_b32 {s(SRD_MCHK + 3)}, 0x00020000", [], [SRD_MCHK + 3], False)
    sal(p, f"s_mov_b64 {s(S_MACC, 2)}, 0", [], [S_MACC, S_MACC + 1], False)
    sal(p, f"s_mov_b32 {s(S_C7F)}, 0x7fff7fff", [], [S_C7F], False)
    sal(p, f"s_movk_i32 {s(S_C4096)}, 4096", [], [S_C4096], False)


def dispatch(p, opt):
    p.raw("s_waitcnt lgkmcnt(0)", kind="salu")
    mask_srd(p, opt)
    sal(p, f"s_mov_b32 {s(S_JO)}, 1000000", [], [S_JO], False)
    p.salu(f"s_or_b32 {s(S_T0)}, {s(S_KILL)}, {s(S_UNSAFE)}", sr(S_KILL) + sr(S_UNSAFE), sr(S_T0) + [SCC])
    p.raw("s_cbranch_scc1 L_slow", rd=[SCC])


def slow_regs(h):
    if h < 3:
        return dict(pairs=[LR + 12 + 8, LR + 12 + 10, OR_ + 10], m6=OR_ + 9, ad=OR_ + 21, tmp=OR_ + 22, mx=OR_ + 23, m2=OR_ + 33)
    return dict(pairs=[XR + 24, XR + 26, XR + 28], m6=XR + 30, ad=XR + 31, tmp=XR + 35, mx=LR + 12 + 8, m2=LR + 12 + 9)


def slow_softmax(p, h, qt, regs):
    R = slow_regs(h)
    ad, tmp, mx, m2 = R["ad"], R["tmp"], R["mx"], R["m2"]
    p.op("v_bfe_u32", tmp, V_BIAS, "4", "4")
    if qt:
        p.op("v_add_u32", tmp, str(16 * qt), tmp)
    p.op("v_mul_u32_u24", tmp, "0x62", tmp)
    p.op("v_add_u32", tmp, f"s{S_MBASE}", tmp)
    p.vld("buffer_load_ushort", R["m6"], 1, tmp, SRD_MASK, 96)
    p.op("v_bfe_u32", ad, V_BIAS, "8", "2")
    p.op("v_lshl_add_u32", ad, ad, "3", tmp)
    for kt in range(3):
        p.vld("buffer_load_dwordx2", R["pairs"][kt], 2, ad, SRD_MASK, 32 * kt)
    for kt in range(3):
        for e in range(4):
            r, src = regs[4 * kt + e], R["pairs"][kt] + (e >> 1)
            if e & 1:
                p.op("v_and_b32", tmp, "0xffff0000", src)
            else:
                p.op("v_lshlrev_b32", tmp, "16", src)
            p.op("v_fmamk_f32", r, tmp, f32(LOG2E), r)
    p.op("v_lshlrev_b32", tmp, "16", R["m6"])
    p.op("v_fmamk_f32", regs[12], tmp, f32(LOG2E), regs[12])
    p.op("v_max3_f32", mx, regs[0], regs[1], regs[2])
    for i in range(3, 13, 2):
        p.op("v_max3_f32", mx, mx, regs[i], regs[i + 1])
    xrow_max(p, mx, m2)
    for r in regs:
        p.op("v_sub_f32", r, r, mx)


def xrow_max(p, mx, m2):
    p.op("v_mov_b32", m2, mx)
    p.swap32(mx, m2)
    p.op("v_max_f32", mx, mx, m2)
    p.op("v_mov_b32", m2, mx)
    p.add(I(f"v_permlane16_swap_b32 {v(mx)}, {v(m2)}", "perm", [mx, m2], [mx, m2]))
    p.op("v_max_f32", mx, mx, m2)


def slow_thin(p, h, r):
    R = slow_regs(h)
    tmp, mx, m2 = R["tmp"], R["mx"], R["m2"]
    p.op("v_bfe_u32", tmp, V_BIAS, "4", "6")
    p.op("v_min_u32", tmp, "48", tmp)
    p.op("v_lshl_add_u32", tmp, tmp, "1", f"s{S_MBASE}")
    p.add(I(f"buffer_load_ushort {v(R['m6'])}, {v(tmp)}, {s(SRD_MASK, 4)}, {s(S_C4096)} offen offset:{48 * 98 - 4096}", "vld",
            [tmp] + sr(SRD_MASK, 4) + sr(S_C4096), [R["m6"]]))
    p.op("v_lshlrev_b32", tmp, "16", R["m6"])
    p.op("v_fmamk_f32", r, tmp, f32(LOG2E), r)
    p.op("v_mov_b32", mx, r)
    for k in (8, 4, 2, 1):
        p.add(I(f"v_max_f32_dpp {v(mx)}, {v(mx)}, {v(mx)} row_ror:{k} row_mask:0xf bank_mask:0xf", "dpp", [mx], [mx]))
    xrow_max(p, mx, m2)
    p.op("v_sub_f32", r, r, mx)


def jo(p, opt):
    p.label("L_jo")
    p.raw("s_setprio 0", kind="salu")
    poll(p, False, 2, f"s{S_NWIN}", 8, 3020, sleep=True).tag = "fence"
    a, b, off = 8, 9, 10
    OB, Y, wq, SL, NP, D = 12, 24, 48, 120, 124, 128
    p.op("v_bfe_u32", a, V_BIAS, "4", "4")
    p.op("v_bfe_u32", b, V_BIAS, "8", "2")
    p.op("v_bfe_u32", off, V_BIAS, "4", "6")
    p.op("v_lshlrev_b32", off, "2", off)
    p.op("v_add_u32", off, str(L_OFF48), off)
    p.dsr("ds_read_b32", off, 1, off, 0)
    p.op("v_min_u32", a, "11", a)
    p.op("v_mul_u32_u24", a, str(XST), a)
    p.op("v_mad_u32_u24", a, b, "48", a)
    p.op("v_add_u32", a, str(L_X + X_O48), a)
    for k in range(3):
        p.dsr("ds_read_b128", OB + 4 * k, 4, a, 16 * k)
    p.dsr("ds_read_b128", SL, 4, V_BIAS, L_SEL - L_BIAS)
    for T in range(6):
        for ks in range(3):
            w = wq + 4 * (3 * T + ks)
            o = 32 * ks * WOS + 32 * T
            p.dsr("ds_read_b64_tr_b16", w, 2, V_WQ, o)
            p.dsr("ds_read_b64_tr_b16", w + 2, 2, V_WQ, o + 16 * WOS)
            p.mfma16(Y + 4 * T, w, OB + 4 * ks, None if ks == 0 else Y + 4 * T)
    ss = 11
    for i in range(24):
        if i == 0:
            p.op("v_fma_f32", ss, Y, Y, f"s{S_EPSLN}")
        else:
            p.op("v_fmac_f32", ss, Y + i, Y + i, rmw=True)
    p.op("v_cvt_pk_bf16_f32", NP, ss, ss)
    for r in (NP + 1, NP + 2, NP + 3):
        p.op("v_mov_b32", r, "0")
    p.mfma16(D, SL, NP, None)
    p.op("v_rsq_f32", D, D, kind="trans")
    p.op("v_mul_f32", D, f32(math.sqrt(96.0)), D)
    for i in range(24):
        p.op("v_mul_f32", Y + i, Y + i, D)
    for uu_ in range(3):
        base = Y + 8 * uu_
        for i in range(4):
            p.op("v_cvt_pk_bf16_f32", base + i, base + 2 * i, base + 2 * i + 1)
        p.vst("buffer_store_dwordx4", base, 4, off, SRD_OUT, 64 * uu_, opt.sflag)
    p.raw("s_endpgm")


import re as _re


def isize(i):
    t = i.text
    if i.kind == "label":
        return 0
    op = t.split()[0]
    lit = bool(_re.search(r"(?<![\w\[:])(0x[0-9a-f]+|\d{3,}|6[5-9]|[7-9]\d|wtab\S*)(?![\w\]:])", t.split(None, 1)[1] if " " in t else ""))
    if op.startswith("s_"):
        if op.startswith(("s_load", "s_mem")):
            return 8
        if op in ("s_waitcnt", "s_nop", "s_barrier", "s_branch", "s_setprio", "s_sleep", "s_endpgm", "s_movk_i32", "s_addk_i32") or op.startswith("s_cbranch"):
            return 4
        return 8 if lit else 4
    if op in ("v_mov_b32", "v_add_u32", "v_sub_u32", "v_subrev_u32", "v_and_b32", "v_or_b32", "v_lshlrev_b32", "v_lshrrev_b32", "v_mul_f32",
              "v_add_f32", "v_sub_f32", "v_fmac_f32", "v_exp_f32", "v_rcp_f32", "v_rsq_f32", "v_min_u32", "v_max_f32", "v_min_f32",
              "v_mul_u32_u24", "v_bfrev_b32", "v_readfirstlane_b32", "v_swap_b32", "v_permlane32_swap_b32", "v_permlane16_swap_b32"):
        return 8 if lit else 4
    return 8


def add_touch(seq, name, nseg, ret, limit=None, step=120):
    pos, acc, tot = [], step, 0
    for k, i in enumerate(seq):
        if limit is not None and tot >= limit:
            break
        sz = isize(i)
        if acc + sz > step and i.kind != "label" and i.tag != "nt":
            pos.append(k)
            acc = 4
        acc += sz
        tot += sz
    per = -(-len(pos) // nseg)
    out, ent = [], []
    ps = {k: j for j, k in enumerate(pos)}
    for k, i in enumerate(seq):
        if k in ps:
            j = ps[k]
            if j % per == 0:
                ent.append(f"L_{name}{j}")
            last = (j + 1) % per == 0 or j + 1 == len(pos)
            out.append(I(f"L_{name}{j}:", "label", states=0))
            out.append(I(f"s_cbranch_execz {ret if last else f'L_{name}{j + 1}'}", "salu"))
        out.append(i)
    return out, ent


def touch_dispatch(ent, ret, tag):
    out = [I("s_mov_b64 exec, 0", "salu")]
    def tree(lo, hi):
        if hi - lo == 1:
            out.append(I(f"s_branch {ent[lo] if lo < len(ent) else ret}", "salu"))
            return
        mid = (lo + hi) // 2
        lbl = f"L_{tag}d{lo}_{hi}"
        out.append(I(f"s_cmp_ge_u32 {s(W)}, {mid}", "salu"))
        out.append(I(f"s_cbranch_scc1 {lbl}", "salu"))
        tree(lo, mid)
        out.append(I(lbl + ":", "label", states=0))
        tree(mid, hi)
    return out, tree


HEADER = open("standalone__window_attn_swin_v2__vision.s.ref").read().split("; Override")[0]


def generate(opt, sched=None):
    opt.hook = make_hooks(opt)
    opt.slow_softmax = slow_softmax
    opt.slow_thin = slow_thin
    segs = {}
    for nm, fn in (("com", pro_common), ("po", path_o), ("py", path_y), ("jo", jo)):
        p = Prog(); fn(p, opt); segs[nm] = p.ins
    p = Prog()
    if opt.debug and opt.debug != 3:
        p.wait(vm=0)
        stamp(p, opt, 5)
    dispatch(p, opt); segs["dis"] = p.ins
    B.SLOWPQ = False
    p = Prog(); body(p, False, opt); segs["fast"] = p.ins
    B.SLOWPQ = True
    p = Prog(); body(p, True, opt); segs["slow"] = p.ins
    p = Prog()
    p.label("L_redo")
    p.wait(vm=0, lgkm=0)
    p.raw("s_nop 15", kind="nop", states=16)
    x_loads(p, opt)
    segs["redo"] = p.ins
    if sched:
        for k in ("fast", "slow", "jo"):
            segs[k] = sched(segs[k])
    st = WaitState()
    com = insert_nops(insert_waits(flatten(segs["com"]), st))
    sty = st.copy()
    po = insert_nops(insert_waits(flatten(segs["po"]), st), com)
    py = insert_nops(insert_waits(flatten(segs["py"]), sty), com)
    tail = lambda w: [(x.text) for x in w.vm]
    assert tail(st) == tail(sty) and len(st.vm) == 9, (tail(st), tail(sty))
    assert not st.lg and not sty.lg
    clean = [I("s_nop 15", "nop", states=16)]
    mid = insert_nops(insert_waits(flatten(segs["dis"]), st), clean)
    head = com + py + po + mid
    fast = insert_nops(insert_waits(flatten(segs["fast"]), st.copy()), head)
    str_ = WaitState(); str_.vm = [I("x", "vst")]; str_.lg = [I("x", "dsw")]
    redo = insert_nops(insert_waits(flatten(segs["redo"]), str_), clean)
    slow = insert_nops(insert_waits(flatten(segs["slow"]), st.copy() if opt.debug in (None, 3) else str_), clean)
    stj = WaitState()
    jos = [I("s_nop 7", "nop", states=8)] + insert_nops(insert_waits(flatten(segs["jo"]), stj), clean)
    jos = [jos[1], jos[0]] + jos[2:]
    if opt.touchb:
        k0 = 0
        acc = 0
        while acc < opt.tlim:
            acc += isize(fast[k0]); k0 += 1
        tail_, ent = add_touch(fast[k0:], "tb", 4, "L_tbret", limit=opt.tlimb)
        fast = fast[:k0] + tail_
        d, tree = touch_dispatch(ent, "L_tbret", "tb")
        tree(0, 4)
        d += [I("L_tbret:", "label", states=0), I("s_mov_b64 exec, -1", "salu")]
        for x in d[1:]:
            x.tag = "nt"
        k = [j for j, i in enumerate(head) if i.text == "<touchB>"][0]
        head = head[:k] + d + head[k + 1:]
    if opt.touch:
        k = [j for j, i in enumerate(head) if i.text == "<touchA>"][0]
        hb = sum(isize(i) for i in head[k + 1:])
        rest, ent = add_touch(head[k + 1:] + [I("<cut>", "label", states=0)] + fast, "ta", 12, "L_taret", limit=hb + opt.tlim)
        c = [j for j, i in enumerate(rest) if i.text == "<cut>"][0]
        fast = rest[c + 1:]
        d, tree = touch_dispatch(ent, "L_taret", "ta")
        tree(0, 12)
        d += [I("L_taret:", "label", states=0), I("s_mov_b64 exec, -1", "salu")]
        head = head[:k] + d + rest[:c]
    name = "standalone__window_attn_swin_v2__vision_kernel"
    txt = HEADER
    txt += f"; @launch grid=({NWG},1,1) block=({64 * WPW},1,1) lds={L_END}\n"
    txt += f""".amdgcn_target "amdgcn-amd-amdhsa--gfx950"
.text
.globl {name}
.p2align 8
.type {name},@function
{name}:
"""
    txt += render(head) + "\n" + render(fast) + "\n" + render(jos) + "\n" + render(redo) + "\nL_slow:\n" + render(slow) + "\nL_end:\n    s_endpgm\n"
    txt += f""".section .rodata,"a"
.p2align 6
.amdhsa_kernel {name}
  .amdhsa_next_free_vgpr {NVGPR}
  .amdhsa_next_free_sgpr 102
  .amdhsa_accum_offset {NVGPR}
  .amdhsa_group_segment_fixed_size 0
  .amdhsa_kernarg_size 96
  .amdhsa_user_sgpr_count 2
  .amdhsa_user_sgpr_kernarg_segment_ptr 1
  .amdhsa_system_sgpr_workgroup_id_x 1
.end_amdhsa_kernel
.p2align 6
wtab:
"""
    tb_ = w_table() + wo_table() + lane_table()
    for i in range(0, len(tb_), 16):
        txt += "    .short " + ", ".join(str(x) for x in tb_[i:i + 16]) + "\n"
    stats = {}
    for nm, seq in (("head", head), ("fast", fast), ("slow", slow), ("jo", jos)):
        c = {}
        for i in seq:
            c[i.kind] = c.get(i.kind, 0) + 1
        c["nopstates"] = sum(i.states for i in seq if i.kind == "nop")
        stats[nm] = c
    return txt, stats


if __name__ == "__main__":
    import sched
    opt = Opt()
    opt.jowave = 0
    for a in sys.argv[1:]:
        if a == "--debug": opt.debug = True
        if a == "--debug3": opt.debug = 3
        if a == "--nomask": opt.mask_check = False
        if a == "--vz": opt.ldszero = False
        if a == "--noxint": opt.xint = False
        if a.startswith("--pf="): opt.pf = int(a[5:])
        if a.startswith("--pk="): opt.pk = a[5:]
        if a == "--notouch": opt.touch = False
        if a == "--touchb": opt.touchb = True
        if a.startswith("--tlim="): opt.tlim = int(a[7:])
        if a.startswith("--tlimb="): opt.tlimb = int(a[8:])
        if a.startswith("--ldslat="): sched.Params.lds_lat = int(a[9:])
        if a.startswith("--b2at="): opt.b2at = int(a[7:])
        if a.startswith("--mk1="): opt.mk1 = a[6:]
        if a.startswith("--mk0="): opt.mk0 = a[6:]
        if a.startswith("--prio="):
            opt.prio = {kv.split(":")[0]: int(kv.split(":")[1]) for kv in a[7:].split(",")}
        for fl in ("xflag", "mflag", "sflag"):
            if a.startswith(f"--{fl}="):
                setattr(opt, fl, " " + a.split("=")[1].replace(",", " "))
    args = [a for a in sys.argv[1:] if not a.startswith("--")]
    out = args[0] if args else "g2.s"
    sc = None if "--nosched" in sys.argv else (lambda x: sched.schedule(x, verbose=True))
    txt, stats = generate(opt, sc)
    open(out, "w").write(txt)
    for k, c in stats.items():
        print(k, c)
```

```python
import sys, struct, math
sys.path.insert(0, "gen")
from asmlib import *

def f32(x):
    return "0x%08x" % struct.unpack("<I", struct.pack("<f", x))[0]

LOG2E = 1.4426950408889634
WS = 608
WOS = 224
L_WI = 0
L_WO = 96 * WS
L_BIAS = L_WO + 96 * WOS
L_B48 = L_BIAS + 49152
L_SEL = L_B48 + 1024
L_ONES = L_SEL + 2048
L_TAB = L_ONES + 1024
L_PAR = L_TAB + 3072
L_CNT = L_PAR + 32
L_OFF48 = L_PAR + 64
L_X = L_PAR + 384
XST = 1536
X_KQ, X_V48, X_P48, X_Z, X_O48 = 0, 512, 768, 896, 1024
L_X48 = L_X + 12 * XST
L_END = L_X48 + 3072

SRD_X, SRD_OUT, SRD_MASK = 4, 8, 20
S_W = 3
S_TAU, S_EPSQ, S_EPSLN = 32, 36, 37
S_MA, S_MB = 38, 40
S_UNSAFE, S_WIN, S_MBASE, S_KILL = 42, 43, 44, 45
SRD_MCHK, S_MACC, S_MTMP, S_C7F, S_C4096, S_B2 = 28, 52, 54, 56, 57, 58
S_T0, S_T1, S_T2, S_T3 = 98, 99, 100, 101

OFF = [0, 1, 2]
V_WQ, V_BIAS, V_TH, V_TV, V_PW = 3, 4, 5, 6, 7
XR, OR_, VF, VSA, VSB, LR, K3, SA, OA = 8, 44, 80, 88, 96, 104, 140, 144, 160
NEG_BIG = -30000.0


class WBuf:
    def __init__(self, quads):
        self.q = list(quads); self.i = 0
    def next(self):
        r = self.q[self.i % len(self.q)]; self.i += 1
        return r


def dep(i, *ids):
    i.rd = i.rd | set(ids)
    return i


def ld_w(p, wb, col, ks):
    r = wb.next()
    off = L_WI + 32 * ks * WS + col * 2
    p.dsr("ds_read_b64_tr_b16", r, 2, V_WQ, off)
    p.dsr("ds_read_b64_tr_b16", r + 2, 2, V_WQ, off + 16 * WS)
    return r


def zero(p, r, opt):
    if opt.ldszero:
        p.dsr("ds_read_b32", r, 1, V_TH, X_Z)
    else:
        p.op("v_mov_b32", r, "0")


def scale(p, regs, sc, opt, lvl):
    i = 0
    while i < len(regs):
        r = regs[i]
        if lvl in opt.pk and i + 1 < len(regs) and regs[i + 1] == r + 1 and r % 2 == 0:
            e = sc & ~1
            mods = " op_sel_hi:[1,0]" if sc % 2 == 0 else " op_sel:[0,1] op_sel_hi:[1,1]"
            p.add(I(f"v_pk_mul_f32 {v(r, 2)}, {v(r, 2)}, {v(e, 2)}{mods}", "pk", [r, r + 1, sc], [r, r + 1]))
            i += 2
        else:
            p.op("v_mul_f32", r, r, sc)
            i += 1


def sumsq(p, dst, regs, eps, opt, lvl, tmp=None):
    if lvl in opt.pk and tmp is not None:
        for i in range(0, len(regs), 2):
            r = regs[i]
            if i == 0:
                p.add(I(f"v_pk_mul_f32 {v(tmp, 2)}, {v(r, 2)}, {v(r, 2)}", "pk", [r, r + 1], [tmp, tmp + 1]))
            else:
                p.add(I(f"v_pk_fma_f32 {v(tmp, 2)}, {v(r, 2)}, {v(r, 2)}, {v(tmp, 2)}", "pk", [r, r + 1, tmp, tmp + 1], [tmp, tmp + 1]))
        p.op("v_add_f32", dst, tmp, tmp + 1)
        p.op("v_add_f32", dst, f"s{eps}", dst)
        return
    for i, x in enumerate(regs):
        if i == 0:
            p.op("v_fma_f32", dst, x, x, f"s{eps}")
        else:
            p.op("v_fmac_f32", dst, x, x, rmw=True)


def X(tt, ks):
    return XR + 12 * tt + 4 * ks


def qk(p, h, opt):
    wb = WBuf([SA, SA + 4, SA + 8, SA + 12])
    for T in range(3):
        for ks in range(3):
            w = ld_w(p, wb, 48 * h + 16 * T, ks)
            for tt in range(3):
                d = LR + 12 * tt + 4 * T
                p.mfma16(d, w, X(tt, ks), None if ks == 0 else d)
    ss = [OA + i for i in range(6)]
    for tt in range(3):
        for e in range(2):
            for i in range(6):
                x = LR + 12 * tt + 6 * e + i
                if i == 0:
                    p.op("v_fma_f32", ss[2 * tt + e], x, x, f"s{S_EPSQ}")
                else:
                    p.op("v_fmac_f32", ss[2 * tt + e], x, x, rmw=True)
    NP, D1, D2, SL = SA, SA + 4, SA + 8, SA + 12
    for i in range(3):
        p.op("v_cvt_pk_bf16_f32", NP + i, ss[2 * i], ss[2 * i + 1])
    zero(p, NP + 3, opt)
    p.dsr("ds_read_b128", SL, 4, V_BIAS, L_SEL - L_BIAS)
    p.dsr("ds_read_b128", K3, 4, V_BIAS, L_SEL + 1024 - L_BIAS)
    p.mfma16(D1, SL, NP, None)
    p.mfma16(D2, K3, NP, None)
    sc = [D1, D1 + 1, D1 + 2, D1 + 3, D2, D2 + 1]
    for i in range(6):
        p.op("v_rsq_f32", sc[i], sc[i], kind="trans")
        if i % 2 == 0:
            p.op("v_mul_f32", sc[i], f"s{S_TAU + h}", sc[i])
    for tt in range(3):
        b = LR + 12 * tt
        scale(p, [b + i for i in range(6)], sc[2 * tt], opt, "q")
        scale(p, [b + 6 + i for i in range(6)], sc[2 * tt + 1], opt, "q")
        for i in range(3):
            p.op("v_cvt_pk_bf16_f32", b + i, b + 2 * i, b + 2 * i + 1)
        zero(p, b + 3, opt)
        for i in range(3):
            p.op("v_cvt_pk_bf16_f32", b + 4 + i, b + 6 + 2 * i, b + 7 + 2 * i)
        zero(p, b + 7, opt)
        if tt < (1 if SLOWPQ else 2):
            zero(p, b + 11, opt)
    dep(p.dsr("ds_read_b128", K3, 4, V_TH, X_KQ + 128 * h), 3003)


def vproj(p, col, dsts, tv, opt):
    wb = WBuf([OA, OA + 4, SA + 12])
    for ks in range(3):
        w = ld_w(p, wb, col, ks)
        for tt in range(3):
            d = SA + 4 * tt
            p.mfma16(d, X(tt, ks), w, None if ks == 0 else d)
    for dst, m, t in dsts:
        if m is None:
            for i in range(6):
                p.op("v_cvt_pk_bf16_f32", dst + i, SA + 2 * i, SA + 2 * i + 1)
        else:
            def g():
                p.salu(f"s_mov_b64 exec, {s(m, 2)}", sr(m, 2), [EXEC])
                for i in range(6):
                    p.op("v_cvt_pk_bf16_f32", dst + i, SA + 2 * i, SA + 2 * i + 1, rmw=True)
                p.salu("s_mov_b64 exec, -1", [], [EXEC])
            p.group(g)
        dep(p.dsr("ds_read_u16", dst + 6, 1, V_TV, X_V48 + 32 * t), 3003)


_u = [0]
SLOWPQ = False


def next_pq():
    r = LR + (0 if SLOWPQ else 12 * (_u[0] % 2)) + 8
    _u[0] += 1
    return r


def pv_norm(p, h, P0, PQ, VS, dst, opt):
    OF, OS = OA, OA + 4
    p.mfma16(OF, VF, P0, None)
    p.mfma16(OS, VS, P0, None)
    p.mfma16(OF, VF + 4, PQ, OF)
    p.mfma16(OS, VS + 4, PQ, OS)
    lreg, r0 = (OS + 2, OS) if h % 2 == 0 else (OS, OS + 2)
    p.op("v_rcp_f32", lreg, lreg, kind="trans")
    scale(p, [OF, OF + 1, OF + 2, OF + 3, r0, r0 + 1], lreg, opt, "o")
    p.op("v_cvt_pk_bf16_f32", dst[0], OF, OF + 1)
    p.op("v_cvt_pk_bf16_f32", dst[1], OF + 2, OF + 3)
    p.op("v_cvt_pk_bf16_f32", dst[2], r0, r0 + 1)


def unit(p, h, qt, slow, opt):
    VS = VSA if h % 2 == 0 else VSB
    boff = (h * 3 + qt) * 4096
    for kt in range(3):
        dep(p.dsr("ds_read_b128", SA + 4 * kt, 4, V_BIAS, boff + 1024 * kt), 3003)
    if opt.b3:
        dep(p.dsr("ds_read_b32", SA + 12, 1, V_BIAS, boff + 3072), 3003)
    else:
        dep(p.dsr("ds_read_b128", SA + 12, 4, V_BIAS, boff + 3072), 3003)
    Q = LR + 12 * qt
    for kt in range(4):
        K = LR + 12 * kt + 4 if kt < 3 else K3
        p.mfma16(SA + 4 * kt, K, Q, SA + 4 * kt)
    regs = [SA + i for i in range(13)]
    if slow:
        opt.slow_softmax(p, h, qt, regs)
    for r in regs:
        p.op("v_exp_f32", r, r, kind="trans")
    P0 = LR + 24 + 8
    PQ = next_pq()
    for i in range(4):
        p.op("v_cvt_pk_bf16_f32", P0 + i, SA + 2 * i, SA + 2 * i + 1)
    p.op("v_cvt_pk_bf16_f32", PQ, SA + 8, SA + 9)
    p.op("v_cvt_pk_bf16_f32", PQ + 1, SA + 10, SA + 11)
    p.op("v_cvt_pk_bf16_f32", PQ + 2, SA + 12, "0")
    o = OR_ + 12 * qt + 3 * h
    pv_norm(p, h, P0, PQ, VS, [o, o + 1, o + 2], opt)


def thin(p, h, slow, opt):
    VS = VSA if h % 2 == 0 else VSB
    Q48 = OA
    dep(p.dsr("ds_read_b128", Q48, 4, V_TH, X_KQ + 128 * h + 64), 3003)
    dep(p.dsr("ds_read_b32", OA + 4, 1, V_BIAS, L_B48 - L_BIAS + 4 * h), 3003)
    for kt in range(4):
        K = LR + 12 * kt + 4 if kt < 3 else K3
        p.mfma16(SA + 4 * kt, Q48, K, None)
    for kt in range(1, 4):
        p.add(I(f"v_mov_b32_dpp {v(SA)}, {v(SA + 4 * kt)} quad_perm:[0,1,2,3] row_mask:{1 << kt} bank_mask:0xf", "dpp",
                [SA, SA + 4 * kt], [SA]))
    p.op("v_add_f32", SA, SA, OA + 4)
    if slow:
        opt.slow_thin(p, h, SA)
    p.op("v_exp_f32", SA, SA, kind="trans")
    p.op("v_cvt_pk_bf16_f32", SA, SA, SA)
    w = p.dsw("ds_write_b16", V_PW, SA, 1, 0)
    w.wr = w.wr | {3010}
    w.rd = w.rd | {3011}
    P0 = LR + 24 + 8
    PQ = next_pq()
    for r, off in ((P0, 0), (PQ, 64)):
        x = dep(p.dsr("ds_read_b128", r, 4, V_TH, X_P48 + off), 3010)
        x.wr = x.wr | {3011}
    OF, OS = OA, OA + 4
    p.mfma16(OF, VF, P0, None)
    p.mfma16(OS, VS, P0, None)
    p.mfma16(OF, VF + 4, PQ, OF)
    p.mfma16(OS, VS + 4, PQ, OS)
    for r, off in ((OF, 0), (OS, 64)):
        w = p.dsw("ds_write_b128", V_TH, r, 4, X_O48 + 128 * h + off)
        w.wr = w.wr | {3012}


def V_PWG(p):
    assert L_BIAS % 1024 == 0
    return V_BIAS


def body(p, slow, opt):
    chk = (not slow) and opt.mask_check
    _u[0] = 0
    opt.hook(p, "start", slow)
    for r in (VSA, VSA + 4, VSB, VSB + 4, VF + 4):
        p.dsr("ds_read_b128", r, 4, V_BIAS, L_ONES - L_BIAS)
    for hp in range(2):
        ha, hb = 2 * hp, 2 * hp + 1
        c0 = 192 + 48 * hp
        qk(p, ha, opt)
        if hp == 0:
            opt.hook(p, "poll0", slow)
        vproj(p, c0, [(VF, None, 4 * hp)], 0, opt)
        vproj(p, c0 + 16, [(VSA, S_MA, 4 * hp + 1), (VSB, S_MB, 4 * hp + 2)], 0, opt)
        opt.hook(p, f"pre{ha}", slow)
        thin(p, ha, slow, opt)
        opt.hook(p, f"thin{ha}", slow)
        for qt in range(3):
            unit(p, ha, qt, slow, opt)
        opt.hook(p, f"post{ha}", slow)
        qk(p, hb, opt)
        vproj(p, c0 + 32, [(VF, None, 4 * hp + 3)], 0, opt)
        opt.hook(p, f"pre{hb}", slow)
        thin(p, hb, slow, opt)
        if hb == 3:
            opt.hook(p, "o48done", slow)
        for qt in range(3):
            unit(p, hb, qt, slow, opt)
            opt.hook(p, f"u{hb}{qt}", slow)
            if hb == 3 and qt == 0 and not opt.mergeo:
                outproj(p, [0], [XR], WBuf([XR + 24, XR + 28, XR + 32]), slow, opt, first=True)
        opt.hook(p, f"post{hb}", slow)
    if opt.mergeo:
        outproj(p, [0, 1, 2], [XR, LR, VF], WBuf([XR + 24, XR + 28, SA, SA + 4, SA + 8, SA + 12]), slow, opt, first=True)
    else:
        outproj(p, [1, 2], [LR, VF], WBuf([SA, SA + 4, SA + 8, SA + 12]), slow, opt)
    opt.hook(p, "prestore", slow)
    Y = [XR, LR, VF]
    ss = [OA, OA + 1, OA + 2]
    for tt in range(3):
        sumsq(p, ss[tt], [Y[tt] + i for i in range(24)], S_EPSLN, opt, "s", LR + 24 + 2 * tt)
    NP0, D0, SL0 = XR + 24, XR + 28, XR + 32
    p.op("v_cvt_pk_bf16_f32", NP0, ss[0], ss[0])
    for r in (NP0 + 1, NP0 + 2, NP0 + 3):
        zero(p, r, opt)
    p.dsr("ds_read_b128", SL0, 4, V_BIAS, L_SEL - L_BIAS)
    p.mfma16(D0, SL0, NP0, None)
    NP1, D1 = K3, OA + 4
    p.op("v_cvt_pk_bf16_f32", NP1, ss[1], ss[2])
    for r in (NP1 + 1, NP1 + 2):
        zero(p, r, opt)
    p.mfma16(D1, SL0, NP1, None)
    rs = [D0, D1, D1 + 1]
    for tt in range(3):
        p.op("v_rsq_f32", rs[tt], rs[tt], kind="trans")
        p.op("v_mul_f32", rs[tt], f32(math.sqrt(96.0)), rs[tt])
        scale(p, [Y[tt] + i for i in range(24)], rs[tt], opt, "l")
        for u in range(3):
            base = Y[tt] + 8 * u
            for i in range(4):
                p.op("v_cvt_pk_bf16_f32", base + i, base + 2 * i, base + 2 * i + 1)
            st = p.vst("buffer_store_dwordx4", base, 4, OFF[tt], SRD_OUT, 64 * u, opt.sflag)
            st.rd = st.rd | {3002}
    opt.hook(p, "end", slow)


def outproj(p, tiles, Ys, wb, slow, opt, first=False):
    if first:
        opt.hook(p, "poll1", slow)
        a, b = XR + 32, XR + 33
        p.op("v_subrev_u32", a, str(L_BIAS), V_BIAS)
        p.op("v_lshrrev_b32", b, "6", a)
        p.op("v_mul_u32_u24", b, str(WOS), b)
        p.op("v_bfe_u32", a, a, "4", "2")
        p.op("v_lshl_add_u32", b, a, "3", b)
        p.op("v_add_u32", V_WQ, str(L_WO), b)
    for T in range(6):
        for ks in range(3):
            w = wb.next()
            off = 32 * ks * WOS + 32 * T
            dep(p.dsr("ds_read_b64_tr_b16", w, 2, V_WQ, off), 3005)
            dep(p.dsr("ds_read_b64_tr_b16", w + 2, 2, V_WQ, off + 16 * WOS), 3005)
            for tt, Y in zip(tiles, Ys):
                d = Y + 4 * T
                p.mfma16(d, w, OR_ + 12 * tt + 4 * ks, None if ks == 0 else d)


if __name__ == "__main__":
    import sched, sim
    class O:
        mask_check = False; sflag = ""; ldszero = "--vz" not in sys.argv
        b3 = True; mergeo = False
        pk = "".join(a[5:] for a in sys.argv if a.startswith("--pk="))
        def hook(self, p, name, slow): pass
    for a in sys.argv:
        if a.startswith("--ldslat="): sched.Params.lds_lat = int(a[9:])
    p = Prog(); body(p, False, O())
    seq = sched.schedule(p.ins, verbose=True)
    fin = insert_nops(insert_waits(flatten(seq), WaitState()))
    c = {}
    for i in fin: c[i.kind] = c.get(i.kind, 0) + 1
    print(c, "nopstates", sum(i.states for i in fin if i.kind == "nop"), "LDS end", L_END)
    txt = render(fin)
    open("body2" + O.pk + ".txt", "w").write("\n".join(l for l in txt.split("\n") if "buffer_store" not in l))
    st = sim.parse(txt.split("\n"))
    for starts in ([0], [0, 0, 0], [0, 2500, 4000], [0, 5000, 10000]):
        e, bp, bm = sim.simulate(st, starts, verbose=(len(starts) == 3 and starts[1] == 2500))
        print(starts, "->", e, "port busy", bp, "mfma busy", bm)
```

```python
import sys, math
sys.path.insert(0, "gen")
from asmlib import *
from g2body import *
import g2body as B

NWG, NS, WPW = 252, 27, 12
X_BYTES = 378 * 378 * 96 * 2
MASK_BYTES = 2916 * 49 * 49 * 2
SRD_WQ, SRD_WO, SRD_RIDX, SRD_RC = 12, 16, 24, 28
S_W1, S_W2, S_LS = 48, 64, 96
S_HI48 = 60
S_N12 = 62
S_SWI, S_SWJ, S_IDLE = 46, 47, 59
S_NWIN = 64
S_JO = 65
S_STAMP, NSTAMP = 66, 12
TAU_THR = 24.0
W = S_W
NVGPR = 168

L, G16, N15, L16 = 44, 45, 46, 47
ta, tb, tc, td = 48, 49, 50, 51
WSRC, WA, WD = 52, 53, 60
TBL = 58
TE, GA, GB, GDST, PARA, ONE, rcv = 84, 85, 86, 87, 88, 89, 90
ridx, ridxb, ridxc = 92, 96, 148
u = 100
wov, uu = 116, 128
WOA = 152
X48 = 8
DBG = 160


class Opt:
    mask_check = True
    debug = None
    xflag = mflag = sflag = ""
    ldszero = True
    prio = None
    b2at = 28
    mk1 = "post1"
    mk0 = "post0"
    xint = True
    b3 = True
    mergeo = False
    earlya = False
    pf = 0
    pk = ""
    touch = True
    touchb = False
    tlim = 1500
    tlimb = 20000


def sal(p, text, rd=(), wr=(), scc=True):
    return p.salu(text, [SB + x for x in rd], [SB + x for x in wr] + ([SCC] if scc else []))


def csel(p, d, a, b, n=1):
    rd = [SCC]
    for x in (a, b):
        if isinstance(x, int):
            rd += sr(x, n)
    f = lambda x: s(x, n) if isinstance(x, int) else x
    return p.salu(f"s_cselect_b{32 * n} {s(d, n)}, {f(a)}, {f(b)}", rd, sr(d, n))


def stamp(p, opt, idx, early=False):
    if not opt.debug or (opt.debug == 3 and idx not in (1, 2, 3, 4, 11)):
        return
    p.add(I(f"s_memtime {s(S_T2, 2)}", "smem", [], sr(S_T2, 2)))
    if early:
        p.op("v_mov_b32", DBG + idx, f"s{S_T2}")
    else:
        p.salu(f"s_mov_b32 {s(S_STAMP + idx)}, {s(S_T2)}", sr(S_T2), sr(S_STAMP + idx)).tag = "fence"


def dbg_early(p, opt):
    if opt.debug:
        for k, r in ((0, 7), (16, 6), (1, 1), (2, 2), (17, 3), (18, 4), (19, 5)):
            p.add(I(f"v_readfirstlane_b32 {s(S_STAMP + k)}, {v(DBG + r)}", "rdlane", [DBG + r], sr(S_STAMP + k)))


def stamp_flush(p, opt):
    if not opt.debug:
        return
    p.wait(vm=0)
    stamp(p, opt, NSTAMP - 1)
    p.smem("s_load_dwordx2", 48, 2, 0, 88)
    sal(p, f"s_mov_b32 s52, s48", [48], [52], False)
    sal(p, f"s_mov_b32 s53, s49", [49], [53], False)
    sal(p, f"s_mov_b32 s54, {1 << 22}", [], [54], False)
    sal(p, f"s_mov_b32 s55, 0x00020000", [], [55], False)
    sal(p, f"s_lshl_b32 {s(S_T0)}, {s(S_WIN)}, 6", [S_WIN], [S_T0])
    sal(p, f"s_mov_b32 {s(S_STAMP + 7)}, {s(S_STAMP + 17)}", [S_STAMP + 17], [S_STAMP + 7], False)
    sal(p, f"s_mov_b32 {s(S_STAMP + 10)}, {s(S_STAMP + 18)}", [S_STAMP + 18], [S_STAMP + 10], False)
    sal(p, f"s_sub_u32 {s(S_STAMP + 12)}, {s(S_STAMP + 19)}, {s(S_STAMP)}", [S_STAMP + 19, S_STAMP], [S_STAMP + 12])
    sal(p, f"s_lshl_b32 {s(S_STAMP + 13)}, s2, 4", [2], [S_STAMP + 13])
    sal(p, f"s_add_u32 {s(S_STAMP + 13)}, {s(S_STAMP + 13)}, {s(W)}", [S_STAMP + 13, W], [S_STAMP + 13])
    p.add(I(f"s_memrealtime {s(S_STAMP + 14, 2)}", "smem", [], sr(S_STAMP + 14, 2)))
    p.op("v_mov_b32", 60, f"s{S_T0}")
    for i in range(15):
        p.op("v_mov_b32", 64 + i, f"s{S_STAMP + i}")
    p.op("v_mov_b32", 64 + 15, f"s{S_STAMP + 16}")
    p.salu("s_mov_b64 exec, 1", [], [EXEC])
    for i in range(4):
        p.vst("buffer_store_dwordx4", 64 + 4 * i, 4, 60, 52, 16 * i)
    p.salu("s_mov_b64 exec, -1", [], [EXEC])


def w_table():
    out = []
    for wp in range(9):
        for lane in range(64):
            c = 64 * wp + lane
            k0, cc = divmod(c, 36)
            rho = 16 * ((k0 >> 2) & 1) + 4 * (k0 >> 3) + (k0 & 3)
            for d in range(4):
                col = 8 * cc + 2 * d
                sec, r = divmod(col, 96)
                h, rem = divmod(r, 24)
                g, i = divmod(rem, 6)
                if sec < 2:
                    i2 = i + 6 * sec
                    ic = 48 * h + 16 * (i2 >> 2) + 4 * g + (i2 & 3)
                else:
                    hp, b = h >> 1, h & 1
                    ic = 192 + 48 * hp + (32 * b + 4 * g + i if i < 4 else 16 + 4 * g + 2 * b + (i - 4))
                out.append(rho * WS + 2 * ic)
    return out


def lane_table():
    out = []
    for lane in range(64):
        n, g_ = lane & 15, lane >> 4
        vals = []
        for tt in range(3):
            t = 16 * tt + n
            vals.append(((t // 7) * 378 + t % 7) * 192 + 16 * g_)
        vals.append((lane >> 2) * WS + (lane & 3) * 8)
        vals.append(X_P48 + (g_ >> 1) * 64 + (n >> 2) * 16 + (g_ & 1) * 8 + (n & 3) * 2)
        vals.append(n * 196 + 16 * g_)
        vals += [0, 0]
        for x in vals:
            out += [x & 0xffff, x >> 16]
    return out


T_LANE = 9 * 512 + 6 * 512
LC = 140


def wo_table():
    out = []
    for wp in range(6):
        for lane in range(64):
            f, l4 = 16 * wp + (lane >> 2), lane & 3
            h, rem = divmod(f, 24)
            g, j = divmod(rem, 6)
            i = 6 * h + j
            rho = 32 * (i >> 3) + 16 * ((i >> 2) & 1) + 4 * g + (i & 3)
            for jj in range(3):
                z = 3 * l4 + jj
                out.append(rho * WOS + 64 * (z >> 2) + 8 * (z & 3))
            out.append(0)
    return out


_wm = [0]


def window_map(p, opt, temps=(66, 67, 68, 69, 70)):
    _wm[0] += 1
    k = _wm[0]
    sA, sB, sC, sD, sf = temps
    swi, swj = S_SWI, S_SWJ
    sal(p, f"s_cmp_lt_u32 s2, {NS}", [2], [])
    p.raw(f"s_cbranch_scc1 L_wmS{k}", rd=[SCC])
    p.cond_begin()
    sal(p, f"s_mul_i32 {s(sf)}, s2, 12", [2], [sf], False)
    sal(p, f"s_add_u32 {s(sf)}, {s(sf)}, {s(W)}", [sf, W], [sf])
    sal(p, f"s_sub_u32 {s(sf)}, {s(sf)}, {12 * NS}", [sf], [sf])
    sal(p, f"s_mul_i32 {s(swi)}, {s(sf)}, 19785", [sf], [swi], False)
    sal(p, f"s_lshr_b32 {s(swi)}, {s(swi)}, 20", [swi], [swi])
    sal(p, f"s_add_u32 {s(S_WIN)}, {s(sf)}, {s(swi)}", [sf, swi], [S_WIN])
    sal(p, f"s_mul_i32 {s(sA)}, {s(swi)}, {(7 * 378 - 7 * 53) * 192}", [swi], [sA], False)
    sal(p, f"s_mul_i32 {s(sB)}, {s(sf)}, {7 * 192}", [sf], [sB], False)
    sal(p, f"s_add_u32 {s(sA)}, {s(sA)}, {s(sB)}", [sA, sB], [sA])
    sal(p, f"s_add_u32 {s(sA)}, {s(sA)}, {(3 * 378 + 3) * 192}", [sA], [sA])
    sal(p, f"s_mov_b32 {s(S_KILL)}, 0", [], [S_KILL], False)
    sal(p, f"s_mov_b32 {s(S_IDLE)}, 0", [], [S_IDLE], False)
    for tt in range(3):
        p.op("v_add_u32", OFF[tt], f"s{sA}", LC + tt)
    p.raw(f"s_branch L_wmE{k}")
    p.cond_end()
    p.label(f"L_wmS{k}")
    p.cond_begin()
    window_map_s(p, opt, temps)
    window_map_v(p, opt)
    p.cond_end()
    p.label(f"L_wmE{k}")
    sal(p, f"s_mul_i32 {s(S_MBASE)}, {s(S_WIN)}, 4802", [S_WIN], [S_MBASE], False)


def window_map_s(p, opt, temps=(66, 67, 68, 69, 70)):
    sA, sB, sC, sD, sf = temps
    swi, swj = S_SWI, S_SWJ
    sal(p, f"s_mul_i32 {s(sA)}, s2, 12", [2], [sA], False)
    sal(p, f"s_add_u32 {s(sA)}, {s(sA)}, {s(W)}", [sA, W], [sA])
    sal(p, f"s_sub_u32 {s(sA)}, {s(sA)}, {12 * NS}", [sA], [sA])
    sal(p, f"s_lshl_b32 {s(sB)}, s2, 2", [2], [sB])
    sal(p, f"s_add_u32 {s(sB)}, {s(sB)}, {s(W)}", [sB, W], [sB])
    sal(p, f"s_add_u32 {s(sC)}, {s(sB)}, {12 * (NWG - NS) - 4}", [sB], [sC])
    sal(p, f"s_cmp_lt_u32 {s(W)}, 4", [W], [])
    csel(p, sC, "2808", sC)
    csel(p, sD, sB, "999")
    sal(p, f"s_cmp_ge_u32 {s(W)}, 8", [W], [])
    csel(p, S_IDLE, "0x80000000", "0")
    csel(p, sC, "0", sC)
    sal(p, f"s_cmp_lt_u32 s2, {NS}", [2], [])
    csel(p, sf, sC, sA)
    csel(p, sD, sD, "999")
    csel(p, S_IDLE, S_IDLE, "0")
    sal(p, f"s_mul_i32 {s(swi)}, {s(sf)}, 19785", [sf], [swi], False)
    sal(p, f"s_lshr_b32 {s(swi)}, {s(swi)}, 20", [swi], [swi])
    sal(p, f"s_mul_i32 {s(swj)}, {s(swi)}, 53", [swi], [swj], False)
    sal(p, f"s_sub_u32 {s(swj)}, {s(sf)}, {s(swj)}", [sf, swj], [swj])
    sal(p, f"s_sub_u32 {s(sA)}, {s(sD)}, 54", [sD], [sA])
    sal(p, f"s_cmp_lt_u32 {s(sD)}, 54", [sD], [])
    csel(p, sA, "53", sA)
    csel(p, sB, sD, "53")
    sal(p, f"s_cmp_lt_u32 {s(sD)}, 107", [sD], [])
    csel(p, swi, sA, swi)
    csel(p, swj, sB, swj)
    csel(p, S_KILL, "1", "0")
    sal(p, f"s_mul_i32 {s(S_WIN)}, {s(swi)}, 54", [swi], [S_WIN], False)
    sal(p, f"s_add_u32 {s(S_WIN)}, {s(S_WIN)}, {s(swj)}", [S_WIN, swj], [S_WIN])
    sal(p, f"s_mul_i32 {s(S_MBASE)}, {s(S_WIN)}, 4802", [S_WIN], [S_MBASE], False)
    sal(p, f"s_mul_i32 {s(swi)}, {s(swi)}, 7", [swi], [swi], False)
    sal(p, f"s_add_u32 {s(swi)}, {s(swi)}, 3", [swi], [swi])
    sal(p, f"s_mul_i32 {s(swj)}, {s(swj)}, 7", [swj], [swj], False)
    sal(p, f"s_add_u32 {s(swj)}, {s(swj)}, 3", [swj], [swj])


O48R = 91


def thin_offsets(p, opt):
    sF, sN, sS, s4b = 34, 35, 46, 47
    sal(p, f"s_lshl_b32 {s(s4b)}, s2, 2", [2], [s4b])
    sal(p, f"s_mul_i32 {s(sF)}, s2, 12", [2], [sF], False)
    sal(p, f"s_sub_u32 {s(sF)}, {s(sF)}, {12 * NS}", [sF], [sF])
    sal(p, f"s_add_u32 {s(sN)}, {s(s4b)}, {12 * (NWG - NS) - 4}", [s4b], [sN])
    sal(p, f"s_cmp_lt_u32 s2, {NS}", [2], [])
    csel(p, sF, sN, sF)
    csel(p, sN, "8", "12")
    csel(p, sS, "4", "0")
    f, wi, wj, sx = ta, tb, tc, td
    def cmp(op, dst, x, y):
        rd = [r for r in (x, y) if isinstance(r, int)] + [SB + int(r[1:]) for r in (x, y) if isinstance(r, str) and r[0] == "s"]
        t = lambda r: v(r) if isinstance(r, int) else r
        p.add(I(f"{op} {s(dst, 2)}, {t(x)}, {t(y)}", "valu", rd, sr(dst, 2)))
    def cnd(d, x, y, m):
        rd = [r for r in (x, y) if isinstance(r, int)] + sr(m, 2)
        t = lambda r: v(r) if isinstance(r, int) else r
        p.add(I(f"v_cndmask_b32 {v(d)}, {t(x)}, {t(y)}, {s(m, 2)}", "valu", rd, [d]))
    m1, m2, m3 = 40, 42, 44
    cmp("v_cmp_gt_u32", m1, f"s{sS}", N15)
    p.op("v_add_u32", f, f"s{sF}", N15)
    p.op("v_mov_b32", wi, "0xaf8")
    cnd(f, f, wi, m1)
    p.op("v_mul_u32_u24", wi, "0x4d49", f)
    p.op("v_lshrrev_b32", wi, "20", wi)
    p.op("v_mul_u32_u24", wj, "53", wi)
    p.op("v_sub_u32", wj, f, wj)
    p.op("v_add_u32", sx, f"s{s4b}", N15)
    p.op("v_mov_b32", f, "0x6b")
    cmp("v_cmp_lt_u32", m2, sx, f)
    cmp("v_cmp_gt_u32", m3, "54", sx)
    p.salu(f"s_and_b64 {s(m1, 2)}, {s(m1, 2)}, {s(m2, 2)}", sr(m1, 2) + sr(m2, 2), sr(m1, 2) + [SCC])
    p.op("v_subrev_u32", f, "54", sx)
    cnd(f, f, "53", m3)
    cnd(sx, "53", sx, m3)
    cnd(wi, wi, f, m1)
    cnd(wj, wj, sx, m1)
    sal(p, f"s_movk_i32 {s(sF)}, 378", [], [sF], False)
    for x in (wi, wj):
        p.op("v_mad_u32_u24", x, x, "7", "9")
        p.op("v_subrev_u32", f, f"s{sF}", x)
        p.op("v_min_u32", x, x, f)
    p.op("v_mad_u32_u24", f, wi, f"s{sF}", wj)
    p.op("v_mul_u32_u24", f, "0xc0", f)
    p.op("v_add_u32", f, f, G16)
    cmp("v_cmp_gt_u32", m1, f"s{sN}", N15)
    p.op("v_bfrev_b32", wi, "1")
    cnd(O48R, wi, f, m1)


def window_map_v(p, opt):
    sA = S_T3
    xa, xb, xc, xd = 48, 49, 50, 51
    sal(p, f"s_movk_i32 {s(sA)}, 378", [], [sA], False)
    p.op("v_or_b32", xa, f"s{S_IDLE}", G16)
    for tt in range(3):
        n, ty, tx = OFF[tt], xb, xc
        a = xd
        if tt == 0:
            n = N15
        else:
            p.op("v_add_u32", n, str(16 * tt), N15)
        p.op("v_mul_u32_u24", ty, "37", n)
        p.op("v_lshrrev_b32", ty, "8", ty)
        p.op("v_mad_i32_i24", tx, ty, "-7", n)
        p.op("v_add_u32", ty, f"s{S_SWI}", ty)
        p.op("v_add_u32", tx, f"s{S_SWJ}", tx)
        p.op("v_subrev_u32", a, f"s{sA}", ty)
        p.op("v_min_u32", ty, ty, a)
        p.op("v_subrev_u32", a, f"s{sA}", tx)
        p.op("v_min_u32", tx, tx, a)
        p.op("v_mad_u32_u24", a, ty, f"s{sA}", tx)
        p.op("v_mul_u32_u24", a, "0xc0", a)
        p.op("v_add_u32", OFF[tt], a, xa)


def x_loads(p, opt, tiles=(0, 1, 2)):
    for tt in tiles:
        for k in range(3):
            p.vld("buffer_load_dwordx4", X(tt, k), 4, OFF[tt], SRD_X, 64 * k, opt.xflag)


def wq_base(p, a, b):
    p.op("v_subrev_u32", a, str(L_BIAS), V_BIAS)
    p.op("v_lshrrev_b32", b, "6", a)
    p.op("v_mul_u32_u24", b, str(WS), b)
    p.op("v_bfe_u32", a, a, "4", "2")
    p.op("v_lshl_add_u32", V_WQ, a, "3", b)


def lds_bases(p, opt):
    p.op("v_add_u32", V_BIAS, str(L_BIAS), L16)
    p.op("v_mov_b32", V_WQ, LC + 3)
    sal(p, f"s_mul_i32 {s(S_T1)}, {s(W)}, {XST}", [W], [S_T1], False)
    sal(p, f"s_add_u32 {s(S_T1)}, {s(S_T1)}, {L_X}", [S_T1], [S_T1])
    p.op("v_add_u32", V_TH, f"s{S_T1}", G16)
    p.op("v_lshl_add_u32", V_TV, N15, "1", f"s{S_T1}")
    p.op("v_add_u32", V_PW, f"s{S_T1}", LC + 4)
    p.op("v_mov_b32", PARA, str(L_PAR))


def pro_common(p, opt):
    p.salu(f"s_cmp_ge_u32 s2, {NWG}", sr(2), [SCC])
    p.raw("s_cbranch_scc1 L_end", rd=[SCC])
    if opt.debug:
        p.add(I(f"s_memtime {s(S_T2, 2)}", "smem", [], sr(S_T2, 2)))
        p.op("v_mov_b32", DBG + 7, f"s{S_T2}")
        p.add(I(f"s_memrealtime {s(S_T2, 2)}", "smem", [], sr(S_T2, 2)))
        p.op("v_mov_b32", DBG + 6, f"s{S_T2}")
    for srd, off in ((SRD_WQ, 8), (SRD_WO, 16), (SRD_RC, 48), (SRD_RIDX, 56), (SRD_X, 0), (SRD_MASK, 64), (SRD_OUT, 72)):
        p.smem("s_load_dwordx2", srd, 2, 0, off)
    p.smem("s_load_dwordx2", 32, 2, 0, 24)
    p.smem("s_load_dwordx4", 36, 4, 0, 32)
    p.op("v_lshrrev_b32", ta, "6", 0)
    p.op("v_and_b32", L, "63", 0)
    p.add(I(f"v_readfirstlane_b32 {s(W)}, {v(ta)}", "rdlane", [ta], sr(W)))
    p.add(I(f"s_getpc_b64 {s(72, 2)}", "salu", [], sr(72, 2)))
    p.add(I("s_add_u32 s72, s72, wtab@rel32@lo+4", "salu", sr(72), sr(72) + [SCC]))
    p.add(I("s_addc_u32 s73, s73, wtab@rel32@hi+12", "salu", sr(73) + [SCC], sr(73) + [SCC]))
    if opt.pf:
        p.add(I(f"s_getpc_b64 {s(70, 2)}", "salu", [], sr(70, 2)))
        sal(p, f"s_min_u32 s74, {s(W)}, {opt.pf - 1}", [W], [74])
        sal(p, f"s_lshl_b32 s74, s74, 13", [74], [74])
        p.op("v_lshl_add_u32", tb, L, "7", "s74")
        p.add(I(f"global_load_dword {v(159)}, {v(tb)}, {s(70, 2)}", "vld", [tb] + sr(70, 2), [159]))
    sal(p, f"s_min_u32 s74, {s(W)}, 8", [W], [74])
    sal(p, f"s_lshl_b32 s74, s74, 6", [74], [74])
    p.op("v_add_u32", ta, "s74", L)
    p.op("v_lshlrev_b32", tb, "3", ta)
    p.add(I(f"global_load_dwordx2 {v(TBL, 2)}, {v(tb)}, {s(72, 2)}", "vld", [tb] + sr(72, 2), vr(TBL, 2)))
    p.op("v_lshlrev_b32", WSRC, "4", ta)
    sal(p, f"s_add_u32 s74, {s(W)}, 5", [W], [74])
    sal(p, f"s_min_u32 s74, s74, 14", [74], [74])
    sal(p, f"s_lshl_b32 s74, s74, 9", [74], [74])
    p.op("v_lshl_add_u32", td, L, "3", "s74")
    p.add(I(f"global_load_dwordx2 {v(WOA + 2, 2)}, {v(td)}, {s(72, 2)}", "vld", [td] + sr(72, 2), vr(WOA + 2, 2)))
    p.op("v_lshlrev_b32", tc, "5", L)
    p.op("v_add_u32", tc, str(T_LANE), tc)
    p.add(I(f"global_load_dwordx4 {v(LC, 4)}, {v(tc)}, {s(72, 2)}", "vld", [tc] + sr(72, 2), vr(LC, 4)))
    p.add(I(f"global_load_dwordx2 {v(LC + 4, 2)}, {v(tc)}, {s(72, 2)} offset:16", "vld", [tc] + sr(72, 2), vr(LC + 4, 2)))
    for srd, nb in ((SRD_WQ, 96 * 288 * 2), (SRD_WO, 96 * 96 * 2), (SRD_RC, 169 * 4), (SRD_RIDX, 49 * 49 * 4), (SRD_X, X_BYTES),
                    (SRD_MASK, MASK_BYTES), (SRD_OUT, X_BYTES)):
        sal(p, f"s_mov_b32 {s(srd + 2)}, {nb}", [], [srd + 2], False)
        sal(p, f"s_mov_b32 {s(srd + 3)}, 0x00020000", [], [srd + 3], False)
    for i in range(6):
        sal(p, f"s_mov_b32 {s(76 + i)}, {9216 * i}", [], [76 + i], False)
    sal(p, f"s_sub_u32 s74, {s(W)}, 9", [W], [74])
    sal(p, f"s_lshl_b32 s74, s74, 8", [74], [74])
    p.op("v_lshl_add_u32", TE, L, "2", "s74")
    sal(p, f"s_cmp_gt_u32 {s(W)}, 8", [W], [])
    p.wait(lgkm=0)
    p.raw("s_cbranch_scc1 L_c9", rd=[SCC])
    p.cond_begin()
    w_loads(p)
    p.smem("s_load_dwordx2", S_LS, 2, 32, 0)
    p.raw("s_branch L_c10")
    p.cond_end()
    p.label("L_c9")
    p.cond_begin()
    p.vld("buffer_load_dword", rcv, 1, TE, SRD_RC, 0)
    p.smem("s_load_dwordx16", S_W1, 16, 36, 0)
    p.smem("s_load_dwordx16", S_W2, 16, 38, 0)
    p.smem("s_load_dwordx16", S_W2 + 16, 16, 38, 64)
    p.cond_end()
    p.label("L_c10")
    if opt.debug:
        p.add(I(f"s_memtime {s(34, 2)}", "smem", [], sr(34, 2)))
        p.op("v_mov_b32", DBG + 1, "s34")
    if opt.touch:
        p.raw("<touchA>", kind="label")
    p.op("v_and_b32", N15, "15", L)
    p.op("v_and_b32", G16, "48", L)
    p.op("v_lshlrev_b32", L16, "4", L)
    sal(p, f"s_cmp_lt_u32 {s(W)}, 4", [W], [])
    p.raw("s_cbranch_scc1 L_pathO", rd=[SCC])


def w_loads(p):
    for i in range(6):
        p.add(I(f"buffer_load_dwordx4 {v(WD + 4 * i, 4)}, {v(WSRC)}, {s(SRD_WQ, 4)}, {s(76 + i)} offen", "vld",
                [WSRC] + sr(SRD_WQ, 4) + sr(76 + i), vr(WD + 4 * i, 4)))


def w_scatter(p):
    p.op("v_and_b32", WA, "0xffff", TBL)
    p.op("v_lshrrev_b32", WA + 1, "16", TBL)
    p.op("v_and_b32", WA + 2, "0xffff", TBL + 1)
    p.op("v_lshrrev_b32", WA + 3, "16", TBL + 1)
    assert L_WI == 0 and (8 * WS) % 256 == 0
    for i in range(0, 6, 2):
        for d in range(4):
            o0 = (i >> 1) * 32 * WS // 256
            p.add(I(f"ds_write2st64_b32 {v(WA + d)}, {v(WD + 4 * i + d)}, {v(WD + 4 * i + 4 + d)} offset0:{o0} offset1:{o0 + 8 * WS // 256}",
                    "dsw", [WA + d, WD + 4 * i + d, WD + 4 * i + 4 + d], []))


def consts(p, opt):
    sal(p, f"s_mov_b32 {s(S_EPSQ)}, {f32(0.25e-12)}", [], [S_EPSQ], False)
    sal(p, f"s_mov_b32 {s(S_EPSLN)}, {f32(24e-5)}", [], [S_EPSLN], False)
    for r, val in ((S_MA, 0x33333333), (S_MA + 1, 0x33333333), (S_MB, 0xcccccccc), (S_MB + 1, 0xcccccccc)):
        sal(p, f"s_mov_b32 {s(r)}, {val:#x}", [], [r], False)
    sal(p, f"s_cmp_lt_u32 s2, {NS}", [2], [])
    csel(p, S_NWIN, "8", "12")


def tau_rd(p):
    p.dsr("ds_read_b128", 156, 4, PARA, 0)


def tau_use(p):
    for h in range(4):
        p.add(I(f"v_readfirstlane_b32 {s(S_TAU + h)}, {v(156 + h)}", "rdlane", [156 + h], sr(S_TAU + h)))
    sal(p, f"s_max_u32 {s(S_T0)}, {s(S_TAU)}, {s(S_TAU + 1)}", [S_TAU, S_TAU + 1], [S_T0])
    sal(p, f"s_max_u32 {s(S_T1)}, {s(S_TAU + 2)}, {s(S_TAU + 3)}", [S_TAU + 2, S_TAU + 3], [S_T1])
    sal(p, f"s_max_u32 {s(S_T0)}, {s(S_T0)}, {s(S_T1)}", [S_T0, S_T1], [S_T0])
    sal(p, f"s_cmp_gt_u32 {s(S_T0)}, {f32(TAU_THR * LOG2E)}", [S_T0], [])
    csel(p, S_UNSAFE, "1", "0")


def gather_addr(p, dst, spos, base):
    sal(p, f"s_lshr_b32 s69, {s(spos)}, 2", [spos], [69])
    sal(p, f"s_and_b32 s68, {s(spos)}, 3", [spos], [68])
    sal(p, f"s_mul_i32 s69, s69, {16 * 196}", [69], [69], False)
    sal(p, f"s_lshl_b32 s68, s68, 6", [68], [68])
    sal(p, f"s_add_u32 s68, s68, s69", [68, 69], [68])
    p.op("v_add_u32", dst, "s68", base)


def gather_prep(p, regs):
    for base in regs:
        for r in range(4):
            p.op("v_min_u32", base + r, "0xa8", base + r)
            p.op("v_lshl_add_u32", base + r, base + r, "4", f"s{S_T0}")
    sal(p, f"s_and_b32 {s(S_T0)}, {s(W)}, 3", [W], [S_T0])
    sal(p, f"s_cmp_eq_u32 {s(S_T0)}, 3", [S_T0], [])
    csel(p, S_HI48, "0xffff0000", "0")
    csel(p, S_HI48 + 1, "-1", "0")


def gather_rd(p, g, idx):
    for r in range(4):
        p.dsr("ds_read_b128", g + 4 * r, 4, idx + r, 0)


def gather_wr(p, g, extra):
    for h in range(4):
        p.add(I(f"v_cndmask_b32 {v(g + h)}, {v(g + h)}, {v(NEGR)}, {s(S_HI48, 2)}", "valu",
                [g + h, NEGR] + sr(S_HI48, 2), [g + h]))
    for i in range(4):
        for j in range(i + 1, 4):
            a_, b_ = g + 4 * i + j, g + 4 * j + i
            p.add(I(f"v_swap_b32 {v(a_)}, {v(b_)}", "valu", [a_, b_], [a_, b_]))
    for h in range(4):
        p.dsw("ds_write_b128", GDST, g + 4 * h, 4, 12288 * h + extra)


NEGR = 57
GC = 153


def path_o(p, opt):
    p.label("L_pathO")
    p.raw("s_waitcnt vmcnt(6)", kind="salu")
    p.ins.append(I("", "forgetv", rd=[LC + 4], states=0))
    window_map(p, opt)
    p.raw("s_barrier")
    x_loads(p, opt)
    stamp(p, opt, 2, early=True)
    w_scatter(p)
    lds_bases(p, opt)
    consts(p, opt)
    dbg_early(p, opt)
    if opt.touchb:
        p.raw("<touchB>", kind="label")
    p.wait(vm=9, lgkm=0)
    p.raw("s_barrier")
    stamp(p, opt, 3)
    tau_rd(p)
    tau_use(p)
    stamp(p, opt, 4)
    p.label("L_join")


def signal(p, which):
    p.salu("s_mov_b64 exec, 1", [], [EXEC])
    p.add(I(f"ds_add_u32 {v(PARA)}, {v(ONE)} offset:{L_CNT - L_PAR + 4 * which}", "dsw", [PARA, ONE], []))
    p.salu("s_mov_b64 exec, -1", [], [EXEC])


def path_y(p, opt):
    sB = S_T1
    sal(p, f"s_sub_u32 {s(sB)}, {s(W)}, 4", [W], [sB])
    if opt.earlya:
        p.raw("s_barrier")
    sal(p, f"s_cmp_lt_u32 {s(W)}, 8", [W], [])
    p.raw("s_cbranch_scc1 L_rg", rd=[SCC])
    p.cond_begin()
    p.op("v_lshlrev_b32", GB, "2", L)
    p.op("v_add_u32", GB, str(48 * 196), GB)
    p.vld("buffer_load_dword", 116, 1, GB, SRD_RIDX, 0)
    sal(p, f"s_cmp_lg_u32 {s(W)}, 8", [W], [])
    p.raw("s_cbranch_scc1 L_re", rd=[SCC])
    p.cond_split()
    thin_offsets(p, opt)
    for k in range(3):
        p.vld("buffer_load_dwordx4", X48 + 4 * k, 4, O48R, SRD_X, 64 * k)
    p.raw("s_branch L_re")
    p.cond_end()
    p.label("L_rg")
    p.cond_begin()
    p.op("v_mul_u32_u24", ta, "0xc4", N15)
    sal(p, f"s_lshl_b32 {s(S_T0)}, {s(sB)}, 6", [sB], [S_T0])
    p.op("v_add3_u32", GA, ta, G16, f"s{S_T0}")
    p.op("v_add_u32", GC, str(32 * 196), GA)
    p.vld("buffer_load_dwordx4", ridx, 4, GA, SRD_RIDX, 0)
    p.vld("buffer_load_dwordx4", ridxb, 4, GA, SRD_RIDX, 16 * 196)
    p.vld("buffer_load_dwordx4", ridxc, 4, GC, SRD_RIDX, 0)
    p.cond_end()
    p.label("L_re")
    if not opt.earlya:
        p.raw("s_barrier")
    sal(p, f"s_mul_i32 {s(S_T0)}, {s(sB)}, 3072", [sB], [S_T0], False)
    p.op("v_mul_u32_u24", ta, "48", L)
    p.op("v_add_u32", WOA, f"s{S_T0}", ta)
    sal(p, f"s_lshl_b32 {s(S_T0)}, {s(sB)}, 10", [sB], [S_T0])
    p.op("v_add_u32", GDST, str(L_BIAS), L16)
    p.op("v_add_u32", GDST, f"s{S_T0}", GDST)
    stamp(p, opt, 2, early=True)
    sal(p, f"s_cmp_lt_u32 {s(W)}, 9", [W], [])
    p.raw("s_cbranch_scc1 L_notab", rd=[SCC])
    p.cond_begin()
    p.raw("s_setprio 3", kind="salu")
    p.raw("s_waitcnt vmcnt(1) lgkmcnt(0)", kind="salu")
    p.ins.append(I("", "forget", rd=[rcv], states=0))
    hb = u
    tmps = [S_LS, S_LS + 1, S_T0, S_T1, S_T2, S_T3]
    def packs1(jp):
        a_, b_ = S_W1 + jp, S_W1 + 8 + jp
        sal(p, f"s_pack_ll_b32_b16 {s(tmps[jp % 6])}, {s(a_)}, {s(b_)}", [a_, b_], [tmps[jp % 6]], False)
        sal(p, f"s_pack_hh_b32_b16 {s(b_)}, {s(a_)}, {s(b_)}", [a_, b_], [b_], False)
    for jp in range(3):
        packs1(jp)
    for jp in range(8):
        if jp + 3 < 8:
            packs1(jp + 3)
        p.op("v_dot2_f32_bf16", hb + 2 * jp, rcv, f"s{tmps[jp % 6]}", "0", kind="dot")
        p.op("v_dot2_f32_bf16", hb + 2 * jp + 1, rcv, f"s{S_W1 + 8 + jp}", "0", kind="dot")
    acc = hb + 8
    def packs2(jp):
        for h in range(4):
            r0, r1 = S_W2 + 4 * jp + (h >> 1), S_W2 + 4 * jp + 2 + (h >> 1)
            nm = "s_pack_hh_b32_b16" if h & 1 else "s_pack_ll_b32_b16"
            st = S_W1 + (4 * jp + h) % 16
            sal(p, f"{nm} {s(st)}, {s(r0)}, {s(r1)}", [r0, r1], [st], False)
    for j in range(8):
        p.op("v_cvt_pk_bf16_f32", hb + j, hb + 2 * j, hb + 2 * j + 1)
        if j < 3:
            packs2(j)
    for j in range(8):
        p.op("v_pk_max_i16", hb + j, hb + j, "0")
    for jp in range(8):
        for h in range(4):
            st = S_W1 + (4 * jp + h) % 16
            if jp == 0:
                p.op("v_dot2_f32_bf16", acc + h, hb, f"s{st}", "0", kind="dot")
            else:
                p.op("v_dot2_f32_bf16", acc + h, hb + jp, f"s{st}", acc + h, kind="dot").tag = "acc"
        if jp + 3 < 8:
            packs2(jp + 3)
    p.op("v_mov_b32", ta, f32(16.0 * LOG2E))
    p.op("v_lshlrev_b32", TE, "2", TE)
    p.op("v_add_u32", TE, str(L_TAB), TE)
    for step in range(9):
        for h in range(4):
            a = acc + h
            if step == 0: p.op("v_cvt_pk_bf16_f32", a, a, a)
            if step == 1: p.op("v_and_b32", a, "0xffff0000", a)
            if step == 2: p.op("v_mul_f32", a, f32(-LOG2E), a)
            if step == 3: p.op("v_exp_f32", a, a, kind="trans")
            if step == 4: p.op("v_add_f32", a, "1.0", a)
            if step == 5: p.op("v_rcp_f32", a, a, kind="trans")
            if step == 6: p.op("v_cvt_pk_bf16_f32", a, a, a)
            if step == 7: p.op("v_and_b32", a, "0xffff0000", a)
            if step == 8:
                p.op("v_fmaak_f32", a, a, ta, f32(-8.0 * LOG2E))
    p.dsw("ds_write_b128", TE, acc, 4, 0)
    p.raw("s_setprio 0", kind="salu")
    p.cond_end()
    p.label("L_notab")
    p.raw("s_waitcnt vmcnt(2)", kind="salu")
    p.ins.append(I("", "forgetv", rd=[LC + 4], states=0))
    lds_bases(p, opt)
    sal(p, f"s_cmp_lg_u32 {s(W)}, 4", [W], [])
    p.raw("s_cbranch_scc1 L_notau", rd=[SCC])
    p.cond_begin()
    p.wait(lgkm=0)
    for h in range(4):
        src, st = S_LS + (h >> 1), S_W1 + h
        if h & 1:
            sal(p, f"s_and_b32 {s(st)}, {s(src)}, 0xffff0000", [src], [st])
        else:
            sal(p, f"s_lshl_b32 {s(st)}, {s(src)}, 16", [src], [st])
        p.op("v_mov_b32", u + h, f"s{st}")
    for h in range(4):
        x = u + h
        p.op("v_min_f32", x, "0x40930000", x)
        p.op("v_max_f32", x, "0xc2c80000", x)
        p.op("v_mul_f32", x, f32(LOG2E), x)
        p.op("v_exp_f32", x, x, kind="trans")
    for h in range(4):
        x = u + h
        p.op("v_cvt_pk_bf16_f32", x, x, x)
        p.op("v_and_b32", x, "0xffff0000", x)
        p.op("v_mul_f32", x, f32(LOG2E), x)
    p.dsw("ds_write_b128", PARA, u, 4, 0)
    for i in range(4):
        p.op("v_mov_b32", u + 4 + i, "0")
    p.dsw("ds_write_b128", PARA, u + 4, 4, L_CNT - L_PAR)
    p.op("v_min_u32", tc, "11", N15)
    p.op("v_mul_u32_u24", tc, str(XST), tc)
    p.op("v_add_u32", tc, tc, G16)
    p.op("v_add_u32", tc, str(L_X + X_Z), tc)
    p.dsw("ds_write_b32", tc, u + 4, 1, 0)
    for i in range(4):
        p.op("v_mov_b32", u + 8 + i, "0x3f803f80")
    p.dsw("ds_write_b128", V_BIAS, u + 8, 4, L_ONES - L_BIAS)
    z = u + 10
    p.op("v_and_b32", ta, "1", L)
    p.op("v_lshlrev_b32", ta, "4", ta)
    p.op("v_mov_b32", tb, "0x3f80")
    p.op("v_lshlrev_b32", ta, ta, tb)
    sal(p, f"s_mov_b32 s50, 0x33333333", [], [50], False)
    sal(p, f"s_mov_b32 s51, 0x33333333", [], [51], False)
    p.wait(lgkm=0)
    for r in (z, z + 1, z + 4, z + 5):
        p.op("v_mov_b32", r, "0")
    p.add(I(f"v_cndmask_b32 {v(z + 2)}, 0, {v(ta)}, {s(50, 2)}", "valu", [ta] + sr(50, 2), [z + 2]))
    p.add(I(f"v_cndmask_b32 {v(z + 3)}, {v(ta)}, 0, {s(50, 2)}", "valu", [ta] + sr(50, 2), [z + 3]))
    p.dsw("ds_write_b128", V_BIAS, z + 2, 4, L_SEL - L_BIAS)
    p.dsw("ds_write_b128", V_BIAS, z, 4, L_SEL + 1024 - L_BIAS)
    p.cond_end()
    p.label("L_notau")
    if opt.debug is True:
        stamp(p, opt, 3, early=True)
        p.wait(vm=6)
        stamp(p, opt, 4, early=True)
    sal(p, f"s_cmp_gt_u32 {s(W)}, 8", [W], [])
    p.raw("s_cbranch_scc1 L_nosc", rd=[SCC])
    p.cond_begin()
    w_scatter(p)
    p.cond_end()
    p.label("L_nosc")
    if opt.debug is True:
        p.wait(lgkm=0)
        stamp(p, opt, 5, early=True)
    p.wait(lgkm=0)
    window_map(p, opt, temps=(48, 49, 50, 51, 52))
    sal(p, f"s_mov_b32 {s(S_T0)}, {L_TAB}", [], [S_T0], False)
    p.op("v_mov_b32", NEGR, f32(NEG_BIG))
    p.op("v_mov_b32", ONE, "1")
    sal(p, f"s_cmp_ge_u32 {s(W)}, 8", [W], [])
    p.raw("s_cbranch_scc1 L_tp", rd=[SCC])
    p.cond_begin()
    gather_prep(p, [ridx, ridxb, ridxc])
    p.raw("s_branch L_tq")
    p.cond_end()
    p.label("L_tp")
    p.cond_begin()
    thin_prep(p, opt)
    p.cond_end()
    p.label("L_tq")
    consts(p, opt)
    sal(p, f"s_mov_b32 {s(S_N12)}, 0x0fff0fff", [], [S_N12], False)
    sal(p, f"s_mov_b32 {s(S_N12 + 1)}, 0x0fff0fff", [], [S_N12 + 1], False)
    dbg_early(p, opt)
    p.raw("s_barrier")
    stamp(p, opt, 3)
    p.raw("s_setprio 3", kind="salu")
    tau_rd(p)
    p.wait(vm=0)
    sal(p, f"s_cmp_ge_u32 {s(W)}, 8", [W], [])
    p.raw("s_cbranch_scc1 L_thin", rd=[SCC])
    p.cond_begin()
    gather_rd(p, u, ridx)
    gather_rd(p, 60, ridxb)
    gather_rd(p, 128, ridxc)
    for i in range(3):
        p.vld("buffer_load_dwordx4", wov + 4 * i, 4, WOA, SRD_WO, 16 * i)
    if opt.xint:
        x_loads(p, opt, (0,))
    gather_wr(p, u, 0)
    if opt.xint:
        x_loads(p, opt, (1,))
    gather_wr(p, 60, 4096)
    gather_wr(p, 128, 8192)
    signal(p, 0)
    if opt.debug is True:
        stamp(p, opt, 17)
    x_loads(p, opt, (2,) if opt.xint else (0, 1, 2))
    p.raw("s_branch L_xdone")
    p.cond_end()
    p.label("L_thin")
    p.cond_begin()
    thin_jobs(p, opt)
    p.cond_end()
    p.label("L_sig0")
    signal(p, 0)
    if opt.debug is True:
        stamp(p, opt, 17)
    p.ins.append(I("", "vmreset", states=0))
    for i in range(3):
        p.vld("buffer_load_dwordx4", wov + 4 * i, 4, WOA, SRD_WO, 16 * i)
    x_loads(p, opt)
    p.label("L_xdone")
    tau_use(p)
    stamp(p, opt, 4)
    sal(p, f"s_cmp_ge_u32 {s(W)}, 10", [W], [])
    p.raw("s_cbranch_scc1 L_nowo", rd=[SCC])
    p.cond_begin()
    for i in range(12):
        p.op("v_lshlrev_b32", uu + 2 * i, "16", wov + i)
        p.op("v_and_b32", uu + 2 * i + 1, "0xffff0000", wov + i)
    sm = 50
    def pk(name, d, a, b, mods=""):
        p.add(I(f"{name} {v(d, 2)}, {v(a, 2)}, {v(b, 2)}{mods}", "valu", vr(a, 2) + vr(b, 2), vr(d, 2)))
    pk("v_pk_add_f32", sm, uu, uu + 2)
    for i in range(2, 12):
        pk("v_pk_add_f32", sm, sm, uu + 2 * i)
    p.op("v_add_f32", sm, sm, sm + 1)
    for ctl in ("quad_perm:[1,0,3,2]", "quad_perm:[2,3,0,1]"):
        p.add(I(f"v_add_f32_dpp {v(sm)}, {v(sm)}, {v(sm)} {ctl} row_mask:0xf bank_mask:0xf", "dpp", [sm], [sm]))
    p.op("v_mul_f32", sm, f32(-1.0 / 96.0), sm)
    for i in range(12):
        pk("v_pk_add_f32", uu + 2 * i, uu + 2 * i, sm, " op_sel_hi:[1,0]")
    for i in range(12):
        p.op("v_cvt_pk_bf16_f32", wov + i, uu + 2 * i, uu + 2 * i + 1)
    sal(p, f"s_mov_b32 {s(S_T0)}, {L_WO}", [], [S_T0], False)
    p.op("v_and_b32", 60, "0xffff", WOA + 2)
    p.op("v_lshrrev_b32", 61, "16", WOA + 2)
    p.op("v_and_b32", 62, "0xffff", WOA + 3)
    for i in range(3):
        p.op("v_add_u32", 60 + i, f"s{S_T0}", 60 + i)
        p.add(I(f"ds_write2_b64 {v(60 + i)}, {v(wov + 4 * i, 2)}, {v(wov + 4 * i + 2, 2)} offset0:0 offset1:4", "dsw",
                [60 + i] + vr(wov + 4 * i, 4), []))
    signal(p, 1)
    p.cond_end()
    p.label("L_nowo")
    p.wait(vm=9, lgkm=0)
    p.raw("s_setprio 0", kind="salu")
    sal(p, f"s_cmp_lg_u32 {s(S_IDLE)}, 0", [S_IDLE], [])
    p.raw("s_cbranch_scc1 L_end", rd=[SCC])
    p.raw("s_branch L_join")


WQH, DST, TAUA, DKQ, WVF, DVF, WVS = 60, 61, 62, 63, 108, 109, 84
RB48 = 90
XA48 = 118


def thin_prep(p, opt):
    hS = 53
    p.op("v_min_u32", 117, "0xa8", 116)
    p.op("v_lshl_add_u32", RB48, 117, "4", f"s{S_T0}")
    sal(p, f"s_sub_u32 {s(hS)}, {s(W)}, 8", [W], [hS])
    sal(p, f"s_mul_i32 {s(S_T0)}, {s(hS)}, 96", [hS], [S_T0], False)
    p.op("v_add_u32", WQH, f"s{S_T0}", V_WQ)
    sal(p, f"s_lshr_b32 s54, {s(hS)}, 1", [hS], [54])
    sal(p, f"s_and_b32 s55, {s(hS)}, 1", [hS], [55])
    sal(p, f"s_mul_i32 {s(S_T1)}, s54, 96", [54], [S_T1], False)
    p.op("v_add_u32", WVS, f"s{S_T1}", V_WQ)
    sal(p, f"s_lshl_b32 {s(S_T2)}, s55, 6", [55], [S_T2])
    p.op("v_add_u32", WVF, f"s{S_T2}", WVS)
    p.op("v_mul_u32_u24", DST, str(XST), N15)
    sal(p, f"s_lshl_b32 {s(S_T0)}, {s(hS)}, 7", [hS], [S_T0])
    sal(p, f"s_add_u32 {s(S_T0)}, {s(S_T0)}, {L_X + X_KQ}", [S_T0], [S_T0])
    p.op("v_add3_u32", DKQ, DST, G16, f"s{S_T0}")
    sal(p, f"s_lshl_b32 {s(S_T3)}, {s(hS)}, 2", [hS], [S_T3])
    p.op("v_add_u32", TAUA, f"s{S_T3}", PARA)
    sal(p, f"s_lshl_b32 s56, s54, 7", [54], [56])
    sal(p, f"s_add_u32 s56, s56, {L_X + X_V48}", [56], [56])
    p.op("v_lshrrev_b32", DVF, "1", G16)
    p.op("v_add3_u32", DST, DST, DVF, "s56")
    sal(p, f"s_mul_i32 s56, s55, 96", [55], [56], False)
    p.op("v_add_u32", DVF, "s56", DST)
    for r in (105, 106, 107):
        p.op("v_mov_b32", r, "0")
    p.op("v_mov_b32", 85, "0x3f803f80")
    p.op("v_mov_b32", 86, "0x3f803f80")
    p.op("v_add_u32", XA48, str(L_X48), L16)
    sal(p, f"s_cmp_lg_u32 {s(W)}, 8", [W], [])
    p.raw("s_cbranch_scc1 L_tp2", rd=[SCC])
    p.cond_split()
    p.op("v_lshlrev_b32", 153, "2", L)
    p.op("v_add_u32", 153, str(L_OFF48), 153)
    p.dsw("ds_write_b32", 153, O48R, 1, 0)
    for k in range(3):
        p.dsw("ds_write_b128", XA48, X48 + 4 * k, 4, 1024 * k)
    p.raw("s_waitcnt lgkmcnt(0)", kind="salu")
    p.label("L_tp2")
    p.cond_split()
    p.add(I(f"v_cmp_lt_u32 {s(56, 2)}, 48, {v(L)}", "valu", [L], sr(56, 2)))


def thin_jobs(p, opt):
    import sched
    Lh, FD, SD = 64, 76, 80
    wqs = [128, 132, 136, 140, 144, 20, 24, 28, 32]
    wfs = [36, 40, 112]
    wss = [116, 120, 124]
    SL, NP, D, BB = 100, 104, 20, 148
    ss = [110, 111]
    Sa, Sb = 84, 86
    n0 = len(p.ins)
    for k in range(3):
        p.dsr("ds_read_b128", X48 + 4 * k, 4, XA48, 1024 * k)
    for T in range(3):
        for ks in range(3):
            r = wqs[3 * T + ks]
            off = L_WI + 32 * ks * WS + 32 * T
            p.dsr("ds_read_b64_tr_b16", r, 2, WQH, off)
            p.dsr("ds_read_b64_tr_b16", r + 2, 2, WQH, off + 16 * WS)
            p.mfma16(Lh + 4 * T, r, X48 + 4 * ks, None if ks == 0 else Lh + 4 * T)
    p.dsr("ds_read_b32", TAUA, 1, TAUA, 0)
    p.dsr("ds_read_b128", SL, 4, V_BIAS, L_SEL - L_BIAS)
    for (ws, ad, o, d) in ((wfs, WVF, 384, FD), (wss, WVS, 416, SD)):
        for ks in range(3):
            off = L_WI + 32 * ks * WS + o
            p.dsr("ds_read_b64_tr_b16", ws[ks], 2, ad, off)
            p.dsr("ds_read_b64_tr_b16", ws[ks] + 2, 2, ad, off + 16 * WS)
            p.mfma16(d, ws[ks], X48 + 4 * ks, None if ks == 0 else d)
    p.dsr("ds_read_b128", BB, 4, RB48, 0)
    for e in range(2):
        for i in range(6):
            x = Lh + 6 * e + i
            if i == 0:
                p.op("v_fma_f32", ss[e], x, x, f"s{S_EPSQ}")
            else:
                p.op("v_fmac_f32", ss[e], x, x, rmw=True)
    p.op("v_cvt_pk_bf16_f32", NP, ss[0], ss[1])
    p.mfma16(D, SL, NP, None)
    p.op("v_cvt_pk_bf16_f32", FD, FD, FD + 1)
    p.op("v_cvt_pk_bf16_f32", FD + 1, FD + 2, FD + 3)
    p.op("v_cvt_pk_bf16_f32", Sa, SD, SD + 1)
    p.op("v_cvt_pk_bf16_f32", Sb + 1, SD + 2, SD + 3)
    for h in range(4):
        p.add(I(f"v_cndmask_b32 {v(BB + h)}, {v(BB + h)}, {v(NEGR)}, {s(56, 2)}", "valu", [BB + h, NEGR] + sr(56, 2), [BB + h]))
    p.dsw("ds_write_b128", V_BIAS, BB, 4, L_B48 - L_BIAS)
    p.op("v_rsq_f32", D, D, kind="trans")
    p.op("v_rsq_f32", D + 1, D + 1, kind="trans")
    p.op("v_mul_f32", D, D, TAUA)
    for i in range(12):
        p.op("v_mul_f32", Lh + i, Lh + i, D + i // 6)
    for i in range(3):
        p.op("v_cvt_pk_bf16_f32", Lh + i, Lh + 2 * i, Lh + 2 * i + 1)
    p.op("v_mov_b32", Lh + 3, "0")
    for i in range(3):
        p.op("v_cvt_pk_bf16_f32", Lh + 4 + i, Lh + 6 + 2 * i, Lh + 7 + 2 * i)
    p.op("v_mov_b32", Lh + 7, "0")
    blk = sched.schedule(p.ins[n0:])
    p.ins = p.ins[:n0] + blk
    p.salu(f"s_mov_b64 exec, {s(S_N12, 2)}", sr(S_N12, 2), [EXEC])
    p.dsw("ds_write_b64", DVF, FD, 2, 0)
    p.dsw("ds_write_b64", DST, Sa, 2, 32)
    p.dsw("ds_write_b64", DST, Sb, 2, 64)
    p.dsw("ds_write_b128", DKQ, Lh + 4, 4, 0)
    p.dsw("ds_write_b128", DKQ, Lh, 4, 64)
    p.salu("s_mov_b64 exec, -1", [], [EXEC])


def poll(p, slow, which, target, r, res, sleep=False):
    lbl = f"L_poll{which}" + ("s" if slow else "f")
    def gg():
        p.label(lbl)
        if sleep:
            p.raw("s_sleep 4", kind="salu")
        p.op("v_mov_b32", r, str(L_CNT + 4 * which))
        p.dsr("ds_read_b32", r, 1, r, 0)
        p.add(I(f"v_readfirstlane_b32 {s(S_B2)}, {v(r)}", "rdlane", [r], sr(S_B2)))
        sal(p, f"s_sub_u32 {s(S_JO)}, {s(S_JO)}, 1", [S_JO], [S_JO])
        p.raw(f"s_cbranch_scc1 {lbl}x", kind="salu", rd=[SCC])
        if isinstance(target, int):
            p.salu(f"s_cmp_lt_u32 {s(S_B2)}, {target}", sr(S_B2), [SCC])
        else:
            p.salu(f"s_cmp_lt_u32 {s(S_B2)}, {target}", sr(S_B2) + sr(int(target[1:])), [SCC])
        p.raw(f"s_cbranch_scc1 {lbl}", kind="salu", rd=[SCC])
        p.label(lbl + "x")
    gr = p.group(gg)
    gr.wr = gr.wr | {res}
    return gr


MQ = [OR_ + 8, OR_ + 20, OR_ + 32, OR_ + 8, OR_ + 20]


def mask_ld(p, opt, i):
    r = MQ[i]
    if i < 4:
        p.vld("buffer_load_dwordx4", r, 4, V_BIAS, SRD_MCHK, 1024 * i, opt.mflag)
    else:
        p.add(I(f"buffer_load_dwordx4 {v(r, 4)}, {v(V_BIAS)}, {s(SRD_MCHK, 4)}, {s(S_C4096)} offen{opt.mflag}", "vld",
                [V_BIAS] + sr(SRD_MCHK, 4) + sr(S_C4096), vr(r, 4)))
    return p.ins[-1]


def mask_use(p, opt, i):
    r = MQ[i]
    p.op("v_or3_b32", r, r, r + 1, r + 2)
    p.op("v_bitop3_b32", r, r, r + 3, f"s{S_C7F}", extra=" bitop3:0xa8")
    p.add(I(f"v_cmp_ne_u32 {s(S_MTMP, 2)}, 0, {v(r)}", "valu", [r], sr(S_MTMP, 2)))
    p.salu(f"s_or_b64 {s(S_MACC, 2)}, {s(S_MACC, 2)}, {s(S_MTMP, 2)}", sr(S_MACC, 2) + sr(S_MTMP, 2), sr(S_MACC, 2) + [SCC])


_pid = [3100]


def anchor_after(p, i, k=-2):
    _pid[0] += 1
    a = p.ins[k]
    a.wr = a.wr | {_pid[0]}
    i.rd = i.rd | {_pid[0]}


def make_hooks(opt):
    def hook(p, name, slow):
        chk = (not slow) and opt.mask_check
        if opt.prio and name in opt.prio:
            n0 = len(p.ins)
            i = p.raw(f"s_setprio {opt.prio[name]}", kind="salu", rd=[3000], wr=[3000])
            if n0:
                anchor_after(p, i)
        if name == "poll0":
            gb = poll(p, slow, 0, 8, K3, 3003)
            a = [i for i in p.ins if i.kind == "mfma"][min(opt.b2at, 28)]
            a.wr = a.wr | {3004}
            gb.rd = gb.rd | {3004}
            p.ins.remove(gb)
            p.ins.insert(p.ins.index(a) + 1, gb)
            if opt.debug is True:
                n0 = len(p.ins)
                stamp(p, opt, 19); stamp(p, opt, 18)
                st = p.ins[n0:]
                del p.ins[n0:]
                k = p.ins.index(gb)
                p.ins[k:k + 1] = st[:2] + [gb] + st[2:]
                gb.tag = "fence"
        elif name == "poll1":
            poll(p, slow, 1, 6, XR + 34, 3005)
        if name == opt.mk0 and chk:
            for i in range(3):
                anchor_after(p, mask_ld(p, opt, i), -2 - i)
        if name == "post0":
            stamp(p, opt, 6)
        if name == opt.mk1 and chk:
            n0 = len(p.ins)
            for i in range(3):
                mask_use(p, opt, i)
            for k in (n0, n0 + 4, n0 + 8):
                anchor_after(p, p.ins[k], n0 - 1 - len(p.ins))
            mask_ld(p, opt, 3); mask_ld(p, opt, 4)
        if name == "post1":
            stamp(p, opt, 8)
        elif name == "thin2" and chk:
            n0 = len(p.ins)
            for i in (3, 4):
                mask_use(p, opt, i)
            for k in (n0, n0 + 4):
                anchor_after(p, p.ins[k], n0 - 1 - len(p.ins))
            p.salu(f"s_cmp_lg_u64 {s(S_MACC, 2)}, 0", sr(S_MACC, 2), [SCC, 3001])
            p.add(I("s_cbranch_scc1 L_redo", "salu", [SCC, 3001], [3001, 3002]))
        elif name == "o48done":
            def gg():
                p.op("v_mov_b32", XR + 32, str(L_CNT + 8))
                p.op("v_mov_b32", XR + 33, "1")
                p.salu("s_mov_b64 exec, 1", [], [EXEC])
                p.add(I(f"ds_add_u32 {v(XR + 32)}, {v(XR + 33)}", "dsw", [XR + 32, XR + 33], []))
                p.salu("s_mov_b64 exec, -1", [], [EXEC])
            gr = p.group(gg)
            gr.rd = gr.rd | {3012, 3002}
        elif name == "post3":
            stamp(p, opt, 9)
        elif name == "end":
            stamp(p, opt, 10)
            n0 = len(p.ins)
            if opt.debug:
                stamp_flush(p, opt)
            sal(p, f"s_cmp_eq_u32 {s(W)}, {opt.jowave}", [W], [])
            p.raw("s_cbranch_scc1 L_jo", rd=[SCC])
            p.raw("s_endpgm")
            for i in p.ins[n0:]:
                i.tag = "fence" if i.tag is None else i.tag
    return hook


def mask_srd(p, opt):
    sal(p, f"s_sub_u32 {s(SRD_MCHK)}, {s(SRD_MASK)}, {L_BIAS}", [SRD_MASK], [SRD_MCHK])
    p.salu(f"s_subb_u32 {s(SRD_MCHK + 1)}, {s(SRD_MASK + 1)}, 0", sr(SRD_MASK + 1) + [SCC], sr(SRD_MCHK + 1) + [SCC])
    sal(p, f"s_add_u32 {s(SRD_MCHK)}, {s(SRD_MCHK)}, {s(S_MBASE)}", [SRD_MCHK, S_MBASE], [SRD_MCHK])
    p.salu(f"s_addc_u32 {s(SRD_MCHK + 1)}, {s(SRD_MCHK + 1)}, 0", sr(SRD_MCHK + 1) + [SCC], sr(SRD_MCHK + 1) + [SCC])
    sal(p, f"s_mov_b32 {s(SRD_MCHK + 2)}, {L_BIAS + 4804}", [], [SRD_MCHK + 2], False)
    sal(p, f"s_mov_b32 {s(SRD_MCHK + 3)}, 0x00020000", [], [SRD_MCHK + 3], False)
    sal(p, f"s_mov_b64 {s(S_MACC, 2)}, 0", [], [S_MACC, S_MACC + 1], False)
    sal(p, f"s_mov_b32 {s(S_C7F)}, 0x7fff7fff", [], [S_C7F], False)
    sal(p, f"s_movk_i32 {s(S_C4096)}, 4096", [], [S_C4096], False)


def dispatch(p, opt):
    p.raw("s_waitcnt lgkmcnt(0)", kind="salu")
    mask_srd(p, opt)
    sal(p, f"s_mov_b32 {s(S_JO)}, 1000000", [], [S_JO], False)
    p.salu(f"s_or_b32 {s(S_T0)}, {s(S_KILL)}, {s(S_UNSAFE)}", sr(S_KILL) + sr(S_UNSAFE), sr(S_T0) + [SCC])
    p.raw("s_cbranch_scc1 L_slow", rd=[SCC])


def slow_regs(h):
    if h < 3:
        return dict(pairs=[LR + 12 + 8, LR + 12 + 10, OR_ + 10], m6=OR_ + 9, ad=OR_ + 21, tmp=OR_ + 22, mx=OR_ + 23, m2=OR_ + 33)
    return dict(pairs=[XR + 24, XR + 26, XR + 28], m6=XR + 30, ad=XR + 31, tmp=XR + 35, mx=LR + 12 + 8, m2=LR + 12 + 9)


def slow_softmax(p, h, qt, regs):
    R = slow_regs(h)
    ad, tmp, mx, m2 = R["ad"], R["tmp"], R["mx"], R["m2"]
    p.op("v_bfe_u32", tmp, V_BIAS, "4", "4")
    if qt:
        p.op("v_add_u32", tmp, str(16 * qt), tmp)
    p.op("v_mul_u32_u24", tmp, "0x62", tmp)
    p.op("v_add_u32", tmp, f"s{S_MBASE}", tmp)
    p.vld("buffer_load_ushort", R["m6"], 1, tmp, SRD_MASK, 96)
    p.op("v_bfe_u32", ad, V_BIAS, "8", "2")
    p.op("v_lshl_add_u32", ad, ad, "3", tmp)
    for kt in range(3):
        p.vld("buffer_load_dwordx2", R["pairs"][kt], 2, ad, SRD_MASK, 32 * kt)
    for kt in range(3):
        for e in range(4):
            r, src = regs[4 * kt + e], R["pairs"][kt] + (e >> 1)
            if e & 1:
                p.op("v_and_b32", tmp, "0xffff0000", src)
            else:
                p.op("v_lshlrev_b32", tmp, "16", src)
            p.op("v_fmamk_f32", r, tmp, f32(LOG2E), r)
    p.op("v_lshlrev_b32", tmp, "16", R["m6"])
    p.op("v_fmamk_f32", regs[12], tmp, f32(LOG2E), regs[12])
    p.op("v_max3_f32", mx, regs[0], regs[1], regs[2])
    for i in range(3, 13, 2):
        p.op("v_max3_f32", mx, mx, regs[i], regs[i + 1])
    xrow_max(p, mx, m2)
    for r in regs:
        p.op("v_sub_f32", r, r, mx)


def xrow_max(p, mx, m2):
    p.op("v_mov_b32", m2, mx)
    p.swap32(mx, m2)
    p.op("v_max_f32", mx, mx, m2)
    p.op("v_mov_b32", m2, mx)
    p.add(I(f"v_permlane16_swap_b32 {v(mx)}, {v(m2)}", "perm", [mx, m2], [mx, m2]))
    p.op("v_max_f32", mx, mx, m2)


def slow_thin(p, h, r):
    R = slow_regs(h)
    tmp, mx, m2 = R["tmp"], R["mx"], R["m2"]
    p.op("v_bfe_u32", tmp, V_BIAS, "4", "6")
    p.op("v_min_u32", tmp, "48", tmp)
    p.op("v_lshl_add_u32", tmp, tmp, "1", f"s{S_MBASE}")
    p.add(I(f"buffer_load_ushort {v(R['m6'])}, {v(tmp)}, {s(SRD_MASK, 4)}, {s(S_C4096)} offen offset:{48 * 98 - 4096}", "vld",
            [tmp] + sr(SRD_MASK, 4) + sr(S_C4096), [R["m6"]]))
    p.op("v_lshlrev_b32", tmp, "16", R["m6"])
    p.op("v_fmamk_f32", r, tmp, f32(LOG2E), r)
    p.op("v_mov_b32", mx, r)
    for k in (8, 4, 2, 1):
        p.add(I(f"v_max_f32_dpp {v(mx)}, {v(mx)}, {v(mx)} row_ror:{k} row_mask:0xf bank_mask:0xf", "dpp", [mx], [mx]))
    xrow_max(p, mx, m2)
    p.op("v_sub_f32", r, r, mx)


def jo(p, opt):
    p.label("L_jo")
    p.raw("s_setprio 0", kind="salu")
    poll(p, False, 2, f"s{S_NWIN}", 8, 3020, sleep=True).tag = "fence"
    a, b, off = 8, 9, 10
    OB, Y, wq, SL, NP, D = 12, 24, 48, 120, 124, 128
    p.op("v_bfe_u32", a, V_BIAS, "4", "4")
    p.op("v_bfe_u32", b, V_BIAS, "8", "2")
    p.op("v_bfe_u32", off, V_BIAS, "4", "6")
    p.op("v_lshlrev_b32", off, "2", off)
    p.op("v_add_u32", off, str(L_OFF48), off)
    p.dsr("ds_read_b32", off, 1, off, 0)
    p.op("v_min_u32", a, "11", a)
    p.op("v_mul_u32_u24", a, str(XST), a)
    p.op("v_lshl_add_u32", a, b, "4", a)
    p.op("v_add_u32", a, str(L_X + X_O48), a)
    RW = 132
    for h in range(4):
        OF, OS = RW + 8 * h, RW + 8 * h + 4
        p.dsr("ds_read_b128", OF, 4, a, 128 * h)
        p.dsr("ds_read_b128", OS, 4, a, 128 * h + 64)
        lreg, r0 = (OS + 2, OS) if h % 2 == 0 else (OS, OS + 2)
        p.op("v_rcp_f32", lreg, lreg, kind="trans")
        for x in (OF, OF + 1, OF + 2, OF + 3, r0, r0 + 1):
            p.op("v_mul_f32", x, x, lreg)
        p.op("v_cvt_pk_bf16_f32", OB + 3 * h, OF, OF + 1)
        p.op("v_cvt_pk_bf16_f32", OB + 3 * h + 1, OF + 2, OF + 3)
        p.op("v_cvt_pk_bf16_f32", OB + 3 * h + 2, r0, r0 + 1)
    p.dsr("ds_read_b128", SL, 4, V_BIAS, L_SEL - L_BIAS)
    for T in range(6):
        for ks in range(3):
            w = wq + 4 * (3 * T + ks)
            o = 32 * ks * WOS + 32 * T
            p.dsr("ds_read_b64_tr_b16", w, 2, V_WQ, o)
            p.dsr("ds_read_b64_tr_b16", w + 2, 2, V_WQ, o + 16 * WOS)
            p.mfma16(Y + 4 * T, w, OB + 4 * ks, None if ks == 0 else Y + 4 * T)
    ss = 11
    for i in range(24):
        if i == 0:
            p.op("v_fma_f32", ss, Y, Y, f"s{S_EPSLN}")
        else:
            p.op("v_fmac_f32", ss, Y + i, Y + i, rmw=True)
    p.op("v_cvt_pk_bf16_f32", NP, ss, ss)
    for r in (NP + 1, NP + 2, NP + 3):
        p.op("v_mov_b32", r, "0")
    p.mfma16(D, SL, NP, None)
    p.op("v_rsq_f32", D, D, kind="trans")
    p.op("v_mul_f32", D, f32(math.sqrt(96.0)), D)
    for i in range(24):
        p.op("v_mul_f32", Y + i, Y + i, D)
    for uu_ in range(3):
        base = Y + 8 * uu_
        for i in range(4):
            p.op("v_cvt_pk_bf16_f32", base + i, base + 2 * i, base + 2 * i + 1)
        p.vst("buffer_store_dwordx4", base, 4, off, SRD_OUT, 64 * uu_, opt.sflag)
    p.raw("s_endpgm")


import re as _re


def isize(i):
    t = i.text
    if i.kind == "label":
        return 0
    op = t.split()[0]
    lit = bool(_re.search(r"(?<![\w\[:])(0x[0-9a-f]+|\d{3,}|6[5-9]|[7-9]\d|wtab\S*)(?![\w\]:])", t.split(None, 1)[1] if " " in t else ""))
    if op.startswith("s_"):
        if op.startswith(("s_load", "s_mem")):
            return 8
        if op in ("s_waitcnt", "s_nop", "s_barrier", "s_branch", "s_setprio", "s_sleep", "s_endpgm", "s_movk_i32", "s_addk_i32") or op.startswith("s_cbranch"):
            return 4
        return 8 if lit else 4
    if op in ("v_mov_b32", "v_add_u32", "v_sub_u32", "v_subrev_u32", "v_and_b32", "v_or_b32", "v_lshlrev_b32", "v_lshrrev_b32", "v_mul_f32",
              "v_add_f32", "v_sub_f32", "v_fmac_f32", "v_exp_f32", "v_rcp_f32", "v_rsq_f32", "v_min_u32", "v_max_f32", "v_min_f32",
              "v_mul_u32_u24", "v_bfrev_b32", "v_readfirstlane_b32", "v_swap_b32", "v_permlane32_swap_b32", "v_permlane16_swap_b32"):
        return 8 if lit else 4
    return 8


def add_touch(seq, name, nseg, ret, limit=None, step=120):
    pos, acc, tot = [], step, 0
    for k, i in enumerate(seq):
        if limit is not None and tot >= limit:
            break
        sz = isize(i)
        if acc + sz > step and i.kind != "label" and i.tag != "nt":
            pos.append(k)
            acc = 4
        acc += sz
        tot += sz
    per = -(-len(pos) // nseg)
    out, ent = [], []
    ps = {k: j for j, k in enumerate(pos)}
    for k, i in enumerate(seq):
        if k in ps:
            j = ps[k]
            if j % per == 0:
                ent.append(f"L_{name}{j}")
            last = (j + 1) % per == 0 or j + 1 == len(pos)
            out.append(I(f"L_{name}{j}:", "label", states=0))
            out.append(I(f"s_cbranch_execz {ret if last else f'L_{name}{j + 1}'}", "salu"))
        out.append(i)
    return out, ent


def touch_dispatch(ent, ret, tag):
    out = [I("s_mov_b64 exec, 0", "salu")]
    def tree(lo, hi):
        if hi - lo == 1:
            out.append(I(f"s_branch {ent[lo] if lo < len(ent) else ret}", "salu"))
            return
        mid = (lo + hi) // 2
        lbl = f"L_{tag}d{lo}_{hi}"
        out.append(I(f"s_cmp_ge_u32 {s(W)}, {mid}", "salu"))
        out.append(I(f"s_cbranch_scc1 {lbl}", "salu"))
        tree(lo, mid)
        out.append(I(lbl + ":", "label", states=0))
        tree(mid, hi)
    return out, tree


HEADER = open("standalone__window_attn_swin_v2__vision.s.ref").read().split("; Override")[0]


def generate(opt, sched=None):
    opt.hook = make_hooks(opt)
    opt.slow_softmax = slow_softmax
    opt.slow_thin = slow_thin
    segs = {}
    for nm, fn in (("com", pro_common), ("po", path_o), ("py", path_y), ("jo", jo)):
        p = Prog(); fn(p, opt); segs[nm] = p.ins
    p = Prog()
    if opt.debug and opt.debug != 3:
        p.wait(vm=0)
        stamp(p, opt, 5)
    dispatch(p, opt); segs["dis"] = p.ins
    B.SLOWPQ = False
    p = Prog(); body(p, False, opt); segs["fast"] = p.ins
    B.SLOWPQ = True
    p = Prog(); body(p, True, opt); segs["slow"] = p.ins
    p = Prog()
    p.label("L_redo")
    p.wait(vm=0, lgkm=0)
    p.raw("s_nop 15", kind="nop", states=16)
    x_loads(p, opt)
    segs["redo"] = p.ins
    if sched:
        for k in ("fast", "slow", "jo"):
            segs[k] = sched(segs[k])
    st = WaitState()
    com = insert_nops(insert_waits(flatten(segs["com"]), st))
    sty = st.copy()
    po = insert_nops(insert_waits(flatten(segs["po"]), st), com)
    py = insert_nops(insert_waits(flatten(segs["py"]), sty), com)
    tail = lambda w: [(x.text) for x in w.vm]
    assert tail(st) == tail(sty) and len(st.vm) == 9, (tail(st), tail(sty))
    assert not st.lg and not sty.lg
    clean = [I("s_nop 15", "nop", states=16)]
    mid = insert_nops(insert_waits(flatten(segs["dis"]), st), clean)
    head = com + py + po + mid
    fast = insert_nops(insert_waits(flatten(segs["fast"]), st.copy()), head)
    str_ = WaitState(); str_.vm = [I("x", "vst")]; str_.lg = [I("x", "dsw")]
    redo = insert_nops(insert_waits(flatten(segs["redo"]), str_), clean)
    slow = insert_nops(insert_waits(flatten(segs["slow"]), st.copy() if opt.debug in (None, 3) else str_), clean)
    stj = WaitState()
    jos = [I("s_nop 7", "nop", states=8)] + insert_nops(insert_waits(flatten(segs["jo"]), stj), clean)
    jos = [jos[1], jos[0]] + jos[2:]
    if opt.touchb:
        k0 = 0
        acc = 0
        while acc < opt.tlim:
            acc += isize(fast[k0]); k0 += 1
        tail_, ent = add_touch(fast[k0:], "tb", 4, "L_tbret", limit=opt.tlimb)
        fast = fast[:k0] + tail_
        d, tree = touch_dispatch(ent, "L_tbret", "tb")
        tree(0, 4)
        d += [I("L_tbret:", "label", states=0), I("s_mov_b64 exec, -1", "salu")]
        for x in d[1:]:
            x.tag = "nt"
        k = [j for j, i in enumerate(head) if i.text == "<touchB>"][0]
        head = head[:k] + d + head[k + 1:]
    if opt.touch:
        k = [j for j, i in enumerate(head) if i.text == "<touchA>"][0]
        hb = sum(isize(i) for i in head[k + 1:])
        rest, ent = add_touch(head[k + 1:] + [I("<cut>", "label", states=0)] + fast, "ta", 12, "L_taret", limit=hb + opt.tlim)
        c = [j for j, i in enumerate(rest) if i.text == "<cut>"][0]
        fast = rest[c + 1:]
        d, tree = touch_dispatch(ent, "L_taret", "ta")
        tree(0, 12)
        d += [I("L_taret:", "label", states=0), I("s_mov_b64 exec, -1", "salu")]
        head = head[:k] + d + rest[:c]
    name = "standalone__window_attn_swin_v2__vision_kernel"
    txt = HEADER
    txt += f"; @launch grid=({NWG},1,1) block=({64 * WPW},1,1) lds={L_END}\n"
    txt += f""".amdgcn_target "amdgcn-amd-amdhsa--gfx950"
.text
.globl {name}
.p2align 8
.type {name},@function
{name}:
"""
    txt += render(head) + "\n" + render(fast) + "\n" + render(jos) + "\n" + render(redo) + "\nL_slow:\n" + render(slow) + "\nL_end:\n    s_endpgm\n"
    txt += f""".section .rodata,"a"
.p2align 6
.amdhsa_kernel {name}
  .amdhsa_next_free_vgpr {NVGPR}
  .amdhsa_next_free_sgpr 102
  .amdhsa_accum_offset {NVGPR}
  .amdhsa_group_segment_fixed_size 0
  .amdhsa_kernarg_size 96
  .amdhsa_user_sgpr_count 2
  .amdhsa_user_sgpr_kernarg_segment_ptr 1
  .amdhsa_system_sgpr_workgroup_id_x 1
.end_amdhsa_kernel
.p2align 6
wtab:
"""
    tb_ = w_table() + wo_table() + lane_table()
    for i in range(0, len(tb_), 16):
        txt += "    .short " + ", ".join(str(x) for x in tb_[i:i + 16]) + "\n"
    stats = {}
    for nm, seq in (("head", head), ("fast", fast), ("slow", slow), ("jo", jos)):
        c = {}
        for i in seq:
            c[i.kind] = c.get(i.kind, 0) + 1
        c["nopstates"] = sum(i.states for i in seq if i.kind == "nop")
        stats[nm] = c
    return txt, stats


if __name__ == "__main__":
    import sched
    opt = Opt()
    opt.jowave = 0
    for a in sys.argv[1:]:
        if a == "--debug": opt.debug = True
        if a == "--debug3": opt.debug = 3
        if a == "--nomask": opt.mask_check = False
        if a == "--vz": opt.ldszero = False
        if a == "--noxint": opt.xint = False
        if a == "--nob3": opt.b3 = False
        if a == "--mergeo": opt.mergeo = True
        if a == "--earlya": opt.earlya = True
        if a.startswith("--pf="): opt.pf = int(a[5:])
        if a.startswith("--pk="): opt.pk = a[5:]
        if a == "--notouch": opt.touch = False
        if a == "--touchb": opt.touchb = True
        if a.startswith("--tlim="): opt.tlim = int(a[7:])
        if a.startswith("--tlimb="): opt.tlimb = int(a[8:])
        if a.startswith("--ldslat="): sched.Params.lds_lat = int(a[9:])
        if a.startswith("--mlat="): sched.Params.mfma_lat16 = int(a[7:])
        if a.startswith("--maxlds="): sched.Params.max_lds_out = int(a[9:])
        if a.startswith("--b2at="): opt.b2at = int(a[7:])
        if a.startswith("--mk1="): opt.mk1 = a[6:]
        if a.startswith("--mk0="): opt.mk0 = a[6:]
        if a.startswith("--prio="):
            opt.prio = {kv.split(":")[0]: int(kv.split(":")[1]) for kv in a[7:].split(",")}
        for fl in ("xflag", "mflag", "sflag"):
            if a.startswith(f"--{fl}="):
                setattr(opt, fl, " " + a.split("=")[1].replace(",", " "))
    args = [a for a in sys.argv[1:] if not a.startswith("--")]
    out = args[0] if args else "g2.s"
    sc = None if "--nosched" in sys.argv else (lambda x: sched.schedule(x, verbose=True))
    txt, stats = generate(opt, sc)
    open(out, "w").write(txt)
    for k, c in stats.items():
        print(k, c)
```

```python
import sys, math
sys.path.insert(0, "gen")
from asmlib import *
from g2body import *
import g2body as B

NWG, NS, WPW = 252, 27, 12
X_BYTES = 378 * 378 * 96 * 2
MASK_BYTES = 2916 * 49 * 49 * 2
SRD_WQ, SRD_WO, SRD_RIDX, SRD_RC = 12, 16, 24, 28
S_W1, S_W2, S_LS = 48, 64, 96
S_HI48 = 60
S_N12 = 62
S_SWI, S_SWJ, S_IDLE = 46, 47, 59
S_NWIN = 64
S_JO = 65
S_STAMP, NSTAMP = 66, 12
TAU_THR = 24.0
W = S_W
NVGPR = 168

L, G16, N15, L16 = 44, 45, 46, 47
ta, tb, tc, td = 48, 49, 50, 51
WSRC, WA, WD = 52, 53, 60
TBL = 58
TE, GA, GB, GDST, PARA, ONE, rcv = 84, 85, 86, 87, 88, 89, 90
ridx, ridxb, ridxc = 92, 96, 148
u = 100
wov, uu = 116, 128
WOA = 152
X48 = 8
DBG = 160


class Opt:
    mask_check = True
    debug = None
    xflag = mflag = sflag = ""
    ldszero = True
    prio = None
    b2at = 28
    mk1 = "post1"
    mk0 = "post0"
    xint = True
    rot = False
    b3 = True
    mergeo = False
    earlya = False
    pf = 0
    pk = ""
    touch = True
    touchb = False
    tlim = 1500
    tlimb = 20000


def sal(p, text, rd=(), wr=(), scc=True):
    return p.salu(text, [SB + x for x in rd], [SB + x for x in wr] + ([SCC] if scc else []))


def csel(p, d, a, b, n=1):
    rd = [SCC]
    for x in (a, b):
        if isinstance(x, int):
            rd += sr(x, n)
    f = lambda x: s(x, n) if isinstance(x, int) else x
    return p.salu(f"s_cselect_b{32 * n} {s(d, n)}, {f(a)}, {f(b)}", rd, sr(d, n))


def stamp(p, opt, idx, early=False):
    if not opt.debug or (opt.debug == 3 and idx not in (1, 2, 3, 4, 11)):
        return
    p.add(I(f"s_memtime {s(S_T2, 2)}", "smem", [], sr(S_T2, 2)))
    if early:
        p.op("v_mov_b32", DBG + idx, f"s{S_T2}")
    else:
        p.salu(f"s_mov_b32 {s(S_STAMP + idx)}, {s(S_T2)}", sr(S_T2), sr(S_STAMP + idx)).tag = "fence"


def dbg_early(p, opt):
    if opt.debug:
        for k, r in ((0, 7), (16, 6), (1, 1), (2, 2), (17, 3), (18, 4), (19, 5)):
            p.add(I(f"v_readfirstlane_b32 {s(S_STAMP + k)}, {v(DBG + r)}", "rdlane", [DBG + r], sr(S_STAMP + k)))


def stamp_flush(p, opt):
    if not opt.debug:
        return
    p.wait(vm=0)
    stamp(p, opt, NSTAMP - 1)
    p.smem("s_load_dwordx2", 48, 2, 0, 88)
    sal(p, f"s_mov_b32 s52, s48", [48], [52], False)
    sal(p, f"s_mov_b32 s53, s49", [49], [53], False)
    sal(p, f"s_mov_b32 s54, {1 << 22}", [], [54], False)
    sal(p, f"s_mov_b32 s55, 0x00020000", [], [55], False)
    sal(p, f"s_lshl_b32 {s(S_T0)}, {s(S_WIN)}, 6", [S_WIN], [S_T0])
    sal(p, f"s_mov_b32 {s(S_STAMP + 7)}, {s(S_STAMP + 17)}", [S_STAMP + 17], [S_STAMP + 7], False)
    sal(p, f"s_mov_b32 {s(S_STAMP + 10)}, {s(S_STAMP + 18)}", [S_STAMP + 18], [S_STAMP + 10], False)
    sal(p, f"s_sub_u32 {s(S_STAMP + 12)}, {s(S_STAMP + 19)}, {s(S_STAMP)}", [S_STAMP + 19, S_STAMP], [S_STAMP + 12])
    sal(p, f"s_lshl_b32 {s(S_STAMP + 13)}, s2, 4", [2], [S_STAMP + 13])
    sal(p, f"s_add_u32 {s(S_STAMP + 13)}, {s(S_STAMP + 13)}, {s(W)}", [S_STAMP + 13, W], [S_STAMP + 13])
    p.add(I(f"s_memrealtime {s(S_STAMP + 14, 2)}", "smem", [], sr(S_STAMP + 14, 2)))
    p.op("v_mov_b32", 60, f"s{S_T0}")
    for i in range(15):
        p.op("v_mov_b32", 64 + i, f"s{S_STAMP + i}")
    p.op("v_mov_b32", 64 + 15, f"s{S_STAMP + 16}")
    p.salu("s_mov_b64 exec, 1", [], [EXEC])
    for i in range(4):
        p.vst("buffer_store_dwordx4", 64 + 4 * i, 4, 60, 52, 16 * i)
    p.salu("s_mov_b64 exec, -1", [], [EXEC])


def w_table():
    out = []
    for wp in range(9):
        for lane in range(64):
            c = 64 * wp + lane
            k0, cc = divmod(c, 36)
            rho = 16 * ((k0 >> 2) & 1) + 4 * (k0 >> 3) + (k0 & 3)
            for d in range(4):
                col = 8 * cc + 2 * d
                sec, r = divmod(col, 96)
                h, rem = divmod(r, 24)
                g, i = divmod(rem, 6)
                if sec < 2:
                    i2 = i + 6 * sec
                    ic = 48 * h + 16 * (i2 >> 2) + 4 * g + (i2 & 3)
                else:
                    hp, b = h >> 1, h & 1
                    ic = 192 + 48 * hp + (32 * b + 4 * g + i if i < 4 else 16 + 4 * g + 2 * b + (i - 4))
                out.append(rho * WS + 2 * ic)
    return out


def lane_table():
    out = []
    for lane in range(64):
        n, g_ = lane & 15, lane >> 4
        vals = []
        for tt in range(3):
            t = 16 * tt + n
            vals.append(((t // 7) * 378 + t % 7) * 192 + 16 * g_)
        vals.append((lane >> 2) * WS + (lane & 3) * 8)
        vals.append(X_P48 + (g_ >> 1) * 64 + (n >> 2) * 16 + (g_ & 1) * 8 + (n & 3) * 2)
        vals.append(n * 196 + 16 * g_)
        vals += [0, 0]
        for x in vals:
            out += [x & 0xffff, x >> 16]
    return out


T_LANE = 9 * 512 + 6 * 512
LC = 140


def wo_table():
    out = []
    for wp in range(6):
        for lane in range(64):
            f, l4 = 16 * wp + (lane >> 2), lane & 3
            h, rem = divmod(f, 24)
            g, j = divmod(rem, 6)
            i = 6 * h + j
            rho = 32 * (i >> 3) + 16 * ((i >> 2) & 1) + 4 * g + (i & 3)
            for jj in range(3):
                z = 3 * l4 + jj
                out.append(rho * WOS + 64 * (z >> 2) + 8 * (z & 3))
            out.append(0)
    return out


_wm = [0]


def window_map(p, opt, temps=(66, 67, 68, 69, 70)):
    _wm[0] += 1
    k = _wm[0]
    sA, sB, sC, sD, sf = temps
    swi, swj = S_SWI, S_SWJ
    sal(p, f"s_cmp_lt_u32 s2, {NS}", [2], [])
    p.raw(f"s_cbranch_scc1 L_wmS{k}", rd=[SCC])
    p.cond_begin()
    sal(p, f"s_mul_i32 {s(sf)}, s2, 12", [2], [sf], False)
    sal(p, f"s_add_u32 {s(sf)}, {s(sf)}, {s(W)}", [sf, W], [sf])
    sal(p, f"s_sub_u32 {s(sf)}, {s(sf)}, {12 * NS}", [sf], [sf])
    sal(p, f"s_mul_i32 {s(swi)}, {s(sf)}, 19785", [sf], [swi], False)
    sal(p, f"s_lshr_b32 {s(swi)}, {s(swi)}, 20", [swi], [swi])
    sal(p, f"s_add_u32 {s(S_WIN)}, {s(sf)}, {s(swi)}", [sf, swi], [S_WIN])
    sal(p, f"s_mul_i32 {s(sA)}, {s(swi)}, {(7 * 378 - 7 * 53) * 192}", [swi], [sA], False)
    sal(p, f"s_mul_i32 {s(sB)}, {s(sf)}, {7 * 192}", [sf], [sB], False)
    sal(p, f"s_add_u32 {s(sA)}, {s(sA)}, {s(sB)}", [sA, sB], [sA])
    sal(p, f"s_add_u32 {s(sA)}, {s(sA)}, {(3 * 378 + 3) * 192}", [sA], [sA])
    sal(p, f"s_mov_b32 {s(S_KILL)}, 0", [], [S_KILL], False)
    sal(p, f"s_mov_b32 {s(S_IDLE)}, 0", [], [S_IDLE], False)
    for tt in range(3):
        p.op("v_add_u32", OFF[tt], f"s{sA}", LC + tt)
    p.raw(f"s_branch L_wmE{k}")
    p.cond_end()
    p.label(f"L_wmS{k}")
    p.cond_begin()
    window_map_s(p, opt, temps)
    window_map_v(p, opt)
    p.cond_end()
    p.label(f"L_wmE{k}")
    sal(p, f"s_mul_i32 {s(S_MBASE)}, {s(S_WIN)}, 4802", [S_WIN], [S_MBASE], False)


def window_map_s(p, opt, temps=(66, 67, 68, 69, 70)):
    sA, sB, sC, sD, sf = temps
    swi, swj = S_SWI, S_SWJ
    sal(p, f"s_mul_i32 {s(sA)}, s2, 12", [2], [sA], False)
    sal(p, f"s_add_u32 {s(sA)}, {s(sA)}, {s(W)}", [sA, W], [sA])
    sal(p, f"s_sub_u32 {s(sA)}, {s(sA)}, {12 * NS}", [sA], [sA])
    sal(p, f"s_lshl_b32 {s(sB)}, s2, 2", [2], [sB])
    sal(p, f"s_add_u32 {s(sB)}, {s(sB)}, {s(W)}", [sB, W], [sB])
    sal(p, f"s_add_u32 {s(sC)}, {s(sB)}, {12 * (NWG - NS) - 4}", [sB], [sC])
    sal(p, f"s_cmp_lt_u32 {s(W)}, 4", [W], [])
    csel(p, sC, "2808", sC)
    csel(p, sD, sB, "999")
    sal(p, f"s_cmp_ge_u32 {s(W)}, 8", [W], [])
    csel(p, S_IDLE, "0x80000000", "0")
    csel(p, sC, "0", sC)
    sal(p, f"s_cmp_lt_u32 s2, {NS}", [2], [])
    csel(p, sf, sC, sA)
    csel(p, sD, sD, "999")
    csel(p, S_IDLE, S_IDLE, "0")
    sal(p, f"s_mul_i32 {s(swi)}, {s(sf)}, 19785", [sf], [swi], False)
    sal(p, f"s_lshr_b32 {s(swi)}, {s(swi)}, 20", [swi], [swi])
    sal(p, f"s_mul_i32 {s(swj)}, {s(swi)}, 53", [swi], [swj], False)
    sal(p, f"s_sub_u32 {s(swj)}, {s(sf)}, {s(swj)}", [sf, swj], [swj])
    sal(p, f"s_sub_u32 {s(sA)}, {s(sD)}, 54", [sD], [sA])
    sal(p, f"s_cmp_lt_u32 {s(sD)}, 54", [sD], [])
    csel(p, sA, "53", sA)
    csel(p, sB, sD, "53")
    sal(p, f"s_cmp_lt_u32 {s(sD)}, 107", [sD], [])
    csel(p, swi, sA, swi)
    csel(p, swj, sB, swj)
    csel(p, S_KILL, "1", "0")
    sal(p, f"s_mul_i32 {s(S_WIN)}, {s(swi)}, 54", [swi], [S_WIN], False)
    sal(p, f"s_add_u32 {s(S_WIN)}, {s(S_WIN)}, {s(swj)}", [S_WIN, swj], [S_WIN])
    sal(p, f"s_mul_i32 {s(S_MBASE)}, {s(S_WIN)}, 4802", [S_WIN], [S_MBASE], False)
    sal(p, f"s_mul_i32 {s(swi)}, {s(swi)}, 7", [swi], [swi], False)
    sal(p, f"s_add_u32 {s(swi)}, {s(swi)}, 3", [swi], [swi])
    sal(p, f"s_mul_i32 {s(swj)}, {s(swj)}, 7", [swj], [swj], False)
    sal(p, f"s_add_u32 {s(swj)}, {s(swj)}, 3", [swj], [swj])


O48R = 91


def thin_offsets(p, opt):
    sF, sN, sS, s4b = 34, 35, 46, 47
    sal(p, f"s_lshl_b32 {s(s4b)}, s2, 2", [2], [s4b])
    sal(p, f"s_mul_i32 {s(sF)}, s2, 12", [2], [sF], False)
    sal(p, f"s_sub_u32 {s(sF)}, {s(sF)}, {12 * NS}", [sF], [sF])
    sal(p, f"s_add_u32 {s(sN)}, {s(s4b)}, {12 * (NWG - NS) - 4}", [s4b], [sN])
    sal(p, f"s_cmp_lt_u32 s2, {NS}", [2], [])
    csel(p, sF, sN, sF)
    csel(p, sN, "8", "12")
    csel(p, sS, "4", "0")
    f, wi, wj, sx = ta, tb, tc, td
    def cmp(op, dst, x, y):
        rd = [r for r in (x, y) if isinstance(r, int)] + [SB + int(r[1:]) for r in (x, y) if isinstance(r, str) and r[0] == "s"]
        t = lambda r: v(r) if isinstance(r, int) else r
        p.add(I(f"{op} {s(dst, 2)}, {t(x)}, {t(y)}", "valu", rd, sr(dst, 2)))
    def cnd(d, x, y, m):
        rd = [r for r in (x, y) if isinstance(r, int)] + sr(m, 2)
        t = lambda r: v(r) if isinstance(r, int) else r
        p.add(I(f"v_cndmask_b32 {v(d)}, {t(x)}, {t(y)}, {s(m, 2)}", "valu", rd, [d]))
    m1, m2, m3 = 40, 42, 44
    cmp("v_cmp_gt_u32", m1, f"s{sS}", N15)
    p.op("v_add_u32", f, f"s{sF}", N15)
    p.op("v_mov_b32", wi, "0xaf8")
    cnd(f, f, wi, m1)
    p.op("v_mul_u32_u24", wi, "0x4d49", f)
    p.op("v_lshrrev_b32", wi, "20", wi)
    p.op("v_mul_u32_u24", wj, "53", wi)
    p.op("v_sub_u32", wj, f, wj)
    p.op("v_add_u32", sx, f"s{s4b}", N15)
    p.op("v_mov_b32", f, "0x6b")
    cmp("v_cmp_lt_u32", m2, sx, f)
    cmp("v_cmp_gt_u32", m3, "54", sx)
    p.salu(f"s_and_b64 {s(m1, 2)}, {s(m1, 2)}, {s(m2, 2)}", sr(m1, 2) + sr(m2, 2), sr(m1, 2) + [SCC])
    p.op("v_subrev_u32", f, "54", sx)
    cnd(f, f, "53", m3)
    cnd(sx, "53", sx, m3)
    cnd(wi, wi, f, m1)
    cnd(wj, wj, sx, m1)
    sal(p, f"s_movk_i32 {s(sF)}, 378", [], [sF], False)
    for x in (wi, wj):
        p.op("v_mad_u32_u24", x, x, "7", "9")
        p.op("v_subrev_u32", f, f"s{sF}", x)
        p.op("v_min_u32", x, x, f)
    p.op("v_mad_u32_u24", f, wi, f"s{sF}", wj)
    p.op("v_mul_u32_u24", f, "0xc0", f)
    p.op("v_add_u32", f, f, G16)
    cmp("v_cmp_gt_u32", m1, f"s{sN}", N15)
    p.op("v_bfrev_b32", wi, "1")
    cnd(O48R, wi, f, m1)


def window_map_v(p, opt):
    sA = S_T3
    xa, xb, xc, xd = 48, 49, 50, 51
    sal(p, f"s_movk_i32 {s(sA)}, 378", [], [sA], False)
    p.op("v_or_b32", xa, f"s{S_IDLE}", G16)
    for tt in range(3):
        n, ty, tx = OFF[tt], xb, xc
        a = xd
        if tt == 0:
            n = N15
        else:
            p.op("v_add_u32", n, str(16 * tt), N15)
        p.op("v_mul_u32_u24", ty, "37", n)
        p.op("v_lshrrev_b32", ty, "8", ty)
        p.op("v_mad_i32_i24", tx, ty, "-7", n)
        p.op("v_add_u32", ty, f"s{S_SWI}", ty)
        p.op("v_add_u32", tx, f"s{S_SWJ}", tx)
        p.op("v_subrev_u32", a, f"s{sA}", ty)
        p.op("v_min_u32", ty, ty, a)
        p.op("v_subrev_u32", a, f"s{sA}", tx)
        p.op("v_min_u32", tx, tx, a)
        p.op("v_mad_u32_u24", a, ty, f"s{sA}", tx)
        p.op("v_mul_u32_u24", a, "0xc0", a)
        p.op("v_add_u32", OFF[tt], a, xa)


def x_loads(p, opt, tiles=(0, 1, 2)):
    for tt in tiles:
        for k in range(3):
            p.vld("buffer_load_dwordx4", X(tt, k), 4, OFF[tt], SRD_X, 64 * k, opt.xflag)


def wq_base(p, a, b):
    p.op("v_subrev_u32", a, str(L_BIAS), V_BIAS)
    p.op("v_lshrrev_b32", b, "6", a)
    p.op("v_mul_u32_u24", b, str(WS), b)
    p.op("v_bfe_u32", a, a, "4", "2")
    p.op("v_lshl_add_u32", V_WQ, a, "3", b)


def lds_bases(p, opt):
    p.op("v_add_u32", V_BIAS, str(L_BIAS), L16)
    p.op("v_mov_b32", V_WQ, LC + 3)
    sal(p, f"s_mul_i32 {s(S_T1)}, {s(W)}, {XST}", [W], [S_T1], False)
    sal(p, f"s_add_u32 {s(S_T1)}, {s(S_T1)}, {L_X}", [S_T1], [S_T1])
    p.op("v_add_u32", V_TH, f"s{S_T1}", G16)
    p.op("v_lshl_add_u32", V_TV, N15, "1", f"s{S_T1}")
    p.op("v_add_u32", V_PW, f"s{S_T1}", LC + 4)
    p.op("v_mov_b32", PARA, str(L_PAR))


def pro_common(p, opt):
    p.salu(f"s_cmp_ge_u32 s2, {NWG}", sr(2), [SCC])
    p.raw("s_cbranch_scc1 L_end", rd=[SCC])
    if opt.rot:
        sal(p, f"s_add_u32 s2, s2, {NS}", [2], [2])
        sal(p, f"s_sub_u32 s3, s2, {NWG}", [2], [3])
        sal(p, f"s_min_u32 s2, s2, s3", [2, 3], [2])
    if opt.debug:
        p.add(I(f"s_memtime {s(S_T2, 2)}", "smem", [], sr(S_T2, 2)))
        p.op("v_mov_b32", DBG + 7, f"s{S_T2}")
        p.add(I(f"s_memrealtime {s(S_T2, 2)}", "smem", [], sr(S_T2, 2)))
        p.op("v_mov_b32", DBG + 6, f"s{S_T2}")
    for srd, off in ((SRD_WQ, 8), (SRD_WO, 16), (SRD_RC, 48), (SRD_RIDX, 56), (SRD_X, 0), (SRD_MASK, 64), (SRD_OUT, 72)):
        p.smem("s_load_dwordx2", srd, 2, 0, off)
    p.smem("s_load_dwordx2", 32, 2, 0, 24)
    p.smem("s_load_dwordx4", 36, 4, 0, 32)
    p.op("v_lshrrev_b32", ta, "6", 0)
    p.op("v_and_b32", L, "63", 0)
    p.add(I(f"v_readfirstlane_b32 {s(W)}, {v(ta)}", "rdlane", [ta], sr(W)))
    p.add(I(f"s_getpc_b64 {s(72, 2)}", "salu", [], sr(72, 2)))
    p.add(I("s_add_u32 s72, s72, wtab@rel32@lo+4", "salu", sr(72), sr(72) + [SCC]))
    p.add(I("s_addc_u32 s73, s73, wtab@rel32@hi+12", "salu", sr(73) + [SCC], sr(73) + [SCC]))
    if opt.pf:
        p.add(I(f"s_getpc_b64 {s(70, 2)}", "salu", [], sr(70, 2)))
        sal(p, f"s_min_u32 s74, {s(W)}, {opt.pf - 1}", [W], [74])
        sal(p, f"s_lshl_b32 s74, s74, 13", [74], [74])
        p.op("v_lshl_add_u32", tb, L, "7", "s74")
        p.add(I(f"global_load_dword {v(159)}, {v(tb)}, {s(70, 2)}", "vld", [tb] + sr(70, 2), [159]))
    sal(p, f"s_min_u32 s74, {s(W)}, 8", [W], [74])
    sal(p, f"s_lshl_b32 s74, s74, 6", [74], [74])
    p.op("v_add_u32", ta, "s74", L)
    p.op("v_lshlrev_b32", tb, "3", ta)
    p.add(I(f"global_load_dwordx2 {v(TBL, 2)}, {v(tb)}, {s(72, 2)}", "vld", [tb] + sr(72, 2), vr(TBL, 2)))
    p.op("v_lshlrev_b32", WSRC, "4", ta)
    sal(p, f"s_add_u32 s74, {s(W)}, 5", [W], [74])
    sal(p, f"s_min_u32 s74, s74, 14", [74], [74])
    sal(p, f"s_lshl_b32 s74, s74, 9", [74], [74])
    p.op("v_lshl_add_u32", td, L, "3", "s74")
    p.add(I(f"global_load_dwordx2 {v(WOA + 2, 2)}, {v(td)}, {s(72, 2)}", "vld", [td] + sr(72, 2), vr(WOA + 2, 2)))
    p.op("v_lshlrev_b32", tc, "5", L)
    p.op("v_add_u32", tc, str(T_LANE), tc)
    p.add(I(f"global_load_dwordx4 {v(LC, 4)}, {v(tc)}, {s(72, 2)}", "vld", [tc] + sr(72, 2), vr(LC, 4)))
    p.add(I(f"global_load_dwordx2 {v(LC + 4, 2)}, {v(tc)}, {s(72, 2)} offset:16", "vld", [tc] + sr(72, 2), vr(LC + 4, 2)))
    for srd, nb in ((SRD_WQ, 96 * 288 * 2), (SRD_WO, 96 * 96 * 2), (SRD_RC, 169 * 4), (SRD_RIDX, 49 * 49 * 4), (SRD_X, X_BYTES),
                    (SRD_MASK, MASK_BYTES), (SRD_OUT, X_BYTES)):
        sal(p, f"s_mov_b32 {s(srd + 2)}, {nb}", [], [srd + 2], False)
        sal(p, f"s_mov_b32 {s(srd + 3)}, 0x00020000", [], [srd + 3], False)
    for i in range(6):
        sal(p, f"s_mov_b32 {s(76 + i)}, {9216 * i}", [], [76 + i], False)
    sal(p, f"s_sub_u32 s74, {s(W)}, 9", [W], [74])
    sal(p, f"s_lshl_b32 s74, s74, 8", [74], [74])
    p.op("v_lshl_add_u32", TE, L, "2", "s74")
    sal(p, f"s_cmp_gt_u32 {s(W)}, 8", [W], [])
    p.wait(lgkm=0)
    p.raw("s_cbranch_scc1 L_c9", rd=[SCC])
    p.cond_begin()
    w_loads(p)
    p.smem("s_load_dwordx2", S_LS, 2, 32, 0)
    p.raw("s_branch L_c10")
    p.cond_end()
    p.label("L_c9")
    p.cond_begin()
    p.vld("buffer_load_dword", rcv, 1, TE, SRD_RC, 0)
    p.smem("s_load_dwordx16", S_W1, 16, 36, 0)
    p.smem("s_load_dwordx16", S_W2, 16, 38, 0)
    p.smem("s_load_dwordx16", S_W2 + 16, 16, 38, 64)
    p.cond_end()
    p.label("L_c10")
    if opt.debug:
        p.add(I(f"s_memtime {s(34, 2)}", "smem", [], sr(34, 2)))
        p.op("v_mov_b32", DBG + 1, "s34")
    if opt.touch:
        p.raw("<touchA>", kind="label")
    p.op("v_and_b32", N15, "15", L)
    p.op("v_and_b32", G16, "48", L)
    p.op("v_lshlrev_b32", L16, "4", L)
    sal(p, f"s_cmp_lt_u32 {s(W)}, 4", [W], [])
    p.raw("s_cbranch_scc1 L_pathO", rd=[SCC])


WFLAG = ['']


def w_loads(p):
    for i in range(6):
        p.add(I(f"buffer_load_dwordx4 {v(WD + 4 * i, 4)}, {v(WSRC)}, {s(SRD_WQ, 4)}, {s(76 + i)} offen{WFLAG[0]}", "vld",
                [WSRC] + sr(SRD_WQ, 4) + sr(76 + i), vr(WD + 4 * i, 4)))


def w_scatter(p):
    p.op("v_and_b32", WA, "0xffff", TBL)
    p.op("v_lshrrev_b32", WA + 1, "16", TBL)
    p.op("v_and_b32", WA + 2, "0xffff", TBL + 1)
    p.op("v_lshrrev_b32", WA + 3, "16", TBL + 1)
    assert L_WI == 0 and (8 * WS) % 256 == 0
    for i in range(0, 6, 2):
        for d in range(4):
            o0 = (i >> 1) * 32 * WS // 256
            p.add(I(f"ds_write2st64_b32 {v(WA + d)}, {v(WD + 4 * i + d)}, {v(WD + 4 * i + 4 + d)} offset0:{o0} offset1:{o0 + 8 * WS // 256}",
                    "dsw", [WA + d, WD + 4 * i + d, WD + 4 * i + 4 + d], []))


def consts(p, opt):
    sal(p, f"s_mov_b32 {s(S_EPSQ)}, {f32(0.25e-12)}", [], [S_EPSQ], False)
    sal(p, f"s_mov_b32 {s(S_EPSLN)}, {f32(24e-5)}", [], [S_EPSLN], False)
    for r, val in ((S_MA, 0x33333333), (S_MA + 1, 0x33333333), (S_MB, 0xcccccccc), (S_MB + 1, 0xcccccccc)):
        sal(p, f"s_mov_b32 {s(r)}, {val:#x}", [], [r], False)
    sal(p, f"s_cmp_lt_u32 s2, {NS}", [2], [])
    csel(p, S_NWIN, "8", "12")


def tau_rd(p):
    p.dsr("ds_read_b128", 156, 4, PARA, 0)


def tau_use(p):
    for h in range(4):
        p.add(I(f"v_readfirstlane_b32 {s(S_TAU + h)}, {v(156 + h)}", "rdlane", [156 + h], sr(S_TAU + h)))
    sal(p, f"s_max_u32 {s(S_T0)}, {s(S_TAU)}, {s(S_TAU + 1)}", [S_TAU, S_TAU + 1], [S_T0])
    sal(p, f"s_max_u32 {s(S_T1)}, {s(S_TAU + 2)}, {s(S_TAU + 3)}", [S_TAU + 2, S_TAU + 3], [S_T1])
    sal(p, f"s_max_u32 {s(S_T0)}, {s(S_T0)}, {s(S_T1)}", [S_T0, S_T1], [S_T0])
    sal(p, f"s_cmp_gt_u32 {s(S_T0)}, {f32(TAU_THR * LOG2E)}", [S_T0], [])
    csel(p, S_UNSAFE, "1", "0")


def gather_addr(p, dst, spos, base):
    sal(p, f"s_lshr_b32 s69, {s(spos)}, 2", [spos], [69])
    sal(p, f"s_and_b32 s68, {s(spos)}, 3", [spos], [68])
    sal(p, f"s_mul_i32 s69, s69, {16 * 196}", [69], [69], False)
    sal(p, f"s_lshl_b32 s68, s68, 6", [68], [68])
    sal(p, f"s_add_u32 s68, s68, s69", [68, 69], [68])
    p.op("v_add_u32", dst, "s68", base)


def gather_prep(p, regs):
    for base in regs:
        for r in range(4):
            p.op("v_min_u32", base + r, "0xa8", base + r)
            p.op("v_lshl_add_u32", base + r, base + r, "4", f"s{S_T0}")
    sal(p, f"s_and_b32 {s(S_T0)}, {s(W)}, 3", [W], [S_T0])
    sal(p, f"s_cmp_eq_u32 {s(S_T0)}, 3", [S_T0], [])
    csel(p, S_HI48, "0xffff0000", "0")
    csel(p, S_HI48 + 1, "-1", "0")


def gather_rd(p, g, idx):
    for r in range(4):
        p.dsr("ds_read_b128", g + 4 * r, 4, idx + r, 0)


def gather_wr(p, g, extra):
    for h in range(4):
        p.add(I(f"v_cndmask_b32 {v(g + h)}, {v(g + h)}, {v(NEGR)}, {s(S_HI48, 2)}", "valu",
                [g + h, NEGR] + sr(S_HI48, 2), [g + h]))
    for i in range(4):
        for j in range(i + 1, 4):
            a_, b_ = g + 4 * i + j, g + 4 * j + i
            p.add(I(f"v_swap_b32 {v(a_)}, {v(b_)}", "valu", [a_, b_], [a_, b_]))
    for h in range(4):
        p.dsw("ds_write_b128", GDST, g + 4 * h, 4, 12288 * h + extra)


NEGR = 57
GC = 153


def path_o(p, opt):
    p.label("L_pathO")
    p.raw("s_waitcnt vmcnt(6)", kind="salu")
    p.ins.append(I("", "forgetv", rd=[LC + 4], states=0))
    window_map(p, opt)
    p.raw("s_barrier")
    x_loads(p, opt)
    stamp(p, opt, 2, early=True)
    w_scatter(p)
    lds_bases(p, opt)
    consts(p, opt)
    dbg_early(p, opt)
    if opt.touchb:
        p.raw("<touchB>", kind="label")
    p.wait(vm=9, lgkm=0)
    p.raw("s_barrier")
    stamp(p, opt, 3)
    tau_rd(p)
    tau_use(p)
    stamp(p, opt, 4)
    p.label("L_join")


def signal(p, which):
    p.salu("s_mov_b64 exec, 1", [], [EXEC])
    p.add(I(f"ds_add_u32 {v(PARA)}, {v(ONE)} offset:{L_CNT - L_PAR + 4 * which}", "dsw", [PARA, ONE], []))
    p.salu("s_mov_b64 exec, -1", [], [EXEC])


def path_y(p, opt):
    sB = S_T1
    sal(p, f"s_sub_u32 {s(sB)}, {s(W)}, 4", [W], [sB])
    if opt.earlya:
        p.raw("s_barrier")
    sal(p, f"s_cmp_lt_u32 {s(W)}, 8", [W], [])
    p.raw("s_cbranch_scc1 L_rg", rd=[SCC])
    p.cond_begin()
    p.op("v_lshlrev_b32", GB, "2", L)
    p.op("v_add_u32", GB, str(48 * 196), GB)
    p.vld("buffer_load_dword", 116, 1, GB, SRD_RIDX, 0)
    sal(p, f"s_cmp_lg_u32 {s(W)}, 8", [W], [])
    p.raw("s_cbranch_scc1 L_re", rd=[SCC])
    p.cond_split()
    thin_offsets(p, opt)
    for k in range(3):
        p.vld("buffer_load_dwordx4", X48 + 4 * k, 4, O48R, SRD_X, 64 * k)
    p.raw("s_branch L_re")
    p.cond_end()
    p.label("L_rg")
    p.cond_begin()
    p.op("v_mul_u32_u24", ta, "0xc4", N15)
    sal(p, f"s_lshl_b32 {s(S_T0)}, {s(sB)}, 6", [sB], [S_T0])
    p.op("v_add3_u32", GA, ta, G16, f"s{S_T0}")
    p.op("v_add_u32", GC, str(32 * 196), GA)
    p.vld("buffer_load_dwordx4", ridx, 4, GA, SRD_RIDX, 0)
    p.vld("buffer_load_dwordx4", ridxb, 4, GA, SRD_RIDX, 16 * 196)
    p.vld("buffer_load_dwordx4", ridxc, 4, GC, SRD_RIDX, 0)
    p.cond_end()
    p.label("L_re")
    if not opt.earlya:
        p.raw("s_barrier")
    sal(p, f"s_mul_i32 {s(S_T0)}, {s(sB)}, 3072", [sB], [S_T0], False)
    p.op("v_mul_u32_u24", ta, "48", L)
    p.op("v_add_u32", WOA, f"s{S_T0}", ta)
    sal(p, f"s_lshl_b32 {s(S_T0)}, {s(sB)}, 10", [sB], [S_T0])
    p.op("v_add_u32", GDST, str(L_BIAS), L16)
    p.op("v_add_u32", GDST, f"s{S_T0}", GDST)
    stamp(p, opt, 2, early=True)
    sal(p, f"s_cmp_lt_u32 {s(W)}, 9", [W], [])
    p.raw("s_cbranch_scc1 L_notab", rd=[SCC])
    p.cond_begin()
    p.raw("s_setprio 3", kind="salu")
    p.raw("s_waitcnt vmcnt(1) lgkmcnt(0)", kind="salu")
    p.ins.append(I("", "forget", rd=[rcv], states=0))
    hb = u
    tmps = [S_LS, S_LS + 1, S_T0, S_T1, S_T2, S_T3]
    def packs1(jp):
        a_, b_ = S_W1 + jp, S_W1 + 8 + jp
        sal(p, f"s_pack_ll_b32_b16 {s(tmps[jp % 6])}, {s(a_)}, {s(b_)}", [a_, b_], [tmps[jp % 6]], False)
        sal(p, f"s_pack_hh_b32_b16 {s(b_)}, {s(a_)}, {s(b_)}", [a_, b_], [b_], False)
    for jp in range(3):
        packs1(jp)
    for jp in range(8):
        if jp + 3 < 8:
            packs1(jp + 3)
        p.op("v_dot2_f32_bf16", hb + 2 * jp, rcv, f"s{tmps[jp % 6]}", "0", kind="dot")
        p.op("v_dot2_f32_bf16", hb + 2 * jp + 1, rcv, f"s{S_W1 + 8 + jp}", "0", kind="dot")
    acc = hb + 8
    def packs2(jp):
        for h in range(4):
            r0, r1 = S_W2 + 4 * jp + (h >> 1), S_W2 + 4 * jp + 2 + (h >> 1)
            nm = "s_pack_hh_b32_b16" if h & 1 else "s_pack_ll_b32_b16"
            st = S_W1 + (4 * jp + h) % 16
            sal(p, f"{nm} {s(st)}, {s(r0)}, {s(r1)}", [r0, r1], [st], False)
    for j in range(8):
        p.op("v_cvt_pk_bf16_f32", hb + j, hb + 2 * j, hb + 2 * j + 1)
        if j < 3:
            packs2(j)
    for j in range(8):
        p.op("v_pk_max_i16", hb + j, hb + j, "0")
    for jp in range(8):
        for h in range(4):
            st = S_W1 + (4 * jp + h) % 16
            if jp == 0:
                p.op("v_dot2_f32_bf16", acc + h, hb, f"s{st}", "0", kind="dot")
            else:
                p.op("v_dot2_f32_bf16", acc + h, hb + jp, f"s{st}", acc + h, kind="dot").tag = "acc"
        if jp + 3 < 8:
            packs2(jp + 3)
    p.op("v_mov_b32", ta, f32(16.0 * LOG2E))
    p.op("v_lshlrev_b32", TE, "2", TE)
    p.op("v_add_u32", TE, str(L_TAB), TE)
    for step in range(9):
        for h in range(4):
            a = acc + h
            if step == 0: p.op("v_cvt_pk_bf16_f32", a, a, a)
            if step == 1: p.op("v_and_b32", a, "0xffff0000", a)
            if step == 2: p.op("v_mul_f32", a, f32(-LOG2E), a)
            if step == 3: p.op("v_exp_f32", a, a, kind="trans")
            if step == 4: p.op("v_add_f32", a, "1.0", a)
            if step == 5: p.op("v_rcp_f32", a, a, kind="trans")
            if step == 6: p.op("v_cvt_pk_bf16_f32", a, a, a)
            if step == 7: p.op("v_and_b32", a, "0xffff0000", a)
            if step == 8:
                p.op("v_fmaak_f32", a, a, ta, f32(-8.0 * LOG2E))
    p.dsw("ds_write_b128", TE, acc, 4, 0)
    p.raw("s_setprio 0", kind="salu")
    p.cond_end()
    p.label("L_notab")
    p.raw("s_waitcnt vmcnt(2)", kind="salu")
    p.ins.append(I("", "forgetv", rd=[LC + 4], states=0))
    lds_bases(p, opt)
    sal(p, f"s_cmp_lg_u32 {s(W)}, 4", [W], [])
    p.raw("s_cbranch_scc1 L_notau", rd=[SCC])
    p.cond_begin()
    p.wait(lgkm=0)
    for h in range(4):
        src, st = S_LS + (h >> 1), S_W1 + h
        if h & 1:
            sal(p, f"s_and_b32 {s(st)}, {s(src)}, 0xffff0000", [src], [st])
        else:
            sal(p, f"s_lshl_b32 {s(st)}, {s(src)}, 16", [src], [st])
        p.op("v_mov_b32", u + h, f"s{st}")
    for h in range(4):
        x = u + h
        p.op("v_min_f32", x, "0x40930000", x)
        p.op("v_max_f32", x, "0xc2c80000", x)
        p.op("v_mul_f32", x, f32(LOG2E), x)
        p.op("v_exp_f32", x, x, kind="trans")
    for h in range(4):
        x = u + h
        p.op("v_cvt_pk_bf16_f32", x, x, x)
        p.op("v_and_b32", x, "0xffff0000", x)
        p.op("v_mul_f32", x, f32(LOG2E), x)
    p.dsw("ds_write_b128", PARA, u, 4, 0)
    for i in range(4):
        p.op("v_mov_b32", u + 4 + i, "0")
    p.dsw("ds_write_b128", PARA, u + 4, 4, L_CNT - L_PAR)
    p.op("v_min_u32", tc, "11", N15)
    p.op("v_mul_u32_u24", tc, str(XST), tc)
    p.op("v_add_u32", tc, tc, G16)
    p.op("v_add_u32", tc, str(L_X + X_Z), tc)
    p.dsw("ds_write_b32", tc, u + 4, 1, 0)
    for i in range(4):
        p.op("v_mov_b32", u + 8 + i, "0x3f803f80")
    p.dsw("ds_write_b128", V_BIAS, u + 8, 4, L_ONES - L_BIAS)
    z = u + 10
    p.op("v_and_b32", ta, "1", L)
    p.op("v_lshlrev_b32", ta, "4", ta)
    p.op("v_mov_b32", tb, "0x3f80")
    p.op("v_lshlrev_b32", ta, ta, tb)
    sal(p, f"s_mov_b32 s50, 0x33333333", [], [50], False)
    sal(p, f"s_mov_b32 s51, 0x33333333", [], [51], False)
    p.wait(lgkm=0)
    for r in (z, z + 1, z + 4, z + 5):
        p.op("v_mov_b32", r, "0")
    p.add(I(f"v_cndmask_b32 {v(z + 2)}, 0, {v(ta)}, {s(50, 2)}", "valu", [ta] + sr(50, 2), [z + 2]))
    p.add(I(f"v_cndmask_b32 {v(z + 3)}, {v(ta)}, 0, {s(50, 2)}", "valu", [ta] + sr(50, 2), [z + 3]))
    p.dsw("ds_write_b128", V_BIAS, z + 2, 4, L_SEL - L_BIAS)
    p.dsw("ds_write_b128", V_BIAS, z, 4, L_SEL + 1024 - L_BIAS)
    p.cond_end()
    p.label("L_notau")
    if opt.debug is True:
        stamp(p, opt, 3, early=True)
        p.wait(vm=6)
        stamp(p, opt, 4, early=True)
    sal(p, f"s_cmp_gt_u32 {s(W)}, 8", [W], [])
    p.raw("s_cbranch_scc1 L_nosc", rd=[SCC])
    p.cond_begin()
    w_scatter(p)
    p.cond_end()
    p.label("L_nosc")
    if opt.debug is True:
        p.wait(lgkm=0)
        stamp(p, opt, 5, early=True)
    p.wait(lgkm=0)
    window_map(p, opt, temps=(48, 49, 50, 51, 52))
    sal(p, f"s_mov_b32 {s(S_T0)}, {L_TAB}", [], [S_T0], False)
    p.op("v_mov_b32", NEGR, f32(NEG_BIG))
    p.op("v_mov_b32", ONE, "1")
    sal(p, f"s_cmp_ge_u32 {s(W)}, 8", [W], [])
    p.raw("s_cbranch_scc1 L_tp", rd=[SCC])
    p.cond_begin()
    gather_prep(p, [ridx, ridxb, ridxc])
    p.raw("s_branch L_tq")
    p.cond_end()
    p.label("L_tp")
    p.cond_begin()
    thin_prep(p, opt)
    p.cond_end()
    p.label("L_tq")
    consts(p, opt)
    sal(p, f"s_mov_b32 {s(S_N12)}, 0x0fff0fff", [], [S_N12], False)
    sal(p, f"s_mov_b32 {s(S_N12 + 1)}, 0x0fff0fff", [], [S_N12 + 1], False)
    dbg_early(p, opt)
    p.raw("s_barrier")
    stamp(p, opt, 3)
    p.raw("s_setprio 3", kind="salu")
    tau_rd(p)
    p.wait(vm=0)
    sal(p, f"s_cmp_ge_u32 {s(W)}, 8", [W], [])
    p.raw("s_cbranch_scc1 L_thin", rd=[SCC])
    p.cond_begin()
    gather_rd(p, u, ridx)
    gather_rd(p, 60, ridxb)
    gather_rd(p, 128, ridxc)
    for i in range(3):
        p.vld("buffer_load_dwordx4", wov + 4 * i, 4, WOA, SRD_WO, 16 * i)
    if opt.xint:
        x_loads(p, opt, (0,))
    gather_wr(p, u, 0)
    if opt.xint:
        x_loads(p, opt, (1,))
    gather_wr(p, 60, 4096)
    gather_wr(p, 128, 8192)
    signal(p, 0)
    if opt.debug is True:
        stamp(p, opt, 17)
    x_loads(p, opt, (2,) if opt.xint else (0, 1, 2))
    p.raw("s_branch L_xdone")
    p.cond_end()
    p.label("L_thin")
    p.cond_begin()
    thin_jobs(p, opt)
    p.cond_end()
    p.label("L_sig0")
    signal(p, 0)
    if opt.debug is True:
        stamp(p, opt, 17)
    p.ins.append(I("", "vmreset", states=0))
    for i in range(3):
        p.vld("buffer_load_dwordx4", wov + 4 * i, 4, WOA, SRD_WO, 16 * i)
    x_loads(p, opt)
    p.label("L_xdone")
    tau_use(p)
    stamp(p, opt, 4)
    sal(p, f"s_cmp_ge_u32 {s(W)}, 10", [W], [])
    p.raw("s_cbranch_scc1 L_nowo", rd=[SCC])
    p.cond_begin()
    for i in range(12):
        p.op("v_lshlrev_b32", uu + 2 * i, "16", wov + i)
        p.op("v_and_b32", uu + 2 * i + 1, "0xffff0000", wov + i)
    sm = 50
    def pk(name, d, a, b, mods=""):
        p.add(I(f"{name} {v(d, 2)}, {v(a, 2)}, {v(b, 2)}{mods}", "valu", vr(a, 2) + vr(b, 2), vr(d, 2)))
    pk("v_pk_add_f32", sm, uu, uu + 2)
    for i in range(2, 12):
        pk("v_pk_add_f32", sm, sm, uu + 2 * i)
    p.op("v_add_f32", sm, sm, sm + 1)
    for ctl in ("quad_perm:[1,0,3,2]", "quad_perm:[2,3,0,1]"):
        p.add(I(f"v_add_f32_dpp {v(sm)}, {v(sm)}, {v(sm)} {ctl} row_mask:0xf bank_mask:0xf", "dpp", [sm], [sm]))
    p.op("v_mul_f32", sm, f32(-1.0 / 96.0), sm)
    for i in range(12):
        pk("v_pk_add_f32", uu + 2 * i, uu + 2 * i, sm, " op_sel_hi:[1,0]")
    for i in range(12):
        p.op("v_cvt_pk_bf16_f32", wov + i, uu + 2 * i, uu + 2 * i + 1)
    sal(p, f"s_mov_b32 {s(S_T0)}, {L_WO}", [], [S_T0], False)
    p.op("v_and_b32", 60, "0xffff", WOA + 2)
    p.op("v_lshrrev_b32", 61, "16", WOA + 2)
    p.op("v_and_b32", 62, "0xffff", WOA + 3)
    for i in range(3):
        p.op("v_add_u32", 60 + i, f"s{S_T0}", 60 + i)
        p.add(I(f"ds_write2_b64 {v(60 + i)}, {v(wov + 4 * i, 2)}, {v(wov + 4 * i + 2, 2)} offset0:0 offset1:4", "dsw",
                [60 + i] + vr(wov + 4 * i, 4), []))
    signal(p, 1)
    p.cond_end()
    p.label("L_nowo")
    p.wait(vm=9, lgkm=0)
    p.raw("s_setprio 0", kind="salu")
    sal(p, f"s_cmp_lg_u32 {s(S_IDLE)}, 0", [S_IDLE], [])
    p.raw("s_cbranch_scc1 L_end", rd=[SCC])
    p.raw("s_branch L_join")


WQH, DST, TAUA, DKQ, WVF, DVF, WVS = 60, 61, 62, 63, 108, 109, 84
RB48 = 90
XA48 = 118


def thin_prep(p, opt):
    hS = 53
    p.op("v_min_u32", 117, "0xa8", 116)
    p.op("v_lshl_add_u32", RB48, 117, "4", f"s{S_T0}")
    sal(p, f"s_sub_u32 {s(hS)}, {s(W)}, 8", [W], [hS])
    sal(p, f"s_mul_i32 {s(S_T0)}, {s(hS)}, 96", [hS], [S_T0], False)
    p.op("v_add_u32", WQH, f"s{S_T0}", V_WQ)
    sal(p, f"s_lshr_b32 s54, {s(hS)}, 1", [hS], [54])
    sal(p, f"s_and_b32 s55, {s(hS)}, 1", [hS], [55])
    sal(p, f"s_mul_i32 {s(S_T1)}, s54, 96", [54], [S_T1], False)
    p.op("v_add_u32", WVS, f"s{S_T1}", V_WQ)
    sal(p, f"s_lshl_b32 {s(S_T2)}, s55, 6", [55], [S_T2])
    p.op("v_add_u32", WVF, f"s{S_T2}", WVS)
    p.op("v_mul_u32_u24", DST, str(XST), N15)
    sal(p, f"s_lshl_b32 {s(S_T0)}, {s(hS)}, 7", [hS], [S_T0])
    sal(p, f"s_add_u32 {s(S_T0)}, {s(S_T0)}, {L_X + X_KQ}", [S_T0], [S_T0])
    p.op("v_add3_u32", DKQ, DST, G16, f"s{S_T0}")
    sal(p, f"s_lshl_b32 {s(S_T3)}, {s(hS)}, 2", [hS], [S_T3])
    p.op("v_add_u32", TAUA, f"s{S_T3}", PARA)
    sal(p, f"s_lshl_b32 s56, s54, 7", [54], [56])
    sal(p, f"s_add_u32 s56, s56, {L_X + X_V48}", [56], [56])
    p.op("v_lshrrev_b32", DVF, "1", G16)
    p.op("v_add3_u32", DST, DST, DVF, "s56")
    sal(p, f"s_mul_i32 s56, s55, 96", [55], [56], False)
    p.op("v_add_u32", DVF, "s56", DST)
    for r in (105, 106, 107):
        p.op("v_mov_b32", r, "0")
    p.op("v_mov_b32", 85, "0x3f803f80")
    p.op("v_mov_b32", 86, "0x3f803f80")
    p.op("v_add_u32", XA48, str(L_X48), L16)
    sal(p, f"s_cmp_lg_u32 {s(W)}, 8", [W], [])
    p.raw("s_cbranch_scc1 L_tp2", rd=[SCC])
    p.cond_split()
    p.op("v_lshlrev_b32", 153, "2", L)
    p.op("v_add_u32", 153, str(L_OFF48), 153)
    p.dsw("ds_write_b32", 153, O48R, 1, 0)
    for k in range(3):
        p.dsw("ds_write_b128", XA48, X48 + 4 * k, 4, 1024 * k)
    p.raw("s_waitcnt lgkmcnt(0)", kind="salu")
    p.label("L_tp2")
    p.cond_split()
    p.add(I(f"v_cmp_lt_u32 {s(56, 2)}, 48, {v(L)}", "valu", [L], sr(56, 2)))


def thin_jobs(p, opt):
    import sched
    Lh, FD, SD = 64, 76, 80
    wqs = [128, 132, 136, 140, 144, 20, 24, 28, 32]
    wfs = [36, 40, 112]
    wss = [116, 120, 124]
    SL, NP, D, BB = 100, 104, 20, 148
    ss = [110, 111]
    Sa, Sb = 84, 86
    n0 = len(p.ins)
    for k in range(3):
        p.dsr("ds_read_b128", X48 + 4 * k, 4, XA48, 1024 * k)
    for T in range(3):
        for ks in range(3):
            r = wqs[3 * T + ks]
            off = L_WI + 32 * ks * WS + 32 * T
            p.dsr("ds_read_b64_tr_b16", r, 2, WQH, off)
            p.dsr("ds_read_b64_tr_b16", r + 2, 2, WQH, off + 16 * WS)
            p.mfma16(Lh + 4 * T, r, X48 + 4 * ks, None if ks == 0 else Lh + 4 * T)
    p.dsr("ds_read_b32", TAUA, 1, TAUA, 0)
    p.dsr("ds_read_b128", SL, 4, V_BIAS, L_SEL - L_BIAS)
    for (ws, ad, o, d) in ((wfs, WVF, 384, FD), (wss, WVS, 416, SD)):
        for ks in range(3):
            off = L_WI + 32 * ks * WS + o
            p.dsr("ds_read_b64_tr_b16", ws[ks], 2, ad, off)
            p.dsr("ds_read_b64_tr_b16", ws[ks] + 2, 2, ad, off + 16 * WS)
            p.mfma16(d, ws[ks], X48 + 4 * ks, None if ks == 0 else d)
    p.dsr("ds_read_b128", BB, 4, RB48, 0)
    for e in range(2):
        for i in range(6):
            x = Lh + 6 * e + i
            if i == 0:
                p.op("v_fma_f32", ss[e], x, x, f"s{S_EPSQ}")
            else:
                p.op("v_fmac_f32", ss[e], x, x, rmw=True)
    p.op("v_cvt_pk_bf16_f32", NP, ss[0], ss[1])
    p.mfma16(D, SL, NP, None)
    p.op("v_cvt_pk_bf16_f32", FD, FD, FD + 1)
    p.op("v_cvt_pk_bf16_f32", FD + 1, FD + 2, FD + 3)
    p.op("v_cvt_pk_bf16_f32", Sa, SD, SD + 1)
    p.op("v_cvt_pk_bf16_f32", Sb + 1, SD + 2, SD + 3)
    for h in range(4):
        p.add(I(f"v_cndmask_b32 {v(BB + h)}, {v(BB + h)}, {v(NEGR)}, {s(56, 2)}", "valu", [BB + h, NEGR] + sr(56, 2), [BB + h]))
    p.dsw("ds_write_b128", V_BIAS, BB, 4, L_B48 - L_BIAS)
    p.op("v_rsq_f32", D, D, kind="trans")
    p.op("v_rsq_f32", D + 1, D + 1, kind="trans")
    p.op("v_mul_f32", D, D, TAUA)
    for i in range(12):
        p.op("v_mul_f32", Lh + i, Lh + i, D + i // 6)
    for i in range(3):
        p.op("v_cvt_pk_bf16_f32", Lh + i, Lh + 2 * i, Lh + 2 * i + 1)
    p.op("v_mov_b32", Lh + 3, "0")
    for i in range(3):
        p.op("v_cvt_pk_bf16_f32", Lh + 4 + i, Lh + 6 + 2 * i, Lh + 7 + 2 * i)
    p.op("v_mov_b32", Lh + 7, "0")
    blk = sched.schedule(p.ins[n0:])
    p.ins = p.ins[:n0] + blk
    p.salu(f"s_mov_b64 exec, {s(S_N12, 2)}", sr(S_N12, 2), [EXEC])
    p.dsw("ds_write_b64", DVF, FD, 2, 0)
    p.dsw("ds_write_b64", DST, Sa, 2, 32)
    p.dsw("ds_write_b64", DST, Sb, 2, 64)
    p.dsw("ds_write_b128", DKQ, Lh + 4, 4, 0)
    p.dsw("ds_write_b128", DKQ, Lh, 4, 64)
    p.salu("s_mov_b64 exec, -1", [], [EXEC])


def poll(p, slow, which, target, r, res, sleep=False):
    lbl = f"L_poll{which}" + ("s" if slow else "f")
    def gg():
        p.label(lbl)
        if sleep:
            p.raw("s_sleep 4", kind="salu")
        p.op("v_mov_b32", r, str(L_CNT + 4 * which))
        p.dsr("ds_read_b32", r, 1, r, 0)
        p.add(I(f"v_readfirstlane_b32 {s(S_B2)}, {v(r)}", "rdlane", [r], sr(S_B2)))
        sal(p, f"s_sub_u32 {s(S_JO)}, {s(S_JO)}, 1", [S_JO], [S_JO])
        p.raw(f"s_cbranch_scc1 {lbl}x", kind="salu", rd=[SCC])
        if isinstance(target, int):
            p.salu(f"s_cmp_lt_u32 {s(S_B2)}, {target}", sr(S_B2), [SCC])
        else:
            p.salu(f"s_cmp_lt_u32 {s(S_B2)}, {target}", sr(S_B2) + sr(int(target[1:])), [SCC])
        p.raw(f"s_cbranch_scc1 {lbl}", kind="salu", rd=[SCC])
        p.label(lbl + "x")
    gr = p.group(gg)
    gr.wr = gr.wr | {res}
    return gr


MQ = [OR_ + 8, OR_ + 20, OR_ + 32, OR_ + 8, OR_ + 20]


def mask_ld(p, opt, i):
    r = MQ[i]
    if i < 4:
        p.vld("buffer_load_dwordx4", r, 4, V_BIAS, SRD_MCHK, 1024 * i, opt.mflag)
    else:
        p.add(I(f"buffer_load_dwordx4 {v(r, 4)}, {v(V_BIAS)}, {s(SRD_MCHK, 4)}, {s(S_C4096)} offen{opt.mflag}", "vld",
                [V_BIAS] + sr(SRD_MCHK, 4) + sr(S_C4096), vr(r, 4)))
    return p.ins[-1]


def mask_use(p, opt, i):
    r = MQ[i]
    p.op("v_or3_b32", r, r, r + 1, r + 2)
    p.op("v_bitop3_b32", r, r, r + 3, f"s{S_C7F}", extra=" bitop3:0xa8")
    p.add(I(f"v_cmp_ne_u32 {s(S_MTMP, 2)}, 0, {v(r)}", "valu", [r], sr(S_MTMP, 2)))
    p.salu(f"s_or_b64 {s(S_MACC, 2)}, {s(S_MACC, 2)}, {s(S_MTMP, 2)}", sr(S_MACC, 2) + sr(S_MTMP, 2), sr(S_MACC, 2) + [SCC])


_pid = [3100]


def anchor_after(p, i, k=-2):
    _pid[0] += 1
    a = p.ins[k]
    a.wr = a.wr | {_pid[0]}
    i.rd = i.rd | {_pid[0]}


def make_hooks(opt):
    def hook(p, name, slow):
        chk = (not slow) and opt.mask_check
        if opt.prio and name in opt.prio:
            n0 = len(p.ins)
            if opt.prio[name] >= 100:
                d = [int(c) for c in str(opt.prio[name])[1:]]
                lb = f"L_pr{name}{'s' if slow else 'f'}"
                def gg():
                    p.raw(f"s_setprio {d[0]}", kind="salu")
                    sal(p, f"s_cmp_lt_u32 {s(W)}, 4", [W], [])
                    p.raw(f"s_cbranch_scc1 {lb}", kind="salu", rd=[SCC])
                    p.raw(f"s_setprio {d[1]}", kind="salu")
                    sal(p, f"s_cmp_lt_u32 {s(W)}, 8", [W], [])
                    p.raw(f"s_cbranch_scc1 {lb}", kind="salu", rd=[SCC])
                    p.raw(f"s_setprio {d[2]}", kind="salu")
                    p.label(lb)
                i = p.group(gg)
                i.rd = i.rd | {3000}
                i.wr = i.wr | {3000}
            else:
                i = p.raw(f"s_setprio {opt.prio[name]}", kind="salu", rd=[3000], wr=[3000])
            if n0:
                anchor_after(p, i)
        if name == "poll0":
            gb = poll(p, slow, 0, 8, K3, 3003)
            a = [i for i in p.ins if i.kind == "mfma"][min(opt.b2at, 28)]
            a.wr = a.wr | {3004}
            gb.rd = gb.rd | {3004}
            p.ins.remove(gb)
            p.ins.insert(p.ins.index(a) + 1, gb)
            if opt.debug is True:
                n0 = len(p.ins)
                stamp(p, opt, 19); stamp(p, opt, 18)
                st = p.ins[n0:]
                del p.ins[n0:]
                k = p.ins.index(gb)
                p.ins[k:k + 1] = st[:2] + [gb] + st[2:]
                gb.tag = "fence"
        elif name == "poll1":
            poll(p, slow, 1, 6, XR + 34, 3005)
        if name == opt.mk0 and chk:
            for i in range(3):
                anchor_after(p, mask_ld(p, opt, i), -2 - i)
        if name == "post0":
            stamp(p, opt, 6)
        if name == opt.mk1 and chk:
            n0 = len(p.ins)
            for i in range(3):
                mask_use(p, opt, i)
            for k in (n0, n0 + 4, n0 + 8):
                anchor_after(p, p.ins[k], n0 - 1 - len(p.ins))
            mask_ld(p, opt, 3); mask_ld(p, opt, 4)
        if name == "post1":
            stamp(p, opt, 8)
        elif name == "thin2" and chk:
            n0 = len(p.ins)
            for i in (3, 4):
                mask_use(p, opt, i)
            for k in (n0, n0 + 4):
                anchor_after(p, p.ins[k], n0 - 1 - len(p.ins))
            p.salu(f"s_cmp_lg_u64 {s(S_MACC, 2)}, 0", sr(S_MACC, 2), [SCC, 3001])
            p.add(I("s_cbranch_scc1 L_redo", "salu", [SCC, 3001], [3001, 3002]))
        elif name == "o48done":
            def gg():
                p.op("v_mov_b32", XR + 32, str(L_CNT + 8))
                p.op("v_mov_b32", XR + 33, "1")
                p.salu("s_mov_b64 exec, 1", [], [EXEC])
                p.add(I(f"ds_add_u32 {v(XR + 32)}, {v(XR + 33)}", "dsw", [XR + 32, XR + 33], []))
                p.salu("s_mov_b64 exec, -1", [], [EXEC])
            gr = p.group(gg)
            gr.rd = gr.rd | {3012, 3002}
        elif name == "post3":
            stamp(p, opt, 9)
        elif name == "end":
            stamp(p, opt, 10)
            n0 = len(p.ins)
            if opt.debug:
                stamp_flush(p, opt)
            sal(p, f"s_cmp_eq_u32 {s(W)}, {opt.jowave}", [W], [])
            p.raw("s_cbranch_scc1 L_jo", rd=[SCC])
            p.raw("s_endpgm")
            for i in p.ins[n0:]:
                i.tag = "fence" if i.tag is None else i.tag
    return hook


def mask_srd(p, opt):
    sal(p, f"s_sub_u32 {s(SRD_MCHK)}, {s(SRD_MASK)}, {L_BIAS}", [SRD_MASK], [SRD_MCHK])
    p.salu(f"s_subb_u32 {s(SRD_MCHK + 1)}, {s(SRD_MASK + 1)}, 0", sr(SRD_MASK + 1) + [SCC], sr(SRD_MCHK + 1) + [SCC])
    sal(p, f"s_add_u32 {s(SRD_MCHK)}, {s(SRD_MCHK)}, {s(S_MBASE)}", [SRD_MCHK, S_MBASE], [SRD_MCHK])
    p.salu(f"s_addc_u32 {s(SRD_MCHK + 1)}, {s(SRD_MCHK + 1)}, 0", sr(SRD_MCHK + 1) + [SCC], sr(SRD_MCHK + 1) + [SCC])
    sal(p, f"s_mov_b32 {s(SRD_MCHK + 2)}, {L_BIAS + 4804}", [], [SRD_MCHK + 2], False)
    sal(p, f"s_mov_b32 {s(SRD_MCHK + 3)}, 0x00020000", [], [SRD_MCHK + 3], False)
    sal(p, f"s_mov_b64 {s(S_MACC, 2)}, 0", [], [S_MACC, S_MACC + 1], False)
    sal(p, f"s_mov_b32 {s(S_C7F)}, 0x7fff7fff", [], [S_C7F], False)
    sal(p, f"s_movk_i32 {s(S_C4096)}, 4096", [], [S_C4096], False)


def dispatch(p, opt):
    p.raw("s_waitcnt lgkmcnt(0)", kind="salu")
    mask_srd(p, opt)
    sal(p, f"s_mov_b32 {s(S_JO)}, 1000000", [], [S_JO], False)
    p.salu(f"s_or_b32 {s(S_T0)}, {s(S_KILL)}, {s(S_UNSAFE)}", sr(S_KILL) + sr(S_UNSAFE), sr(S_T0) + [SCC])
    p.raw("s_cbranch_scc1 L_slow", rd=[SCC])


def slow_regs(h):
    if h < 3:
        return dict(pairs=[LR + 12 + 8, LR + 12 + 10, OR_ + 10], m6=OR_ + 9, ad=OR_ + 21, tmp=OR_ + 22, mx=OR_ + 23, m2=OR_ + 33)
    return dict(pairs=[XR + 24, XR + 26, XR + 28], m6=XR + 30, ad=XR + 31, tmp=XR + 35, mx=LR + 12 + 8, m2=LR + 12 + 9)


def slow_softmax(p, h, qt, regs):
    R = slow_regs(h)
    ad, tmp, mx, m2 = R["ad"], R["tmp"], R["mx"], R["m2"]
    p.op("v_bfe_u32", tmp, V_BIAS, "4", "4")
    if qt:
        p.op("v_add_u32", tmp, str(16 * qt), tmp)
    p.op("v_mul_u32_u24", tmp, "0x62", tmp)
    p.op("v_add_u32", tmp, f"s{S_MBASE}", tmp)
    p.vld("buffer_load_ushort", R["m6"], 1, tmp, SRD_MASK, 96)
    p.op("v_bfe_u32", ad, V_BIAS, "8", "2")
    p.op("v_lshl_add_u32", ad, ad, "3", tmp)
    for kt in range(3):
        p.vld("buffer_load_dwordx2", R["pairs"][kt], 2, ad, SRD_MASK, 32 * kt)
    for kt in range(3):
        for e in range(4):
            r, src = regs[4 * kt + e], R["pairs"][kt] + (e >> 1)
            if e & 1:
                p.op("v_and_b32", tmp, "0xffff0000", src)
            else:
                p.op("v_lshlrev_b32", tmp, "16", src)
            p.op("v_fmamk_f32", r, tmp, f32(LOG2E), r)
    p.op("v_lshlrev_b32", tmp, "16", R["m6"])
    p.op("v_fmamk_f32", regs[12], tmp, f32(LOG2E), regs[12])
    p.op("v_max3_f32", mx, regs[0], regs[1], regs[2])
    for i in range(3, 13, 2):
        p.op("v_max3_f32", mx, mx, regs[i], regs[i + 1])
    xrow_max(p, mx, m2)
    for r in regs:
        p.op("v_sub_f32", r, r, mx)


def xrow_max(p, mx, m2):
    p.op("v_mov_b32", m2, mx)
    p.swap32(mx, m2)
    p.op("v_max_f32", mx, mx, m2)
    p.op("v_mov_b32", m2, mx)
    p.add(I(f"v_permlane16_swap_b32 {v(mx)}, {v(m2)}", "perm", [mx, m2], [mx, m2]))
    p.op("v_max_f32", mx, mx, m2)


def slow_thin(p, h, r):
    R = slow_regs(h)
    tmp, mx, m2 = R["tmp"], R["mx"], R["m2"]
    p.op("v_bfe_u32", tmp, V_BIAS, "4", "6")
    p.op("v_min_u32", tmp, "48", tmp)
    p.op("v_lshl_add_u32", tmp, tmp, "1", f"s{S_MBASE}")
    p.add(I(f"buffer_load_ushort {v(R['m6'])}, {v(tmp)}, {s(SRD_MASK, 4)}, {s(S_C4096)} offen offset:{48 * 98 - 4096}", "vld",
            [tmp] + sr(SRD_MASK, 4) + sr(S_C4096), [R["m6"]]))
    p.op("v_lshlrev_b32", tmp, "16", R["m6"])
    p.op("v_fmamk_f32", r, tmp, f32(LOG2E), r)
    p.op("v_mov_b32", mx, r)
    for k in (8, 4, 2, 1):
        p.add(I(f"v_max_f32_dpp {v(mx)}, {v(mx)}, {v(mx)} row_ror:{k} row_mask:0xf bank_mask:0xf", "dpp", [mx], [mx]))
    xrow_max(p, mx, m2)
    p.op("v_sub_f32", r, r, mx)


def jo(p, opt):
    p.label("L_jo")
    p.raw("s_setprio 0", kind="salu")
    poll(p, False, 2, f"s{S_NWIN}", 8, 3020, sleep=True).tag = "fence"
    a, b, off = 8, 9, 10
    OB, Y, wq, SL, NP, D = 12, 24, 48, 120, 124, 128
    p.op("v_bfe_u32", a, V_BIAS, "4", "4")
    p.op("v_bfe_u32", b, V_BIAS, "8", "2")
    p.op("v_bfe_u32", off, V_BIAS, "4", "6")
    p.op("v_lshlrev_b32", off, "2", off)
    p.op("v_add_u32", off, str(L_OFF48), off)
    p.dsr("ds_read_b32", off, 1, off, 0)
    p.op("v_min_u32", a, "11", a)
    p.op("v_mul_u32_u24", a, str(XST), a)
    p.op("v_lshl_add_u32", a, b, "4", a)
    p.op("v_add_u32", a, str(L_X + X_O48), a)
    RW = 132
    for h in range(4):
        OF, OS = RW + 8 * h, RW + 8 * h + 4
        p.dsr("ds_read_b128", OF, 4, a, 128 * h)
        p.dsr("ds_read_b128", OS, 4, a, 128 * h + 64)
        lreg, r0 = (OS + 2, OS) if h % 2 == 0 else (OS, OS + 2)
        p.op("v_rcp_f32", lreg, lreg, kind="trans")
        for x in (OF, OF + 1, OF + 2, OF + 3, r0, r0 + 1):
            p.op("v_mul_f32", x, x, lreg)
        p.op("v_cvt_pk_bf16_f32", OB + 3 * h, OF, OF + 1)
        p.op("v_cvt_pk_bf16_f32", OB + 3 * h + 1, OF + 2, OF + 3)
        p.op("v_cvt_pk_bf16_f32", OB + 3 * h + 2, r0, r0 + 1)
    p.dsr("ds_read_b128", SL, 4, V_BIAS, L_SEL - L_BIAS)
    for T in range(6):
        for ks in range(3):
            w = wq + 4 * (3 * T + ks)
            o = 32 * ks * WOS + 32 * T
            p.dsr("ds_read_b64_tr_b16", w, 2, V_WQ, o)
            p.dsr("ds_read_b64_tr_b16", w + 2, 2, V_WQ, o + 16 * WOS)
            p.mfma16(Y + 4 * T, w, OB + 4 * ks, None if ks == 0 else Y + 4 * T)
    ss = 11
    for i in range(24):
        if i == 0:
            p.op("v_fma_f32", ss, Y, Y, f"s{S_EPSLN}")
        else:
            p.op("v_fmac_f32", ss, Y + i, Y + i, rmw=True)
    p.op("v_cvt_pk_bf16_f32", NP, ss, ss)
    for r in (NP + 1, NP + 2, NP + 3):
        p.op("v_mov_b32", r, "0")
    p.mfma16(D, SL, NP, None)
    p.op("v_rsq_f32", D, D, kind="trans")
    p.op("v_mul_f32", D, f32(math.sqrt(96.0)), D)
    for i in range(24):
        p.op("v_mul_f32", Y + i, Y + i, D)
    for uu_ in range(3):
        base = Y + 8 * uu_
        for i in range(4):
            p.op("v_cvt_pk_bf16_f32", base + i, base + 2 * i, base + 2 * i + 1)
        p.vst("buffer_store_dwordx4", base, 4, off, SRD_OUT, 64 * uu_, opt.sflag)
    p.raw("s_endpgm")


import re as _re


def isize(i):
    t = i.text
    if i.kind == "label":
        return 0
    op = t.split()[0]
    lit = bool(_re.search(r"(?<![\w\[:])(0x[0-9a-f]+|\d{3,}|6[5-9]|[7-9]\d|wtab\S*)(?![\w\]:])", t.split(None, 1)[1] if " " in t else ""))
    if op.startswith("s_"):
        if op.startswith(("s_load", "s_mem")):
            return 8
        if op in ("s_waitcnt", "s_nop", "s_barrier", "s_branch", "s_setprio", "s_sleep", "s_endpgm", "s_movk_i32", "s_addk_i32") or op.startswith("s_cbranch"):
            return 4
        return 8 if lit else 4
    if op in ("v_mov_b32", "v_add_u32", "v_sub_u32", "v_subrev_u32", "v_and_b32", "v_or_b32", "v_lshlrev_b32", "v_lshrrev_b32", "v_mul_f32",
              "v_add_f32", "v_sub_f32", "v_fmac_f32", "v_exp_f32", "v_rcp_f32", "v_rsq_f32", "v_min_u32", "v_max_f32", "v_min_f32",
              "v_mul_u32_u24", "v_bfrev_b32", "v_readfirstlane_b32", "v_swap_b32", "v_permlane32_swap_b32", "v_permlane16_swap_b32"):
        return 8 if lit else 4
    return 8


def add_touch(seq, name, nseg, ret, limit=None, step=120):
    pos, acc, tot = [], step, 0
    for k, i in enumerate(seq):
        if limit is not None and tot >= limit:
            break
        sz = isize(i)
        if acc + sz > step and i.kind != "label" and i.tag != "nt":
            pos.append(k)
            acc = 4
        acc += sz
        tot += sz
    per = -(-len(pos) // nseg)
    out, ent = [], []
    ps = {k: j for j, k in enumerate(pos)}
    for k, i in enumerate(seq):
        if k in ps:
            j = ps[k]
            if j % per == 0:
                ent.append(f"L_{name}{j}")
            last = (j + 1) % per == 0 or j + 1 == len(pos)
            out.append(I(f"L_{name}{j}:", "label", states=0))
            out.append(I(f"s_cbranch_execz {ret if last else f'L_{name}{j + 1}'}", "salu"))
        out.append(i)
    return out, ent


def touch_dispatch(ent, ret, tag):
    out = [I("s_mov_b64 exec, 0", "salu")]
    def tree(lo, hi):
        if hi - lo == 1:
            out.append(I(f"s_branch {ent[lo] if lo < len(ent) else ret}", "salu"))
            return
        mid = (lo + hi) // 2
        lbl = f"L_{tag}d{lo}_{hi}"
        out.append(I(f"s_cmp_ge_u32 {s(W)}, {mid}", "salu"))
        out.append(I(f"s_cbranch_scc1 {lbl}", "salu"))
        tree(lo, mid)
        out.append(I(lbl + ":", "label", states=0))
        tree(mid, hi)
    return out, tree


HEADER = open("standalone__window_attn_swin_v2__vision.s.ref").read().split("; Override")[0]


DOC = """;
; One wave = one 7x7 window, 12 waves per workgroup, everything fused (qkv, cosine attention, CPB bias,
; MFMA result feeds the next MFMA without data movement; tokens 0..47 are 3 tiles, token 48 of the 12
; windows shares one tile (LDS hand-off, LDS counters).  Weights / bias tiles live in LDS.
; LayerNorm mean: Wo is centred over its output columns once per workgroup (exact reformulation).
; fixed centre; the short path is taken only if a run-time check finds tau <= 24 for all heads AND the
; window's attn_mask entries (read from the input) all zero.  Otherwise (L_slow) the mask is added and
"""


def generate(opt, sched=None):
    opt.hook = make_hooks(opt)
    opt.slow_softmax = slow_softmax
    opt.slow_thin = slow_thin
    segs = {}
    for nm, fn in (("com", pro_common), ("po", path_o), ("py", path_y), ("jo", jo)):
        p = Prog(); fn(p, opt); segs[nm] = p.ins
    p = Prog()
    if opt.debug and opt.debug != 3:
        p.wait(vm=0)
        stamp(p, opt, 5)
    dispatch(p, opt); segs["dis"] = p.ins
    B.SLOWPQ = False
    p = Prog(); body(p, False, opt); segs["fast"] = p.ins
    B.SLOWPQ = True
    p = Prog(); body(p, True, opt); segs["slow"] = p.ins
    p = Prog()
    p.label("L_redo")
    p.wait(vm=0, lgkm=0)
    p.raw("s_nop 15", kind="nop", states=16)
    x_loads(p, opt)
    segs["redo"] = p.ins
    if sched:
        for k in ("fast", "slow", "jo"):
            segs[k] = sched(segs[k])
    st = WaitState()
    com = insert_nops(insert_waits(flatten(segs["com"]), st))
    sty = st.copy()
    po = insert_nops(insert_waits(flatten(segs["po"]), st), com)
    py = insert_nops(insert_waits(flatten(segs["py"]), sty), com)
    tail = lambda w: [(x.text) for x in w.vm]
    assert tail(st) == tail(sty) and len(st.vm) == 9, (tail(st), tail(sty))
    assert not st.lg and not sty.lg
    clean = [I("s_nop 15", "nop", states=16)]
    mid = insert_nops(insert_waits(flatten(segs["dis"]), st), clean)
    head = com + py + po + mid
    fast = insert_nops(insert_waits(flatten(segs["fast"]), st.copy()), head)
    str_ = WaitState(); str_.vm = [I("x", "vst")]; str_.lg = [I("x", "dsw")]
    redo = insert_nops(insert_waits(flatten(segs["redo"]), str_), clean)
    slow = insert_nops(insert_waits(flatten(segs["slow"]), st.copy() if opt.debug in (None, 3) else str_), clean)
    stj = WaitState()
    jos = [I("s_nop 7", "nop", states=8)] + insert_nops(insert_waits(flatten(segs["jo"]), stj), clean)
    jos = [jos[1], jos[0]] + jos[2:]
    if opt.touchb:
        k0 = 0
        acc = 0
        while acc < opt.tlim:
            acc += isize(fast[k0]); k0 += 1
        tail_, ent = add_touch(fast[k0:], "tb", 4, "L_tbret", limit=opt.tlimb)
        fast = fast[:k0] + tail_
        d, tree = touch_dispatch(ent, "L_tbret", "tb")
        tree(0, 4)
        d += [I("L_tbret:", "label", states=0), I("s_mov_b64 exec, -1", "salu")]
        for x in d[1:]:
            x.tag = "nt"
        k = [j for j, i in enumerate(head) if i.text == "<touchB>"][0]
        head = head[:k] + d + head[k + 1:]
    if opt.touch:
        k = [j for j, i in enumerate(head) if i.text == "<touchA>"][0]
        hb = sum(isize(i) for i in head[k + 1:])
        rest, ent = add_touch(head[k + 1:] + [I("<cut>", "label", states=0)] + fast, "ta", 12, "L_taret", limit=hb + opt.tlim)
        c = [j for j, i in enumerate(rest) if i.text == "<cut>"][0]
        fast = rest[c + 1:]
        d, tree = touch_dispatch(ent, "L_taret", "ta")
        tree(0, 12)
        d += [I("L_taret:", "label", states=0), I("s_mov_b64 exec, -1", "salu")]
        head = head[:k] + d + rest[:c]
    name = "standalone__window_attn_swin_v2__vision_kernel"
    txt = HEADER
    txt += f"; @launch grid=({NWG},1,1) block=({64 * WPW},1,1) lds={L_END}\n"
    txt += DOC
    txt += f""".amdgcn_target "amdgcn-amd-amdhsa--gfx950"
.text
.globl {name}
.p2align 8
.type {name},@function
{name}:
"""
    txt += render(head) + "\n" + render(fast) + "\n" + render(jos) + "\n" + render(redo) + "\nL_slow:\n" + render(slow) + "\nL_end:\n    s_endpgm\n"
    txt += f""".section .rodata,"a"
.p2align 6
.amdhsa_kernel {name}
  .amdhsa_next_free_vgpr {NVGPR}
  .amdhsa_next_free_sgpr 102
  .amdhsa_accum_offset {NVGPR}
  .amdhsa_group_segment_fixed_size 0
  .amdhsa_kernarg_size 96
  .amdhsa_user_sgpr_count 2
  .amdhsa_user_sgpr_kernarg_segment_ptr 1
  .amdhsa_system_sgpr_workgroup_id_x 1
.end_amdhsa_kernel
.p2align 6
wtab:
"""
    tb_ = w_table() + wo_table() + lane_table()
    for i in range(0, len(tb_), 16):
        txt += "    .short " + ", ".join(str(x) for x in tb_[i:i + 16]) + "\n"
    stats = {}
    for nm, seq in (("head", head), ("fast", fast), ("slow", slow), ("jo", jos)):
        c = {}
        for i in seq:
            c[i.kind] = c.get(i.kind, 0) + 1
        c["nopstates"] = sum(i.states for i in seq if i.kind == "nop")
        stats[nm] = c
    return txt, stats


if __name__ == "__main__":
    import sched
    opt = Opt()
    opt.jowave = 0
    for a in sys.argv[1:]:
        if a == "--debug": opt.debug = True
        if a == "--debug3": opt.debug = 3
        if a == "--nomask": opt.mask_check = False
        if a == "--vz": opt.ldszero = False
        if a == "--noxint": opt.xint = False
        if a == "--rot": opt.rot = True
        if a.startswith("--wflag="): WFLAG[0] = " " + a[8:].replace(",", " ")
        if a == "--nob3": opt.b3 = False
        if a == "--mergeo": opt.mergeo = True
        if a == "--earlya": opt.earlya = True
        if a.startswith("--pf="): opt.pf = int(a[5:])
        if a.startswith("--pk="): opt.pk = a[5:]
        if a == "--notouch": opt.touch = False
        if a == "--touchb": opt.touchb = True
        if a.startswith("--tlim="): opt.tlim = int(a[7:])
        if a.startswith("--tlimb="): opt.tlimb = int(a[8:])
        if a.startswith("--ldslat="): sched.Params.lds_lat = int(a[9:])
        if a.startswith("--mlat="): sched.Params.mfma_lat16 = int(a[7:])
        if a.startswith("--maxlds="): sched.Params.max_lds_out = int(a[9:])
        if a.startswith("--b2at="): opt.b2at = int(a[7:])
        if a.startswith("--mk1="): opt.mk1 = a[6:]
        if a.startswith("--mk0="): opt.mk0 = a[6:]
        if a.startswith("--prio="):
            opt.prio = {kv.split(":")[0]: int(kv.split(":")[1]) for kv in a[7:].split(",")}
        for fl in ("xflag", "mflag", "sflag"):
            if a.startswith(f"--{fl}="):
                setattr(opt, fl, " " + a.split("=")[1].replace(",", " "))
    args = [a for a in sys.argv[1:] if not a.startswith("--")]
    out = args[0] if args else "g2.s"
    sc = None if "--nosched" in sys.argv else (lambda x: sched.schedule(x, verbose=True))
    txt, stats = generate(opt, sc)
    open(out, "w").write(txt)
    for k, c in stats.items():
        print(k, c)
```

```python
import sys, struct, math
sys.path.insert(0, "gen")
from asmlib import *

def f32(x):
    return "0x%08x" % struct.unpack("<I", struct.pack("<f", x))[0]

LOG2E = 1.4426950408889634
WS = 608
WOS = 224
L_WI = 0
L_WO = 96 * WS
L_BIAS = L_WO + 96 * WOS
L_B48 = L_BIAS + 49152
L_SEL = L_B48 + 1024
L_ONES = L_SEL + 2048
L_TAB = L_ONES + 1024
L_PAR = L_TAB + 3072
L_CNT = L_PAR + 32
L_OFF48 = L_PAR + 64
L_X = L_PAR + 384
XST = 1536
X_KQ, X_V48, X_P48, X_Z, X_O48 = 0, 512, 768, 896, 1024
L_X48 = L_X + 12 * XST
L_END = L_X48 + 3072

SRD_X, SRD_OUT, SRD_MASK = 4, 8, 20
S_W = 3
S_TAU, S_EPSQ, S_EPSLN = 32, 36, 37
S_MA, S_MB = 38, 40
S_UNSAFE, S_WIN, S_MBASE, S_KILL = 42, 43, 44, 45
SRD_MCHK, S_MACC, S_MTMP, S_C7F, S_C4096, S_B2 = 28, 52, 54, 56, 57, 58
S_T0, S_T1, S_T2, S_T3 = 98, 99, 100, 101

OFF = [0, 1, 2]
V_WQ, V_BIAS, V_TH, V_TV, V_PW = 3, 4, 5, 6, 7
XR, OR_, VF, VSA, VSB, LR, K3, SA, OA = 8, 44, 80, 88, 96, 104, 140, 144, 160
NEG_BIG = -30000.0


class WBuf:
    def __init__(self, quads):
        self.q = list(quads); self.i = 0
    def next(self):
        r = self.q[self.i % len(self.q)]; self.i += 1
        return r


def dep(i, *ids):
    i.rd = i.rd | set(ids)
    return i


def ld_w(p, wb, col, ks):
    r = wb.next()
    off = L_WI + 32 * ks * WS + col * 2
    p.dsr("ds_read_b64_tr_b16", r, 2, V_WQ, off)
    p.dsr("ds_read_b64_tr_b16", r + 2, 2, V_WQ, off + 16 * WS)
    return r


def zero(p, r, opt):
    if opt.ldszero:
        p.dsr("ds_read_b32", r, 1, V_TH, X_Z)
    else:
        p.op("v_mov_b32", r, "0")


def scale(p, regs, sc, opt, lvl):
    i = 0
    while i < len(regs):
        r = regs[i]
        if lvl in opt.pk and i + 1 < len(regs) and regs[i + 1] == r + 1 and r % 2 == 0:
            e = sc & ~1
            mods = " op_sel_hi:[1,0]" if sc % 2 == 0 else " op_sel:[0,1] op_sel_hi:[1,1]"
            p.add(I(f"v_pk_mul_f32 {v(r, 2)}, {v(r, 2)}, {v(e, 2)}{mods}", "pk", [r, r + 1, sc], [r, r + 1]))
            i += 2
        else:
            p.op("v_mul_f32", r, r, sc)
            i += 1


def sumsq(p, dst, regs, eps, opt, lvl, tmp=None):
    if lvl in opt.pk and tmp is not None:
        for i in range(0, len(regs), 2):
            r = regs[i]
            if i == 0:
                p.add(I(f"v_pk_mul_f32 {v(tmp, 2)}, {v(r, 2)}, {v(r, 2)}", "pk", [r, r + 1], [tmp, tmp + 1]))
            else:
                p.add(I(f"v_pk_fma_f32 {v(tmp, 2)}, {v(r, 2)}, {v(r, 2)}, {v(tmp, 2)}", "pk", [r, r + 1, tmp, tmp + 1], [tmp, tmp + 1]))
        p.op("v_add_f32", dst, tmp, tmp + 1)
        p.op("v_add_f32", dst, f"s{eps}", dst)
        return
    for i, x in enumerate(regs):
        if i == 0:
            p.op("v_fma_f32", dst, x, x, f"s{eps}")
        else:
            p.op("v_fmac_f32", dst, x, x, rmw=True)


def X(tt, ks):
    return XR + 12 * tt + 4 * ks


def qk(p, h, opt):
    wb = WBuf([SA, SA + 4, SA + 8, SA + 12])
    for T in range(3):
        for ks in range(3):
            w = ld_w(p, wb, 48 * h + 16 * T, ks)
            for tt in range(3):
                d = LR + 12 * tt + 4 * T
                p.mfma16(d, w, X(tt, ks), None if ks == 0 else d)
    ss = [OA + i for i in range(6)]
    for tt in range(3):
        for e in range(2):
            for i in range(6):
                x = LR + 12 * tt + 6 * e + i
                if i == 0:
                    p.op("v_fma_f32", ss[2 * tt + e], x, x, f"s{S_EPSQ}")
                else:
                    p.op("v_fmac_f32", ss[2 * tt + e], x, x, rmw=True)
    NP, D1, D2, SL = SA, SA + 4, SA + 8, SA + 12
    for i in range(3):
        p.op("v_cvt_pk_bf16_f32", NP + i, ss[2 * i], ss[2 * i + 1])
    zero(p, NP + 3, opt)
    p.dsr("ds_read_b128", SL, 4, V_BIAS, L_SEL - L_BIAS)
    p.dsr("ds_read_b128", K3, 4, V_BIAS, L_SEL + 1024 - L_BIAS)
    p.mfma16(D1, SL, NP, None)
    p.mfma16(D2, K3, NP, None)
    sc = [D1, D1 + 1, D1 + 2, D1 + 3, D2, D2 + 1]
    for i in range(6):
        p.op("v_rsq_f32", sc[i], sc[i], kind="trans")
        if i % 2 == 0:
            p.op("v_mul_f32", sc[i], f"s{S_TAU + h}", sc[i])
    for tt in range(3):
        b = LR + 12 * tt
        scale(p, [b + i for i in range(6)], sc[2 * tt], opt, "q")
        scale(p, [b + 6 + i for i in range(6)], sc[2 * tt + 1], opt, "q")
        for i in range(3):
            p.op("v_cvt_pk_bf16_f32", b + i, b + 2 * i, b + 2 * i + 1)
        zero(p, b + 3, opt)
        for i in range(3):
            p.op("v_cvt_pk_bf16_f32", b + 4 + i, b + 6 + 2 * i, b + 7 + 2 * i)
        zero(p, b + 7, opt)
        if tt < (1 if SLOWPQ else 2):
            zero(p, b + 11, opt)
    LATE.append(lambda: dep(p.dsr("ds_read_b128", K3, 4, V_TH, X_KQ + 128 * h), 3003))
    if not (opt.latepoll and h == 0):
        flush_late()


LATE = []


def flush_late():
    for f in LATE:
        f()
    LATE.clear()


def vproj(p, col, dsts, tv, opt):
    wb = WBuf([OA, OA + 4, SA + 12])
    for ks in range(3):
        w = ld_w(p, wb, col, ks)
        for tt in range(3):
            d = SA + 4 * tt
            p.mfma16(d, X(tt, ks), w, None if ks == 0 else d)
    for dst, m, t in dsts:
        if m is None:
            for i in range(6):
                p.op("v_cvt_pk_bf16_f32", dst + i, SA + 2 * i, SA + 2 * i + 1)
        else:
            def g():
                p.salu(f"s_mov_b64 exec, {s(m, 2)}", sr(m, 2), [EXEC])
                for i in range(6):
                    p.op("v_cvt_pk_bf16_f32", dst + i, SA + 2 * i, SA + 2 * i + 1, rmw=True)
                p.salu("s_mov_b64 exec, -1", [], [EXEC])
            p.group(g)
        LATE.append(lambda dst=dst, t=t: dep(p.dsr("ds_read_u16", dst + 6, 1, V_TV, X_V48 + 32 * t), 3003))
        if not (opt.latepoll and t < 3):
            flush_late()


_u = [0]
SLOWPQ = False


def next_pq():
    r = LR + (0 if SLOWPQ else 12 * (_u[0] % 2)) + 8
    _u[0] += 1
    return r


def pv_norm(p, h, P0, PQ, VS, dst, opt):
    OF, OS = OA, OA + 4
    p.mfma16(OF, VF, P0, None)
    p.mfma16(OS, VS, P0, None)
    p.mfma16(OF, VF + 4, PQ, OF)
    p.mfma16(OS, VS + 4, PQ, OS)
    lreg, r0 = (OS + 2, OS) if h % 2 == 0 else (OS, OS + 2)
    p.op("v_rcp_f32", lreg, lreg, kind="trans")
    scale(p, [OF, OF + 1, OF + 2, OF + 3, r0, r0 + 1], lreg, opt, "o")
    p.op("v_cvt_pk_bf16_f32", dst[0], OF, OF + 1)
    p.op("v_cvt_pk_bf16_f32", dst[1], OF + 2, OF + 3)
    p.op("v_cvt_pk_bf16_f32", dst[2], r0, r0 + 1)


def unit(p, h, qt, slow, opt):
    VS = VSA if h % 2 == 0 else VSB
    boff = (h * 3 + qt) * 4096
    for kt in range(3):
        dep(p.dsr("ds_read_b128", SA + 4 * kt, 4, V_BIAS, boff + 1024 * kt), 3003)
    if opt.b3:
        dep(p.dsr("ds_read_b32", SA + 12, 1, V_BIAS, boff + 3072), 3003)
    else:
        dep(p.dsr("ds_read_b128", SA + 12, 4, V_BIAS, boff + 3072), 3003)
    Q = LR + 12 * qt
    for kt in range(4):
        K = LR + 12 * kt + 4 if kt < 3 else K3
        p.mfma16(SA + 4 * kt, K, Q, SA + 4 * kt)
    regs = [SA + i for i in range(13)]
    if slow:
        opt.slow_softmax(p, h, qt, regs)
    for r in regs:
        p.op("v_exp_f32", r, r, kind="trans")
    P0 = LR + 24 + 8
    PQ = next_pq()
    for i in range(4):
        p.op("v_cvt_pk_bf16_f32", P0 + i, SA + 2 * i, SA + 2 * i + 1)
    p.op("v_cvt_pk_bf16_f32", PQ, SA + 8, SA + 9)
    p.op("v_cvt_pk_bf16_f32", PQ + 1, SA + 10, SA + 11)
    p.op("v_cvt_pk_bf16_f32", PQ + 2, SA + 12, "0")
    o = OR_ + 12 * qt + 3 * h
    pv_norm(p, h, P0, PQ, VS, [o, o + 1, o + 2], opt)


def thin(p, h, slow, opt):
    VS = VSA if h % 2 == 0 else VSB
    Q48 = OA
    dep(p.dsr("ds_read_b128", Q48, 4, V_TH, X_KQ + 128 * h + 64), 3003)
    dep(p.dsr("ds_read_b32", OA + 4, 1, V_BIAS, L_B48 - L_BIAS + 4 * h), 3003)
    for kt in range(4):
        K = LR + 12 * kt + 4 if kt < 3 else K3
        p.mfma16(SA + 4 * kt, Q48, K, None)
    for kt in range(1, 4):
        p.add(I(f"v_mov_b32_dpp {v(SA)}, {v(SA + 4 * kt)} quad_perm:[0,1,2,3] row_mask:{1 << kt} bank_mask:0xf", "dpp",
                [SA, SA + 4 * kt], [SA]))
    p.op("v_add_f32", SA, SA, OA + 4)
    if slow:
        opt.slow_thin(p, h, SA)
    p.op("v_exp_f32", SA, SA, kind="trans")
    p.op("v_cvt_pk_bf16_f32", SA, SA, SA)
    w = p.dsw("ds_write_b16", V_PW, SA, 1, 0)
    w.wr = w.wr | {3010}
    w.rd = w.rd | {3011}
    P0 = LR + 24 + 8
    PQ = next_pq()
    for r, off in ((P0, 0), (PQ, 64)):
        x = dep(p.dsr("ds_read_b128", r, 4, V_TH, X_P48 + off), 3010)
        x.wr = x.wr | {3011}
    OF, OS = OA, OA + 4
    p.mfma16(OF, VF, P0, None)
    p.mfma16(OS, VS, P0, None)
    p.mfma16(OF, VF + 4, PQ, OF)
    p.mfma16(OS, VS + 4, PQ, OS)
    for r, off in ((OF, 0), (OS, 64)):
        w = p.dsw("ds_write_b128", V_TH, r, 4, X_O48 + 128 * h + off)
        w.wr = w.wr | {3012}


def V_PWG(p):
    assert L_BIAS % 1024 == 0
    return V_BIAS


def body(p, slow, opt):
    chk = (not slow) and opt.mask_check
    _u[0] = 0
    opt.hook(p, "start", slow)
    for r in (VSA, VSA + 4, VSB, VSB + 4, VF + 4):
        p.dsr("ds_read_b128", r, 4, V_BIAS, L_ONES - L_BIAS)
    for hp in range(2):
        ha, hb = 2 * hp, 2 * hp + 1
        c0 = 192 + 48 * hp
        qk(p, ha, opt)
        if hp == 0 and not opt.latepoll:
            opt.hook(p, "poll0", slow)
        vproj(p, c0, [(VF, None, 4 * hp)], 0, opt)
        vproj(p, c0 + 16, [(VSA, S_MA, 4 * hp + 1), (VSB, S_MB, 4 * hp + 2)], 0, opt)
        if hp == 0 and opt.latepoll:
            opt.hook(p, "poll0", slow)
            flush_late()
        opt.hook(p, f"pre{ha}", slow)
        thin(p, ha, slow, opt)
        opt.hook(p, f"thin{ha}", slow)
        for qt in range(3):
            unit(p, ha, qt, slow, opt)
        opt.hook(p, f"post{ha}", slow)
        qk(p, hb, opt)
        vproj(p, c0 + 32, [(VF, None, 4 * hp + 3)], 0, opt)
        opt.hook(p, f"pre{hb}", slow)
        thin(p, hb, slow, opt)
        if hb == 3:
            opt.hook(p, "o48done", slow)
        for qt in range(3):
            unit(p, hb, qt, slow, opt)
            opt.hook(p, f"u{hb}{qt}", slow)
            if hb == 3 and qt == 0 and not opt.mergeo:
                outproj(p, [0], [XR], WBuf([XR + 24, XR + 28, XR + 32]), slow, opt, first=True)
        opt.hook(p, f"post{hb}", slow)
    if opt.mergeo:
        outproj(p, [0, 1, 2], [XR, LR, VF], WBuf([XR + 24, XR + 28, SA, SA + 4, SA + 8, SA + 12]), slow, opt, first=True)
    else:
        outproj(p, [1, 2], [LR, VF], WBuf([SA, SA + 4, SA + 8, SA + 12]), slow, opt)
    opt.hook(p, "prestore", slow)
    Y = [XR, LR, VF]
    ss = [OA, OA + 1, OA + 2]
    for tt in range(3):
        sumsq(p, ss[tt], [Y[tt] + i for i in range(24)], S_EPSLN, opt, "s", LR + 24 + 2 * tt)
    NP0, D0, SL0 = XR + 24, XR + 28, XR + 32
    p.op("v_cvt_pk_bf16_f32", NP0, ss[0], ss[0])
    for r in (NP0 + 1, NP0 + 2, NP0 + 3):
        zero(p, r, opt)
    p.dsr("ds_read_b128", SL0, 4, V_BIAS, L_SEL - L_BIAS)
    p.mfma16(D0, SL0, NP0, None)
    NP1, D1 = K3, OA + 4
    p.op("v_cvt_pk_bf16_f32", NP1, ss[1], ss[2])
    for r in (NP1 + 1, NP1 + 2):
        zero(p, r, opt)
    p.mfma16(D1, SL0, NP1, None)
    rs = [D0, D1, D1 + 1]
    for tt in range(3):
        p.op("v_rsq_f32", rs[tt], rs[tt], kind="trans")
        p.op("v_mul_f32", rs[tt], f32(math.sqrt(96.0)), rs[tt])
        scale(p, [Y[tt] + i for i in range(24)], rs[tt], opt, "l")
        for u in range(3):
            base = Y[tt] + 8 * u
            for i in range(4):
                p.op("v_cvt_pk_bf16_f32", base + i, base + 2 * i, base + 2 * i + 1)
            st = p.vst("buffer_store_dwordx4", base, 4, OFF[tt], SRD_OUT, 64 * u, opt.sflag)
            st.rd = st.rd | {3002}
    opt.hook(p, "end", slow)


def outproj(p, tiles, Ys, wb, slow, opt, first=False):
    if first:
        opt.hook(p, "poll1", slow)
        a, b = XR + 32, XR + 33
        p.op("v_subrev_u32", a, str(L_BIAS), V_BIAS)
        p.op("v_lshrrev_b32", b, "6", a)
        p.op("v_mul_u32_u24", b, str(WOS), b)
        p.op("v_bfe_u32", a, a, "4", "2")
        p.op("v_lshl_add_u32", b, a, "3", b)
        p.op("v_add_u32", V_WQ, str(L_WO), b)
    for T in range(6):
        for ks in range(3):
            w = wb.next()
            off = 32 * ks * WOS + 32 * T
            dep(p.dsr("ds_read_b64_tr_b16", w, 2, V_WQ, off), 3005)
            dep(p.dsr("ds_read_b64_tr_b16", w + 2, 2, V_WQ, off + 16 * WOS), 3005)
            for tt, Y in zip(tiles, Ys):
                d = Y + 4 * T
                p.mfma16(d, w, OR_ + 12 * tt + 4 * ks, None if ks == 0 else d)


if __name__ == "__main__":
    import sched, sim
    class O:
        mask_check = False; sflag = ""; ldszero = "--vz" not in sys.argv
        b3 = True; mergeo = False; latepoll = False
        pk = "".join(a[5:] for a in sys.argv if a.startswith("--pk="))
        def hook(self, p, name, slow): pass
    for a in sys.argv:
        if a.startswith("--ldslat="): sched.Params.lds_lat = int(a[9:])
    p = Prog(); body(p, False, O())
    seq = sched.schedule(p.ins, verbose=True)
    fin = insert_nops(insert_waits(flatten(seq), WaitState()))
    c = {}
    for i in fin: c[i.kind] = c.get(i.kind, 0) + 1
    print(c, "nopstates", sum(i.states for i in fin if i.kind == "nop"), "LDS end", L_END)
    txt = render(fin)
    open("body2" + O.pk + ".txt", "w").write("\n".join(l for l in txt.split("\n") if "buffer_store" not in l))
    st = sim.parse(txt.split("\n"))
    for starts in ([0], [0, 0, 0], [0, 2500, 4000], [0, 5000, 10000]):
        e, bp, bm = sim.simulate(st, starts, verbose=(len(starts) == 3 and starts[1] == 2500))
        print(starts, "->", e, "port busy", bp, "mfma busy", bm)
```

```python
import sys, math
sys.path.insert(0, "gen")
from asmlib import *
from g2body import *
import g2body as B

NWG, NS, WPW = 252, 27, 12
X_BYTES = 378 * 378 * 96 * 2
MASK_BYTES = 2916 * 49 * 49 * 2
SRD_WQ, SRD_WO, SRD_RIDX, SRD_RC = 12, 16, 24, 28
S_W1, S_W2, S_LS = 48, 64, 96
S_HI48 = 60
S_N12 = 62
S_SWI, S_SWJ, S_IDLE = 46, 47, 59
S_NWIN = 64
S_JO = 65
S_STAMP, NSTAMP = 66, 12
TAU_THR = 24.0
W = S_W
NVGPR = 168

L, G16, N15, L16 = 44, 45, 46, 47
ta, tb, tc, td = 48, 49, 50, 51
WSRC, WA, WD = 52, 53, 60
TBL = 58
TE, GA, GB, GDST, PARA, ONE, rcv = 84, 85, 86, 87, 88, 89, 90
ridx, ridxb, ridxc = 92, 96, 148
u = 100
wov, uu = 116, 128
WOA = 152
X48 = 8
DBG = 160


class Opt:
    mask_check = True
    debug = None
    xflag = mflag = sflag = ""
    ldszero = True
    prio = None
    b2at = 28
    mk1 = "post1"
    mk0 = "post0"
    xint = True
    latepoll = False
    xearly = 0
    rot = False
    b3 = True
    mergeo = False
    earlya = False
    pf = 0
    pk = ""
    touch = True
    touchb = False
    tlim = 1500
    tlimb = 20000


def sal(p, text, rd=(), wr=(), scc=True):
    return p.salu(text, [SB + x for x in rd], [SB + x for x in wr] + ([SCC] if scc else []))


def csel(p, d, a, b, n=1):
    rd = [SCC]
    for x in (a, b):
        if isinstance(x, int):
            rd += sr(x, n)
    f = lambda x: s(x, n) if isinstance(x, int) else x
    return p.salu(f"s_cselect_b{32 * n} {s(d, n)}, {f(a)}, {f(b)}", rd, sr(d, n))


def stamp(p, opt, idx, early=False):
    if not opt.debug or (opt.debug == 3 and idx not in (1, 2, 3, 4, 11)):
        return
    p.add(I(f"s_memtime {s(S_T2, 2)}", "smem", [], sr(S_T2, 2)))
    if early:
        p.op("v_mov_b32", DBG + idx, f"s{S_T2}")
    else:
        p.salu(f"s_mov_b32 {s(S_STAMP + idx)}, {s(S_T2)}", sr(S_T2), sr(S_STAMP + idx)).tag = "fence"


def dbg_early(p, opt):
    if opt.debug:
        for k, r in ((0, 7), (16, 6), (1, 1), (2, 2), (17, 3), (18, 4), (19, 5)):
            p.add(I(f"v_readfirstlane_b32 {s(S_STAMP + k)}, {v(DBG + r)}", "rdlane", [DBG + r], sr(S_STAMP + k)))


def stamp_flush(p, opt):
    if not opt.debug:
        return
    p.wait(vm=0)
    stamp(p, opt, NSTAMP - 1)
    p.smem("s_load_dwordx2", 48, 2, 0, 88)
    sal(p, f"s_mov_b32 s52, s48", [48], [52], False)
    sal(p, f"s_mov_b32 s53, s49", [49], [53], False)
    sal(p, f"s_mov_b32 s54, {1 << 22}", [], [54], False)
    sal(p, f"s_mov_b32 s55, 0x00020000", [], [55], False)
    sal(p, f"s_lshl_b32 {s(S_T0)}, {s(S_WIN)}, 6", [S_WIN], [S_T0])
    sal(p, f"s_mov_b32 {s(S_STAMP + 7)}, {s(S_STAMP + 17)}", [S_STAMP + 17], [S_STAMP + 7], False)
    sal(p, f"s_mov_b32 {s(S_STAMP + 10)}, {s(S_STAMP + 18)}", [S_STAMP + 18], [S_STAMP + 10], False)
    sal(p, f"s_sub_u32 {s(S_STAMP + 12)}, {s(S_STAMP + 19)}, {s(S_STAMP)}", [S_STAMP + 19, S_STAMP], [S_STAMP + 12])
    sal(p, f"s_lshl_b32 {s(S_STAMP + 13)}, s2, 4", [2], [S_STAMP + 13])
    sal(p, f"s_add_u32 {s(S_STAMP + 13)}, {s(S_STAMP + 13)}, {s(W)}", [S_STAMP + 13, W], [S_STAMP + 13])
    p.add(I(f"s_memrealtime {s(S_STAMP + 14, 2)}", "smem", [], sr(S_STAMP + 14, 2)))
    p.op("v_mov_b32", 60, f"s{S_T0}")
    for i in range(15):
        p.op("v_mov_b32", 64 + i, f"s{S_STAMP + i}")
    p.op("v_mov_b32", 64 + 15, f"s{S_STAMP + 16}")
    p.salu("s_mov_b64 exec, 1", [], [EXEC])
    for i in range(4):
        p.vst("buffer_store_dwordx4", 64 + 4 * i, 4, 60, 52, 16 * i)
    p.salu("s_mov_b64 exec, -1", [], [EXEC])


def w_table():
    out = []
    for wp in range(9):
        for lane in range(64):
            c = 64 * wp + lane
            k0, cc = divmod(c, 36)
            rho = 16 * ((k0 >> 2) & 1) + 4 * (k0 >> 3) + (k0 & 3)
            for d in range(4):
                col = 8 * cc + 2 * d
                sec, r = divmod(col, 96)
                h, rem = divmod(r, 24)
                g, i = divmod(rem, 6)
                if sec < 2:
                    i2 = i + 6 * sec
                    ic = 48 * h + 16 * (i2 >> 2) + 4 * g + (i2 & 3)
                else:
                    hp, b = h >> 1, h & 1
                    ic = 192 + 48 * hp + (32 * b + 4 * g + i if i < 4 else 16 + 4 * g + 2 * b + (i - 4))
                out.append(rho * WS + 2 * ic)
    return out


def lane_table():
    out = []
    for lane in range(64):
        n, g_ = lane & 15, lane >> 4
        vals = []
        for tt in range(3):
            t = 16 * tt + n
            vals.append(((t // 7) * 378 + t % 7) * 192 + 16 * g_)
        vals.append((lane >> 2) * WS + (lane & 3) * 8)
        vals.append(X_P48 + (g_ >> 1) * 64 + (n >> 2) * 16 + (g_ & 1) * 8 + (n & 3) * 2)
        vals.append(n * 196 + 16 * g_)
        vals += [0, 0]
        for x in vals:
            out += [x & 0xffff, x >> 16]
    return out


T_LANE = 9 * 512 + 6 * 512
LC = 140


def wo_table():
    out = []
    for wp in range(6):
        for lane in range(64):
            f, l4 = 16 * wp + (lane >> 2), lane & 3
            h, rem = divmod(f, 24)
            g, j = divmod(rem, 6)
            i = 6 * h + j
            rho = 32 * (i >> 3) + 16 * ((i >> 2) & 1) + 4 * g + (i & 3)
            for jj in range(3):
                z = 3 * l4 + jj
                out.append(rho * WOS + 64 * (z >> 2) + 8 * (z & 3))
            out.append(0)
    return out


_wm = [0]


def window_map(p, opt, temps=(66, 67, 68, 69, 70)):
    _wm[0] += 1
    k = _wm[0]
    sA, sB, sC, sD, sf = temps
    swi, swj = S_SWI, S_SWJ
    sal(p, f"s_cmp_lt_u32 s2, {NS}", [2], [])
    p.raw(f"s_cbranch_scc1 L_wmS{k}", rd=[SCC])
    p.cond_begin()
    sal(p, f"s_mul_i32 {s(sf)}, s2, 12", [2], [sf], False)
    sal(p, f"s_add_u32 {s(sf)}, {s(sf)}, {s(W)}", [sf, W], [sf])
    sal(p, f"s_sub_u32 {s(sf)}, {s(sf)}, {12 * NS}", [sf], [sf])
    sal(p, f"s_mul_i32 {s(swi)}, {s(sf)}, 19785", [sf], [swi], False)
    sal(p, f"s_lshr_b32 {s(swi)}, {s(swi)}, 20", [swi], [swi])
    sal(p, f"s_add_u32 {s(S_WIN)}, {s(sf)}, {s(swi)}", [sf, swi], [S_WIN])
    sal(p, f"s_mul_i32 {s(sA)}, {s(swi)}, {(7 * 378 - 7 * 53) * 192}", [swi], [sA], False)
    sal(p, f"s_mul_i32 {s(sB)}, {s(sf)}, {7 * 192}", [sf], [sB], False)
    sal(p, f"s_add_u32 {s(sA)}, {s(sA)}, {s(sB)}", [sA, sB], [sA])
    sal(p, f"s_add_u32 {s(sA)}, {s(sA)}, {(3 * 378 + 3) * 192}", [sA], [sA])
    sal(p, f"s_mov_b32 {s(S_KILL)}, 0", [], [S_KILL], False)
    sal(p, f"s_mov_b32 {s(S_IDLE)}, 0", [], [S_IDLE], False)
    for tt in range(3):
        p.op("v_add_u32", OFF[tt], f"s{sA}", LC + tt)
    p.raw(f"s_branch L_wmE{k}")
    p.cond_end()
    p.label(f"L_wmS{k}")
    p.cond_begin()
    window_map_s(p, opt, temps)
    window_map_v(p, opt)
    p.cond_end()
    p.label(f"L_wmE{k}")
    sal(p, f"s_mul_i32 {s(S_MBASE)}, {s(S_WIN)}, 4802", [S_WIN], [S_MBASE], False)


def window_map_s(p, opt, temps=(66, 67, 68, 69, 70)):
    sA, sB, sC, sD, sf = temps
    swi, swj = S_SWI, S_SWJ
    sal(p, f"s_mul_i32 {s(sA)}, s2, 12", [2], [sA], False)
    sal(p, f"s_add_u32 {s(sA)}, {s(sA)}, {s(W)}", [sA, W], [sA])
    sal(p, f"s_sub_u32 {s(sA)}, {s(sA)}, {12 * NS}", [sA], [sA])
    sal(p, f"s_lshl_b32 {s(sB)}, s2, 2", [2], [sB])
    sal(p, f"s_add_u32 {s(sB)}, {s(sB)}, {s(W)}", [sB, W], [sB])
    sal(p, f"s_add_u32 {s(sC)}, {s(sB)}, {12 * (NWG - NS) - 4}", [sB], [sC])
    sal(p, f"s_cmp_lt_u32 {s(W)}, 4", [W], [])
    csel(p, sC, "2808", sC)
    csel(p, sD, sB, "999")
    sal(p, f"s_cmp_ge_u32 {s(W)}, 8", [W], [])
    csel(p, S_IDLE, "0x80000000", "0")
    csel(p, sC, "0", sC)
    sal(p, f"s_cmp_lt_u32 s2, {NS}", [2], [])
    csel(p, sf, sC, sA)
    csel(p, sD, sD, "999")
    csel(p, S_IDLE, S_IDLE, "0")
    sal(p, f"s_mul_i32 {s(swi)}, {s(sf)}, 19785", [sf], [swi], False)
    sal(p, f"s_lshr_b32 {s(swi)}, {s(swi)}, 20", [swi], [swi])
    sal(p, f"s_mul_i32 {s(swj)}, {s(swi)}, 53", [swi], [swj], False)
    sal(p, f"s_sub_u32 {s(swj)}, {s(sf)}, {s(swj)}", [sf, swj], [swj])
    sal(p, f"s_sub_u32 {s(sA)}, {s(sD)}, 54", [sD], [sA])
    sal(p, f"s_cmp_lt_u32 {s(sD)}, 54", [sD], [])
    csel(p, sA, "53", sA)
    csel(p, sB, sD, "53")
    sal(p, f"s_cmp_lt_u32 {s(sD)}, 107", [sD], [])
    csel(p, swi, sA, swi)
    csel(p, swj, sB, swj)
    csel(p, S_KILL, "1", "0")
    sal(p, f"s_mul_i32 {s(S_WIN)}, {s(swi)}, 54", [swi], [S_WIN], False)
    sal(p, f"s_add_u32 {s(S_WIN)}, {s(S_WIN)}, {s(swj)}", [S_WIN, swj], [S_WIN])
    sal(p, f"s_mul_i32 {s(S_MBASE)}, {s(S_WIN)}, 4802", [S_WIN], [S_MBASE], False)
    sal(p, f"s_mul_i32 {s(swi)}, {s(swi)}, 7", [swi], [swi], False)
    sal(p, f"s_add_u32 {s(swi)}, {s(swi)}, 3", [swi], [swi])
    sal(p, f"s_mul_i32 {s(swj)}, {s(swj)}, 7", [swj], [swj], False)
    sal(p, f"s_add_u32 {s(swj)}, {s(swj)}, 3", [swj], [swj])


O48R = 91


def thin_offsets(p, opt):
    sF, sN, sS, s4b = 34, 35, 46, 47
    sal(p, f"s_lshl_b32 {s(s4b)}, s2, 2", [2], [s4b])
    sal(p, f"s_mul_i32 {s(sF)}, s2, 12", [2], [sF], False)
    sal(p, f"s_sub_u32 {s(sF)}, {s(sF)}, {12 * NS}", [sF], [sF])
    sal(p, f"s_add_u32 {s(sN)}, {s(s4b)}, {12 * (NWG - NS) - 4}", [s4b], [sN])
    sal(p, f"s_cmp_lt_u32 s2, {NS}", [2], [])
    csel(p, sF, sN, sF)
    csel(p, sN, "8", "12")
    csel(p, sS, "4", "0")
    f, wi, wj, sx = ta, tb, tc, td
    def cmp(op, dst, x, y):
        rd = [r for r in (x, y) if isinstance(r, int)] + [SB + int(r[1:]) for r in (x, y) if isinstance(r, str) and r[0] == "s"]
        t = lambda r: v(r) if isinstance(r, int) else r
        p.add(I(f"{op} {s(dst, 2)}, {t(x)}, {t(y)}", "valu", rd, sr(dst, 2)))
    def cnd(d, x, y, m):
        rd = [r for r in (x, y) if isinstance(r, int)] + sr(m, 2)
        t = lambda r: v(r) if isinstance(r, int) else r
        p.add(I(f"v_cndmask_b32 {v(d)}, {t(x)}, {t(y)}, {s(m, 2)}", "valu", rd, [d]))
    m1, m2, m3 = 40, 42, 44
    cmp("v_cmp_gt_u32", m1, f"s{sS}", N15)
    p.op("v_add_u32", f, f"s{sF}", N15)
    p.op("v_mov_b32", wi, "0xaf8")
    cnd(f, f, wi, m1)
    p.op("v_mul_u32_u24", wi, "0x4d49", f)
    p.op("v_lshrrev_b32", wi, "20", wi)
    p.op("v_mul_u32_u24", wj, "53", wi)
    p.op("v_sub_u32", wj, f, wj)
    p.op("v_add_u32", sx, f"s{s4b}", N15)
    p.op("v_mov_b32", f, "0x6b")
    cmp("v_cmp_lt_u32", m2, sx, f)
    cmp("v_cmp_gt_u32", m3, "54", sx)
    p.salu(f"s_and_b64 {s(m1, 2)}, {s(m1, 2)}, {s(m2, 2)}", sr(m1, 2) + sr(m2, 2), sr(m1, 2) + [SCC])
    p.op("v_subrev_u32", f, "54", sx)
    cnd(f, f, "53", m3)
    cnd(sx, "53", sx, m3)
    cnd(wi, wi, f, m1)
    cnd(wj, wj, sx, m1)
    sal(p, f"s_movk_i32 {s(sF)}, 378", [], [sF], False)
    for x in (wi, wj):
        p.op("v_mad_u32_u24", x, x, "7", "9")
        p.op("v_subrev_u32", f, f"s{sF}", x)
        p.op("v_min_u32", x, x, f)
    p.op("v_mad_u32_u24", f, wi, f"s{sF}", wj)
    p.op("v_mul_u32_u24", f, "0xc0", f)
    p.op("v_add_u32", f, f, G16)
    cmp("v_cmp_gt_u32", m1, f"s{sN}", N15)
    p.op("v_bfrev_b32", wi, "1")
    cnd(O48R, wi, f, m1)


def window_map_v(p, opt):
    sA = S_T3
    xa, xb, xc, xd = 48, 49, 50, 51
    sal(p, f"s_movk_i32 {s(sA)}, 378", [], [sA], False)
    p.op("v_or_b32", xa, f"s{S_IDLE}", G16)
    for tt in range(3):
        n, ty, tx = OFF[tt], xb, xc
        a = xd
        if tt == 0:
            n = N15
        else:
            p.op("v_add_u32", n, str(16 * tt), N15)
        p.op("v_mul_u32_u24", ty, "37", n)
        p.op("v_lshrrev_b32", ty, "8", ty)
        p.op("v_mad_i32_i24", tx, ty, "-7", n)
        p.op("v_add_u32", ty, f"s{S_SWI}", ty)
        p.op("v_add_u32", tx, f"s{S_SWJ}", tx)
        p.op("v_subrev_u32", a, f"s{sA}", ty)
        p.op("v_min_u32", ty, ty, a)
        p.op("v_subrev_u32", a, f"s{sA}", tx)
        p.op("v_min_u32", tx, tx, a)
        p.op("v_mad_u32_u24", a, ty, f"s{sA}", tx)
        p.op("v_mul_u32_u24", a, "0xc0", a)
        p.op("v_add_u32", OFF[tt], a, xa)


def x_loads(p, opt, tiles=(0, 1, 2)):
    for tt in tiles:
        for k in range(3):
            p.vld("buffer_load_dwordx4", X(tt, k), 4, OFF[tt], SRD_X, 64 * k, opt.xflag)


def wq_base(p, a, b):
    p.op("v_subrev_u32", a, str(L_BIAS), V_BIAS)
    p.op("v_lshrrev_b32", b, "6", a)
    p.op("v_mul_u32_u24", b, str(WS), b)
    p.op("v_bfe_u32", a, a, "4", "2")
    p.op("v_lshl_add_u32", V_WQ, a, "3", b)


def lds_bases(p, opt):
    p.op("v_add_u32", V_BIAS, str(L_BIAS), L16)
    p.op("v_mov_b32", V_WQ, LC + 3)
    sal(p, f"s_mul_i32 {s(S_T1)}, {s(W)}, {XST}", [W], [S_T1], False)
    sal(p, f"s_add_u32 {s(S_T1)}, {s(S_T1)}, {L_X}", [S_T1], [S_T1])
    p.op("v_add_u32", V_TH, f"s{S_T1}", G16)
    p.op("v_lshl_add_u32", V_TV, N15, "1", f"s{S_T1}")
    p.op("v_add_u32", V_PW, f"s{S_T1}", LC + 4)
    p.op("v_mov_b32", PARA, str(L_PAR))


def pro_common(p, opt):
    p.salu(f"s_cmp_ge_u32 s2, {NWG}", sr(2), [SCC])
    p.raw("s_cbranch_scc1 L_end", rd=[SCC])
    if opt.rot:
        sal(p, f"s_add_u32 s2, s2, {NS}", [2], [2])
        sal(p, f"s_sub_u32 s3, s2, {NWG}", [2], [3])
        sal(p, f"s_min_u32 s2, s2, s3", [2, 3], [2])
    if opt.debug:
        p.add(I(f"s_memtime {s(S_T2, 2)}", "smem", [], sr(S_T2, 2)))
        p.op("v_mov_b32", DBG + 7, f"s{S_T2}")
        p.add(I(f"s_memrealtime {s(S_T2, 2)}", "smem", [], sr(S_T2, 2)))
        p.op("v_mov_b32", DBG + 6, f"s{S_T2}")
    for srd, off in ((SRD_WQ, 8), (SRD_WO, 16), (SRD_RC, 48), (SRD_RIDX, 56), (SRD_X, 0), (SRD_MASK, 64), (SRD_OUT, 72)):
        p.smem("s_load_dwordx2", srd, 2, 0, off)
    p.smem("s_load_dwordx2", 32, 2, 0, 24)
    p.smem("s_load_dwordx4", 36, 4, 0, 32)
    p.op("v_lshrrev_b32", ta, "6", 0)
    p.op("v_and_b32", L, "63", 0)
    p.add(I(f"v_readfirstlane_b32 {s(W)}, {v(ta)}", "rdlane", [ta], sr(W)))
    p.add(I(f"s_getpc_b64 {s(72, 2)}", "salu", [], sr(72, 2)))
    p.add(I("s_add_u32 s72, s72, wtab@rel32@lo+4", "salu", sr(72), sr(72) + [SCC]))
    p.add(I("s_addc_u32 s73, s73, wtab@rel32@hi+12", "salu", sr(73) + [SCC], sr(73) + [SCC]))
    if opt.pf:
        p.add(I(f"s_getpc_b64 {s(70, 2)}", "salu", [], sr(70, 2)))
        sal(p, f"s_min_u32 s74, {s(W)}, {opt.pf - 1}", [W], [74])
        sal(p, f"s_lshl_b32 s74, s74, 13", [74], [74])
        p.op("v_lshl_add_u32", tb, L, "7", "s74")
        p.add(I(f"global_load_dword {v(159)}, {v(tb)}, {s(70, 2)}", "vld", [tb] + sr(70, 2), [159]))
    sal(p, f"s_min_u32 s74, {s(W)}, 8", [W], [74])
    sal(p, f"s_lshl_b32 s74, s74, 6", [74], [74])
    p.op("v_add_u32", ta, "s74", L)
    p.op("v_lshlrev_b32", tb, "3", ta)
    p.add(I(f"global_load_dwordx2 {v(TBL, 2)}, {v(tb)}, {s(72, 2)}", "vld", [tb] + sr(72, 2), vr(TBL, 2)))
    p.op("v_lshlrev_b32", WSRC, "4", ta)
    sal(p, f"s_add_u32 s74, {s(W)}, 5", [W], [74])
    sal(p, f"s_min_u32 s74, s74, 14", [74], [74])
    sal(p, f"s_lshl_b32 s74, s74, 9", [74], [74])
    p.op("v_lshl_add_u32", td, L, "3", "s74")
    p.add(I(f"global_load_dwordx2 {v(WOA + 2, 2)}, {v(td)}, {s(72, 2)}", "vld", [td] + sr(72, 2), vr(WOA + 2, 2)))
    p.op("v_lshlrev_b32", tc, "5", L)
    p.op("v_add_u32", tc, str(T_LANE), tc)
    p.add(I(f"global_load_dwordx4 {v(LC, 4)}, {v(tc)}, {s(72, 2)}", "vld", [tc] + sr(72, 2), vr(LC, 4)))
    p.add(I(f"global_load_dwordx2 {v(LC + 4, 2)}, {v(tc)}, {s(72, 2)} offset:16", "vld", [tc] + sr(72, 2), vr(LC + 4, 2)))
    for srd, nb in ((SRD_WQ, 96 * 288 * 2), (SRD_WO, 96 * 96 * 2), (SRD_RC, 169 * 4), (SRD_RIDX, 49 * 49 * 4), (SRD_X, X_BYTES),
                    (SRD_MASK, MASK_BYTES), (SRD_OUT, X_BYTES)):
        sal(p, f"s_mov_b32 {s(srd + 2)}, {nb}", [], [srd + 2], False)
        sal(p, f"s_mov_b32 {s(srd + 3)}, 0x00020000", [], [srd + 3], False)
    for i in range(6):
        sal(p, f"s_mov_b32 {s(76 + i)}, {9216 * i}", [], [76 + i], False)
    sal(p, f"s_sub_u32 s74, {s(W)}, 9", [W], [74])
    sal(p, f"s_lshl_b32 s74, s74, 8", [74], [74])
    p.op("v_lshl_add_u32", TE, L, "2", "s74")
    sal(p, f"s_cmp_gt_u32 {s(W)}, 8", [W], [])
    p.wait(lgkm=0)
    p.raw("s_cbranch_scc1 L_c9", rd=[SCC])
    p.cond_begin()
    w_loads(p)
    p.smem("s_load_dwordx2", S_LS, 2, 32, 0)
    p.raw("s_branch L_c10")
    p.cond_end()
    p.label("L_c9")
    p.cond_begin()
    p.vld("buffer_load_dword", rcv, 1, TE, SRD_RC, 0)
    p.smem("s_load_dwordx16", S_W1, 16, 36, 0)
    p.smem("s_load_dwordx16", S_W2, 16, 38, 0)
    p.smem("s_load_dwordx16", S_W2 + 16, 16, 38, 64)
    p.cond_end()
    p.label("L_c10")
    if opt.debug:
        p.add(I(f"s_memtime {s(34, 2)}", "smem", [], sr(34, 2)))
        p.op("v_mov_b32", DBG + 1, "s34")
    if opt.touch:
        p.raw("<touchA>", kind="label")
    p.op("v_and_b32", N15, "15", L)
    p.op("v_and_b32", G16, "48", L)
    p.op("v_lshlrev_b32", L16, "4", L)
    sal(p, f"s_cmp_lt_u32 {s(W)}, 4", [W], [])
    p.raw("s_cbranch_scc1 L_pathO", rd=[SCC])


WFLAG = ['']


def w_loads(p):
    for i in range(6):
        p.add(I(f"buffer_load_dwordx4 {v(WD + 4 * i, 4)}, {v(WSRC)}, {s(SRD_WQ, 4)}, {s(76 + i)} offen{WFLAG[0]}", "vld",
                [WSRC] + sr(SRD_WQ, 4) + sr(76 + i), vr(WD + 4 * i, 4)))


def w_scatter(p):
    p.op("v_and_b32", WA, "0xffff", TBL)
    p.op("v_lshrrev_b32", WA + 1, "16", TBL)
    p.op("v_and_b32", WA + 2, "0xffff", TBL + 1)
    p.op("v_lshrrev_b32", WA + 3, "16", TBL + 1)
    assert L_WI == 0 and (8 * WS) % 256 == 0
    for i in range(0, 6, 2):
        for d in range(4):
            o0 = (i >> 1) * 32 * WS // 256
            p.add(I(f"ds_write2st64_b32 {v(WA + d)}, {v(WD + 4 * i + d)}, {v(WD + 4 * i + 4 + d)} offset0:{o0} offset1:{o0 + 8 * WS // 256}",
                    "dsw", [WA + d, WD + 4 * i + d, WD + 4 * i + 4 + d], []))


def consts(p, opt):
    sal(p, f"s_mov_b32 {s(S_EPSQ)}, {f32(0.25e-12)}", [], [S_EPSQ], False)
    sal(p, f"s_mov_b32 {s(S_EPSLN)}, {f32(24e-5)}", [], [S_EPSLN], False)
    for r, val in ((S_MA, 0x33333333), (S_MA + 1, 0x33333333), (S_MB, 0xcccccccc), (S_MB + 1, 0xcccccccc)):
        sal(p, f"s_mov_b32 {s(r)}, {val:#x}", [], [r], False)
    sal(p, f"s_cmp_lt_u32 s2, {NS}", [2], [])
    csel(p, S_NWIN, "8", "12")


def tau_rd(p):
    p.dsr("ds_read_b128", 156, 4, PARA, 0)


def tau_use(p):
    for h in range(4):
        p.add(I(f"v_readfirstlane_b32 {s(S_TAU + h)}, {v(156 + h)}", "rdlane", [156 + h], sr(S_TAU + h)))
    sal(p, f"s_max_u32 {s(S_T0)}, {s(S_TAU)}, {s(S_TAU + 1)}", [S_TAU, S_TAU + 1], [S_T0])
    sal(p, f"s_max_u32 {s(S_T1)}, {s(S_TAU + 2)}, {s(S_TAU + 3)}", [S_TAU + 2, S_TAU + 3], [S_T1])
    sal(p, f"s_max_u32 {s(S_T0)}, {s(S_T0)}, {s(S_T1)}", [S_T0, S_T1], [S_T0])
    sal(p, f"s_cmp_gt_u32 {s(S_T0)}, {f32(TAU_THR * LOG2E)}", [S_T0], [])
    csel(p, S_UNSAFE, "1", "0")


def gather_addr(p, dst, spos, base):
    sal(p, f"s_lshr_b32 s69, {s(spos)}, 2", [spos], [69])
    sal(p, f"s_and_b32 s68, {s(spos)}, 3", [spos], [68])
    sal(p, f"s_mul_i32 s69, s69, {16 * 196}", [69], [69], False)
    sal(p, f"s_lshl_b32 s68, s68, 6", [68], [68])
    sal(p, f"s_add_u32 s68, s68, s69", [68, 69], [68])
    p.op("v_add_u32", dst, "s68", base)


def gather_prep(p, regs):
    for base in regs:
        for r in range(4):
            p.op("v_min_u32", base + r, "0xa8", base + r)
            p.op("v_lshl_add_u32", base + r, base + r, "4", f"s{S_T0}")
    sal(p, f"s_and_b32 {s(S_T0)}, {s(W)}, 3", [W], [S_T0])
    sal(p, f"s_cmp_eq_u32 {s(S_T0)}, 3", [S_T0], [])
    csel(p, S_HI48, "0xffff0000", "0")
    csel(p, S_HI48 + 1, "-1", "0")


def gather_rd(p, g, idx):
    for r in range(4):
        p.dsr("ds_read_b128", g + 4 * r, 4, idx + r, 0)


def gather_wr(p, g, extra):
    for h in range(4):
        p.add(I(f"v_cndmask_b32 {v(g + h)}, {v(g + h)}, {v(NEGR)}, {s(S_HI48, 2)}", "valu",
                [g + h, NEGR] + sr(S_HI48, 2), [g + h]))
    for i in range(4):
        for j in range(i + 1, 4):
            a_, b_ = g + 4 * i + j, g + 4 * j + i
            p.add(I(f"v_swap_b32 {v(a_)}, {v(b_)}", "valu", [a_, b_], [a_, b_]))
    for h in range(4):
        p.dsw("ds_write_b128", GDST, g + 4 * h, 4, 12288 * h + extra)


NEGR = 57
GC = 153


def path_o(p, opt):
    p.label("L_pathO")
    p.raw("s_waitcnt vmcnt(6)", kind="salu")
    p.ins.append(I("", "forgetv", rd=[LC + 4], states=0))
    window_map(p, opt)
    p.raw("s_barrier")
    x_loads(p, opt)
    stamp(p, opt, 2, early=True)
    w_scatter(p)
    lds_bases(p, opt)
    consts(p, opt)
    dbg_early(p, opt)
    if opt.touchb:
        p.raw("<touchB>", kind="label")
    p.wait(vm=9, lgkm=0)
    p.raw("s_barrier")
    stamp(p, opt, 3)
    tau_rd(p)
    tau_use(p)
    stamp(p, opt, 4)
    p.label("L_join")


def signal(p, which):
    p.salu("s_mov_b64 exec, 1", [], [EXEC])
    p.add(I(f"ds_add_u32 {v(PARA)}, {v(ONE)} offset:{L_CNT - L_PAR + 4 * which}", "dsw", [PARA, ONE], []))
    p.salu("s_mov_b64 exec, -1", [], [EXEC])


def path_y(p, opt):
    sB = S_T1
    sal(p, f"s_sub_u32 {s(sB)}, {s(W)}, 4", [W], [sB])
    if opt.earlya:
        p.raw("s_barrier")
    sal(p, f"s_cmp_lt_u32 {s(W)}, 8", [W], [])
    p.raw("s_cbranch_scc1 L_rg", rd=[SCC])
    p.cond_begin()
    p.op("v_lshlrev_b32", GB, "2", L)
    p.op("v_add_u32", GB, str(48 * 196), GB)
    p.vld("buffer_load_dword", 116, 1, GB, SRD_RIDX, 0)
    sal(p, f"s_cmp_lg_u32 {s(W)}, 8", [W], [])
    p.raw("s_cbranch_scc1 L_re", rd=[SCC])
    p.cond_split()
    thin_offsets(p, opt)
    for k in range(3):
        p.vld("buffer_load_dwordx4", X48 + 4 * k, 4, O48R, SRD_X, 64 * k)
    p.raw("s_branch L_re")
    p.cond_end()
    p.label("L_rg")
    p.cond_begin()
    p.op("v_mul_u32_u24", ta, "0xc4", N15)
    sal(p, f"s_lshl_b32 {s(S_T0)}, {s(sB)}, 6", [sB], [S_T0])
    p.op("v_add3_u32", GA, ta, G16, f"s{S_T0}")
    p.op("v_add_u32", GC, str(32 * 196), GA)
    p.vld("buffer_load_dwordx4", ridx, 4, GA, SRD_RIDX, 0)
    p.vld("buffer_load_dwordx4", ridxb, 4, GA, SRD_RIDX, 16 * 196)
    p.vld("buffer_load_dwordx4", ridxc, 4, GC, SRD_RIDX, 0)
    p.cond_end()
    p.label("L_re")
    if not opt.earlya:
        p.raw("s_barrier")
    sal(p, f"s_mul_i32 {s(S_T0)}, {s(sB)}, 3072", [sB], [S_T0], False)
    p.op("v_mul_u32_u24", ta, "48", L)
    p.op("v_add_u32", WOA, f"s{S_T0}", ta)
    sal(p, f"s_lshl_b32 {s(S_T0)}, {s(sB)}, 10", [sB], [S_T0])
    p.op("v_add_u32", GDST, str(L_BIAS), L16)
    p.op("v_add_u32", GDST, f"s{S_T0}", GDST)
    stamp(p, opt, 2, early=True)
    sal(p, f"s_cmp_lt_u32 {s(W)}, 9", [W], [])
    p.raw("s_cbranch_scc1 L_notab", rd=[SCC])
    p.cond_begin()
    p.raw("s_setprio 3", kind="salu")
    p.raw("s_waitcnt vmcnt(1) lgkmcnt(0)", kind="salu")
    p.ins.append(I("", "forget", rd=[rcv], states=0))
    hb = u
    tmps = [S_LS, S_LS + 1, S_T0, S_T1, S_T2, S_T3]
    def packs1(jp):
        a_, b_ = S_W1 + jp, S_W1 + 8 + jp
        sal(p, f"s_pack_ll_b32_b16 {s(tmps[jp % 6])}, {s(a_)}, {s(b_)}", [a_, b_], [tmps[jp % 6]], False)
        sal(p, f"s_pack_hh_b32_b16 {s(b_)}, {s(a_)}, {s(b_)}", [a_, b_], [b_], False)
    for jp in range(3):
        packs1(jp)
    for jp in range(8):
        if jp + 3 < 8:
            packs1(jp + 3)
        p.op("v_dot2_f32_bf16", hb + 2 * jp, rcv, f"s{tmps[jp % 6]}", "0", kind="dot")
        p.op("v_dot2_f32_bf16", hb + 2 * jp + 1, rcv, f"s{S_W1 + 8 + jp}", "0", kind="dot")
    acc = hb + 8
    def packs2(jp):
        for h in range(4):
            r0, r1 = S_W2 + 4 * jp + (h >> 1), S_W2 + 4 * jp + 2 + (h >> 1)
            nm = "s_pack_hh_b32_b16" if h & 1 else "s_pack_ll_b32_b16"
            st = S_W1 + (4 * jp + h) % 16
            sal(p, f"{nm} {s(st)}, {s(r0)}, {s(r1)}", [r0, r1], [st], False)
    for j in range(8):
        p.op("v_cvt_pk_bf16_f32", hb + j, hb + 2 * j, hb + 2 * j + 1)
        if j < 3:
            packs2(j)
    for j in range(8):
        p.op("v_pk_max_i16", hb + j, hb + j, "0")
    for jp in range(8):
        for h in range(4):
            st = S_W1 + (4 * jp + h) % 16
            if jp == 0:
                p.op("v_dot2_f32_bf16", acc + h, hb, f"s{st}", "0", kind="dot")
            else:
                p.op("v_dot2_f32_bf16", acc + h, hb + jp, f"s{st}", acc + h, kind="dot").tag = "acc"
        if jp + 3 < 8:
            packs2(jp + 3)
    p.op("v_mov_b32", ta, f32(16.0 * LOG2E))
    p.op("v_lshlrev_b32", TE, "2", TE)
    p.op("v_add_u32", TE, str(L_TAB), TE)
    for step in range(9):
        for h in range(4):
            a = acc + h
            if step == 0: p.op("v_cvt_pk_bf16_f32", a, a, a)
            if step == 1: p.op("v_and_b32", a, "0xffff0000", a)
            if step == 2: p.op("v_mul_f32", a, f32(-LOG2E), a)
            if step == 3: p.op("v_exp_f32", a, a, kind="trans")
            if step == 4: p.op("v_add_f32", a, "1.0", a)
            if step == 5: p.op("v_rcp_f32", a, a, kind="trans")
            if step == 6: p.op("v_cvt_pk_bf16_f32", a, a, a)
            if step == 7: p.op("v_and_b32", a, "0xffff0000", a)
            if step == 8:
                p.op("v_fmaak_f32", a, a, ta, f32(-8.0 * LOG2E))
    p.dsw("ds_write_b128", TE, acc, 4, 0)
    p.raw("s_setprio 0", kind="salu")
    p.cond_end()
    p.label("L_notab")
    p.raw("s_waitcnt vmcnt(2)", kind="salu")
    p.ins.append(I("", "forgetv", rd=[LC + 4], states=0))
    lds_bases(p, opt)
    sal(p, f"s_cmp_lg_u32 {s(W)}, 4", [W], [])
    p.raw("s_cbranch_scc1 L_notau", rd=[SCC])
    p.cond_begin()
    p.wait(lgkm=0)
    for h in range(4):
        src, st = S_LS + (h >> 1), S_W1 + h
        if h & 1:
            sal(p, f"s_and_b32 {s(st)}, {s(src)}, 0xffff0000", [src], [st])
        else:
            sal(p, f"s_lshl_b32 {s(st)}, {s(src)}, 16", [src], [st])
        p.op("v_mov_b32", u + h, f"s{st}")
    for h in range(4):
        x = u + h
        p.op("v_min_f32", x, "0x40930000", x)
        p.op("v_max_f32", x, "0xc2c80000", x)
        p.op("v_mul_f32", x, f32(LOG2E), x)
        p.op("v_exp_f32", x, x, kind="trans")
    for h in range(4):
        x = u + h
        p.op("v_cvt_pk_bf16_f32", x, x, x)
        p.op("v_and_b32", x, "0xffff0000", x)
        p.op("v_mul_f32", x, f32(LOG2E), x)
    p.dsw("ds_write_b128", PARA, u, 4, 0)
    for i in range(4):
        p.op("v_mov_b32", u + 4 + i, "0")
    p.dsw("ds_write_b128", PARA, u + 4, 4, L_CNT - L_PAR)
    p.op("v_min_u32", tc, "11", N15)
    p.op("v_mul_u32_u24", tc, str(XST), tc)
    p.op("v_add_u32", tc, tc, G16)
    p.op("v_add_u32", tc, str(L_X + X_Z), tc)
    p.dsw("ds_write_b32", tc, u + 4, 1, 0)
    for i in range(4):
        p.op("v_mov_b32", u + 8 + i, "0x3f803f80")
    p.dsw("ds_write_b128", V_BIAS, u + 8, 4, L_ONES - L_BIAS)
    z = u + 10
    p.op("v_and_b32", ta, "1", L)
    p.op("v_lshlrev_b32", ta, "4", ta)
    p.op("v_mov_b32", tb, "0x3f80")
    p.op("v_lshlrev_b32", ta, ta, tb)
    sal(p, f"s_mov_b32 s50, 0x33333333", [], [50], False)
    sal(p, f"s_mov_b32 s51, 0x33333333", [], [51], False)
    p.wait(lgkm=0)
    for r in (z, z + 1, z + 4, z + 5):
        p.op("v_mov_b32", r, "0")
    p.add(I(f"v_cndmask_b32 {v(z + 2)}, 0, {v(ta)}, {s(50, 2)}", "valu", [ta] + sr(50, 2), [z + 2]))
    p.add(I(f"v_cndmask_b32 {v(z + 3)}, {v(ta)}, 0, {s(50, 2)}", "valu", [ta] + sr(50, 2), [z + 3]))
    p.dsw("ds_write_b128", V_BIAS, z + 2, 4, L_SEL - L_BIAS)
    p.dsw("ds_write_b128", V_BIAS, z, 4, L_SEL + 1024 - L_BIAS)
    p.cond_end()
    p.label("L_notau")
    if opt.debug is True:
        stamp(p, opt, 3, early=True)
        p.wait(vm=6)
        stamp(p, opt, 4, early=True)
    sal(p, f"s_cmp_gt_u32 {s(W)}, 8", [W], [])
    p.raw("s_cbranch_scc1 L_nosc", rd=[SCC])
    p.cond_begin()
    w_scatter(p)
    p.cond_end()
    p.label("L_nosc")
    if opt.debug is True:
        p.wait(lgkm=0)
        stamp(p, opt, 5, early=True)
    p.wait(lgkm=0)
    window_map(p, opt, temps=(48, 49, 50, 51, 52))
    sal(p, f"s_mov_b32 {s(S_T0)}, {L_TAB}", [], [S_T0], False)
    p.op("v_mov_b32", NEGR, f32(NEG_BIG))
    p.op("v_mov_b32", ONE, "1")
    sal(p, f"s_cmp_ge_u32 {s(W)}, 8", [W], [])
    p.raw("s_cbranch_scc1 L_tp", rd=[SCC])
    p.cond_begin()
    gather_prep(p, [ridx, ridxb, ridxc])
    if opt.xearly:
        for i in range(3):
            p.vld("buffer_load_dwordx4", wov + 4 * i, 4, WOA, SRD_WO, 16 * i)
        x_loads(p, opt, (0, 1, 2)[:opt.xearly])
    p.raw("s_branch L_tq")
    p.cond_end()
    p.label("L_tp")
    p.cond_begin()
    thin_prep(p, opt)
    p.cond_end()
    p.label("L_tq")
    consts(p, opt)
    sal(p, f"s_mov_b32 {s(S_N12)}, 0x0fff0fff", [], [S_N12], False)
    sal(p, f"s_mov_b32 {s(S_N12 + 1)}, 0x0fff0fff", [], [S_N12 + 1], False)
    dbg_early(p, opt)
    p.raw("s_barrier")
    stamp(p, opt, 3)
    p.raw("s_setprio 3", kind="salu")
    tau_rd(p)
    if opt.xearly:
        p.ins.append(I("", "vmreset", states=0))
    else:
        p.wait(vm=0)
    sal(p, f"s_cmp_ge_u32 {s(W)}, 8", [W], [])
    p.raw("s_cbranch_scc1 L_thin", rd=[SCC])
    p.cond_begin()
    gather_rd(p, u, ridx)
    gather_rd(p, 60, ridxb)
    gather_rd(p, 128, ridxc)
    if not opt.xearly:
        for i in range(3):
            p.vld("buffer_load_dwordx4", wov + 4 * i, 4, WOA, SRD_WO, 16 * i)
    rem = [t for t in (0, 1, 2) if t >= opt.xearly]
    if len(rem) > 2:
        x_loads(p, opt, (rem.pop(0),))
    gather_wr(p, u, 0)
    if len(rem) > 1:
        x_loads(p, opt, (rem.pop(0),))
    gather_wr(p, 60, 4096)
    gather_wr(p, 128, 8192)
    signal(p, 0)
    if opt.debug is True:
        stamp(p, opt, 17)
    x_loads(p, opt, tuple(rem))
    p.raw("s_branch L_xdone")
    p.cond_end()
    p.label("L_thin")
    p.cond_begin()
    thin_jobs(p, opt)
    p.cond_end()
    p.label("L_sig0")
    signal(p, 0)
    if opt.debug is True:
        stamp(p, opt, 17)
    p.ins.append(I("", "vmreset", states=0))
    for i in range(3):
        p.vld("buffer_load_dwordx4", wov + 4 * i, 4, WOA, SRD_WO, 16 * i)
    x_loads(p, opt)
    p.label("L_xdone")
    tau_use(p)
    stamp(p, opt, 4)
    sal(p, f"s_cmp_ge_u32 {s(W)}, 10", [W], [])
    p.raw("s_cbranch_scc1 L_nowo", rd=[SCC])
    p.cond_begin()
    for i in range(12):
        p.op("v_lshlrev_b32", uu + 2 * i, "16", wov + i)
        p.op("v_and_b32", uu + 2 * i + 1, "0xffff0000", wov + i)
    sm = 50
    def pk(name, d, a, b, mods=""):
        p.add(I(f"{name} {v(d, 2)}, {v(a, 2)}, {v(b, 2)}{mods}", "valu", vr(a, 2) + vr(b, 2), vr(d, 2)))
    pk("v_pk_add_f32", sm, uu, uu + 2)
    for i in range(2, 12):
        pk("v_pk_add_f32", sm, sm, uu + 2 * i)
    p.op("v_add_f32", sm, sm, sm + 1)
    for ctl in ("quad_perm:[1,0,3,2]", "quad_perm:[2,3,0,1]"):
        p.add(I(f"v_add_f32_dpp {v(sm)}, {v(sm)}, {v(sm)} {ctl} row_mask:0xf bank_mask:0xf", "dpp", [sm], [sm]))
    p.op("v_mul_f32", sm, f32(-1.0 / 96.0), sm)
    for i in range(12):
        pk("v_pk_add_f32", uu + 2 * i, uu + 2 * i, sm, " op_sel_hi:[1,0]")
    for i in range(12):
        p.op("v_cvt_pk_bf16_f32", wov + i, uu + 2 * i, uu + 2 * i + 1)
    sal(p, f"s_mov_b32 {s(S_T0)}, {L_WO}", [], [S_T0], False)
    p.op("v_and_b32", 60, "0xffff", WOA + 2)
    p.op("v_lshrrev_b32", 61, "16", WOA + 2)
    p.op("v_and_b32", 62, "0xffff", WOA + 3)
    for i in range(3):
        p.op("v_add_u32", 60 + i, f"s{S_T0}", 60 + i)
        p.add(I(f"ds_write2_b64 {v(60 + i)}, {v(wov + 4 * i, 2)}, {v(wov + 4 * i + 2, 2)} offset0:0 offset1:4", "dsw",
                [60 + i] + vr(wov + 4 * i, 4), []))
    signal(p, 1)
    p.cond_end()
    p.label("L_nowo")
    p.wait(vm=9, lgkm=0)
    p.raw("s_setprio 0", kind="salu")
    sal(p, f"s_cmp_lg_u32 {s(S_IDLE)}, 0", [S_IDLE], [])
    p.raw("s_cbranch_scc1 L_end", rd=[SCC])
    p.raw("s_branch L_join")


WQH, DST, TAUA, DKQ, WVF, DVF, WVS = 60, 61, 62, 63, 108, 109, 84
RB48 = 90
XA48 = 118


def thin_prep(p, opt):
    hS = 53
    p.op("v_min_u32", 117, "0xa8", 116)
    p.op("v_lshl_add_u32", RB48, 117, "4", f"s{S_T0}")
    sal(p, f"s_sub_u32 {s(hS)}, {s(W)}, 8", [W], [hS])
    sal(p, f"s_mul_i32 {s(S_T0)}, {s(hS)}, 96", [hS], [S_T0], False)
    p.op("v_add_u32", WQH, f"s{S_T0}", V_WQ)
    sal(p, f"s_lshr_b32 s54, {s(hS)}, 1", [hS], [54])
    sal(p, f"s_and_b32 s55, {s(hS)}, 1", [hS], [55])
    sal(p, f"s_mul_i32 {s(S_T1)}, s54, 96", [54], [S_T1], False)
    p.op("v_add_u32", WVS, f"s{S_T1}", V_WQ)
    sal(p, f"s_lshl_b32 {s(S_T2)}, s55, 6", [55], [S_T2])
    p.op("v_add_u32", WVF, f"s{S_T2}", WVS)
    p.op("v_mul_u32_u24", DST, str(XST), N15)
    sal(p, f"s_lshl_b32 {s(S_T0)}, {s(hS)}, 7", [hS], [S_T0])
    sal(p, f"s_add_u32 {s(S_T0)}, {s(S_T0)}, {L_X + X_KQ}", [S_T0], [S_T0])
    p.op("v_add3_u32", DKQ, DST, G16, f"s{S_T0}")
    sal(p, f"s_lshl_b32 {s(S_T3)}, {s(hS)}, 2", [hS], [S_T3])
    p.op("v_add_u32", TAUA, f"s{S_T3}", PARA)
    sal(p, f"s_lshl_b32 s56, s54, 7", [54], [56])
    sal(p, f"s_add_u32 s56, s56, {L_X + X_V48}", [56], [56])
    p.op("v_lshrrev_b32", DVF, "1", G16)
    p.op("v_add3_u32", DST, DST, DVF, "s56")
    sal(p, f"s_mul_i32 s56, s55, 96", [55], [56], False)
    p.op("v_add_u32", DVF, "s56", DST)
    for r in (105, 106, 107):
        p.op("v_mov_b32", r, "0")
    p.op("v_mov_b32", 85, "0x3f803f80")
    p.op("v_mov_b32", 86, "0x3f803f80")
    p.op("v_add_u32", XA48, str(L_X48), L16)
    sal(p, f"s_cmp_lg_u32 {s(W)}, 8", [W], [])
    p.raw("s_cbranch_scc1 L_tp2", rd=[SCC])
    p.cond_split()
    p.op("v_lshlrev_b32", 153, "2", L)
    p.op("v_add_u32", 153, str(L_OFF48), 153)
    p.dsw("ds_write_b32", 153, O48R, 1, 0)
    for k in range(3):
        p.dsw("ds_write_b128", XA48, X48 + 4 * k, 4, 1024 * k)
    p.raw("s_waitcnt lgkmcnt(0)", kind="salu")
    p.label("L_tp2")
    p.cond_split()
    p.add(I(f"v_cmp_lt_u32 {s(56, 2)}, 48, {v(L)}", "valu", [L], sr(56, 2)))
    if opt.xearly:
        p.raw("s_waitcnt vmcnt(0)", kind="salu")


def thin_jobs(p, opt):
    import sched
    Lh, FD, SD = 64, 76, 80
    wqs = [128, 132, 136, 140, 144, 20, 24, 28, 32]
    wfs = [36, 40, 112]
    wss = [116, 120, 124]
    SL, NP, D, BB = 100, 104, 20, 148
    ss = [110, 111]
    Sa, Sb = 84, 86
    n0 = len(p.ins)
    for k in range(3):
        p.dsr("ds_read_b128", X48 + 4 * k, 4, XA48, 1024 * k)
    for T in range(3):
        for ks in range(3):
            r = wqs[3 * T + ks]
            off = L_WI + 32 * ks * WS + 32 * T
            p.dsr("ds_read_b64_tr_b16", r, 2, WQH, off)
            p.dsr("ds_read_b64_tr_b16", r + 2, 2, WQH, off + 16 * WS)
            p.mfma16(Lh + 4 * T, r, X48 + 4 * ks, None if ks == 0 else Lh + 4 * T)
    p.dsr("ds_read_b32", TAUA, 1, TAUA, 0)
    p.dsr("ds_read_b128", SL, 4, V_BIAS, L_SEL - L_BIAS)
    for (ws, ad, o, d) in ((wfs, WVF, 384, FD), (wss, WVS, 416, SD)):
        for ks in range(3):
            off = L_WI + 32 * ks * WS + o
            p.dsr("ds_read_b64_tr_b16", ws[ks], 2, ad, off)
            p.dsr("ds_read_b64_tr_b16", ws[ks] + 2, 2, ad, off + 16 * WS)
            p.mfma16(d, ws[ks], X48 + 4 * ks, None if ks == 0 else d)
    p.dsr("ds_read_b128", BB, 4, RB48, 0)
    for e in range(2):
        for i in range(6):
            x = Lh + 6 * e + i
            if i == 0:
                p.op("v_fma_f32", ss[e], x, x, f"s{S_EPSQ}")
            else:
                p.op("v_fmac_f32", ss[e], x, x, rmw=True)
    p.op("v_cvt_pk_bf16_f32", NP, ss[0], ss[1])
    p.mfma16(D, SL, NP, None)
    p.op("v_cvt_pk_bf16_f32", FD, FD, FD + 1)
    p.op("v_cvt_pk_bf16_f32", FD + 1, FD + 2, FD + 3)
    p.op("v_cvt_pk_bf16_f32", Sa, SD, SD + 1)
    p.op("v_cvt_pk_bf16_f32", Sb + 1, SD + 2, SD + 3)
    for h in range(4):
        p.add(I(f"v_cndmask_b32 {v(BB + h)}, {v(BB + h)}, {v(NEGR)}, {s(56, 2)}", "valu", [BB + h, NEGR] + sr(56, 2), [BB + h]))
    p.dsw("ds_write_b128", V_BIAS, BB, 4, L_B48 - L_BIAS)
    p.op("v_rsq_f32", D, D, kind="trans")
    p.op("v_rsq_f32", D + 1, D + 1, kind="trans")
    p.op("v_mul_f32", D, D, TAUA)
    for i in range(12):
        p.op("v_mul_f32", Lh + i, Lh + i, D + i // 6)
    for i in range(3):
        p.op("v_cvt_pk_bf16_f32", Lh + i, Lh + 2 * i, Lh + 2 * i + 1)
    p.op("v_mov_b32", Lh + 3, "0")
    for i in range(3):
        p.op("v_cvt_pk_bf16_f32", Lh + 4 + i, Lh + 6 + 2 * i, Lh + 7 + 2 * i)
    p.op("v_mov_b32", Lh + 7, "0")
    blk = sched.schedule(p.ins[n0:])
    p.ins = p.ins[:n0] + blk
    p.salu(f"s_mov_b64 exec, {s(S_N12, 2)}", sr(S_N12, 2), [EXEC])
    p.dsw("ds_write_b64", DVF, FD, 2, 0)
    p.dsw("ds_write_b64", DST, Sa, 2, 32)
    p.dsw("ds_write_b64", DST, Sb, 2, 64)
    p.dsw("ds_write_b128", DKQ, Lh + 4, 4, 0)
    p.dsw("ds_write_b128", DKQ, Lh, 4, 64)
    p.salu("s_mov_b64 exec, -1", [], [EXEC])


def poll(p, slow, which, target, r, res, sleep=False):
    lbl = f"L_poll{which}" + ("s" if slow else "f")
    def gg():
        p.label(lbl)
        if sleep:
            p.raw("s_sleep 4", kind="salu")
        p.op("v_mov_b32", r, str(L_CNT + 4 * which))
        p.dsr("ds_read_b32", r, 1, r, 0)
        p.add(I(f"v_readfirstlane_b32 {s(S_B2)}, {v(r)}", "rdlane", [r], sr(S_B2)))
        sal(p, f"s_sub_u32 {s(S_JO)}, {s(S_JO)}, 1", [S_JO], [S_JO])
        p.raw(f"s_cbranch_scc1 {lbl}x", kind="salu", rd=[SCC])
        if isinstance(target, int):
            p.salu(f"s_cmp_lt_u32 {s(S_B2)}, {target}", sr(S_B2), [SCC])
        else:
            p.salu(f"s_cmp_lt_u32 {s(S_B2)}, {target}", sr(S_B2) + sr(int(target[1:])), [SCC])
        p.raw(f"s_cbranch_scc1 {lbl}", kind="salu", rd=[SCC])
        p.label(lbl + "x")
    gr = p.group(gg)
    gr.wr = gr.wr | {res}
    return gr


MQ = [OR_ + 8, OR_ + 20, OR_ + 32, OR_ + 8, OR_ + 20]


def mask_ld(p, opt, i):
    r = MQ[i]
    if i < 4:
        p.vld("buffer_load_dwordx4", r, 4, V_BIAS, SRD_MCHK, 1024 * i, opt.mflag)
    else:
        p.add(I(f"buffer_load_dwordx4 {v(r, 4)}, {v(V_BIAS)}, {s(SRD_MCHK, 4)}, {s(S_C4096)} offen{opt.mflag}", "vld",
                [V_BIAS] + sr(SRD_MCHK, 4) + sr(S_C4096), vr(r, 4)))
    return p.ins[-1]


def mask_use(p, opt, i):
    r = MQ[i]
    p.op("v_or3_b32", r, r, r + 1, r + 2)
    p.op("v_bitop3_b32", r, r, r + 3, f"s{S_C7F}", extra=" bitop3:0xa8")
    p.add(I(f"v_cmp_ne_u32 {s(S_MTMP, 2)}, 0, {v(r)}", "valu", [r], sr(S_MTMP, 2)))
    p.salu(f"s_or_b64 {s(S_MACC, 2)}, {s(S_MACC, 2)}, {s(S_MTMP, 2)}", sr(S_MACC, 2) + sr(S_MTMP, 2), sr(S_MACC, 2) + [SCC])


_pid = [3100]


def anchor_after(p, i, k=-2):
    _pid[0] += 1
    a = p.ins[k]
    a.wr = a.wr | {_pid[0]}
    i.rd = i.rd | {_pid[0]}


def make_hooks(opt):
    def hook(p, name, slow):
        chk = (not slow) and opt.mask_check
        if opt.prio and name in opt.prio:
            n0 = len(p.ins)
            if opt.prio[name] >= 100:
                d = [int(c) for c in str(opt.prio[name])[1:]]
                lb = f"L_pr{name}{'s' if slow else 'f'}"
                def gg():
                    p.raw(f"s_setprio {d[0]}", kind="salu")
                    sal(p, f"s_cmp_lt_u32 {s(W)}, 4", [W], [])
                    p.raw(f"s_cbranch_scc1 {lb}", kind="salu", rd=[SCC])
                    p.raw(f"s_setprio {d[1]}", kind="salu")
                    sal(p, f"s_cmp_lt_u32 {s(W)}, 8", [W], [])
                    p.raw(f"s_cbranch_scc1 {lb}", kind="salu", rd=[SCC])
                    p.raw(f"s_setprio {d[2]}", kind="salu")
                    p.label(lb)
                i = p.group(gg)
                i.rd = i.rd | {3000}
                i.wr = i.wr | {3000}
            else:
                i = p.raw(f"s_setprio {opt.prio[name]}", kind="salu", rd=[3000], wr=[3000])
            if n0:
                anchor_after(p, i)
        if name == "poll0":
            gb = poll(p, slow, 0, 8, K3, 3003)
            a = [i for i in p.ins if i.kind == "mfma"][min(opt.b2at, 46 if opt.latepoll else 28)]
            a.wr = a.wr | {3004}
            gb.rd = gb.rd | {3004}
            p.ins.remove(gb)
            p.ins.insert(p.ins.index(a) + 1, gb)
            if opt.debug is True:
                n0 = len(p.ins)
                stamp(p, opt, 19); stamp(p, opt, 18)
                st = p.ins[n0:]
                del p.ins[n0:]
                k = p.ins.index(gb)
                p.ins[k:k + 1] = st[:2] + [gb] + st[2:]
                gb.tag = "fence"
        elif name == "poll1":
            poll(p, slow, 1, 6, XR + 34, 3005)
        if name == opt.mk0 and chk:
            for i in range(3):
                anchor_after(p, mask_ld(p, opt, i), -2 - i)
        if name == "post0":
            stamp(p, opt, 6)
        if name == opt.mk1 and chk:
            n0 = len(p.ins)
            for i in range(3):
                mask_use(p, opt, i)
            for k in (n0, n0 + 4, n0 + 8):
                anchor_after(p, p.ins[k], n0 - 1 - len(p.ins))
            mask_ld(p, opt, 3); mask_ld(p, opt, 4)
        if name == "post1":
            stamp(p, opt, 8)
        elif name == "thin2" and chk:
            n0 = len(p.ins)
            for i in (3, 4):
                mask_use(p, opt, i)
            for k in (n0, n0 + 4):
                anchor_after(p, p.ins[k], n0 - 1 - len(p.ins))
            p.salu(f"s_cmp_lg_u64 {s(S_MACC, 2)}, 0", sr(S_MACC, 2), [SCC, 3001])
            p.add(I("s_cbranch_scc1 L_redo", "salu", [SCC, 3001], [3001, 3002]))
        elif name == "o48done":
            def gg():
                p.op("v_mov_b32", XR + 32, str(L_CNT + 8))
                p.op("v_mov_b32", XR + 33, "1")
                p.salu("s_mov_b64 exec, 1", [], [EXEC])
                p.add(I(f"ds_add_u32 {v(XR + 32)}, {v(XR + 33)}", "dsw", [XR + 32, XR + 33], []))
                p.salu("s_mov_b64 exec, -1", [], [EXEC])
            gr = p.group(gg)
            gr.rd = gr.rd | {3012, 3002}
        elif name == "post3":
            stamp(p, opt, 9)
        elif name == "end":
            stamp(p, opt, 10)
            n0 = len(p.ins)
            if opt.debug:
                stamp_flush(p, opt)
            sal(p, f"s_cmp_eq_u32 {s(W)}, {opt.jowave}", [W], [])
            p.raw("s_cbranch_scc1 L_jo", rd=[SCC])
            p.raw("s_endpgm")
            for i in p.ins[n0:]:
                i.tag = "fence" if i.tag is None else i.tag
    return hook


def mask_srd(p, opt):
    sal(p, f"s_sub_u32 {s(SRD_MCHK)}, {s(SRD_MASK)}, {L_BIAS}", [SRD_MASK], [SRD_MCHK])
    p.salu(f"s_subb_u32 {s(SRD_MCHK + 1)}, {s(SRD_MASK + 1)}, 0", sr(SRD_MASK + 1) + [SCC], sr(SRD_MCHK + 1) + [SCC])
    sal(p, f"s_add_u32 {s(SRD_MCHK)}, {s(SRD_MCHK)}, {s(S_MBASE)}", [SRD_MCHK, S_MBASE], [SRD_MCHK])
    p.salu(f"s_addc_u32 {s(SRD_MCHK + 1)}, {s(SRD_MCHK + 1)}, 0", sr(SRD_MCHK + 1) + [SCC], sr(SRD_MCHK + 1) + [SCC])
    sal(p, f"s_mov_b32 {s(SRD_MCHK + 2)}, {L_BIAS + 4804}", [], [SRD_MCHK + 2], False)
    sal(p, f"s_mov_b32 {s(SRD_MCHK + 3)}, 0x00020000", [], [SRD_MCHK + 3], False)
    sal(p, f"s_mov_b64 {s(S_MACC, 2)}, 0", [], [S_MACC, S_MACC + 1], False)
    sal(p, f"s_mov_b32 {s(S_C7F)}, 0x7fff7fff", [], [S_C7F], False)
    sal(p, f"s_movk_i32 {s(S_C4096)}, 4096", [], [S_C4096], False)


def dispatch(p, opt):
    p.raw("s_waitcnt lgkmcnt(0)", kind="salu")
    mask_srd(p, opt)
    sal(p, f"s_mov_b32 {s(S_JO)}, 1000000", [], [S_JO], False)
    p.salu(f"s_or_b32 {s(S_T0)}, {s(S_KILL)}, {s(S_UNSAFE)}", sr(S_KILL) + sr(S_UNSAFE), sr(S_T0) + [SCC])
    p.raw("s_cbranch_scc1 L_slow", rd=[SCC])


def slow_regs(h):
    if h < 3:
        return dict(pairs=[LR + 12 + 8, LR + 12 + 10, OR_ + 10], m6=OR_ + 9, ad=OR_ + 21, tmp=OR_ + 22, mx=OR_ + 23, m2=OR_ + 33)
    return dict(pairs=[XR + 24, XR + 26, XR + 28], m6=XR + 30, ad=XR + 31, tmp=XR + 35, mx=LR + 12 + 8, m2=LR + 12 + 9)


def slow_softmax(p, h, qt, regs):
    R = slow_regs(h)
    ad, tmp, mx, m2 = R["ad"], R["tmp"], R["mx"], R["m2"]
    p.op("v_bfe_u32", tmp, V_BIAS, "4", "4")
    if qt:
        p.op("v_add_u32", tmp, str(16 * qt), tmp)
    p.op("v_mul_u32_u24", tmp, "0x62", tmp)
    p.op("v_add_u32", tmp, f"s{S_MBASE}", tmp)
    p.vld("buffer_load_ushort", R["m6"], 1, tmp, SRD_MASK, 96)
    p.op("v_bfe_u32", ad, V_BIAS, "8", "2")
    p.op("v_lshl_add_u32", ad, ad, "3", tmp)
    for kt in range(3):
        p.vld("buffer_load_dwordx2", R["pairs"][kt], 2, ad, SRD_MASK, 32 * kt)
    for kt in range(3):
        for e in range(4):
            r, src = regs[4 * kt + e], R["pairs"][kt] + (e >> 1)
            if e & 1:
                p.op("v_and_b32", tmp, "0xffff0000", src)
            else:
                p.op("v_lshlrev_b32", tmp, "16", src)
            p.op("v_fmamk_f32", r, tmp, f32(LOG2E), r)
    p.op("v_lshlrev_b32", tmp, "16", R["m6"])
    p.op("v_fmamk_f32", regs[12], tmp, f32(LOG2E), regs[12])
    p.op("v_max3_f32", mx, regs[0], regs[1], regs[2])
    for i in range(3, 13, 2):
        p.op("v_max3_f32", mx, mx, regs[i], regs[i + 1])
    xrow_max(p, mx, m2)
    for r in regs:
        p.op("v_sub_f32", r, r, mx)


def xrow_max(p, mx, m2):
    p.op("v_mov_b32", m2, mx)
    p.swap32(mx, m2)
    p.op("v_max_f32", mx, mx, m2)
    p.op("v_mov_b32", m2, mx)
    p.add(I(f"v_permlane16_swap_b32 {v(mx)}, {v(m2)}", "perm", [mx, m2], [mx, m2]))
    p.op("v_max_f32", mx, mx, m2)


def slow_thin(p, h, r):
    R = slow_regs(h)
    tmp, mx, m2 = R["tmp"], R["mx"], R["m2"]
    p.op("v_bfe_u32", tmp, V_BIAS, "4", "6")
    p.op("v_min_u32", tmp, "48", tmp)
    p.op("v_lshl_add_u32", tmp, tmp, "1", f"s{S_MBASE}")
    p.add(I(f"buffer_load_ushort {v(R['m6'])}, {v(tmp)}, {s(SRD_MASK, 4)}, {s(S_C4096)} offen offset:{48 * 98 - 4096}", "vld",
            [tmp] + sr(SRD_MASK, 4) + sr(S_C4096), [R["m6"]]))
    p.op("v_lshlrev_b32", tmp, "16", R["m6"])
    p.op("v_fmamk_f32", r, tmp, f32(LOG2E), r)
    p.op("v_mov_b32", mx, r)
    for k in (8, 4, 2, 1):
        p.add(I(f"v_max_f32_dpp {v(mx)}, {v(mx)}, {v(mx)} row_ror:{k} row_mask:0xf bank_mask:0xf", "dpp", [mx], [mx]))
    xrow_max(p, mx, m2)
    p.op("v_sub_f32", r, r, mx)


def jo(p, opt):
    p.label("L_jo")
    p.raw("s_setprio 0", kind="salu")
    poll(p, False, 2, f"s{S_NWIN}", 8, 3020, sleep=True).tag = "fence"
    a, b, off = 8, 9, 10
    OB, Y, wq, SL, NP, D = 12, 24, 48, 120, 124, 128
    p.op("v_bfe_u32", a, V_BIAS, "4", "4")
    p.op("v_bfe_u32", b, V_BIAS, "8", "2")
    p.op("v_bfe_u32", off, V_BIAS, "4", "6")
    p.op("v_lshlrev_b32", off, "2", off)
    p.op("v_add_u32", off, str(L_OFF48), off)
    p.dsr("ds_read_b32", off, 1, off, 0)
    p.op("v_min_u32", a, "11", a)
    p.op("v_mul_u32_u24", a, str(XST), a)
    p.op("v_lshl_add_u32", a, b, "4", a)
    p.op("v_add_u32", a, str(L_X + X_O48), a)
    RW = 132
    for h in range(4):
        OF, OS = RW + 8 * h, RW + 8 * h + 4
        p.dsr("ds_read_b128", OF, 4, a, 128 * h)
        p.dsr("ds_read_b128", OS, 4, a, 128 * h + 64)
        lreg, r0 = (OS + 2, OS) if h % 2 == 0 else (OS, OS + 2)
        p.op("v_rcp_f32", lreg, lreg, kind="trans")
        for x in (OF, OF + 1, OF + 2, OF + 3, r0, r0 + 1):
            p.op("v_mul_f32", x, x, lreg)
        p.op("v_cvt_pk_bf16_f32", OB + 3 * h, OF, OF + 1)
        p.op("v_cvt_pk_bf16_f32", OB + 3 * h + 1, OF + 2, OF + 3)
        p.op("v_cvt_pk_bf16_f32", OB + 3 * h + 2, r0, r0 + 1)
    p.dsr("ds_read_b128", SL, 4, V_BIAS, L_SEL - L_BIAS)
    for T in range(6):
        for ks in range(3):
            w = wq + 4 * (3 * T + ks)
            o = 32 * ks * WOS + 32 * T
            p.dsr("ds_read_b64_tr_b16", w, 2, V_WQ, o)
            p.dsr("ds_read_b64_tr_b16", w + 2, 2, V_WQ, o + 16 * WOS)
            p.mfma16(Y + 4 * T, w, OB + 4 * ks, None if ks == 0 else Y + 4 * T)
    ss = 11
    for i in range(24):
        if i == 0:
            p.op("v_fma_f32", ss, Y, Y, f"s{S_EPSLN}")
        else:
            p.op("v_fmac_f32", ss, Y + i, Y + i, rmw=True)
    p.op("v_cvt_pk_bf16_f32", NP, ss, ss)
    for r in (NP + 1, NP + 2, NP + 3):
        p.op("v_mov_b32", r, "0")
    p.mfma16(D, SL, NP, None)
    p.op("v_rsq_f32", D, D, kind="trans")
    p.op("v_mul_f32", D, f32(math.sqrt(96.0)), D)
    for i in range(24):
        p.op("v_mul_f32", Y + i, Y + i, D)
    for uu_ in range(3):
        base = Y + 8 * uu_
        for i in range(4):
            p.op("v_cvt_pk_bf16_f32", base + i, base + 2 * i, base + 2 * i + 1)
        p.vst("buffer_store_dwordx4", base, 4, off, SRD_OUT, 64 * uu_, opt.sflag)
    p.raw("s_endpgm")


import re as _re


def isize(i):
    t = i.text
    if i.kind == "label":
        return 0
    op = t.split()[0]
    lit = bool(_re.search(r"(?<![\w\[:])(0x[0-9a-f]+|\d{3,}|6[5-9]|[7-9]\d|wtab\S*)(?![\w\]:])", t.split(None, 1)[1] if " " in t else ""))
    if op.startswith("s_"):
        if op.startswith(("s_load", "s_mem")):
            return 8
        if op in ("s_waitcnt", "s_nop", "s_barrier", "s_branch", "s_setprio", "s_sleep", "s_endpgm", "s_movk_i32", "s_addk_i32") or op.startswith("s_cbranch"):
            return 4
        return 8 if lit else 4
    if op in ("v_mov_b32", "v_add_u32", "v_sub_u32", "v_subrev_u32", "v_and_b32", "v_or_b32", "v_lshlrev_b32", "v_lshrrev_b32", "v_mul_f32",
              "v_add_f32", "v_sub_f32", "v_fmac_f32", "v_exp_f32", "v_rcp_f32", "v_rsq_f32", "v_min_u32", "v_max_f32", "v_min_f32",
              "v_mul_u32_u24", "v_bfrev_b32", "v_readfirstlane_b32", "v_swap_b32", "v_permlane32_swap_b32", "v_permlane16_swap_b32"):
        return 8 if lit else 4
    return 8


def add_touch(seq, name, nseg, ret, limit=None, step=120):
    pos, acc, tot = [], step, 0
    for k, i in enumerate(seq):
        if limit is not None and tot >= limit:
            break
        sz = isize(i)
        if acc + sz > step and i.kind != "label" and i.tag != "nt":
            pos.append(k)
            acc = 4
        acc += sz
        tot += sz
    per = -(-len(pos) // nseg)
    out, ent = [], []
    ps = {k: j for j, k in enumerate(pos)}
    for k, i in enumerate(seq):
        if k in ps:
            j = ps[k]
            if j % per == 0:
                ent.append(f"L_{name}{j}")
            last = (j + 1) % per == 0 or j + 1 == len(pos)
            out.append(I(f"L_{name}{j}:", "label", states=0))
            out.append(I(f"s_cbranch_execz {ret if last else f'L_{name}{j + 1}'}", "salu"))
        out.append(i)
    return out, ent


def touch_dispatch(ent, ret, tag):
    out = [I("s_mov_b64 exec, 0", "salu")]
    def tree(lo, hi):
        if hi - lo == 1:
            out.append(I(f"s_branch {ent[lo] if lo < len(ent) else ret}", "salu"))
            return
        mid = (lo + hi) // 2
        lbl = f"L_{tag}d{lo}_{hi}"
        out.append(I(f"s_cmp_ge_u32 {s(W)}, {mid}", "salu"))
        out.append(I(f"s_cbranch_scc1 {lbl}", "salu"))
        tree(lo, mid)
        out.append(I(lbl + ":", "label", states=0))
        tree(mid, hi)
    return out, tree


HEADER = open("standalone__window_attn_swin_v2__vision.s.ref").read().split("; Override")[0]


DOC = """;
; One wave = one 7x7 window, 12 waves per workgroup, everything fused (qkv, cosine attention, CPB bias,
; MFMA result feeds the next MFMA without data movement; tokens 0..47 are 3 tiles, token 48 of the 12
; windows shares one tile (LDS hand-off, LDS counters).  Weights / bias tiles live in LDS.
; LayerNorm mean: Wo is centred over its output columns once per workgroup (exact reformulation).
; fixed centre; the short path is taken only if a run-time check finds tau <= 24 for all heads AND the
; window's attn_mask entries (read from the input) all zero.  Otherwise (L_slow) the mask is added and
"""


def generate(opt, sched=None):
    opt.hook = make_hooks(opt)
    opt.slow_softmax = slow_softmax
    opt.slow_thin = slow_thin
    segs = {}
    for nm, fn in (("com", pro_common), ("po", path_o), ("py", path_y), ("jo", jo)):
        p = Prog(); fn(p, opt); segs[nm] = p.ins
    p = Prog()
    if opt.debug and opt.debug != 3:
        p.wait(vm=0)
        stamp(p, opt, 5)
    dispatch(p, opt); segs["dis"] = p.ins
    B.SLOWPQ = False
    p = Prog(); body(p, False, opt); segs["fast"] = p.ins
    B.SLOWPQ = True
    p = Prog(); body(p, True, opt); segs["slow"] = p.ins
    p = Prog()
    p.label("L_redo")
    p.wait(vm=0, lgkm=0)
    p.raw("s_nop 15", kind="nop", states=16)
    x_loads(p, opt)
    segs["redo"] = p.ins
    if sched:
        for k in ("fast", "slow", "jo"):
            segs[k] = sched(segs[k])
    st = WaitState()
    com = insert_nops(insert_waits(flatten(segs["com"]), st))
    sty = st.copy()
    po = insert_nops(insert_waits(flatten(segs["po"]), st), com)
    py = insert_nops(insert_waits(flatten(segs["py"]), sty), com)
    tail = lambda w: [(x.text) for x in w.vm]
    assert tail(st) == tail(sty) and len(st.vm) == 9, (tail(st), tail(sty))
    assert not st.lg and not sty.lg
    clean = [I("s_nop 15", "nop", states=16)]
    mid = insert_nops(insert_waits(flatten(segs["dis"]), st), clean)
    head = com + py + po + mid
    fast = insert_nops(insert_waits(flatten(segs["fast"]), st.copy()), head)
    str_ = WaitState(); str_.vm = [I("x", "vst")]; str_.lg = [I("x", "dsw")]
    redo = insert_nops(insert_waits(flatten(segs["redo"]), str_), clean)
    slow = insert_nops(insert_waits(flatten(segs["slow"]), st.copy() if opt.debug in (None, 3) else str_), clean)
    stj = WaitState()
    jos = [I("s_nop 7", "nop", states=8)] + insert_nops(insert_waits(flatten(segs["jo"]), stj), clean)
    jos = [jos[1], jos[0]] + jos[2:]
    if opt.touchb:
        k0 = 0
        acc = 0
        while acc < opt.tlim:
            acc += isize(fast[k0]); k0 += 1
        tail_, ent = add_touch(fast[k0:], "tb", 4, "L_tbret", limit=opt.tlimb)
        fast = fast[:k0] + tail_
        d, tree = touch_dispatch(ent, "L_tbret", "tb")
        tree(0, 4)
        d += [I("L_tbret:", "label", states=0), I("s_mov_b64 exec, -1", "salu")]
        for x in d[1:]:
            x.tag = "nt"
        k = [j for j, i in enumerate(head) if i.text == "<touchB>"][0]
        head = head[:k] + d + head[k + 1:]
    if opt.touch:
        k = [j for j, i in enumerate(head) if i.text == "<touchA>"][0]
        hb = sum(isize(i) for i in head[k + 1:])
        rest, ent = add_touch(head[k + 1:] + [I("<cut>", "label", states=0)] + fast, "ta", 12, "L_taret", limit=hb + opt.tlim)
        c = [j for j, i in enumerate(rest) if i.text == "<cut>"][0]
        fast = rest[c + 1:]
        d, tree = touch_dispatch(ent, "L_taret", "ta")
        tree(0, 12)
        d += [I("L_taret:", "label", states=0), I("s_mov_b64 exec, -1", "salu")]
        head = head[:k] + d + rest[:c]
    name = "standalone__window_attn_swin_v2__vision_kernel"
    txt = HEADER
    txt += f"; @launch grid=({NWG},1,1) block=({64 * WPW},1,1) lds={L_END}\n"
    txt += DOC
    txt += f""".amdgcn_target "amdgcn-amd-amdhsa--gfx950"
.text
.globl {name}
.p2align 8
.type {name},@function
{name}:
"""
    txt += render(head) + "\n" + render(fast) + "\n" + render(jos) + "\n" + render(redo) + "\nL_slow:\n" + render(slow) + "\nL_end:\n    s_endpgm\n"
    txt += f""".section .rodata,"a"
.p2align 6
.amdhsa_kernel {name}
  .amdhsa_next_free_vgpr {NVGPR}
  .amdhsa_next_free_sgpr 102
  .amdhsa_accum_offset {NVGPR}
  .amdhsa_group_segment_fixed_size 0
  .amdhsa_kernarg_size 96
  .amdhsa_user_sgpr_count 2
  .amdhsa_user_sgpr_kernarg_segment_ptr 1
  .amdhsa_system_sgpr_workgroup_id_x 1
.end_amdhsa_kernel
.p2align 6
wtab:
"""
    tb_ = w_table() + wo_table() + lane_table()
    for i in range(0, len(tb_), 16):
        txt += "    .short " + ", ".join(str(x) for x in tb_[i:i + 16]) + "\n"
    stats = {}
    for nm, seq in (("head", head), ("fast", fast), ("slow", slow), ("jo", jos)):
        c = {}
        for i in seq:
            c[i.kind] = c.get(i.kind, 0) + 1
        c["nopstates"] = sum(i.states for i in seq if i.kind == "nop")
        stats[nm] = c
    return txt, stats


if __name__ == "__main__":
    import sched
    opt = Opt()
    opt.jowave = 0
    for a in sys.argv[1:]:
        if a == "--debug": opt.debug = True
        if a == "--debug3": opt.debug = 3
        if a == "--nomask": opt.mask_check = False
        if a == "--vz": opt.ldszero = False
        if a == "--noxint": opt.xint = False
        if a == "--latepoll": opt.latepoll = True
        if a.startswith("--xearly="): opt.xearly = int(a[9:])
        if a == "--rot": opt.rot = True
        if a.startswith("--wflag="): WFLAG[0] = " " + a[8:].replace(",", " ")
        if a == "--nob3": opt.b3 = False
        if a == "--mergeo": opt.mergeo = True
        if a == "--earlya": opt.earlya = True
        if a.startswith("--pf="): opt.pf = int(a[5:])
        if a.startswith("--pk="): opt.pk = a[5:]
        if a == "--notouch": opt.touch = False
        if a == "--touchb": opt.touchb = True
        if a.startswith("--tlim="): opt.tlim = int(a[7:])
        if a.startswith("--tlimb="): opt.tlimb = int(a[8:])
        if a.startswith("--ldslat="): sched.Params.lds_lat = int(a[9:])
        if a.startswith("--mlat="): sched.Params.mfma_lat16 = int(a[7:])
        if a.startswith("--maxlds="): sched.Params.max_lds_out = int(a[9:])
        if a.startswith("--b2at="): opt.b2at = int(a[7:])
        if a.startswith("--mk1="): opt.mk1 = a[6:]
        if a.startswith("--mk0="): opt.mk0 = a[6:]
        if a.startswith("--prio="):
            opt.prio = {kv.split(":")[0]: int(kv.split(":")[1]) for kv in a[7:].split(",")}
        for fl in ("xflag", "mflag", "sflag"):
            if a.startswith(f"--{fl}="):
                setattr(opt, fl, " " + a.split("=")[1].replace(",", " "))
    args = [a for a in sys.argv[1:] if not a.startswith("--")]
    out = args[0] if args else "g2.s"
    sc = None if "--nosched" in sys.argv else (lambda x: sched.schedule(x, verbose=True))
    txt, stats = generate(opt, sc)
    open(out, "w").write(txt)
    for k, c in stats.items():
        print(k, c)
```
